```python
import torch

def _softmax(x, axis=-1):
    return torch.softmax(x, dim=axis)
def _gelu(x):
    return torch.nn.functional.gelu(x, approximate="tanh")
def _silu(x):
    return torch.nn.functional.silu(x)
def _sigmoid(x):
    return torch.sigmoid(x)
def _layernorm(x, axis=-1, eps=1e-5):
    m = x.mean(dim=axis, keepdim=True)
    v = x.var(dim=axis, keepdim=True, unbiased=False)
    return (x - m) / torch.sqrt(v + eps)
def _scatter_add(tgt, idx, src, axis=0):
    return tgt.clone().index_add_(axis, idx, src)
def _segment_sum(src, seg, n):
    out = torch.zeros((n,) + src.shape[1:], dtype=src.dtype)
    return out.index_add_(0, seg, src)
def _pad(x, pw):
    flat = tuple(v for pair in reversed(pw) for v in pair)
    return torch.nn.functional.pad(x, flat)

kernel_name = 'sequential_preLN__sliding_block_cached__glu_gated_reglu__decode'

def setup_inputs():

    _w = (lambda a: (lambda t: t.to(torch.bfloat16) if t.is_floating_point() else t)(torch.as_tensor(a)))
    def _A_setup():
        B, Sq, D = 1, 1, 576
        Hq, Hkv, Sk, Dh = 32, 16, 65536, 128
        assert Hq % Hkv == 0, (Hq, Hkv)
        return {
            "x": _w((lambda *s: torch.randn(*s, dtype=torch.bfloat16) * 0.05)(B, Sq, D)),
            "k_cache": _w((lambda *s: torch.randn(*s, dtype=torch.bfloat16) * 1.6)(B, Hkv, Sk, Dh)),
            "v_cache": _w((lambda *s: torch.randn(*s, dtype=torch.bfloat16) * 0.8)(B, Hkv, Sk, Dh)),
            "wq": _w((lambda *s: torch.randn(*s, dtype=torch.bfloat16) * 1.6)(D, Hq * Dh) * (D ** -0.5)),
            "wo": _w((lambda *s: torch.randn(*s, dtype=torch.bfloat16) * 0.8)(Hq * Dh, D) * ((Hq * Dh) ** -0.5)),
        }
    _A_in = _A_setup()

    def _B_setup():
        B, S, D, F = 1, 1, 576, 4608
        return {
            "x": _w((lambda *s: torch.randn(*s, dtype=torch.bfloat16) * 0.05)(B, S, D)),
            "W_gate": _w((lambda *s: torch.randn(*s, dtype=torch.bfloat16) * 0.4)(D, F) * (2.0 / D) ** 0.5),
            "W_up": _w((lambda *s: torch.randn(*s, dtype=torch.bfloat16) * 0.4)(D, F) * (2.0 / D) ** 0.5),
            "W_down": _w((lambda *s: torch.randn(*s, dtype=torch.bfloat16) * 0.4)(F, D) * (1.0 / F) ** 0.5),
        }
    _B_in = _B_setup()

    return {
        "A_x": _A_in["x"],
        "A_k_cache": _A_in["k_cache"],
        "A_v_cache": _A_in["v_cache"],
        "A_wq": _A_in["wq"],
        "A_wo": _A_in["wo"],
        "B_x": _B_in["x"],
        "B_W_gate": _B_in["W_gate"],
        "B_W_up": _B_in["W_up"],
        "B_W_down": _B_in["W_down"],
    }

def reference(A_x, A_k_cache, A_v_cache, A_wq, A_wo, B_x, B_W_gate, B_W_up, B_W_down):
    def _A_ref(x, k_cache, v_cache, wq, wo):
        B, Sq, D = x.shape
        Hq, Dh = 32, 128
        Hkv, Sk = k_cache.shape[1], k_cache.shape[2]
        W = min(4096, max(256, Sk // 4))
        rep = Hq // Hkv
        q = (lambda x, *d: x.permute(*d))((x @ wq).reshape(B, Sq, Hq, Dh), 0, 2, 1, 3)
        k = (lambda x, n, axis: torch.repeat_interleave(x, n, dim=axis))(k_cache[:, :, Sk - W:, :], rep, axis=1)
        v = (lambda x, n, axis: torch.repeat_interleave(x, n, dim=axis))(v_cache[:, :, Sk - W:, :], rep, axis=1)
        scores = torch.einsum("bhqd,bhkd->bhqk", q, k) * (Dh ** -0.5)
        p = _softmax(scores, axis=-1)
        o = torch.einsum("bhqk,bhkd->bhqd", p, v)
        return (lambda x, *d: x.permute(*d))(o, 0, 2, 1, 3).reshape(B, Sq, Hq * Dh) @ wo

    def _B_ref(x, W_gate, W_up, W_down):
        gate = torch.einsum("bsd,df->bsf", x, W_gate)
        up = torch.einsum("bsd,df->bsf", x, W_up)
        gate = gate * (lambda x, dt: x.to(dt))(gate > 0, gate.dtype)
        h = gate * up
        return torch.einsum("bsf,fd->bsd", h, W_down)

    x = A_x
    h = x + _A_ref(_layernorm(x, axis=-1), A_k_cache, A_v_cache, A_wq, A_wo)
    h2 = h + _B_ref(_layernorm(h, axis=-1), B_W_gate, B_W_up, B_W_down)
    return h2
```

```python
import re
_reg = re.compile(r'^(v|s|a)(\d+)$')
_rng = re.compile(r'^(v|s|a)\[(\d+):(\d+)\]$')
def regs(op):
    op = op.strip()
    if op.startswith('-'): op = op[1:]
    if op.startswith('abs(') : op = op[4:-1]
    if op.startswith('|'): op = op.strip('|')
    m = _reg.match(op)
    if m: return {(m.group(1), int(m.group(2)))}
    m = _rng.match(op)
    if m: return {(m.group(1), i) for i in range(int(m.group(2)), int(m.group(3)) + 1)}
    if op == 'vcc': return {('s', 'vcc')}
    if op in ('exec', 'exec_lo', 'exec_hi'): return {('s', 'exec')}
    if op == 'm0': return {('s', 'm0')}
    return set()
TRANS = ('v_exp_f32', 'v_log_f32', 'v_rcp_f32', 'v_rsq_f32', 'v_sqrt_f32', 'v_sin_f32', 'v_cos_f32')
class Ins:
    def __init__(self, text):
        self.text = text
        t = text.split(';')[0].strip()
        parts = t.split(None, 1)
        self.mn = parts[0]
        rest = parts[1] if len(parts) > 1 else ''
        ops = []; cur = ''; depth = 0
        for ch in rest:
            if ch in '[(': depth += 1
            if ch in '])': depth -= 1
            if ch == ',' and depth == 0: ops.append(cur.strip()); cur = ''
            else: cur += ch
        if cur.strip(): ops.append(cur.strip())
        self.mods = ''
        if ops:
            last = ops[-1].split(None, 1)
            ops[-1] = last[0]
            if len(last) > 1: self.mods = last[1]
        self.ops = ops
        mn = self.mn
        self.valu = mn.startswith('v_') and not mn.startswith('v_mfma')
        self.mfma = mn.startswith('v_mfma')
        self.salu = mn.startswith('s_')
        self.vmem = mn.startswith(('buffer_', 'global_', 'flat_'))
        self.ds = mn.startswith('ds_')
        self.dpp = '_dpp' in mn or any(k in self.mods for k in ('row_ror', 'row_shr', 'row_shl', 'quad_perm', 'row_bcast', 'row_mirror', 'row_half_mirror', 'row_newbcast'))
        self.trans = any(mn.startswith(x) for x in TRANS)
        self.dl = mn.startswith('v_dot')
        self.perml = mn.startswith('v_permlane')
        self.lds_dma = self.vmem and (' lds' in (' ' + self.mods) or 'load_lds' in mn)
        R = [regs(o) for o in ops]
        dst = set(); src = set()
        if self.mfma:
            dst = R[0]; src = set().union(*R[1:]); self.srcC = R[3]; self.srcAB = R[1] | R[2]
        elif self.valu:
            if mn.startswith('v_cmp'):
                dst = R[0]; src = set().union(*R[1:])
            elif self.perml:
                dst = R[0] | R[1]; src = R[0] | R[1]
            elif mn.startswith(('v_add_co', 'v_sub_co', 'v_addc_co', 'v_subb_co')):
                dst = R[0] | R[1]; src = set().union(*R[2:])
            elif mn.startswith('v_nop'):
                pass
            else:
                dst = R[0]; src = set().union(*R[1:]) if len(R) > 1 else set()
                if mn.startswith(('v_fmac', 'v_dot2c', 'v_writelane', 'v_pk_fmac')) or self.dpp: src = src | R[0]
                if mn.startswith('v_cndmask') and len(ops) == 3: src = src | {('s', 'vcc')}
        elif self.ds:
            if mn.startswith(('ds_read', 'ds_bpermute', 'ds_permute', 'ds_swizzle')):
                dst = R[0]; src = set().union(*R[1:])
            else:
                src = set().union(*R)
        elif self.vmem:
            isload = '_load' in mn
            isatomic_ret = 'atomic' in mn and 'sc0' in self.mods
            if (isload and not self.lds_dma) or isatomic_ret:
                dst = R[0]; src = set().union(*R[1:])
            else:
                src = set().union(*R)
            if self.lds_dma: src = src | {('s', 'm0')}
            self.widestore = ('_store' in mn and (mn.endswith('x4') or mn.endswith('x3')))
            if self.widestore:
                if mn.startswith('buffer'): self.storedata = R[0]
                else: self.storedata = R[1]
        elif self.salu:
            if mn in ('s_nop', 's_waitcnt', 's_barrier', 's_endpgm', 's_sleep', 's_setprio', 's_branch') or mn.startswith('s_cbranch') or mn.startswith('s_cmp'):
                src = set().union(*R) if R else set()
            elif mn.startswith(('s_load', 's_memtime', 's_memrealtime', 's_getreg', 's_getpc', 's_buffer_load')):
                dst = R[0]; src = set().union(*R[1:]) if len(R) > 1 else set()
            elif 'saveexec' in mn:
                dst = R[0] | {('s', 'exec')}; src = set().union(*R[1:]) | {('s', 'exec')}
            else:
                dst = R[0]; src = set().union(*R[1:]) if len(R) > 1 else set()
        self.dst = dst; self.src = src
        self.ws = 1
        if mn == 's_nop': self.ws = int(ops[0], 0) + 1
def V(s): return {r for r in s if r[0] in ('v', 'a')}
def S(s): return {r for r in s if r[0] == 's'}
def need(p, c):
    n = 0
    pv = V(p.dst); ps = S(p.dst)
    cv = V(c.src)
    if p.valu and not p.mfma:
        if pv & cv:
            if c.dpp: n = max(n, 2)
            if c.perml: n = max(n, 2)
            if c.mfma: n = max(n, 2)
            if c.mn.startswith(('v_readlane', 'v_readfirstlane')): n = max(n, 1)
            if p.trans and c.valu and not c.trans: n = max(n, 1)
            if p.trans and (c.mfma): n = max(n, 2)
            if p.dl:
                if c.mn == p.mn and not (pv & V(c.src - c.dst if not c.mn.startswith('v_dot2c') else (set().union(*[regs(o) for o in c.ops[1:]])))) :
                    if c.mn.startswith('v_dot2c'): n = max(n, 0)
                    else:
                        srcC = regs(c.ops[3]); srcAB = regs(c.ops[1]) | regs(c.ops[2])
                        n = max(n, 3 if (pv & V(srcAB)) else 0)
                else: n = max(n, 3)
        if p.dl and (pv & V(c.dst)) and c.mn != p.mn: n = max(n, 3)
        if ps & S(c.src):
            if c.valu: n = max(n, 2)
            if c.mn.startswith(('v_readlane', 'v_writelane')): n = max(n, 4)
            if c.vmem: n = max(n, 5)
    if p.mfma:
        passes = 4 if '16x16' in p.mn else 8
        full = {4: 8, 8: 12}[passes]
        if c.mfma:
            if pv & V(c.srcAB): n = max(n, full)
            if pv & V(c.srcC):
                if V(c.srcC) == pv: n = max(n, 0)
                else: n = max(n, {4: 6, 8: 10}[passes])
        else:
            if pv & (V(c.src) | V(c.dst)): n = max(n, full)
        if c.valu and not c.mfma and (V(p.srcC) & V(c.dst)): n = max(n, {4: 3, 8: 7}[passes])
    if p.salu and ('s', 'm0') in p.dst and c.lds_dma: n = max(n, 1)
    if p.vmem and getattr(p, 'widestore', False):
        if c.valu and (V(p.storedata) & V(c.dst)): n = max(n, 2)
        elif V(p.storedata) & V(c.dst): n = max(n, 1)
    return n
class E:
    def __init__(self):
        self.lines = []; self.hist = []; self.nops = 0; self.count = 0
    def label(self, name):
        self.lines.append(name + ":")
    def raw(self, s): self.lines.append(s)
    def comment(self, s): self.lines.append("    ; " + s)
    def flush_hist(self): self.hist = []
    def __call__(self, text):
        for t in text.split("\n"):
            t = t.strip()
            if not t: continue
            if t.startswith(';'): self.lines.append("    " + t); continue
            if t.endswith(':'): self.label(t[:-1]); continue
            ins = Ins(t)
            req = 0; dist = 0
            for p in reversed(self.hist):
                k = need(p, ins)
                if k - dist > req: req = k - dist
                dist += p.ws
                if dist > 20: break
            while req > 0:
                k = min(req, 16)
                nop = Ins(f"s_nop {k-1}"); self.hist.append(nop); self.lines.append(f"    s_nop {k-1}"); self.nops += 1
                req -= k
            self.hist.append(ins); self.hist = self.hist[-40:]
            self.lines.append("    " + t); self.count += 1
    def text(self): return "\n".join(self.lines) + "\n"
```

```python
import sys
sys.path.insert(0, "work")
from emit import E
NAME = "sequential_preLN__sliding_block_cached__glu_gated_reglu__decode"
HEADER = open("cdna_kernels/" + NAME + ".s.ref").read().split("; Override launch geometry")[0]

H1 = 0x10000; H2 = 0x40000; H3 = 0x90000; H4 = 0xA0000; TS = 0x400000
QP = 0; QG = 4608; QB = 12800; MX = 13312; LS = 13376
ST2 = 13440
HNL = 13568
MR = 14720
HHL = 17024
WR = 13440
FR = 16512
WB = 18432
LDS_BYTES = WB + 3 * 36864
STAMPS = 16

class G:
    def __init__(self, opt):
        self.o = opt
        self.e = E()
    def stamp(self, k):
        if not self.o.get("stamps"): return
        e = self.e
        e(f"s_memrealtime s[90:91]")
        e("s_waitcnt lgkmcnt(0)")
        e(f"v_writelane_b32 v127, s90, {k}")
    def Rnd(self, d, s):
        self.e(f"v_cvt_pk_bf16_f32 {d}, {s}, {s}")
        self.e(f"v_and_b32 {d}, 0xffff0000, {d}")
    def row_allreduce(self, op, vs, steps=(8, 4, 2, 1)):
        for st in steps:
            for v in vs:
                self.e(f"{op}_dpp {v}, {v}, {v} row_ror:{st} row_mask:0xf bank_mask:0xf")
    def tagins(self, v4):
        for k in range(4):
            self.e(f"v_perm_b32 v{v4+k}, v{v4+k}, v7, s{56+k}")
    def validate(self, grans, t0, t1, first=True):
        e = self.e
        for i, gb in enumerate(grans):
            e(f"v_perm_b32 {t0}, v{gb+1}, v{gb}, s62")
            e(f"v_perm_b32 {t1}, v{gb+3}, v{gb+2}, s63")
            e(f"v_or_b32 {t0}, {t0}, {t1}")
            e(f"v_cmp_ne_u32 vcc, {t0}, v7")
            if len(grans) > 1:
                if i == 0: e("s_mov_b64 s[60:61], vcc")
                else: e("s_or_b64 s[60:61], s[60:61], vcc")
        if len(grans) > 1: e("s_mov_b64 vcc, s[60:61]")

    def gen(self):
        e = self.e; o = self.o
        nt = "nt"
        e("s_cmp_ge_u32 s2, 256\ns_cbranch_scc1 L_end")
        e("s_load_dwordx16 s[4:19], s[0:1], 0\ns_load_dwordx8 s[20:27], s[0:1], 64")
        if o.get("stamps"):
            e("v_mov_b32 v127, 0")
            e("s_memrealtime s[90:91]")
        e("v_and_b32 v1, 63, v0\nv_lshrrev_b32 v6, 6, v0\nv_readfirstlane_b32 s30, v6")
        e("s_and_b32 s28, s2, 7\ns_lshl_b32 s28, s28, 1\ns_lshr_b32 s33, s2, 7\ns_or_b32 s28, s28, s33")
        e("s_lshr_b32 s29, s2, 3\ns_and_b32 s29, s29, 15")
        e("v_and_b32 v2, 15, v1")
        e("v_lshrrev_b32 v3, 4, v1")
        e("v_lshlrev_b32 v8, 4, v1")
        e("s_lshr_b32 s33, s29, 1\ns_mul_i32 s33, s33, 72\ns_lshl_b32 s34, s30, 3\ns_add_u32 s33, s33, s34")
        e("v_add_u32 v9, s33, v3\nv_lshlrev_b32 v9, 1, v9")
        e("v_lshlrev_b32 v10, 2, v2\nv_add_u32 v10, v10, v3\ns_lshl_b32 s34, s30, 6\nv_add_u32 v10, s34, v10\nv_lshlrev_b32 v10, 1, v10")
        e("v_lshlrev_b32 v11, 13, v3\nv_lshlrev_b32 v12, 4, v2\nv_add_u32 v11, v11, v12")
        e("s_and_b32 s34, s29, 1\ns_lshl_b32 s35, s28, 1\ns_add_u32 s35, s35, s34\ns_lshl_b32 s35, s35, 8\ns_lshl_b32 s34, s33, 13\ns_add_u32 s35, s35, s34")
        e("s_add_u32 s34, s35, 0x8000")
        e(f"s_lshl_b32 s33, s28, 24\ns_lshl_b32 s64, s29, 16\ns_add_u32 s33, s33, s64\ns_add_u32 s33, s33, {61440*256}\ns_lshl_b32 s64, s30, 13\ns_add_u32 s33, s33, s64")
        e("v_bfe_u32 v13, v1, 2, 2\nv_lshlrev_b32 v13, 8, v13\nv_lshlrev_b32 v12, 6, v3\nv_add_u32 v13, v13, v12\nv_and_b32 v12, 3, v1\nv_lshlrev_b32 v12, 4, v12\nv_add_u32 v13, v13, v12")
        e("s_waitcnt lgkmcnt(0)")
        if o.get("stamps"): e("v_writelane_b32 v127, s90, 0")
        e("s_load_dword s31, s[26:27], 0")
        e("s_mov_b32 s36, s4\ns_mov_b32 s37, s5\ns_movk_i32 s38, 1152\ns_mov_b32 s39, 0x20000")
        e("s_mov_b32 s48, s10\ns_mov_b32 s49, s11\ns_mov_b32 s50, %d\ns_mov_b32 s51, 0x20000" % (576*8192))
        e("buffer_load_dwordx4 v[24:27], v8, s[36:39], 0 offen")
        e("buffer_load_dwordx4 v[28:31], v8, s[36:39], 0 offen offset:1024")
        e("buffer_load_ushort v14, v9, s[36:39], 0 offen")
        e("buffer_load_ushort v15, v9, s[36:39], 0 offen offset:8")
        e("buffer_load_ushort v126, v10, s[36:39], 0 offen")
        e(f"buffer_load_dwordx4 v[16:19], v11, s[48:51], s35 offen {nt}")
        e(f"buffer_load_dwordx4 v[20:23], v11, s[48:51], s34 offen {nt}")
        e("s_barrier")
        e("s_add_u32 s40, s6, s33\ns_addc_u32 s41, s7, 0\ns_movk_i32 s42, 0x2000\ns_mov_b32 s43, 0x20000")
        e("s_add_u32 s44, s8, s33\ns_addc_u32 s45, s9, 0\ns_movk_i32 s46, 0x2000\ns_mov_b32 s47, 0x20000")
        e("s_cmp_eq_u32 s30, 8\ns_cbranch_scc1 L_noK")
        e("s_movk_i32 s64, 0x1000")
        for t in range(8):
            e(f"buffer_load_dwordx4 v[{32+4*t}:{35+4*t}], v13, s[40:43], {'s64' if t>=4 else '0'} offen offset:{(t%4)*1024} {nt}")
        e("s_branch L_Kdone")
        e("L_noK:")
        if o.get("codepf", True):
            e("s_getpc_b64 s[64:65]")
            e("L_pfbase:")
            e("v_lshlrev_b32 v12, 6, v1")
            for k in range(3):
                e(f"v_add_u32 v6, {4096*k}, v12")
                e(f"v_min_u32 v6, L_end-L_pfbase, v6")
                e(f"global_load_dword v124, v6, s[64:65]")
        e("L_Kdone:")
        e("v_and_b32 v6, 1, v1\nv_lshlrev_b32 v6, 4, v6\nv_mov_b32 v12, 0xffff\nv_lshlrev_b32 v12, v6, v12")
        e("v_bfe_u32 v6, v1, 1, 2")
        for r in range(4):
            e(f"v_cmp_eq_u32 vcc, {r}, v6\nv_cndmask_b32 v{120+r}, 0, v12, vcc")
        e("s_mov_b32 s56, 0x07060500\ns_mov_b32 s57, 0x07060501\ns_mov_b32 s58, 0x07060502\ns_mov_b32 s59, 0x07060503")
        e("s_mov_b32 s62, 0x0c0c0400\ns_mov_b32 s63, 0x04000c0c")
        e("s_cmp_eq_u32 s30, 8\ns_cbranch_scc1 L_w8a\ns_waitcnt vmcnt(10)\ns_branch L_w8b\nL_w8a:\ns_waitcnt vmcnt(%d)\nL_w8b:" % (5 if o.get("codepf", True) else 2))
        self.stamp(1)
        e("v_mov_b32 v96, 0\nv_mov_b32 v97, 0\ns_mov_b32 s64, 0x3f803f80")
        for k in range(8):
            e(f"v_dot2_f32_bf16 v96, v{24+k}, s64, v96")
            e(f"v_dot2_f32_bf16 v97, v{24+k}, v{24+k}, v97")
        self.row_allreduce("v_add_f32", ["v96", "v97"])
        e("v_permlane16_swap_b32 v96, v97\nv_add_f32 v96, v96, v97\nv_mov_b32 v97, v96\nv_permlane32_swap_b32 v96, v97\nv_add_f32 v96, v96, v97")
        e("v_readlane_b32 s64, v96, 0\nv_readlane_b32 s65, v96, 16")
        self.ln_scalars("s64", "s65", "v96", "v97", "v98", "v99")
        for i, xv in enumerate(("v14", "v15")):
            e(f"v_lshlrev_b32 {xv}, 16, {xv}")
            self.ln_apply(xv, "v96", "v97", "v98", "v99", "v100")
            for r in range(4):
                e(f"v_and_b32 v{104+4*i+r}, {xv}, v{120+r}")
        e("s_waitcnt lgkmcnt(0)")
        e("s_mul_i32 s31, s31, 0x19660d\ns_add_u32 s31, s31, 0x3c6ef35f")
        e("v_mov_b32 v7, s31")
        e("s_cmp_eq_u32 s30, 8\ns_cbranch_scc1 L_w8c\ns_waitcnt vmcnt(8)\ns_branch L_w8d\nL_w8c:\ns_waitcnt vmcnt(%d)\nL_w8d:" % (3 if o.get("codepf", True) else 0))
        self.stamp(2)
        e("v_mfma_f32_16x16x32_bf16 v[100:103], v[104:107], v[16:19], 0")
        e("v_mfma_f32_16x16x32_bf16 v[100:103], v[108:111], v[20:23], v[100:103]")
        e("v_lshlrev_b32 v6, 5, v2\nv_lshlrev_b32 v12, 4, v3\nv_add_u32 v6, v6, v12\ns_lshl_b32 s64, s30, 9\nv_add_u32 v6, s64, v6")
        e("s_mov_b32 exec_lo, -1\ns_mov_b32 exec_hi, 0")
        e(f"ds_write_b128 v6, v[100:103] offset:{QP}")
        e("s_mov_b64 exec, -1")
        e("s_waitcnt lgkmcnt(0)\ns_barrier")
        e("s_cmp_eq_u32 s30, 8\ns_cbranch_scc0 L_gather1")
        e("v_and_b32 v6, 31, v1\nv_lshlrev_b32 v6, 4, v6\nv_lshrrev_b32 v12, 5, v1\nv_lshlrev_b32 v12, 9, v12\nv_add_u32 v6, v6, v12")
        for i in range(4):
            e(f"ds_read_b128 v[{32+4*i}:{35+4*i}], v6 offset:{QP + 1024*i}")
        e("s_mov_b32 exec_lo, -1\ns_mov_b32 exec_hi, 0")
        e("v_mov_b32 v48, 0\nv_mov_b32 v49, 0\nv_mov_b32 v50, 0\nv_mov_b32 v51, 0") if False else None
        e("s_mov_b64 exec, -1")
        for r in range(4): e(f"v_mov_b32 v{48+r}, 0")
        e("s_mov_b32 exec_lo, -1\ns_mov_b32 exec_hi, 0")
        e(f"ds_read_b128 v[48:51], v6 offset:{QP + 4096}")
        e("s_mov_b64 exec, -1")
        e("s_waitcnt lgkmcnt(0)")
        for r in range(4):
            e(f"v_add_f32 v{32+r}, v{32+r}, v{36+r}")
            e(f"v_add_f32 v{40+r}, v{40+r}, v{44+r}")
        for r in range(4):
            e(f"v_add_f32 v{32+r}, v{32+r}, v{40+r}")
        for r in range(4):
            e(f"v_add_f32 v{32+r}, v{32+r}, v{48+r}")
        for r in range(4): e(f"v_mov_b32 v{36+r}, v{32+r}")
        for r in range(4): e(f"v_permlane32_swap_b32 v{32+r}, v{36+r}")
        for r in range(4): e(f"v_add_f32 v{32+r}, v{32+r}, v{36+r}")
        self.tagins(32)
        e(f"s_lshl_b32 s64, s28, 13\ns_lshl_b32 s65, s29, 9\ns_add_u32 s64, s64, s65\ns_add_u32 s64, s64, {H1}")
        e("v_and_b32 v6, 31, v1\nv_lshlrev_b32 v6, 4, v6\nv_add_u32 v6, s64, v6")
        e("s_mov_b32 exec_lo, -1\ns_mov_b32 exec_hi, 0")
        e("global_store_dwordx4 v6, v[32:35], s[26:27] sc1")
        e("s_mov_b64 exec, -1")
        self.stamp(3)
        e("s_branch L_afterH1")
        e("L_gather1:")
        e(f"s_lshl_b32 s64, s28, 13\ns_lshl_b32 s65, s30, 10\ns_add_u32 s64, s64, s65\ns_add_u32 s64, s64, {H1}")
        e("v_lshlrev_b32 v6, 4, v1\nv_add_u32 v6, s64, v6")
        e(f"s_waitcnt vmcnt({o.get('h1wait', 4)})")
        e("global_load_dwordx4 v[96:99], v6, s[26:27] sc1")
        e("s_movk_i32 s64, 0x1000")
        for t in range(8):
            e(f"buffer_load_dwordx4 v[{64+4*t}:{67+4*t}], v8, s[44:47], {'s64' if t>=4 else '0'} offen offset:{(t%4)*1024} {nt}")
        nlater = 0
        e("s_cmp_ge_u32 s29, 9\ns_cbranch_scc0 L_nowo\ns_cmp_lt_u32 s29, 15\ns_cbranch_scc0 L_nowo")
        self.wo_dma()
        e("L_nowo:")
        e("s_cmp_ge_u32 s29, 9\ns_cbranch_scc0 L_h1w8\ns_cmp_lt_u32 s29, 15\ns_cbranch_scc0 L_h1w8")
        e("s_waitcnt vmcnt(14)\ns_branch L_h1chk\nL_h1w8:\ns_waitcnt vmcnt(8)\nL_h1chk:")
        self.stamp(3)
        e("s_mov_b32 s66, 0")
        e("L_h1loop:")
        self.validate([96], "v100", "v101")
        e("s_cbranch_vccz L_h1ok")
        e("s_add_u32 s66, s66, 1\ns_cmp_gt_u32 s66, %d\ns_cbranch_scc1 L_h1ok" % o.get("maxspin", 20000))
        e("s_sleep 2")
        e("global_load_dwordx4 v[96:99], v6, s[26:27] sc1\ns_waitcnt vmcnt(0)\ns_branch L_h1loop")
        e("L_h1ok:")
        e("v_lshlrev_b32 v6, 4, v1\ns_lshl_b32 s64, s30, 10\nv_add_u32 v6, s64, v6")
        e(f"ds_write_b128 v6, v[96:99] offset:{QG}")
        e("L_afterH1:")
        e("s_waitcnt lgkmcnt(0)\ns_barrier")
        e("s_cmp_lt_u32 s30, 4\ns_cbranch_scc0 L_noqsum")
        e("v_lshlrev_b32 v6, 2, v0")
        for k in range(8):
            e(f"ds_read_b32 v{96+k}, v6 offset:{QG + 1024*k}")
        e("s_waitcnt lgkmcnt(0)")
        for k in range(8): e(f"v_and_b32 v{96+k}, 0xffffff00, v{96+k}")
        e("v_add_f32 v96, v96, v97\nv_add_f32 v98, v98, v99\nv_add_f32 v100, v100, v101\nv_add_f32 v102, v102, v103")
        e("v_add_f32 v96, v96, v98\nv_add_f32 v100, v100, v102\nv_add_f32 v96, v96, v100")
        e("v_cvt_pk_bf16_f32 v96, v96, v96\nv_lshlrev_b32 v6, 1, v0")
        e(f"ds_write_b16 v6, v96 offset:{QB}")
        e("L_noqsum:")
        e("s_waitcnt lgkmcnt(0)\ns_barrier")
        e("s_cmp_eq_u32 s30, 8\ns_cbranch_scc1 L_w8att")
        e("v_bfe_u32 v6, v1, 2, 1\nv_lshlrev_b32 v6, 8, v6\nv_lshlrev_b32 v12, 6, v3\nv_add_u32 v6, v6, v12\nv_and_b32 v12, 3, v1\nv_lshlrev_b32 v12, 4, v12\nv_add_u32 v6, v6, v12")
        e(f"ds_read_b128 v[16:19], v6 offset:{QB}")
        e("s_waitcnt lgkmcnt(0)")
        self.stamp(4)
        for t in range(8):
            e(f"v_mfma_f32_16x16x32_bf16 v[{96+4*t if t<6 else 24+4*(t-6)}:{99+4*t if t<6 else 27+4*(t-6)}], v[16:19], v[{32+4*t}:{35+4*t}], 0")
        D = [96+4*t if t < 6 else 24+4*(t-6) for t in range(8)]
        for k in range(4):
            for t in range(8):
                if k == 0: e(f"v_mov_b32_dpp v{32+t}, v{D[t]} quad_perm:[0,0,0,0] row_mask:0xf bank_mask:0xf")
                else: e(f"v_add_f32_dpp v{32+t}, v{D[t]+k}, v{32+t} quad_perm:[{k},{k},{k},{k}] row_mask:0xf bank_mask:0xf")
        e("s_mov_b32 s64, 0x3db504f3")
        for t in range(0, 8, 2):
            e(f"v_cvt_pk_bf16_f32 v{40+t}, v{32+t}, v{33+t}")
        for t in range(0, 8, 2):
            e(f"v_lshlrev_b32 v{32+t}, 16, v{40+t}\nv_and_b32 v{33+t}, 0xffff0000, v{40+t}")
        for t in range(8): e(f"v_mul_f32 v{32+t}, s64, v{32+t}")
        for t in range(0, 8, 2):
            e(f"v_cvt_pk_bf16_f32 v{40+t}, v{32+t}, v{33+t}")
        for t in range(0, 8, 2):
            e(f"v_lshlrev_b32 v{32+t}, 16, v{40+t}\nv_and_b32 v{33+t}, 0xffff0000, v{40+t}")
        e("v_max3_f32 v40, v32, v33, v34\nv_max3_f32 v41, v35, v36, v37\nv_max3_f32 v40, v40, v38, v39\nv_max_f32 v40, v40, v41")
        self.row_allreduce("v_max_f32", ["v40"], steps=(8, 4))
        e("v_lshlrev_b32 v6, 1, v1\ns_lshl_b32 s64, s30, 2\nv_add_u32 v6, s64, v6")
        e("s_mov_b64 exec, 0x10001")
        e(f"ds_write_b32 v6, v40 offset:{MX}")
        e("s_mov_b64 exec, -1")
        e("L_w8att:")
        e("s_waitcnt lgkmcnt(0)\ns_barrier")
        e("s_cmp_eq_u32 s30, 8\ns_cbranch_scc1 L_w8pv")
        e("v_and_b32 v6, 1, v3\nv_lshlrev_b32 v6, 5, v6")
        e(f"ds_read_b128 v[44:47], v6 offset:{MX}\nds_read_b128 v[48:51], v6 offset:{MX+16}")
        e("s_waitcnt lgkmcnt(0)")
        e("v_max3_f32 v40, v44, v45, v46\nv_max3_f32 v41, v47, v48, v49\nv_max3_f32 v40, v40, v50, v51\nv_max_f32 v40, v40, v41")
        e("s_mov_b32 s64, 0x3fb8aa3b")
        for t in range(8): e(f"v_sub_f32 v{32+t}, v{32+t}, v40")
        for t in range(8): e(f"v_mul_f32 v{32+t}, s64, v{32+t}")
        for t in range(8): e(f"v_exp_f32 v{32+t}, v{32+t}")
        e("v_add_f32 v41, v32, v33\nv_add_f32 v42, v34, v35\nv_add_f32 v43, v36, v37\nv_add_f32 v44, v38, v39")
        e("v_add_f32 v41, v41, v42\nv_add_f32 v43, v43, v44\nv_add_f32 v41, v41, v43")
        for t in range(0, 8, 2):
            e(f"v_cvt_pk_bf16_f32 v{24+t//2}, v{32+t}, v{33+t}")
        self.row_allreduce("v_add_f32", ["v41"], steps=(8, 4))
        e("v_lshlrev_b32 v6, 1, v1\ns_lshl_b32 s64, s30, 2\nv_add_u32 v6, s64, v6")
        e("s_mov_b64 exec, 0x10001")
        e(f"ds_write_b32 v6, v41 offset:{LS}")
        e("s_mov_b64 exec, -1")
        e("v_bfe_u32 v6, v1, 3, 1\nv_lshlrev_b32 v6, 4, v6\nv_lshlrev_b32 v12, 2, v3\nv_add_u32 v6, v6, v12\nv_lshlrev_b32 v6, 2, v6")
        for k in range(4): e(f"ds_bpermute_b32 v{28+k}, v6, v{24+k}")
        e("s_waitcnt lgkmcnt(0)")
        e("s_mov_b32 s64, 0x01000100\ns_mov_b32 s65, 0x03020302")
        for t in range(8):
            e(f"v_perm_b32 v24, v{28+t//2}, v{28+t//2}, {'s64' if t%2==0 else 's65'}")
            for r in range(4):
                e(f"v_and_b32 v{32+4*t+r}, v24, v{120+r}")
        self.stamp(5)
        def pv(nl):
            for t in range(8):
                e(f"s_waitcnt vmcnt({7-t+nl})")
                e(f"v_mfma_f32_16x16x32_bf16 v[16:19], v[{32+4*t}:{35+4*t}], v[{64+4*t}:{67+4*t}], {'0' if t==0 else 'v[16:19]'}")
        e("s_cmp_ge_u32 s29, 9\ns_cbranch_scc0 L_pv0\ns_cmp_lt_u32 s29, 15\ns_cbranch_scc0 L_pv0")
        pv(6)
        e("s_branch L_pvdone")
        e("L_pv0:")
        pv(0)
        e("L_pvdone:")
        self.stamp(6)
        e("v_lshrrev_b32 v6, 1, v3\nv_lshlrev_b32 v6, 9, v6\nv_lshlrev_b32 v12, 5, v2\nv_add_u32 v6, v6, v12\nv_and_b32 v12, 1, v3\nv_lshlrev_b32 v12, 4, v12\nv_add_u32 v6, v6, v12")
        e("s_lshl_b32 s64, s30, 10\nv_add_u32 v6, s64, v6")
        e(f"ds_write_b128 v6, v[16:19] offset:{QG}")
        e("L_w8pv:")
        e("s_waitcnt lgkmcnt(0)\ns_barrier")
        e(f"s_mul_i32 s67, s28, 18432\ns_mul_i32 s64, s29, 1152\ns_add_u32 s67, s67, s64\ns_add_u32 s67, s67, {H2}")
        e("s_cmp_eq_u32 s30, 8\ns_cbranch_scc1 L_w8st")
        e("v_and_b32 v6, 7, v1\nv_lshlrev_b32 v6, 4, v6\nv_lshrrev_b32 v12, 3, v1\nv_lshlrev_b32 v12, 10, v12\nv_add_u32 v6, v6, v12\ns_lshl_b32 s64, s30, 7\nv_add_u32 v6, s64, v6")
        e(f"ds_read_b128 v[16:19], v6 offset:{QG}")
        e("s_waitcnt lgkmcnt(0)")
        self.reduce_stride8(16, 20)
        self.tagins(16)
        e("v_and_b32 v6, 7, v1\nv_lshlrev_b32 v6, 4, v6\ns_lshl_b32 s64, s30, 7\ns_add_u32 s64, s64, s67\nv_add_u32 v6, s64, v6")
        e("s_mov_b64 exec, 0xff")
        e("global_store_dwordx4 v6, v[16:19], s[26:27] sc1")
        e("s_mov_b64 exec, -1")
        e("s_branch L_roles")
        e("L_w8st:")
        e("v_mov_b32 v6, 0")
        e(f"ds_read_b128 v[32:35], v6 offset:{MX}\nds_read_b128 v[36:39], v6 offset:{MX+16}\nds_read_b128 v[40:43], v6 offset:{MX+32}\nds_read_b128 v[44:47], v6 offset:{MX+48}")
        e(f"ds_read_b128 v[48:51], v6 offset:{LS}\nds_read_b128 v[52:55], v6 offset:{LS+16}\nds_read_b128 v[56:59], v6 offset:{LS+32}\nds_read_b128 v[60:63], v6 offset:{LS+48}")
        e("s_waitcnt lgkmcnt(0)")
        e("v_max3_f32 v16, v32, v33, v34\nv_max3_f32 v16, v16, v35, v36\nv_max3_f32 v16, v16, v37, v38\nv_max_f32 v16, v16, v39")
        e("v_max3_f32 v18, v40, v41, v42\nv_max3_f32 v18, v18, v43, v44\nv_max3_f32 v18, v18, v45, v46\nv_max_f32 v18, v18, v47")
        e("v_add_f32 v17, v48, v49\nv_add_f32 v19, v56, v57")
        for k in range(2, 8): e(f"v_add_f32 v17, v17, v{48+k}\nv_add_f32 v19, v19, v{56+k}")
        self.tagins(16)
        e("s_add_u32 s64, s67, 1024\nv_mov_b32 v6, s64")
        e("s_mov_b64 exec, 1")
        e("global_store_dwordx4 v6, v[16:19], s[26:27] sc1")
        e("s_mov_b64 exec, -1")
        e("L_roles:")
        self.stamp(7)
        e("s_cmp_lt_u32 s29, 9\ns_cbranch_scc1 L_roleA")
        e("s_cmp_lt_u32 s29, 15\ns_cbranch_scc0 L_fin")
        self.roleB1()
        e("L_roleA:")
        self.roleA()
        e("L_fin:")
        if o.get("stamps"):
            self.stamp(15)
            e(f"s_mul_i32 s64, s2, 9\ns_add_u32 s64, s64, s30\ns_lshl_b32 s64, s64, 6\ns_add_u32 s64, s64, {TS}")
            e("v_lshlrev_b32 v6, 2, v1\nv_add_u32 v6, s64, v6")
            e("s_mov_b64 exec, 0xffff")
            e("global_store_dword v6, v127, s[26:27]")
        e("L_end:")
        e("s_endpgm")
        return e.text()

    def ln_scalars(self, s1, s2, vm, vs, vr, vt):
        e = self.e
        e(f"s_mov_b32 s68, 0x3ae38e39")
        e(f"v_mov_b32 {vm}, {s1}\nv_mul_f32 {vm}, s68, {vm}")
        e(f"v_mov_b32 {vs}, {s2}\nv_mul_f32 {vs}, s68, {vs}")
        e(f"v_fma_f32 {vs}, -{vm}, {vm}, {vs}")
        e(f"v_max_f32 {vs}, 0, {vs}")
        self.Rnd(vm, vm); self.Rnd(vs, vs)
        e(f"v_add_f32 {vs}, 0x3727c5ac, {vs}")
        self.Rnd(vs, vs)
        e(f"v_sqrt_f32 {vs}, {vs}")
        self.Rnd(vs, vs)
        e(f"v_rcp_f32 {vr}, {vs}")
    def ln_apply(self, x, vm, vs, vr, t0, t1):
        e = self.e
        e(f"v_sub_f32 {x}, {x}, {vm}")
        self.Rnd(x, x)
        e(f"v_mul_f32 {t0}, {x}, {vr}")
        e(f"v_fma_f32 {t1}, -{t0}, {vs}, {x}")
        e(f"v_fma_f32 {t0}, {t1}, {vr}, {t0}")
        e(f"v_cvt_pk_bf16_f32 {x}, {t0}, {t0}")
    def reduce_stride8(self, v, t):
        e = self.e
        for r in range(4): e(f"v_add_f32_dpp v{v+r}, v{v+r}, v{v+r} row_ror:8 row_mask:0xf bank_mask:0xf")
        for r in range(4): e(f"v_mov_b32 v{t+r}, v{v+r}")
        for r in range(4): e(f"v_permlane16_swap_b32 v{v+r}, v{t+r}")
        for r in range(4): e(f"v_add_f32 v{v+r}, v{v+r}, v{t+r}")
        for r in range(4): e(f"v_mov_b32 v{t+r}, v{v+r}")
        for r in range(4): e(f"v_permlane32_swap_b32 v{v+r}, v{t+r}")
        for r in range(4): e(f"v_add_f32 v{v+r}, v{v+r}, v{t+r}")
    def xrow_transpose_reduce(self, v):
        e = self.e
        e(f"v_permlane16_swap_b32 v{v}, v{v+1}\nv_permlane16_swap_b32 v{v+2}, v{v+3}")
        e(f"v_add_f32 v{v}, v{v}, v{v+1}\nv_add_f32 v{v+2}, v{v+2}, v{v+3}")
        e(f"v_permlane32_swap_b32 v{v}, v{v+2}")
        e(f"v_add_f32 v{v}, v{v}, v{v+2}")

    def wo_dma(self):
        e = self.e
        e("s_mov_b32 s52, s12\ns_mov_b32 s53, s13\ns_mov_b32 s54, %d\ns_mov_b32 s55, 0x20000" % (4096*1152))
        e("s_lshl_b32 s64, s28, 8\ns_lshl_b32 s65, s30, 5\ns_add_u32 s64, s64, s65\ns_mul_i32 s64, s64, 1152")
        e("s_sub_u32 s65, s29, 9\ns_mul_i32 s65, s65, 192\ns_add_u32 s64, s64, s65")
        e(f"s_mul_i32 s65, s30, 6144\ns_add_u32 s65, s65, {WB}")
        for i in range(6):
            e(f"v_add_u32 v100, {64*i}, v1\nv_mul_u32_u24 v101, 5462, v100\nv_lshrrev_b32 v101, 16, v101")
            e("v_mul_u32_u24 v102, 12, v101\nv_sub_u32 v102, v100, v102")
            e("v_bfe_u32 v103, v101, 3, 1\nv_lshlrev_b32 v103, 1, v103\nv_xor_b32 v102, v102, v103\nv_lshlrev_b32 v102, 4, v102")
            e("v_mul_u32_u24 v101, 1152, v101\nv_add_u32 v101, v101, v102")
            e("s_mov_b32 m0, s65\ns_add_u32 s65, s65, 1024")
            e("buffer_load_dwordx4 v101, s[52:55], s64 offen nt lds")

    def roleB1(self):
        e = self.e; o = self.o
        e("s_cmp_eq_u32 s30, 8\ns_cbranch_scc1 L_b1w8")
        e(f"s_mul_i32 s64, s28, 18432\ns_add_u32 s64, s64, {H2}")
        e("v_mul_u32_u24 v6, 1152, v2\nv_add_u32 v6, s64, v6\nv_add_u32 v9, 1024, v6")
        e("v_lshlrev_b32 v12, 5, v3\ns_lshl_b32 s65, s30, 7\nv_add_u32 v12, s65, v12\nv_add_u32 v6, v6, v12")
        e("s_waitcnt vmcnt(0)")
        self.stamp(8)
        e("v_lshlrev_b32 v10, 3, v3\nv_bfe_u32 v12, v1, 2, 2\nv_add_u32 v10, v10, v12\nv_mul_u32_u24 v10, 192, v10\nv_and_b32 v12, 3, v1\nv_lshlrev_b32 v12, 3, v12\nv_add_u32 v10, v10, v12")
        e(f"s_mul_i32 s65, s30, 6144\ns_add_u32 s65, s65, {WB}\nv_add_u32 v10, s65, v10")
        e("v_and_b32 v12, 1, v3\nv_lshlrev_b32 v12, 5, v12")
        e("v_add_u32 v11, v10, v12")
        e("v_sub_u32 v10, v10, v12")
        for tau in range(6):
            a = "v11" if tau % 2 == 0 else "v10"
            e(f"ds_read_b64_tr_b16 v[{32+4*tau}:{33+4*tau}], {a} offset:{32*tau}")
            e(f"ds_read_b64_tr_b16 v[{34+4*tau}:{35+4*tau}], {a} offset:{32*tau + 768}")
        if o.get("h2sleep"): e(f"s_sleep {o['h2sleep']}")
        e("s_mov_b32 s66, 0")
        e("L_h2loop:")
        e("global_load_dwordx4 v[64:67], v6, s[26:27] sc1\nglobal_load_dwordx4 v[68:71], v6, s[26:27] offset:16 sc1\nglobal_load_dwordx4 v[72:75], v9, s[26:27] sc1")
        e("s_waitcnt vmcnt(0)")
        self.validate([64, 68, 72], "v100", "v101")
        e("s_cbranch_vccz L_h2ok")
        e("s_add_u32 s66, s66, 1\ns_cmp_gt_u32 s66, %d\ns_cbranch_scc1 L_h2ok" % o.get("maxspin", 20000))
        e("s_sleep 1\ns_branch L_h2loop")
        e("L_h2ok:")
        self.stamp(9)
        e("s_cmp_lt_u32 s30, 4\ns_cbranch_scc1 L_h2h0\nv_mov_b32 v72, v74\nv_mov_b32 v73, v75\nL_h2h0:")
        e("v_and_b32 v72, 0xffffff00, v72\nv_and_b32 v73, 0xffffff00, v73")
        e("v_mov_b32 v76, v72")
        self.row_allreduce("v_max_f32", ["v76"])
        e("v_sub_f32 v72, v72, v76\nv_mul_f32 v72, 0x3fb8aa3b, v72\nv_exp_f32 v72, v72")
        e("v_mul_f32 v73, v72, v73")
        self.row_allreduce("v_add_f32", ["v73"])
        e("v_rcp_f32 v73, v73")
        e("v_mul_f32 v72, v72, v73")
        for k in range(8): e(f"v_and_b32 v{64+k}, 0xffffff00, v{64+k}")
        for k in range(8): e(f"v_mul_f32 v{64+k}, v72, v{64+k}")
        self.row_allreduce("v_add_f32", [f"v{64+k}" for k in range(8)])
        for k in range(4): e(f"v_cvt_pk_bf16_f32 v{76+k}, v{64+2*k}, v{65+2*k}")
        e("s_waitcnt lgkmcnt(0)")
        for tau in range(6):
            e(f"v_mfma_f32_16x16x32_bf16 v[{80+4*tau}:{83+4*tau}], v[{32+4*tau}:{35+4*tau}], v[76:79], 0")
        e(f"v_lshlrev_b32 v6, 4, v3\ns_mul_i32 s64, s30, 384\nv_add_u32 v6, s64, v6")
        e("s_mov_b32 s64, 0x00010001\ns_mov_b32 s65, 0x00010001\ns_mov_b64 exec, s[64:65]")
        for tau in range(6):
            e(f"ds_write_b128 v6, v[{80+4*tau}:{83+4*tau}] offset:{WR + 64*tau}")
        e("s_mov_b64 exec, -1")
        e("L_b1w8:")
        e("s_waitcnt lgkmcnt(0)\ns_barrier")
        e("s_cmp_lt_u32 s30, 3\ns_cbranch_scc0 L_b1pubdone")
        e("v_and_b32 v6, 7, v1\nv_lshlrev_b32 v6, 4, v6\nv_lshrrev_b32 v12, 3, v1\nv_mul_u32_u24 v12, 384, v12\nv_add_u32 v6, v6, v12\ns_lshl_b32 s64, s30, 7\nv_add_u32 v6, s64, v6")
        e(f"ds_read_b128 v[16:19], v6 offset:{WR}")
        e("s_waitcnt lgkmcnt(0)")
        self.reduce_stride8(16, 20)
        self.tagins(16)
        e(f"s_mul_i32 s64, s28, 2304\ns_sub_u32 s65, s29, 9\ns_mul_i32 s65, s65, 384\ns_add_u32 s64, s64, s65\ns_lshl_b32 s65, s30, 7\ns_add_u32 s64, s64, s65\ns_add_u32 s64, s64, {H3}")
        e("v_and_b32 v6, 7, v1\nv_lshlrev_b32 v6, 4, v6\nv_add_u32 v6, s64, v6")
        e("s_mov_b64 exec, 0xff")
        e("global_store_dwordx4 v6, v[16:19], s[26:27] sc1")
        e("s_mov_b64 exec, -1")
        e("L_b1pubdone:")
        self.stamp(10)
        e("s_sub_u32 s32, s29, 9\ns_cmp_lt_u32 s32, 2\ns_cbranch_scc0 L_rho2\ns_lshl_b32 s64, s28, 1\ns_add_u32 s32, s32, s64\ns_branch L_reducer")
        e("L_rho2:\ns_cmp_eq_u32 s32, 2\ns_cbranch_scc0 L_fin\ns_cmp_lt_u32 s28, 4\ns_cbranch_scc0 L_fin\ns_add_u32 s32, s28, 32")
        e("L_reducer:")
        e("s_cmp_eq_u32 s30, 0\ns_cbranch_scc0 L_redh4")
        e(f"v_lshrrev_b32 v6, 2, v1\nv_mul_u32_u24 v6, 2304, v6\nv_and_b32 v12, 3, v1\nv_lshlrev_b32 v12, 4, v12\nv_add_u32 v6, v6, v12\ns_lshl_b32 s64, s32, 6\ns_add_u32 s64, s64, {H3}\nv_add_u32 v6, s64, v6")
        e("v_and_b32 v12, 3, v1\nv_lshlrev_b32 v12, 3, v12\ns_lshl_b32 s64, s32, 5\nv_add_u32 v12, s64, v12")
        e("buffer_load_dwordx2 v[40:41], v12, s[36:39], 0 offen")
        e("s_mov_b32 s66, 0")
        e("L_rh3loop:")
        e("global_load_dwordx4 v[32:35], v6, s[26:27] sc1\ns_waitcnt vmcnt(0)")
        self.validate([32], "v100", "v101")
        e("s_cbranch_vccz L_rh3ok")
        e("s_add_u32 s66, s66, 1\ns_cmp_gt_u32 s66, %d\ns_cbranch_scc1 L_rh3ok" % o.get("maxspin", 20000))
        e("s_sleep 4\ns_branch L_rh3loop")
        e("L_rh3ok:")
        for r in range(4): e(f"v_and_b32 v{32+r}, 0xffffff00, v{32+r}")
        self.reduce_stride4(32, 36)
        e("v_lshlrev_b32 v44, 16, v40\nv_and_b32 v45, 0xffff0000, v40\nv_lshlrev_b32 v46, 16, v41\nv_and_b32 v47, 0xffff0000, v41")
        for r in range(4):
            self.Rnd(f"v{32+r}", f"v{32+r}")
            e(f"v_add_f32 v{44+r}, v{44+r}, v{32+r}")
            self.Rnd(f"v{44+r}", f"v{44+r}")
        e("L_redh4:")
        e(f"v_lshrrev_b32 v6, 2, v0\nv_mul_u32_u24 v6, 2304, v6\nv_and_b32 v12, 3, v0\nv_lshlrev_b32 v12, 4, v12\nv_add_u32 v6, v6, v12\ns_lshl_b32 s64, s32, 6\ns_add_u32 s64, s64, {H4}\nv_add_u32 v6, s64, v6")
        if o.get("h4sleep"): e(f"s_sleep {o['h4sleep']}")
        e("s_mov_b32 s66, 0")
        e("L_h4loop:")
        e("global_load_dwordx4 v[32:35], v6, s[26:27] sc1\ns_waitcnt vmcnt(0)")
        self.validate([32], "v100", "v101")
        e("s_cbranch_vccz L_h4ok")
        e("s_add_u32 s66, s66, 1\ns_cmp_gt_u32 s66, %d\ns_cbranch_scc1 L_h4ok" % o.get("maxspin", 20000))
        e("s_sleep 2\ns_branch L_h4loop")
        e("L_h4ok:")
        self.stamp(11)
        for r in range(4): e(f"v_and_b32 v{32+r}, 0xffffff00, v{32+r}")
        self.reduce_stride4(32, 36)
        e(f"v_and_b32 v6, 3, v1\nv_lshlrev_b32 v6, 4, v6\ns_lshl_b32 s64, s30, 6\nv_add_u32 v6, s64, v6")
        e("s_mov_b64 exec, 0xf")
        e(f"ds_write_b128 v6, v[32:35] offset:{FR}")
        e("s_mov_b64 exec, -1")
        e("s_waitcnt lgkmcnt(0)\ns_barrier")
        e("s_cmp_eq_u32 s30, 0\ns_cbranch_scc0 L_fin")
        e("v_and_b32 v6, 3, v1\nv_lshlrev_b32 v6, 4, v6\nv_lshrrev_b32 v12, 2, v1\nv_lshlrev_b32 v12, 6, v12\nv_add_u32 v6, v6, v12")
        for r in range(4): e(f"v_mov_b32 v{32+r}, 0")
        e("s_mov_b32 exec_lo, -1\ns_mov_b32 exec_hi, 0xf")
        e(f"ds_read_b128 v[32:35], v6 offset:{FR}")
        e("s_mov_b64 exec, -1")
        e("s_waitcnt lgkmcnt(0)")
        self.reduce_stride4(32, 36)
        for r in range(4):
            self.Rnd(f"v{32+r}", f"v{32+r}")
            e(f"v_add_f32 v{32+r}, v{44+r}, v{32+r}")
        e("v_cvt_pk_bf16_f32 v32, v32, v33\nv_cvt_pk_bf16_f32 v33, v34, v35")
        e("s_mov_b32 s52, s22\ns_mov_b32 s53, s23\ns_movk_i32 s54, 1152\ns_mov_b32 s55, 0x20000")
        e("v_and_b32 v6, 3, v1\nv_lshlrev_b32 v6, 3, v6\ns_lshl_b32 s64, s32, 5\nv_add_u32 v6, s64, v6")
        e("s_mov_b64 exec, 0xf")
        e("buffer_store_dwordx2 v[32:33], v6, s[52:55], 0 offen")
        e("s_mov_b64 exec, -1")
        e("s_cmp_eq_u32 s32, 0\ns_cbranch_scc0 L_fin")
        e("v_mov_b32 v6, 0\ns_mov_b64 exec, 1\nglobal_store_dword v6, v7, s[26:27] sc1\ns_mov_b64 exec, -1")
        e("s_branch L_fin")
    def reduce_stride4(self, v, t):
        e = self.e
        for st in (8, 4):
            for r in range(4): e(f"v_add_f32_dpp v{v+r}, v{v+r}, v{v+r} row_ror:{st} row_mask:0xf bank_mask:0xf")
        for r in range(4): e(f"v_mov_b32 v{t+r}, v{v+r}")
        for r in range(4): e(f"v_permlane16_swap_b32 v{v+r}, v{t+r}")
        for r in range(4): e(f"v_add_f32 v{v+r}, v{v+r}, v{t+r}")
        for r in range(4): e(f"v_mov_b32 v{t+r}, v{v+r}")
        for r in range(4): e(f"v_permlane32_swap_b32 v{v+r}, v{t+r}")
        for r in range(4): e(f"v_add_f32 v{v+r}, v{v+r}, v{t+r}")

    def roleA(self):
        e = self.e; o = self.o
        e("s_mul_i32 s32, s28, 9\ns_add_u32 s32, s32, s29")
        e("v_lshrrev_b32 v10, 2, v1\nv_mul_u32_u24 v10, 9216, v10\nv_and_b32 v12, 3, v1\nv_lshrrev_b32 v11, 5, v1\nv_lshlrev_b32 v11, 1, v11\nv_xor_b32 v12, v12, v11\nv_lshlrev_b32 v12, 4, v12\nv_add_u32 v10, v10, v12")
        e("s_lshl_b32 s64, s32, 6\ns_mul_i32 s65, s30, 589824\ns_add_u32 s68, s64, s65")
        e(f"s_lshl_b32 s69, s30, 12\ns_add_u32 s69, s69, {WB}")
        for (p, lo) in ((16, 0), (18, 36864)):
            e(f"s_mov_b32 s52, s{p}\ns_mov_b32 s53, s{p+1}\ns_mov_b32 s54, {576*9216}\ns_mov_b32 s55, 0x20000")
            e(f"s_mov_b32 s64, s68\ns_add_u32 s65, s69, {lo}")
            for i in range(4):
                e("s_mov_b32 m0, s65\ns_add_u32 s65, s65, 1024")
                e("buffer_load_dwordx4 v10, s[52:55], s64 offen nt lds")
                if i < 3: e(f"s_add_u32 s64, s64, {16*9216}")
        e(f"v_mul_u32_u24 v6, 2304, v3\nv_lshlrev_b32 v12, 4, v2\nv_add_u32 v6, v6, v12\ns_lshl_b32 s64, s30, 8\ns_add_u32 s64, s64, {H3}\nv_add_u32 v6, s64, v6")
        e("v_add_u32 v8, 9216, v6\nv_add_u32 v9, 18432, v6\nv_add_u32 v13, 27648, v6")
        e("v_lshrrev_b32 v14, 3, v1\nv_mul_u32_u24 v14, 1152, v14\nv_and_b32 v12, 7, v1\nv_bfe_u32 v11, v1, 4, 1\nv_lshlrev_b32 v11, 1, v11\nv_xor_b32 v12, v12, v11")
        e("v_xor_b32 v11, 4, v12\nv_lshlrev_b32 v12, 4, v12\nv_lshlrev_b32 v11, 4, v11\nv_add_u32 v15, v14, v11\nv_add_u32 v14, v14, v12")
        e(f"s_waitcnt vmcnt({o.get('h3wait', 2)})")
        self.stamp(8)
        def h3loads():
            e("global_load_dwordx4 v[80:83], v6, s[26:27] sc1\nglobal_load_dwordx4 v[84:87], v8, s[26:27] sc1\nglobal_load_dwordx4 v[88:91], v9, s[26:27] sc1\nglobal_load_dwordx4 v[92:95], v13, s[26:27] sc1")
        h3loads()
        e(f"s_mov_b32 s52, s20\ns_mov_b32 s53, s21\ns_mov_b32 s54, {4608*1152}\ns_mov_b32 s55, 0x20000")
        e(f"s_mul_i32 s64, s32, 36864\ns_lshl_b32 s65, s30, 7\ns_add_u32 s64, s64, s65\ns_add_u32 s65, s69, {2*36864}")
        for i in range(4):
            e("s_mov_b32 m0, s65\ns_add_u32 s65, s65, 1024")
            e(f"buffer_load_dwordx4 {'v14' if i%2==0 else 'v15'}, s[52:55], s64 offen nt lds")
            if i < 3: e(f"s_add_u32 s64, s64, {8*1152}")
        e("s_waitcnt vmcnt(4)")
        e("v_lshlrev_b32 v10, 3, v3\nv_bfe_u32 v12, v1, 2, 2\nv_add_u32 v10, v10, v12\nv_lshlrev_b32 v10, 6, v10\nv_and_b32 v12, 3, v1\nv_lshlrev_b32 v12, 3, v12\nv_add_u32 v10, v10, v12\nv_add_u32 v10, s69, v10")
        e("v_and_b32 v12, 1, v3\nv_lshlrev_b32 v12, 5, v12\nv_add_u32 v11, v10, v12\nv_xor_b32 v12, 32, v12\nv_add_u32 v10, v10, v12")
        for m, lo in enumerate((0, 36864)):
            for s in range(2):
                for tau in range(2):
                    fr = 32 + 16*m + 8*s + 4*tau
                    a = "v11" if tau == 0 else "v10"
                    off = lo + 2048*s
                    if off + 256 > 65535:
                        raise RuntimeError("offset")
                    e(f"ds_read_b64_tr_b16 v[{fr}:{fr+1}], {a} offset:{off}")
                    e(f"ds_read_b64_tr_b16 v[{fr+2}:{fr+3}], {a} offset:{off+256}")
        e("s_mov_b32 s66, 0")
        e("L_h3loop:")
        self.validate([80, 84, 88, 92], "v100", "v101")
        e("s_cbranch_vccz L_h3ok")
        e("s_add_u32 s66, s66, 1\ns_cmp_gt_u32 s66, %d\ns_cbranch_scc1 L_h3ok" % o.get("maxspin", 20000))
        e("s_sleep 2")
        h3loads()
        e("s_waitcnt vmcnt(0)\ns_branch L_h3loop")
        e("L_h3ok:")
        self.stamp(9)
        for k in range(16): e(f"v_and_b32 v{80+k}, 0xffffff00, v{80+k}")
        for r in range(4):
            e(f"v_add_f32 v{80+r}, v{80+r}, v{84+r}\nv_add_f32 v{88+r}, v{88+r}, v{92+r}")
        for r in range(4): e(f"v_add_f32 v{80+r}, v{80+r}, v{88+r}")
        self.xrow_transpose_reduce(80)
        self.Rnd("v80", "v80")
        e("v_lshlrev_b32 v81, 16, v126\nv_add_f32 v80, v81, v80")
        self.Rnd("v80", "v80")
        e("v_mul_f32 v81, v80, v80\nv_mov_b32 v82, v80")
        self.row_allreduce("v_add_f32", ["v82", "v81"])
        e("v_permlane16_swap_b32 v82, v81\nv_add_f32 v82, v82, v81\nv_mov_b32 v81, v82\nv_permlane32_swap_b32 v82, v81\nv_add_f32 v82, v82, v81")
        e("v_lshlrev_b32 v6, 2, v1\ns_lshl_b32 s64, s30, 2\nv_add_u32 v6, s64, v6")
        e("s_mov_b64 exec, 0x10001")
        e(f"ds_write_b32 v6, v82 offset:{ST2}")
        e("s_mov_b64 exec, -1")
        e("s_waitcnt lgkmcnt(0)\ns_barrier")
        e("v_lshlrev_b32 v6, 2, v1\nv_mov_b32 v82, 0")
        e("s_mov_b64 exec, 0x01ff01ff")
        e(f"ds_read_b32 v82, v6 offset:{ST2}")
        e("s_mov_b64 exec, -1")
        e("s_waitcnt lgkmcnt(0)")
        self.row_allreduce("v_add_f32", ["v82"])
        e("v_readlane_b32 s64, v82, 0\nv_readlane_b32 s65, v82, 16")
        self.ln_scalars("s64", "s65", "v84", "v85", "v86", "v87")
        self.ln_apply("v80x", "v84", "v85", "v86", "v87", "v88") if False else None
        e("v_mov_b32 v89, v80")
        self.ln_apply("v89", "v84", "v85", "v86", "v87", "v88")
        e(f"v_lshlrev_b32 v6, 2, v2\nv_add_u32 v6, v6, v3\nv_lshlrev_b32 v6, 1, v6\ns_lshl_b32 s64, s30, 7\nv_add_u32 v6, s64, v6")
        e(f"ds_write_b16 v6, v89 offset:{HNL}")
        e("v_lshlrev_b32 v6, 4, v3\nv_add_u32 v6, s64, v6")
        e("s_waitcnt lgkmcnt(0)")
        e(f"ds_read_b128 v[84:87], v6 offset:{HNL}\nds_read_b128 v[88:91], v6 offset:{HNL+64}")
        e("s_waitcnt lgkmcnt(0)")
        for s in range(2):
            for m in range(2):
                for tau in range(2):
                    fr = 32 + 16*m + 8*s + 4*tau; d = 96 + 8*m + 4*tau
                    e(f"v_mfma_f32_16x16x32_bf16 v[{d}:{d+3}], v[{fr}:{fr+3}], v[{84+4*s}:{87+4*s}], {'0' if s==0 else f'v[{d}:{d+3}]'}")
        e("s_waitcnt vmcnt(0)")
        self.stamp(10)
        e("v_lshlrev_b32 v10, 3, v3\nv_bfe_u32 v12, v1, 2, 2\nv_add_u32 v10, v10, v12\nv_lshlrev_b32 v10, 7, v10\nv_and_b32 v12, 3, v1\nv_lshlrev_b32 v12, 3, v12\nv_add_u32 v10, v10, v12")
        e("v_bfe_u32 v12, v1, 3, 1\nv_and_b32 v11, 1, v3\nv_lshlrev_b32 v11, 1, v11\nv_or_b32 v12, v12, v11\nv_lshlrev_b32 v12, 5, v12\nv_add_u32 v10, v10, v12")
        e(f"s_add_u32 s65, s69, {2*36864}\nv_add_u32 v10, s65, v10")
        for tau in range(4):
            e(f"v_xor_b32 v11, {32*tau}, v10")
            e(f"ds_read_b64_tr_b16 v[{64+4*tau}:{65+4*tau}], v11\nds_read_b64_tr_b16 v[{66+4*tau}:{67+4*tau}], v11 offset:512")
        e(f"v_lshlrev_b32 v6, 4, v3\ns_lshl_b32 s64, s30, 8\nv_add_u32 v6, s64, v6")
        e("s_mov_b32 s64, 0x00010001\ns_mov_b32 s65, 0x00010001\ns_mov_b64 exec, s[64:65]")
        for k in range(4):
            e(f"ds_write_b128 v6, v[{96+4*k}:{99+4*k}] offset:{MR + 64*k}")
        e("s_mov_b64 exec, -1")
        e("s_waitcnt lgkmcnt(0)\ns_barrier")
        e("v_lshlrev_b32 v6, 4, v2\nv_lshlrev_b32 v12, 8, v3\nv_add_u32 v6, v6, v12")
        for r in range(4): e(f"v_mov_b32 v{92+r}, 0")
        e(f"ds_read_b128 v[84:87], v6 offset:{MR}\nds_read_b128 v[88:91], v6 offset:{MR+1024}")
        e("s_mov_b64 exec, 0xffff")
        e(f"ds_read_b128 v[92:95], v6 offset:{MR+2048}")
        e("s_mov_b64 exec, -1")
        e("s_waitcnt lgkmcnt(0)")
        for r in range(4): e(f"v_add_f32 v{84+r}, v{84+r}, v{88+r}")
        for r in range(4): e(f"v_add_f32 v{84+r}, v{84+r}, v{92+r}")
        self.xrow_transpose_reduce(84)
        self.Rnd("v84", "v84")
        e("v_mov_b32_dpp v85, v84 row_ror:8 row_mask:0xf bank_mask:0xf")
        e("v_max_f32 v86, 0, v84\nv_mul_f32 v86, v86, v85\nv_cvt_pk_bf16_f32 v86, v86, v86")
        e(f"v_lshlrev_b32 v6, 2, v2\nv_add_u32 v6, v6, v3\nv_lshlrev_b32 v6, 1, v6\ns_lshl_b32 s64, s30, 6\nv_add_u32 v6, s64, v6")
        e("s_mov_b32 s66, 0x00ff00ff\ns_mov_b32 s67, 0x00ff00ff\ns_mov_b64 exec, s[66:67]")
        e(f"ds_write_b16 v6, v86 offset:{HHL}")
        e("s_mov_b64 exec, -1")
        e("v_lshlrev_b32 v6, 4, v3\nv_add_u32 v6, s64, v6")
        e("s_waitcnt lgkmcnt(0)")
        e(f"ds_read_b128 v[84:87], v6 offset:{HHL}")
        e("s_waitcnt lgkmcnt(0)")
        for tau in range(4):
            e(f"v_mfma_f32_16x16x32_bf16 v[{96+4*tau}:{99+4*tau}], v[{64+4*tau}:{67+4*tau}], v[84:87], 0")
        for tau in range(1, 4):
            for r in range(4):
                e(f"v_mov_b32_dpp v{96+r}, v{96+4*tau+r} quad_perm:[0,1,2,3] row_mask:0xf bank_mask:{1<<tau:#x}")
        self.tagins(96)
        e(f"s_mul_i32 s64, s32, 2304\ns_lshl_b32 s65, s30, 8\ns_add_u32 s64, s64, s65\ns_add_u32 s64, s64, {H4}")
        e("v_bfe_u32 v6, v1, 2, 2\nv_lshlrev_b32 v6, 6, v6\nv_lshlrev_b32 v12, 4, v3\nv_add_u32 v6, v6, v12\nv_add_u32 v6, s64, v6")
        e("s_mov_b32 s64, 0x11111111\ns_mov_b32 s65, 0x11111111\ns_mov_b64 exec, s[64:65]")
        e("global_store_dwordx4 v6, v[96:99], s[26:27] sc1")
        e("s_mov_b64 exec, -1")
        self.stamp(11)

def build(opt=None):
    opt = opt or {}
    g = G(opt)
    body = g.gen()
    name = NAME + "_kernel"
    txt = HEADER + "; Override launch geometry by editing the next line (default: block=256,\n; grid=ceil(out_elems/256), lds=0). Harness parses it; keep it on one line.\n"
    txt += f"; @launch grid=(256,1,1) block=(576,1,1) lds={LDS_BYTES}\n"
    txt += f""".amdgcn_target "amdgcn-amd-amdhsa--gfx950"
.text
.globl {name}
.p2align 8
.type {name},@function
{name}:
{body}.section .rodata,"a"
.p2align 6
.amdhsa_kernel {name}
  .amdhsa_next_free_vgpr 128
  .amdhsa_next_free_sgpr 96
  .amdhsa_accum_offset 128
  .amdhsa_group_segment_fixed_size 0
  .amdhsa_kernarg_size 96
  .amdhsa_user_sgpr_count 2
  .amdhsa_user_sgpr_kernarg_segment_ptr 1
  .amdhsa_system_sgpr_workgroup_id_x 1
.end_amdhsa_kernel
"""
    return txt, g
if __name__ == "__main__":
    import json
    opt = json.loads(sys.argv[2]) if len(sys.argv) > 2 else {}
    txt, g = build(opt)
    open(sys.argv[1], "w").write(txt)
    print("instrs", g.e.count, "nops", g.e.nops)
```

```python
import sys
sys.path.insert(0, "work")
from emit import E
NAME = "sequential_preLN__sliding_block_cached__glu_gated_reglu__decode"
HEADER = open("cdna_kernels/" + NAME + ".s.ref").read().split("; Override launch geometry")[0]

H1 = 0x10000; H2 = 0x40000; H3 = 0x90000; H4 = 0xA0000; TS = 0x400000
QP = 0; QG = 4608; QB = 12800; MX = 13312; LS = 13376
ST2 = 13440
HNL = 13568
MR = 14720
HHL = 17024
WR = 13440
FR = 16512
WB = 18432
LDS_BYTES = WB + 3 * 36864
STAMPS = 16

class G:
    def __init__(self, opt):
        self.o = opt
        self.e = E()
    def stamp(self, k):
        if not self.o.get("stamps"): return
        e = self.e
        e(f"s_memrealtime s[90:91]")
        e("s_waitcnt lgkmcnt(0)")
        e(f"v_writelane_b32 v127, s90, {k}")
    def dstamp(self, k, inv=False):
        if not self.o.get("dstamps"): return
        e = self.e
        self.uid = getattr(self, "uid", 0) + 1
        e(f"s_cmp_eq_u32 s30, 0\ns_cbranch_scc0 L_ds{self.uid}")
        e("s_memrealtime s[92:93]\ns_waitcnt lgkmcnt(0)")
        if inv: e("s_not_b32 s92, s92")
        e(f"v_mov_b32 v124, s92\nv_mov_b32 v125, {4*k}")
        e("s_mov_b64 s[94:95], exec\ns_mov_b64 exec, 1")
        e("global_atomic_umax v125, v124, s[24:25] sc1")
        e("s_mov_b64 exec, s[94:95]")
        e(f"L_ds{self.uid}:")
    def Rnd(self, d, s):
        self.e(f"v_cvt_pk_bf16_f32 {d}, {s}, {s}")
        self.e(f"v_and_b32 {d}, 0xffff0000, {d}")
    def row_allreduce(self, op, vs, steps=(8, 4, 2, 1)):
        for st in steps:
            for v in vs:
                self.e(f"{op}_dpp {v}, {v}, {v} row_ror:{st} row_mask:0xf bank_mask:0xf")
    def tagins(self, v4):
        for k in range(4):
            self.e(f"v_perm_b32 v{v4+k}, v{v4+k}, v7, s{56+k}")
    def validate(self, grans, t0, t1, first=True):
        e = self.e
        for i, gb in enumerate(grans):
            e(f"v_perm_b32 {t0}, v{gb+1}, v{gb}, s62")
            e(f"v_perm_b32 {t1}, v{gb+3}, v{gb+2}, s63")
            e(f"v_or_b32 {t0}, {t0}, {t1}")
            e(f"v_cmp_ne_u32 vcc, {t0}, v7")
            if len(grans) > 1:
                if i == 0: e("s_mov_b64 s[60:61], vcc")
                else: e("s_or_b64 s[60:61], s[60:61], vcc")
        if len(grans) > 1: e("s_mov_b64 vcc, s[60:61]")

    def gen(self):
        e = self.e; o = self.o
        nt = "nt"
        e("s_cmp_ge_u32 s2, 256\ns_cbranch_scc1 L_end")
        e("s_load_dwordx16 s[4:19], s[0:1], 0\ns_load_dwordx8 s[20:27], s[0:1], 64")
        if o.get("stamps"):
            e("v_mov_b32 v127, 0")
            e("s_memrealtime s[90:91]")
        e("v_and_b32 v1, 63, v0\nv_lshrrev_b32 v6, 6, v0\nv_readfirstlane_b32 s30, v6")
        e("s_and_b32 s28, s2, 7\ns_lshl_b32 s28, s28, 1\ns_lshr_b32 s33, s2, 7\ns_or_b32 s28, s28, s33")
        e("s_lshr_b32 s29, s2, 3\ns_and_b32 s29, s29, 15")
        e("v_and_b32 v2, 15, v1")
        e("v_lshrrev_b32 v3, 4, v1")
        e("v_lshlrev_b32 v8, 4, v1")
        e("s_lshr_b32 s33, s29, 1\ns_mul_i32 s33, s33, 72\ns_lshl_b32 s34, s30, 3\ns_add_u32 s33, s33, s34")
        e("v_add_u32 v9, s33, v3\nv_lshlrev_b32 v9, 1, v9")
        e("v_lshlrev_b32 v10, 2, v2\nv_add_u32 v10, v10, v3\ns_lshl_b32 s34, s30, 6\nv_add_u32 v10, s34, v10\nv_lshlrev_b32 v10, 1, v10")
        e("v_lshlrev_b32 v11, 13, v3\nv_lshlrev_b32 v12, 4, v2\nv_add_u32 v11, v11, v12")
        e("s_and_b32 s34, s29, 1\ns_lshl_b32 s35, s28, 1\ns_add_u32 s35, s35, s34\ns_lshl_b32 s35, s35, 8\ns_lshl_b32 s34, s33, 13\ns_add_u32 s35, s35, s34")
        e("s_add_u32 s34, s35, 0x8000")
        e(f"s_lshl_b32 s33, s28, 24\ns_lshl_b32 s64, s29, 16\ns_add_u32 s33, s33, s64\ns_add_u32 s33, s33, {61440*256}\ns_lshl_b32 s64, s30, 13\ns_add_u32 s33, s33, s64")
        e("v_bfe_u32 v13, v1, 2, 2\nv_lshlrev_b32 v13, 8, v13\nv_lshlrev_b32 v12, 6, v3\nv_add_u32 v13, v13, v12\nv_and_b32 v12, 3, v1\nv_lshlrev_b32 v12, 4, v12\nv_add_u32 v13, v13, v12")
        e("s_waitcnt lgkmcnt(0)")
        self.dstamp(0, inv=True)
        if o.get("stamps"): e("v_writelane_b32 v127, s90, 0")
        e("s_load_dword s31, s[26:27], 0")
        e("s_mov_b32 s36, s4\ns_mov_b32 s37, s5\ns_movk_i32 s38, 1152\ns_mov_b32 s39, 0x20000")
        e("s_mov_b32 s48, s10\ns_mov_b32 s49, s11\ns_mov_b32 s50, %d\ns_mov_b32 s51, 0x20000" % (576*8192))
        e("buffer_load_dwordx4 v[24:27], v8, s[36:39], 0 offen")
        e("buffer_load_dwordx4 v[28:31], v8, s[36:39], 0 offen offset:1024")
        e("buffer_load_ushort v14, v9, s[36:39], 0 offen")
        e("buffer_load_ushort v15, v9, s[36:39], 0 offen offset:8")
        e("buffer_load_ushort v126, v10, s[36:39], 0 offen")
        e(f"buffer_load_dwordx4 v[16:19], v11, s[48:51], s35 offen {nt}")
        e(f"buffer_load_dwordx4 v[20:23], v11, s[48:51], s34 offen {nt}")
        e("s_barrier")
        e("s_add_u32 s40, s6, s33\ns_addc_u32 s41, s7, 0\ns_movk_i32 s42, 0x2000\ns_mov_b32 s43, 0x20000")
        e("s_add_u32 s44, s8, s33\ns_addc_u32 s45, s9, 0\ns_movk_i32 s46, 0x2000\ns_mov_b32 s47, 0x20000")
        e("s_cmp_eq_u32 s30, 8\ns_cbranch_scc1 L_noK")
        e("s_movk_i32 s64, 0x1000")
        for t in range(8):
            e(f"buffer_load_dwordx4 v[{32+4*t}:{35+4*t}], v13, s[40:43], {'s64' if t>=4 else '0'} offen offset:{(t%4)*1024} {nt}")
        e("s_branch L_Kdone")
        e("L_noK:")
        if o.get("codepf", True):
            e("s_getpc_b64 s[64:65]")
            e("L_pfbase:")
            e("v_lshlrev_b32 v12, 6, v1")
            for k in range(3):
                e(f"v_add_u32 v6, {4096*k}, v12")
                e(f"v_min_u32 v6, L_end-L_pfbase, v6")
                e(f"global_load_dword v124, v6, s[64:65]")
        e("L_Kdone:")
        e("v_and_b32 v6, 1, v1\nv_lshlrev_b32 v6, 4, v6\nv_mov_b32 v12, 0xffff\nv_lshlrev_b32 v12, v6, v12")
        e("v_bfe_u32 v6, v1, 1, 2")
        for r in range(4):
            e(f"v_cmp_eq_u32 vcc, {r}, v6\nv_cndmask_b32 v{120+r}, 0, v12, vcc")
        e("s_mov_b32 s56, 0x07060500\ns_mov_b32 s57, 0x07060501\ns_mov_b32 s58, 0x07060502\ns_mov_b32 s59, 0x07060503")
        e("s_mov_b32 s62, 0x0c0c0400\ns_mov_b32 s63, 0x04000c0c")
        e("s_cmp_eq_u32 s30, 8\ns_cbranch_scc1 L_w8a\ns_waitcnt vmcnt(10)\ns_branch L_w8b\nL_w8a:\ns_waitcnt vmcnt(%d)\nL_w8b:" % (5 if o.get("codepf", True) else 2))
        self.stamp(1)
        e("v_mov_b32 v96, 0\nv_mov_b32 v97, 0\ns_mov_b32 s64, 0x3f803f80")
        for k in range(8):
            e(f"v_dot2_f32_bf16 v96, v{24+k}, s64, v96")
            e(f"v_dot2_f32_bf16 v97, v{24+k}, v{24+k}, v97")
        self.row_allreduce("v_add_f32", ["v96", "v97"])
        e("v_permlane16_swap_b32 v96, v97\nv_add_f32 v96, v96, v97\nv_mov_b32 v97, v96\nv_permlane32_swap_b32 v96, v97\nv_add_f32 v96, v96, v97")
        e("v_readlane_b32 s64, v96, 0\nv_readlane_b32 s65, v96, 16")
        self.ln_scalars("s64", "s65", "v96", "v97", "v98", "v99")
        for i, xv in enumerate(("v14", "v15")):
            e(f"v_lshlrev_b32 {xv}, 16, {xv}")
            self.ln_apply(xv, "v96", "v97", "v98", "v99", "v100")
            for r in range(4):
                e(f"v_and_b32 v{104+4*i+r}, {xv}, v{120+r}")
        e("s_waitcnt lgkmcnt(0)")
        e("s_mul_i32 s31, s31, 0x19660d\ns_add_u32 s31, s31, 0x3c6ef35f")
        e("v_mov_b32 v7, s31")
        e("s_cmp_eq_u32 s30, 8\ns_cbranch_scc1 L_w8c\ns_waitcnt vmcnt(8)\ns_branch L_w8d\nL_w8c:\ns_waitcnt vmcnt(%d)\nL_w8d:" % (3 if o.get("codepf", True) else 0))
        self.stamp(2)
        self.dstamp(1)
        e("v_mfma_f32_16x16x32_bf16 v[100:103], v[104:107], v[16:19], 0")
        e("v_mfma_f32_16x16x32_bf16 v[100:103], v[108:111], v[20:23], v[100:103]")
        e("v_lshlrev_b32 v6, 5, v2\nv_lshlrev_b32 v12, 4, v3\nv_add_u32 v6, v6, v12\ns_lshl_b32 s64, s30, 9\nv_add_u32 v6, s64, v6")
        e("s_mov_b32 exec_lo, -1\ns_mov_b32 exec_hi, 0")
        e(f"ds_write_b128 v6, v[100:103] offset:{QP}")
        e("s_mov_b64 exec, -1")
        e("s_waitcnt lgkmcnt(0)\ns_barrier")
        e("s_cmp_eq_u32 s30, 8\ns_cbranch_scc0 L_gather1")
        e("v_and_b32 v6, 31, v1\nv_lshlrev_b32 v6, 4, v6\nv_lshrrev_b32 v12, 5, v1\nv_lshlrev_b32 v12, 9, v12\nv_add_u32 v6, v6, v12")
        for i in range(4):
            e(f"ds_read_b128 v[{32+4*i}:{35+4*i}], v6 offset:{QP + 1024*i}")
        e("s_mov_b32 exec_lo, -1\ns_mov_b32 exec_hi, 0")
        e("v_mov_b32 v48, 0\nv_mov_b32 v49, 0\nv_mov_b32 v50, 0\nv_mov_b32 v51, 0") if False else None
        e("s_mov_b64 exec, -1")
        for r in range(4): e(f"v_mov_b32 v{48+r}, 0")
        e("s_mov_b32 exec_lo, -1\ns_mov_b32 exec_hi, 0")
        e(f"ds_read_b128 v[48:51], v6 offset:{QP + 4096}")
        e("s_mov_b64 exec, -1")
        e("s_waitcnt lgkmcnt(0)")
        for r in range(4):
            e(f"v_add_f32 v{32+r}, v{32+r}, v{36+r}")
            e(f"v_add_f32 v{40+r}, v{40+r}, v{44+r}")
        for r in range(4):
            e(f"v_add_f32 v{32+r}, v{32+r}, v{40+r}")
        for r in range(4):
            e(f"v_add_f32 v{32+r}, v{32+r}, v{48+r}")
        for r in range(4): e(f"v_mov_b32 v{36+r}, v{32+r}")
        for r in range(4): e(f"v_permlane32_swap_b32 v{32+r}, v{36+r}")
        for r in range(4): e(f"v_add_f32 v{32+r}, v{32+r}, v{36+r}")
        self.tagins(32)
        e(f"s_lshl_b32 s64, s28, 13\ns_lshl_b32 s65, s29, 9\ns_add_u32 s64, s64, s65\ns_add_u32 s64, s64, {H1}")
        e("v_and_b32 v6, 31, v1\nv_lshlrev_b32 v6, 4, v6\nv_add_u32 v6, s64, v6")
        e("s_mov_b32 exec_lo, -1\ns_mov_b32 exec_hi, 0")
        e("global_store_dwordx4 v6, v[32:35], s[26:27] sc1")
        e("s_mov_b64 exec, -1")
        self.stamp(3)
        e("s_branch L_afterH1")
        e("L_gather1:")
        e(f"s_lshl_b32 s64, s28, 13\ns_lshl_b32 s65, s30, 10\ns_add_u32 s64, s64, s65\ns_add_u32 s64, s64, {H1}")
        e("v_lshlrev_b32 v6, 4, v1\nv_add_u32 v6, s64, v6")
        e(f"s_waitcnt vmcnt({o.get('h1wait', 4)})")
        e("global_load_dwordx4 v[96:99], v6, s[26:27] sc1")
        e("s_movk_i32 s64, 0x1000")
        for t in range(8):
            e(f"buffer_load_dwordx4 v[{64+4*t}:{67+4*t}], v8, s[44:47], {'s64' if t>=4 else '0'} offen offset:{(t%4)*1024} {nt}")
        nlater = 0
        e("s_cmp_ge_u32 s29, 9\ns_cbranch_scc0 L_nowo\ns_cmp_lt_u32 s29, 15\ns_cbranch_scc0 L_nowo")
        self.wo_dma()
        e("L_nowo:")
        e("s_cmp_ge_u32 s29, 9\ns_cbranch_scc0 L_h1w8\ns_cmp_lt_u32 s29, 15\ns_cbranch_scc0 L_h1w8")
        e("s_waitcnt vmcnt(14)\ns_branch L_h1chk\nL_h1w8:\ns_waitcnt vmcnt(8)\nL_h1chk:")
        self.stamp(3)
        e("s_mov_b32 s66, 0")
        e("L_h1loop:")
        self.validate([96], "v100", "v101")
        e("s_cbranch_vccz L_h1ok")
        e("s_add_u32 s66, s66, 1\ns_cmp_gt_u32 s66, %d\ns_cbranch_scc1 L_h1ok" % o.get("maxspin", 20000))
        e("s_sleep 2")
        e("global_load_dwordx4 v[96:99], v6, s[26:27] sc1\ns_waitcnt vmcnt(0)\ns_branch L_h1loop")
        e("L_h1ok:")
        e("v_lshlrev_b32 v6, 4, v1\ns_lshl_b32 s64, s30, 10\nv_add_u32 v6, s64, v6")
        e(f"ds_write_b128 v6, v[96:99] offset:{QG}")
        e("L_afterH1:")
        e("s_waitcnt lgkmcnt(0)\ns_barrier")
        e("s_cmp_lt_u32 s30, 4\ns_cbranch_scc0 L_noqsum")
        e("v_lshlrev_b32 v6, 2, v0")
        for k in range(8):
            e(f"ds_read_b32 v{96+k}, v6 offset:{QG + 1024*k}")
        e("s_waitcnt lgkmcnt(0)")
        for k in range(8): e(f"v_and_b32 v{96+k}, 0xffffff00, v{96+k}")
        e("v_add_f32 v96, v96, v97\nv_add_f32 v98, v98, v99\nv_add_f32 v100, v100, v101\nv_add_f32 v102, v102, v103")
        e("v_add_f32 v96, v96, v98\nv_add_f32 v100, v100, v102\nv_add_f32 v96, v96, v100")
        e("v_cvt_pk_bf16_f32 v96, v96, v96\nv_lshlrev_b32 v6, 1, v0")
        e(f"ds_write_b16 v6, v96 offset:{QB}")
        e("L_noqsum:")
        e("s_waitcnt lgkmcnt(0)\ns_barrier")
        e("s_cmp_eq_u32 s30, 8\ns_cbranch_scc1 L_w8att")
        e("v_bfe_u32 v6, v1, 2, 1\nv_lshlrev_b32 v6, 8, v6\nv_lshlrev_b32 v12, 6, v3\nv_add_u32 v6, v6, v12\nv_and_b32 v12, 3, v1\nv_lshlrev_b32 v12, 4, v12\nv_add_u32 v6, v6, v12")
        e(f"ds_read_b128 v[16:19], v6 offset:{QB}")
        e("s_waitcnt lgkmcnt(0)")
        self.stamp(4)
        for t in range(8):
            e(f"v_mfma_f32_16x16x32_bf16 v[{96+4*t if t<6 else 24+4*(t-6)}:{99+4*t if t<6 else 27+4*(t-6)}], v[16:19], v[{32+4*t}:{35+4*t}], 0")
        D = [96+4*t if t < 6 else 24+4*(t-6) for t in range(8)]
        for k in range(4):
            for t in range(8):
                if k == 0: e(f"v_mov_b32_dpp v{32+t}, v{D[t]} quad_perm:[0,0,0,0] row_mask:0xf bank_mask:0xf")
                else: e(f"v_add_f32_dpp v{32+t}, v{D[t]+k}, v{32+t} quad_perm:[{k},{k},{k},{k}] row_mask:0xf bank_mask:0xf")
        e("s_mov_b32 s64, 0x3db504f3")
        for t in range(0, 8, 2):
            e(f"v_cvt_pk_bf16_f32 v{40+t}, v{32+t}, v{33+t}")
        for t in range(0, 8, 2):
            e(f"v_lshlrev_b32 v{32+t}, 16, v{40+t}\nv_and_b32 v{33+t}, 0xffff0000, v{40+t}")
        for t in range(8): e(f"v_mul_f32 v{32+t}, s64, v{32+t}")
        for t in range(0, 8, 2):
            e(f"v_cvt_pk_bf16_f32 v{40+t}, v{32+t}, v{33+t}")
        for t in range(0, 8, 2):
            e(f"v_lshlrev_b32 v{32+t}, 16, v{40+t}\nv_and_b32 v{33+t}, 0xffff0000, v{40+t}")
        e("v_max3_f32 v40, v32, v33, v34\nv_max3_f32 v41, v35, v36, v37\nv_max3_f32 v40, v40, v38, v39\nv_max_f32 v40, v40, v41")
        self.row_allreduce("v_max_f32", ["v40"], steps=(8, 4))
        e("v_lshlrev_b32 v6, 1, v1\ns_lshl_b32 s64, s30, 2\nv_add_u32 v6, s64, v6")
        e("s_mov_b64 exec, 0x10001")
        e(f"ds_write_b32 v6, v40 offset:{MX}")
        e("s_mov_b64 exec, -1")
        e("L_w8att:")
        e("s_waitcnt lgkmcnt(0)\ns_barrier")
        e("s_cmp_eq_u32 s30, 8\ns_cbranch_scc1 L_w8pv")
        e("v_and_b32 v6, 1, v3\nv_lshlrev_b32 v6, 5, v6")
        e(f"ds_read_b128 v[44:47], v6 offset:{MX}\nds_read_b128 v[48:51], v6 offset:{MX+16}")
        e("s_waitcnt lgkmcnt(0)")
        e("v_max3_f32 v40, v44, v45, v46\nv_max3_f32 v41, v47, v48, v49\nv_max3_f32 v40, v40, v50, v51\nv_max_f32 v40, v40, v41")
        e("s_mov_b32 s64, 0x3fb8aa3b")
        for t in range(8): e(f"v_sub_f32 v{32+t}, v{32+t}, v40")
        for t in range(8): e(f"v_mul_f32 v{32+t}, s64, v{32+t}")
        for t in range(8): e(f"v_exp_f32 v{32+t}, v{32+t}")
        e("v_add_f32 v41, v32, v33\nv_add_f32 v42, v34, v35\nv_add_f32 v43, v36, v37\nv_add_f32 v44, v38, v39")
        e("v_add_f32 v41, v41, v42\nv_add_f32 v43, v43, v44\nv_add_f32 v41, v41, v43")
        for t in range(0, 8, 2):
            e(f"v_cvt_pk_bf16_f32 v{24+t//2}, v{32+t}, v{33+t}")
        self.row_allreduce("v_add_f32", ["v41"], steps=(8, 4))
        e("v_lshlrev_b32 v6, 1, v1\ns_lshl_b32 s64, s30, 2\nv_add_u32 v6, s64, v6")
        e("s_mov_b64 exec, 0x10001")
        e(f"ds_write_b32 v6, v41 offset:{LS}")
        e("s_mov_b64 exec, -1")
        e("v_bfe_u32 v6, v1, 3, 1\nv_lshlrev_b32 v6, 4, v6\nv_lshlrev_b32 v12, 2, v3\nv_add_u32 v6, v6, v12\nv_lshlrev_b32 v6, 2, v6")
        for k in range(4): e(f"ds_bpermute_b32 v{28+k}, v6, v{24+k}")
        e("s_waitcnt lgkmcnt(0)")
        e("s_mov_b32 s64, 0x01000100\ns_mov_b32 s65, 0x03020302")
        for t in range(8):
            e(f"v_perm_b32 v24, v{28+t//2}, v{28+t//2}, {'s64' if t%2==0 else 's65'}")
            for r in range(4):
                e(f"v_and_b32 v{32+4*t+r}, v24, v{120+r}")
        self.stamp(5)
        def pv(nl):
            for t in range(8):
                e(f"s_waitcnt vmcnt({7-t+nl})")
                e(f"v_mfma_f32_16x16x32_bf16 v[16:19], v[{32+4*t}:{35+4*t}], v[{64+4*t}:{67+4*t}], {'0' if t==0 else 'v[16:19]'}")
        e("s_cmp_ge_u32 s29, 9\ns_cbranch_scc0 L_pv0\ns_cmp_lt_u32 s29, 15\ns_cbranch_scc0 L_pv0")
        pv(6)
        e("s_branch L_pvdone")
        e("L_pv0:")
        pv(0)
        e("L_pvdone:")
        self.stamp(6)
        e("v_lshrrev_b32 v6, 1, v3\nv_lshlrev_b32 v6, 9, v6\nv_lshlrev_b32 v12, 5, v2\nv_add_u32 v6, v6, v12\nv_and_b32 v12, 1, v3\nv_lshlrev_b32 v12, 4, v12\nv_add_u32 v6, v6, v12")
        e("s_lshl_b32 s64, s30, 10\nv_add_u32 v6, s64, v6")
        e(f"ds_write_b128 v6, v[16:19] offset:{QG}")
        e("L_w8pv:")
        e("s_waitcnt lgkmcnt(0)\ns_barrier")
        e(f"s_mul_i32 s67, s28, 18432\ns_mul_i32 s64, s29, 1152\ns_add_u32 s67, s67, s64\ns_add_u32 s67, s67, {H2}")
        e("s_cmp_eq_u32 s30, 8\ns_cbranch_scc1 L_w8st")
        e("v_and_b32 v6, 7, v1\nv_lshlrev_b32 v6, 4, v6\nv_lshrrev_b32 v12, 3, v1\nv_lshlrev_b32 v12, 10, v12\nv_add_u32 v6, v6, v12\ns_lshl_b32 s64, s30, 7\nv_add_u32 v6, s64, v6")
        e(f"ds_read_b128 v[16:19], v6 offset:{QG}")
        e("s_waitcnt lgkmcnt(0)")
        self.reduce_stride8(16, 20)
        self.tagins(16)
        e("v_and_b32 v6, 7, v1\nv_lshlrev_b32 v6, 4, v6\ns_lshl_b32 s64, s30, 7\ns_add_u32 s64, s64, s67\nv_add_u32 v6, s64, v6")
        e("s_mov_b64 exec, 0xff")
        e("global_store_dwordx4 v6, v[16:19], s[26:27] sc1")
        e("s_mov_b64 exec, -1")
        e("s_branch L_roles")
        e("L_w8st:")
        e("v_mov_b32 v6, 0")
        e(f"ds_read_b128 v[32:35], v6 offset:{MX}\nds_read_b128 v[36:39], v6 offset:{MX+16}\nds_read_b128 v[40:43], v6 offset:{MX+32}\nds_read_b128 v[44:47], v6 offset:{MX+48}")
        e(f"ds_read_b128 v[48:51], v6 offset:{LS}\nds_read_b128 v[52:55], v6 offset:{LS+16}\nds_read_b128 v[56:59], v6 offset:{LS+32}\nds_read_b128 v[60:63], v6 offset:{LS+48}")
        e("s_waitcnt lgkmcnt(0)")
        e("v_max3_f32 v16, v32, v33, v34\nv_max3_f32 v16, v16, v35, v36\nv_max3_f32 v16, v16, v37, v38\nv_max_f32 v16, v16, v39")
        e("v_max3_f32 v18, v40, v41, v42\nv_max3_f32 v18, v18, v43, v44\nv_max3_f32 v18, v18, v45, v46\nv_max_f32 v18, v18, v47")
        e("v_add_f32 v17, v48, v49\nv_add_f32 v19, v56, v57")
        for k in range(2, 8): e(f"v_add_f32 v17, v17, v{48+k}\nv_add_f32 v19, v19, v{56+k}")
        self.tagins(16)
        e("s_add_u32 s64, s67, 1024\nv_mov_b32 v6, s64")
        e("s_mov_b64 exec, 1")
        e("global_store_dwordx4 v6, v[16:19], s[26:27] sc1")
        e("s_mov_b64 exec, -1")
        e("L_roles:")
        self.dstamp(3)
        self.stamp(7)
        e("s_cmp_lt_u32 s29, 9\ns_cbranch_scc1 L_roleA")
        e("s_cmp_lt_u32 s29, 15\ns_cbranch_scc0 L_fin")
        self.roleB1()
        e("L_roleA:")
        self.roleA()
        e("L_fin:")
        self.dstamp(7)
        if o.get("stamps"):
            self.stamp(15)
            e(f"s_mul_i32 s64, s2, 9\ns_add_u32 s64, s64, s30\ns_lshl_b32 s64, s64, 6\ns_add_u32 s64, s64, {TS}")
            e("v_lshlrev_b32 v6, 2, v1\nv_add_u32 v6, s64, v6")
            e("s_mov_b64 exec, 0xffff")
            e("global_store_dword v6, v127, s[26:27]")
        e("L_end:")
        e("s_endpgm")
        return e.text()

    def ln_scalars(self, s1, s2, vm, vs, vr, vt):
        e = self.e
        e(f"s_mov_b32 s68, 0x3ae38e39")
        e(f"v_mov_b32 {vm}, {s1}\nv_mul_f32 {vm}, s68, {vm}")
        e(f"v_mov_b32 {vs}, {s2}\nv_mul_f32 {vs}, s68, {vs}")
        e(f"v_fma_f32 {vs}, -{vm}, {vm}, {vs}")
        e(f"v_max_f32 {vs}, 0, {vs}")
        self.Rnd(vm, vm); self.Rnd(vs, vs)
        e(f"v_add_f32 {vs}, 0x3727c5ac, {vs}")
        self.Rnd(vs, vs)
        e(f"v_sqrt_f32 {vs}, {vs}")
        self.Rnd(vs, vs)
        e(f"v_rcp_f32 {vr}, {vs}")
    def ln_apply(self, x, vm, vs, vr, t0, t1):
        e = self.e
        e(f"v_sub_f32 {x}, {x}, {vm}")
        self.Rnd(x, x)
        e(f"v_mul_f32 {t0}, {x}, {vr}")
        e(f"v_fma_f32 {t1}, -{t0}, {vs}, {x}")
        e(f"v_fma_f32 {t0}, {t1}, {vr}, {t0}")
        e(f"v_cvt_pk_bf16_f32 {x}, {t0}, {t0}")
    def reduce_stride8(self, v, t):
        e = self.e
        for r in range(4): e(f"v_add_f32_dpp v{v+r}, v{v+r}, v{v+r} row_ror:8 row_mask:0xf bank_mask:0xf")
        for r in range(4): e(f"v_mov_b32 v{t+r}, v{v+r}")
        for r in range(4): e(f"v_permlane16_swap_b32 v{v+r}, v{t+r}")
        for r in range(4): e(f"v_add_f32 v{v+r}, v{v+r}, v{t+r}")
        for r in range(4): e(f"v_mov_b32 v{t+r}, v{v+r}")
        for r in range(4): e(f"v_permlane32_swap_b32 v{v+r}, v{t+r}")
        for r in range(4): e(f"v_add_f32 v{v+r}, v{v+r}, v{t+r}")
    def xrow_transpose_reduce(self, v):
        e = self.e
        e(f"v_permlane16_swap_b32 v{v}, v{v+1}\nv_permlane16_swap_b32 v{v+2}, v{v+3}")
        e(f"v_add_f32 v{v}, v{v}, v{v+1}\nv_add_f32 v{v+2}, v{v+2}, v{v+3}")
        e(f"v_permlane32_swap_b32 v{v}, v{v+2}")
        e(f"v_add_f32 v{v}, v{v}, v{v+2}")

    def wo_dma(self):
        e = self.e
        e("s_mov_b32 s52, s12\ns_mov_b32 s53, s13\ns_mov_b32 s54, %d\ns_mov_b32 s55, 0x20000" % (4096*1152))
        e("s_lshl_b32 s64, s28, 8\ns_lshl_b32 s65, s30, 5\ns_add_u32 s64, s64, s65\ns_mul_i32 s64, s64, 1152")
        e("s_sub_u32 s65, s29, 9\ns_mul_i32 s65, s65, 192\ns_add_u32 s64, s64, s65")
        e(f"s_mul_i32 s65, s30, 6144\ns_add_u32 s65, s65, {WB}")
        for i in range(6):
            e(f"v_add_u32 v100, {64*i}, v1\nv_mul_u32_u24 v101, 5462, v100\nv_lshrrev_b32 v101, 16, v101")
            e("v_mul_u32_u24 v102, 12, v101\nv_sub_u32 v102, v100, v102")
            e("v_bfe_u32 v103, v101, 3, 1\nv_lshlrev_b32 v103, 1, v103\nv_xor_b32 v102, v102, v103\nv_lshlrev_b32 v102, 4, v102")
            e("v_mul_u32_u24 v101, 1152, v101\nv_add_u32 v101, v101, v102")
            e("s_mov_b32 m0, s65\ns_add_u32 s65, s65, 1024")
            e("buffer_load_dwordx4 v101, s[52:55], s64 offen nt lds")

    def roleB1(self):
        e = self.e; o = self.o
        e("s_cmp_eq_u32 s30, 8\ns_cbranch_scc1 L_b1w8")
        e(f"s_mul_i32 s64, s28, 18432\ns_add_u32 s64, s64, {H2}")
        e("v_mul_u32_u24 v6, 1152, v2\nv_add_u32 v6, s64, v6\nv_add_u32 v9, 1024, v6")
        e("v_lshlrev_b32 v12, 5, v3\ns_lshl_b32 s65, s30, 7\nv_add_u32 v12, s65, v12\nv_add_u32 v6, v6, v12")
        e("s_waitcnt vmcnt(0)")
        self.stamp(8)
        e("v_lshlrev_b32 v10, 3, v3\nv_bfe_u32 v12, v1, 2, 2\nv_add_u32 v10, v10, v12\nv_mul_u32_u24 v10, 192, v10\nv_and_b32 v12, 3, v1\nv_lshlrev_b32 v12, 3, v12\nv_add_u32 v10, v10, v12")
        e(f"s_mul_i32 s65, s30, 6144\ns_add_u32 s65, s65, {WB}\nv_add_u32 v10, s65, v10")
        e("v_and_b32 v12, 1, v3\nv_lshlrev_b32 v12, 5, v12")
        e("v_add_u32 v11, v10, v12")
        e("v_sub_u32 v10, v10, v12")
        for tau in range(6):
            a = "v11" if tau % 2 == 0 else "v10"
            e(f"ds_read_b64_tr_b16 v[{32+4*tau}:{33+4*tau}], {a} offset:{32*tau}")
            e(f"ds_read_b64_tr_b16 v[{34+4*tau}:{35+4*tau}], {a} offset:{32*tau + 768}")
        if o.get("h2sleep"): e(f"s_sleep {o['h2sleep']}")
        e("s_mov_b32 s66, 0")
        e("L_h2loop:")
        e("global_load_dwordx4 v[64:67], v6, s[26:27] sc1\nglobal_load_dwordx4 v[68:71], v6, s[26:27] offset:16 sc1\nglobal_load_dwordx4 v[72:75], v9, s[26:27] sc1")
        e("s_waitcnt vmcnt(0)")
        self.validate([64, 68, 72], "v100", "v101")
        e("s_cbranch_vccz L_h2ok")
        e("s_add_u32 s66, s66, 1\ns_cmp_gt_u32 s66, %d\ns_cbranch_scc1 L_h2ok" % o.get("maxspin", 20000))
        e("s_sleep 1\ns_branch L_h2loop")
        e("L_h2ok:")
        self.dstamp(4)
        self.stamp(9)
        e("s_cmp_lt_u32 s30, 4\ns_cbranch_scc1 L_h2h0\nv_mov_b32 v72, v74\nv_mov_b32 v73, v75\nL_h2h0:")
        e("v_and_b32 v72, 0xffffff00, v72\nv_and_b32 v73, 0xffffff00, v73")
        e("v_mov_b32 v76, v72")
        self.row_allreduce("v_max_f32", ["v76"])
        e("v_sub_f32 v72, v72, v76\nv_mul_f32 v72, 0x3fb8aa3b, v72\nv_exp_f32 v72, v72")
        e("v_mul_f32 v73, v72, v73")
        self.row_allreduce("v_add_f32", ["v73"])
        e("v_rcp_f32 v73, v73")
        e("v_mul_f32 v72, v72, v73")
        for k in range(8): e(f"v_and_b32 v{64+k}, 0xffffff00, v{64+k}")
        for k in range(8): e(f"v_mul_f32 v{64+k}, v72, v{64+k}")
        self.row_allreduce("v_add_f32", [f"v{64+k}" for k in range(8)])
        for k in range(4): e(f"v_cvt_pk_bf16_f32 v{76+k}, v{64+2*k}, v{65+2*k}")
        e("s_waitcnt lgkmcnt(0)")
        for tau in range(6):
            e(f"v_mfma_f32_16x16x32_bf16 v[{80+4*tau}:{83+4*tau}], v[{32+4*tau}:{35+4*tau}], v[76:79], 0")
        e(f"v_lshlrev_b32 v6, 4, v3\ns_mul_i32 s64, s30, 384\nv_add_u32 v6, s64, v6")
        e("s_mov_b32 s64, 0x00010001\ns_mov_b32 s65, 0x00010001\ns_mov_b64 exec, s[64:65]")
        for tau in range(6):
            e(f"ds_write_b128 v6, v[{80+4*tau}:{83+4*tau}] offset:{WR + 64*tau}")
        e("s_mov_b64 exec, -1")
        e("L_b1w8:")
        e("s_waitcnt lgkmcnt(0)\ns_barrier")
        e("s_cmp_lt_u32 s30, 3\ns_cbranch_scc0 L_b1pubdone")
        e("v_and_b32 v6, 7, v1\nv_lshlrev_b32 v6, 4, v6\nv_lshrrev_b32 v12, 3, v1\nv_mul_u32_u24 v12, 384, v12\nv_add_u32 v6, v6, v12\ns_lshl_b32 s64, s30, 7\nv_add_u32 v6, s64, v6")
        e(f"ds_read_b128 v[16:19], v6 offset:{WR}")
        e("s_waitcnt lgkmcnt(0)")
        self.reduce_stride8(16, 20)
        self.tagins(16)
        e(f"s_mul_i32 s64, s28, 2304\ns_sub_u32 s65, s29, 9\ns_mul_i32 s65, s65, 384\ns_add_u32 s64, s64, s65\ns_lshl_b32 s65, s30, 7\ns_add_u32 s64, s64, s65\ns_add_u32 s64, s64, {H3}")
        e("v_and_b32 v6, 7, v1\nv_lshlrev_b32 v6, 4, v6\nv_add_u32 v6, s64, v6")
        e("s_mov_b64 exec, 0xff")
        e("global_store_dwordx4 v6, v[16:19], s[26:27] sc1")
        e("s_mov_b64 exec, -1")
        e("L_b1pubdone:")
        self.stamp(10)
        e("s_sub_u32 s32, s29, 9\ns_cmp_lt_u32 s32, 2\ns_cbranch_scc0 L_rho2\ns_lshl_b32 s64, s28, 1\ns_add_u32 s32, s32, s64\ns_branch L_reducer")
        e("L_rho2:\ns_cmp_eq_u32 s32, 2\ns_cbranch_scc0 L_fin\ns_cmp_lt_u32 s28, 4\ns_cbranch_scc0 L_fin\ns_add_u32 s32, s28, 32")
        e("L_reducer:")
        e("s_cmp_eq_u32 s30, 0\ns_cbranch_scc0 L_redh4")
        e(f"v_lshrrev_b32 v6, 2, v1\nv_mul_u32_u24 v6, 2304, v6\nv_and_b32 v12, 3, v1\nv_lshlrev_b32 v12, 4, v12\nv_add_u32 v6, v6, v12\ns_lshl_b32 s64, s32, 6\ns_add_u32 s64, s64, {H3}\nv_add_u32 v6, s64, v6")
        e("v_and_b32 v12, 3, v1\nv_lshlrev_b32 v12, 3, v12\ns_lshl_b32 s64, s32, 5\nv_add_u32 v12, s64, v12")
        e("buffer_load_dwordx2 v[40:41], v12, s[36:39], 0 offen")
        e("s_mov_b32 s66, 0")
        e("L_rh3loop:")
        e("global_load_dwordx4 v[32:35], v6, s[26:27] sc1\ns_waitcnt vmcnt(0)")
        self.validate([32], "v100", "v101")
        e("s_cbranch_vccz L_rh3ok")
        e("s_add_u32 s66, s66, 1\ns_cmp_gt_u32 s66, %d\ns_cbranch_scc1 L_rh3ok" % o.get("maxspin", 20000))
        e("s_sleep 4\ns_branch L_rh3loop")
        e("L_rh3ok:")
        for r in range(4): e(f"v_and_b32 v{32+r}, 0xffffff00, v{32+r}")
        self.reduce_stride4(32, 36)
        e("v_lshlrev_b32 v44, 16, v40\nv_and_b32 v45, 0xffff0000, v40\nv_lshlrev_b32 v46, 16, v41\nv_and_b32 v47, 0xffff0000, v41")
        for r in range(4):
            self.Rnd(f"v{32+r}", f"v{32+r}")
            e(f"v_add_f32 v{44+r}, v{44+r}, v{32+r}")
            self.Rnd(f"v{44+r}", f"v{44+r}")
        e("L_redh4:")
        e(f"v_lshrrev_b32 v6, 2, v0\nv_mul_u32_u24 v6, 2304, v6\nv_and_b32 v12, 3, v0\nv_lshlrev_b32 v12, 4, v12\nv_add_u32 v6, v6, v12\ns_lshl_b32 s64, s32, 6\ns_add_u32 s64, s64, {H4}\nv_add_u32 v6, s64, v6")
        if o.get("h4sleep"): e(f"s_sleep {o['h4sleep']}")
        e("s_mov_b32 s66, 0")
        e("L_h4loop:")
        e("global_load_dwordx4 v[32:35], v6, s[26:27] sc1\ns_waitcnt vmcnt(0)")
        self.validate([32], "v100", "v101")
        e("s_cbranch_vccz L_h4ok")
        e("s_add_u32 s66, s66, 1\ns_cmp_gt_u32 s66, %d\ns_cbranch_scc1 L_h4ok" % o.get("maxspin", 20000))
        e("s_sleep 2\ns_branch L_h4loop")
        e("L_h4ok:")
        self.dstamp(6)
        self.stamp(11)
        for r in range(4): e(f"v_and_b32 v{32+r}, 0xffffff00, v{32+r}")
        self.reduce_stride4(32, 36)
        e(f"v_and_b32 v6, 3, v1\nv_lshlrev_b32 v6, 4, v6\ns_lshl_b32 s64, s30, 6\nv_add_u32 v6, s64, v6")
        e("s_mov_b64 exec, 0xf")
        e(f"ds_write_b128 v6, v[32:35] offset:{FR}")
        e("s_mov_b64 exec, -1")
        e("s_waitcnt lgkmcnt(0)\ns_barrier")
        e("s_cmp_eq_u32 s30, 0\ns_cbranch_scc0 L_fin")
        e("v_and_b32 v6, 3, v1\nv_lshlrev_b32 v6, 4, v6\nv_lshrrev_b32 v12, 2, v1\nv_lshlrev_b32 v12, 6, v12\nv_add_u32 v6, v6, v12")
        for r in range(4): e(f"v_mov_b32 v{32+r}, 0")
        e("s_mov_b32 exec_lo, -1\ns_mov_b32 exec_hi, 0xf")
        e(f"ds_read_b128 v[32:35], v6 offset:{FR}")
        e("s_mov_b64 exec, -1")
        e("s_waitcnt lgkmcnt(0)")
        self.reduce_stride4(32, 36)
        for r in range(4):
            self.Rnd(f"v{32+r}", f"v{32+r}")
            e(f"v_add_f32 v{32+r}, v{44+r}, v{32+r}")
        e("v_cvt_pk_bf16_f32 v32, v32, v33\nv_cvt_pk_bf16_f32 v33, v34, v35")
        e("s_mov_b32 s52, s22\ns_mov_b32 s53, s23\ns_movk_i32 s54, 1152\ns_mov_b32 s55, 0x20000")
        e("v_and_b32 v6, 3, v1\nv_lshlrev_b32 v6, 3, v6\ns_lshl_b32 s64, s32, 5\nv_add_u32 v6, s64, v6")
        e("s_mov_b64 exec, 0xf")
        e("buffer_store_dwordx2 v[32:33], v6, s[52:55], 0 offen")
        e("s_mov_b64 exec, -1")
        e("s_cmp_eq_u32 s32, 0\ns_cbranch_scc0 L_fin")
        e("v_mov_b32 v6, 0\ns_mov_b64 exec, 1\nglobal_store_dword v6, v7, s[26:27] sc1\ns_mov_b64 exec, -1")
        e("s_branch L_fin")
    def reduce_stride4(self, v, t):
        e = self.e
        for st in (8, 4):
            for r in range(4): e(f"v_add_f32_dpp v{v+r}, v{v+r}, v{v+r} row_ror:{st} row_mask:0xf bank_mask:0xf")
        for r in range(4): e(f"v_mov_b32 v{t+r}, v{v+r}")
        for r in range(4): e(f"v_permlane16_swap_b32 v{v+r}, v{t+r}")
        for r in range(4): e(f"v_add_f32 v{v+r}, v{v+r}, v{t+r}")
        for r in range(4): e(f"v_mov_b32 v{t+r}, v{v+r}")
        for r in range(4): e(f"v_permlane32_swap_b32 v{v+r}, v{t+r}")
        for r in range(4): e(f"v_add_f32 v{v+r}, v{v+r}, v{t+r}")

    def roleA(self):
        e = self.e; o = self.o
        e("s_mul_i32 s32, s28, 9\ns_add_u32 s32, s32, s29")
        e("v_lshrrev_b32 v10, 2, v1\nv_mul_u32_u24 v10, 9216, v10\nv_and_b32 v12, 3, v1\nv_lshrrev_b32 v11, 5, v1\nv_lshlrev_b32 v11, 1, v11\nv_xor_b32 v12, v12, v11\nv_lshlrev_b32 v12, 4, v12\nv_add_u32 v10, v10, v12")
        e("s_lshl_b32 s64, s32, 6\ns_mul_i32 s65, s30, 589824\ns_add_u32 s68, s64, s65")
        e(f"s_lshl_b32 s69, s30, 12\ns_add_u32 s69, s69, {WB}")
        for (p, lo) in ((16, 0), (18, 36864)):
            e(f"s_mov_b32 s52, s{p}\ns_mov_b32 s53, s{p+1}\ns_mov_b32 s54, {576*9216}\ns_mov_b32 s55, 0x20000")
            e(f"s_mov_b32 s64, s68\ns_add_u32 s65, s69, {lo}")
            for i in range(4):
                e("s_mov_b32 m0, s65\ns_add_u32 s65, s65, 1024")
                e("buffer_load_dwordx4 v10, s[52:55], s64 offen nt lds")
                if i < 3: e(f"s_add_u32 s64, s64, {16*9216}")
        e(f"v_mul_u32_u24 v6, 2304, v3\nv_lshlrev_b32 v12, 4, v2\nv_add_u32 v6, v6, v12\ns_lshl_b32 s64, s30, 8\ns_add_u32 s64, s64, {H3}\nv_add_u32 v6, s64, v6")
        e("v_add_u32 v8, 9216, v6\nv_add_u32 v9, 18432, v6\nv_add_u32 v13, 27648, v6")
        e("v_lshrrev_b32 v14, 3, v1\nv_mul_u32_u24 v14, 1152, v14\nv_and_b32 v12, 7, v1\nv_bfe_u32 v11, v1, 4, 1\nv_lshlrev_b32 v11, 1, v11\nv_xor_b32 v12, v12, v11")
        e("v_xor_b32 v11, 4, v12\nv_lshlrev_b32 v12, 4, v12\nv_lshlrev_b32 v11, 4, v11\nv_add_u32 v15, v14, v11\nv_add_u32 v14, v14, v12")
        e(f"s_waitcnt vmcnt({o.get('h3wait', 2)})")
        self.stamp(8)
        def h3loads():
            e("global_load_dwordx4 v[80:83], v6, s[26:27] sc1\nglobal_load_dwordx4 v[84:87], v8, s[26:27] sc1\nglobal_load_dwordx4 v[88:91], v9, s[26:27] sc1\nglobal_load_dwordx4 v[92:95], v13, s[26:27] sc1")
        h3loads()
        e(f"s_mov_b32 s52, s20\ns_mov_b32 s53, s21\ns_mov_b32 s54, {4608*1152}\ns_mov_b32 s55, 0x20000")
        e(f"s_mul_i32 s64, s32, 36864\ns_lshl_b32 s65, s30, 7\ns_add_u32 s64, s64, s65\ns_add_u32 s65, s69, {2*36864}")
        for i in range(4):
            e("s_mov_b32 m0, s65\ns_add_u32 s65, s65, 1024")
            e(f"buffer_load_dwordx4 {'v14' if i%2==0 else 'v15'}, s[52:55], s64 offen nt lds")
            if i < 3: e(f"s_add_u32 s64, s64, {8*1152}")
        e("s_waitcnt vmcnt(4)")
        e("v_lshlrev_b32 v10, 3, v3\nv_bfe_u32 v12, v1, 2, 2\nv_add_u32 v10, v10, v12\nv_lshlrev_b32 v10, 6, v10\nv_and_b32 v12, 3, v1\nv_lshlrev_b32 v12, 3, v12\nv_add_u32 v10, v10, v12\nv_add_u32 v10, s69, v10")
        e("v_and_b32 v12, 1, v3\nv_lshlrev_b32 v12, 5, v12\nv_add_u32 v11, v10, v12\nv_xor_b32 v12, 32, v12\nv_add_u32 v10, v10, v12")
        for m, lo in enumerate((0, 36864)):
            for s in range(2):
                for tau in range(2):
                    fr = 32 + 16*m + 8*s + 4*tau
                    a = "v11" if tau == 0 else "v10"
                    off = lo + 2048*s
                    if off + 256 > 65535:
                        raise RuntimeError("offset")
                    e(f"ds_read_b64_tr_b16 v[{fr}:{fr+1}], {a} offset:{off}")
                    e(f"ds_read_b64_tr_b16 v[{fr+2}:{fr+3}], {a} offset:{off+256}")
        e("s_mov_b32 s66, 0")
        e("L_h3loop:")
        self.validate([80, 84, 88, 92], "v100", "v101")
        e("s_cbranch_vccz L_h3ok")
        e("s_add_u32 s66, s66, 1\ns_cmp_gt_u32 s66, %d\ns_cbranch_scc1 L_h3ok" % o.get("maxspin", 20000))
        e("s_sleep 2")
        h3loads()
        e("s_waitcnt vmcnt(0)\ns_branch L_h3loop")
        e("L_h3ok:")
        self.dstamp(5)
        self.stamp(9)
        for k in range(16): e(f"v_and_b32 v{80+k}, 0xffffff00, v{80+k}")
        for r in range(4):
            e(f"v_add_f32 v{80+r}, v{80+r}, v{84+r}\nv_add_f32 v{88+r}, v{88+r}, v{92+r}")
        for r in range(4): e(f"v_add_f32 v{80+r}, v{80+r}, v{88+r}")
        self.xrow_transpose_reduce(80)
        self.Rnd("v80", "v80")
        e("v_lshlrev_b32 v81, 16, v126\nv_add_f32 v80, v81, v80")
        self.Rnd("v80", "v80")
        e("v_mul_f32 v81, v80, v80\nv_mov_b32 v82, v80")
        self.row_allreduce("v_add_f32", ["v82", "v81"])
        e("v_permlane16_swap_b32 v82, v81\nv_add_f32 v82, v82, v81\nv_mov_b32 v81, v82\nv_permlane32_swap_b32 v82, v81\nv_add_f32 v82, v82, v81")
        e("v_lshlrev_b32 v6, 2, v1\ns_lshl_b32 s64, s30, 2\nv_add_u32 v6, s64, v6")
        e("s_mov_b64 exec, 0x10001")
        e(f"ds_write_b32 v6, v82 offset:{ST2}")
        e("s_mov_b64 exec, -1")
        e("s_waitcnt lgkmcnt(0)\ns_barrier")
        e("v_lshlrev_b32 v6, 2, v1\nv_mov_b32 v82, 0")
        e("s_mov_b64 exec, 0x01ff01ff")
        e(f"ds_read_b32 v82, v6 offset:{ST2}")
        e("s_mov_b64 exec, -1")
        e("s_waitcnt lgkmcnt(0)")
        self.row_allreduce("v_add_f32", ["v82"])
        e("v_readlane_b32 s64, v82, 0\nv_readlane_b32 s65, v82, 16")
        self.ln_scalars("s64", "s65", "v84", "v85", "v86", "v87")
        self.ln_apply("v80x", "v84", "v85", "v86", "v87", "v88") if False else None
        e("v_mov_b32 v89, v80")
        self.ln_apply("v89", "v84", "v85", "v86", "v87", "v88")
        e(f"v_lshlrev_b32 v6, 2, v2\nv_add_u32 v6, v6, v3\nv_lshlrev_b32 v6, 1, v6\ns_lshl_b32 s64, s30, 7\nv_add_u32 v6, s64, v6")
        e(f"ds_write_b16 v6, v89 offset:{HNL}")
        e("v_lshlrev_b32 v6, 4, v3\nv_add_u32 v6, s64, v6")
        e("s_waitcnt lgkmcnt(0)")
        e(f"ds_read_b128 v[84:87], v6 offset:{HNL}\nds_read_b128 v[88:91], v6 offset:{HNL+64}")
        e("s_waitcnt lgkmcnt(0)")
        for s in range(2):
            for m in range(2):
                for tau in range(2):
                    fr = 32 + 16*m + 8*s + 4*tau; d = 96 + 8*m + 4*tau
                    e(f"v_mfma_f32_16x16x32_bf16 v[{d}:{d+3}], v[{fr}:{fr+3}], v[{84+4*s}:{87+4*s}], {'0' if s==0 else f'v[{d}:{d+3}]'}")
        e("s_waitcnt vmcnt(0)")
        self.stamp(10)
        e("v_lshlrev_b32 v10, 3, v3\nv_bfe_u32 v12, v1, 2, 2\nv_add_u32 v10, v10, v12\nv_lshlrev_b32 v10, 7, v10\nv_and_b32 v12, 3, v1\nv_lshlrev_b32 v12, 3, v12\nv_add_u32 v10, v10, v12")
        e("v_bfe_u32 v12, v1, 3, 1\nv_and_b32 v11, 1, v3\nv_lshlrev_b32 v11, 1, v11\nv_or_b32 v12, v12, v11\nv_lshlrev_b32 v12, 5, v12\nv_add_u32 v10, v10, v12")
        e(f"s_add_u32 s65, s69, {2*36864}\nv_add_u32 v10, s65, v10")
        for tau in range(4):
            e(f"v_xor_b32 v11, {32*tau}, v10")
            e(f"ds_read_b64_tr_b16 v[{64+4*tau}:{65+4*tau}], v11\nds_read_b64_tr_b16 v[{66+4*tau}:{67+4*tau}], v11 offset:512")
        e(f"v_lshlrev_b32 v6, 4, v3\ns_lshl_b32 s64, s30, 8\nv_add_u32 v6, s64, v6")
        e("s_mov_b32 s64, 0x00010001\ns_mov_b32 s65, 0x00010001\ns_mov_b64 exec, s[64:65]")
        for k in range(4):
            e(f"ds_write_b128 v6, v[{96+4*k}:{99+4*k}] offset:{MR + 64*k}")
        e("s_mov_b64 exec, -1")
        e("s_waitcnt lgkmcnt(0)\ns_barrier")
        e("v_lshlrev_b32 v6, 4, v2\nv_lshlrev_b32 v12, 8, v3\nv_add_u32 v6, v6, v12")
        for r in range(4): e(f"v_mov_b32 v{92+r}, 0")
        e(f"ds_read_b128 v[84:87], v6 offset:{MR}\nds_read_b128 v[88:91], v6 offset:{MR+1024}")
        e("s_mov_b64 exec, 0xffff")
        e(f"ds_read_b128 v[92:95], v6 offset:{MR+2048}")
        e("s_mov_b64 exec, -1")
        e("s_waitcnt lgkmcnt(0)")
        for r in range(4): e(f"v_add_f32 v{84+r}, v{84+r}, v{88+r}")
        for r in range(4): e(f"v_add_f32 v{84+r}, v{84+r}, v{92+r}")
        self.xrow_transpose_reduce(84)
        self.Rnd("v84", "v84")
        e("v_mov_b32_dpp v85, v84 row_ror:8 row_mask:0xf bank_mask:0xf")
        e("v_max_f32 v86, 0, v84\nv_mul_f32 v86, v86, v85\nv_cvt_pk_bf16_f32 v86, v86, v86")
        e(f"v_lshlrev_b32 v6, 2, v2\nv_add_u32 v6, v6, v3\nv_lshlrev_b32 v6, 1, v6\ns_lshl_b32 s64, s30, 6\nv_add_u32 v6, s64, v6")
        e("s_mov_b32 s66, 0x00ff00ff\ns_mov_b32 s67, 0x00ff00ff\ns_mov_b64 exec, s[66:67]")
        e(f"ds_write_b16 v6, v86 offset:{HHL}")
        e("s_mov_b64 exec, -1")
        e("v_lshlrev_b32 v6, 4, v3\nv_add_u32 v6, s64, v6")
        e("s_waitcnt lgkmcnt(0)")
        e(f"ds_read_b128 v[84:87], v6 offset:{HHL}")
        e("s_waitcnt lgkmcnt(0)")
        for tau in range(4):
            e(f"v_mfma_f32_16x16x32_bf16 v[{96+4*tau}:{99+4*tau}], v[{64+4*tau}:{67+4*tau}], v[84:87], 0")
        for tau in range(1, 4):
            for r in range(4):
                e(f"v_mov_b32_dpp v{96+r}, v{96+4*tau+r} quad_perm:[0,1,2,3] row_mask:0xf bank_mask:{1<<tau:#x}")
        self.tagins(96)
        e(f"s_mul_i32 s64, s32, 2304\ns_lshl_b32 s65, s30, 8\ns_add_u32 s64, s64, s65\ns_add_u32 s64, s64, {H4}")
        e("v_bfe_u32 v6, v1, 2, 2\nv_lshlrev_b32 v6, 6, v6\nv_lshlrev_b32 v12, 4, v3\nv_add_u32 v6, v6, v12\nv_add_u32 v6, s64, v6")
        e("s_mov_b32 s64, 0x11111111\ns_mov_b32 s65, 0x11111111\ns_mov_b64 exec, s[64:65]")
        e("global_store_dwordx4 v6, v[96:99], s[26:27] sc1")
        e("s_mov_b64 exec, -1")
        self.stamp(11)

def build(opt=None):
    opt = opt or {}
    g = G(opt)
    body = g.gen()
    name = NAME + "_kernel"
    txt = HEADER + "; Override launch geometry by editing the next line (default: block=256,\n; grid=ceil(out_elems/256), lds=0). Harness parses it; keep it on one line.\n"
    txt += f"; @launch grid=(256,1,1) block=(576,1,1) lds={LDS_BYTES}\n"
    txt += f""".amdgcn_target "amdgcn-amd-amdhsa--gfx950"
.text
.globl {name}
.p2align 8
.type {name},@function
{name}:
{body}.section .rodata,"a"
.p2align 6
.amdhsa_kernel {name}
  .amdhsa_next_free_vgpr 128
  .amdhsa_next_free_sgpr 96
  .amdhsa_accum_offset 128
  .amdhsa_group_segment_fixed_size 0
  .amdhsa_kernarg_size 96
  .amdhsa_user_sgpr_count 2
  .amdhsa_user_sgpr_kernarg_segment_ptr 1
  .amdhsa_system_sgpr_workgroup_id_x 1
.end_amdhsa_kernel
"""
    return txt, g
if __name__ == "__main__":
    import json
    opt = json.loads(sys.argv[2]) if len(sys.argv) > 2 else {}
    txt, g = build(opt)
    open(sys.argv[1], "w").write(txt)
    print("instrs", g.e.count, "nops", g.e.nops)
```

```python
import sys
sys.path.insert(0, "work")
from emit import E
NAME = "sequential_preLN__sliding_block_cached__glu_gated_reglu__decode"
HEADER = open("cdna_kernels/" + NAME + ".s.ref").read().split("; Override launch geometry")[0]

H1 = 0x10000; H2 = 0x40000; H3 = 0x90000; H4 = 0xA0000; TS = 0x400000
XT = 0
FL = 256
QB = 512
MX = 1024
LS = 1056
PL = 1280
OP = 2560
ST2 = 6656
HNL = 6784
MR = 7936
HHL = 10240
WR = 6656
FR = 9728
WB = 11264
LDS_BYTES = WB + 3 * 36864

class G:
    def __init__(self, opt):
        self.o = opt; self.e = E(); self.uid = 0
    def stamp(self, k):
        if not self.o.get("stamps"): return
        e = self.e
        e(f"s_memrealtime s[90:91]\ns_waitcnt lgkmcnt(0)\nv_writelane_b32 v127, s90, {k}")
    def note(self, k, sreg):
        if self.o.get("stamps"): self.e(f"v_writelane_b32 v127, {sreg}, {k}")
    def Rnd(self, d, s):
        self.e(f"v_cvt_pk_bf16_f32 {d}, {s}, {s}")
        self.e(f"v_and_b32 {d}, 0xffff0000, {d}")
    def row_allreduce(self, op, vs, steps=(8, 4, 2, 1)):
        for st in steps:
            for v in vs:
                self.e(f"{op}_dpp {v}, {v}, {v} row_ror:{st} row_mask:0xf bank_mask:0xf")
    def tagins(self, v4):
        for k in range(4):
            self.e(f"v_perm_b32 v{v4+k}, v{v4+k}, v7, s{56+k}")
    def validate(self, grans, t0, t1):
        e = self.e
        for i, gb in enumerate(grans):
            e(f"v_perm_b32 {t0}, v{gb+1}, v{gb}, s62")
            e(f"v_perm_b32 {t1}, v{gb+3}, v{gb+2}, s63")
            e(f"v_or_b32 {t0}, {t0}, {t1}")
            e(f"v_cmp_ne_u32 vcc, {t0}, v7")
            if len(grans) > 1:
                if i == 0: e("s_mov_b64 s[60:61], vcc")
                else: e("s_or_b64 s[60:61], s[60:61], vcc")
        if len(grans) > 1: e("s_mov_b64 vcc, s[60:61]")
    def spin_tail(self, okl, loopl, sleep):
        e = self.e
        e(f"s_cbranch_vccz {okl}")
        e("s_add_u32 s66, s66, 1\ns_cmp_gt_u32 s66, %d\ns_cbranch_scc1 %s" % (self.o.get("maxspin", 20000), okl))
        if sleep: e(f"s_sleep {sleep}")
    def masks(self):
        e = self.e
        e("v_and_b32 v6, 1, v1\nv_lshlrev_b32 v6, 4, v6\nv_mov_b32 v12, 0xffff\nv_lshlrev_b32 v12, v6, v12")
        e("v_bfe_u32 v6, v1, 1, 2")
        for r in range(4):
            e(f"v_cmp_eq_u32 vcc, {r}, v6\nv_cndmask_b32 v{120+r}, 0, v12, vcc")
    def consts(self):
        e = self.e
        e("s_mov_b32 s56, 0x07060500\ns_mov_b32 s57, 0x07060501\ns_mov_b32 s58, 0x07060502\ns_mov_b32 s59, 0x07060503")
        e("s_mov_b32 s62, 0x0c0c0400\ns_mov_b32 s63, 0x04000c0c")
    def epoch(self):
        e = self.e
        e("s_waitcnt lgkmcnt(0)")
        e("s_mul_i32 s31, s31, 0x19660d\ns_add_u32 s31, s31, 0x3c6ef35f\nv_mov_b32 v7, s31")
    def ln_scalars(self, s1, s2, vm, vs, vr):
        e = self.e
        e(f"s_mov_b32 s68, 0x3ae38e39")
        e(f"v_mov_b32 {vm}, {s1}\nv_mov_b32 {vs}, {s2}\nv_mul_f32 {vm}, s68, {vm}\nv_mul_f32 {vs}, s68, {vs}")
        e(f"v_fma_f32 {vs}, -{vm}, {vm}, {vs}")
        e(f"v_max_f32 {vs}, 0, {vs}")
        self.Rnd(vs, vs); self.Rnd(vm, vm)
        e(f"v_add_f32 {vs}, 0x3727c5ac, {vs}")
        self.Rnd(vs, vs)
        e(f"v_sqrt_f32 {vs}, {vs}")
        self.Rnd(vs, vs)
        e(f"v_rcp_f32 {vr}, {vs}")
    def ln_apply(self, x, vm, vs, vr, t0, t1):
        e = self.e
        e(f"v_sub_f32 {x}, {x}, {vm}")
        self.Rnd(x, x)
        e(f"v_mul_f32 {t0}, {x}, {vr}")
        e(f"v_fma_f32 {t1}, -{t0}, {vs}, {x}")
        e(f"v_fma_f32 {t0}, {t1}, {vr}, {t0}")
        e(f"v_cvt_pk_bf16_f32 {x}, {t0}, {t0}")
    def reduce_stride8(self, v, t):
        e = self.e
        for r in range(4): e(f"v_add_f32_dpp v{v+r}, v{v+r}, v{v+r} row_ror:8 row_mask:0xf bank_mask:0xf")
        self.xrow_allreduce(v, t)
    def xrow_allreduce(self, v, t):
        e = self.e
        for r in range(4): e(f"v_mov_b32 v{t+r}, v{v+r}")
        for r in range(4): e(f"v_permlane16_swap_b32 v{v+r}, v{t+r}")
        for r in range(4): e(f"v_add_f32 v{v+r}, v{v+r}, v{t+r}")
        for r in range(4): e(f"v_mov_b32 v{t+r}, v{v+r}")
        for r in range(4): e(f"v_permlane32_swap_b32 v{v+r}, v{t+r}")
        for r in range(4): e(f"v_add_f32 v{v+r}, v{v+r}, v{t+r}")
    def reduce_stride4(self, v, t):
        e = self.e
        for st in (8, 4):
            for r in range(4): e(f"v_add_f32_dpp v{v+r}, v{v+r}, v{v+r} row_ror:{st} row_mask:0xf bank_mask:0xf")
        self.xrow_allreduce(v, t)
    def xrow_transpose_reduce(self, v):
        e = self.e
        e(f"v_permlane16_swap_b32 v{v}, v{v+1}\nv_permlane16_swap_b32 v{v+2}, v{v+3}")
        e(f"v_add_f32 v{v}, v{v}, v{v+1}\nv_add_f32 v{v+2}, v{v+2}, v{v+3}")
        e(f"v_permlane32_swap_b32 v{v}, v{v+2}")
        e(f"v_add_f32 v{v}, v{v}, v{v+2}")

    def gen(self):
        e = self.e; o = self.o
        nt = o.get("kvflag", "nt")
        e("s_cmp_ge_u32 s2, 256\ns_cbranch_scc1 L_end")
        e("s_load_dwordx16 s[4:19], s[0:1], 0\ns_load_dwordx8 s[20:27], s[0:1], 64")
        if o.get("stamps"): e("v_mov_b32 v127, 0\ns_memrealtime s[90:91]")
        e("v_and_b32 v1, 63, v0\nv_lshrrev_b32 v6, 6, v0\nv_readfirstlane_b32 s30, v6")
        e("s_and_b32 s28, s2, 7\ns_lshl_b32 s28, s28, 1\ns_lshr_b32 s33, s2, 7\ns_or_b32 s28, s28, s33")
        e("s_lshr_b32 s29, s2, 3\ns_and_b32 s29, s29, 15")
        e("v_and_b32 v2, 15, v1\nv_lshrrev_b32 v3, 4, v1\nv_lshlrev_b32 v8, 4, v1")
        e(f"s_lshl_b32 s33, s28, 24\ns_lshl_b32 s64, s29, 16\ns_add_u32 s33, s33, s64\ns_add_u32 s33, s33, {61440*256}\ns_and_b32 s64, s30, 3\ns_lshl_b32 s64, s64, 14\ns_add_u32 s33, s33, s64")
        e("s_movk_i32 s70, 0x1000\ns_movk_i32 s71, 0x2000\ns_movk_i32 s72, 0x3000")
        e("v_bfe_u32 v13, v1, 2, 2\nv_lshlrev_b32 v13, 8, v13\nv_lshlrev_b32 v12, 6, v3\nv_add_u32 v13, v13, v12\nv_and_b32 v12, 3, v1\nv_lshlrev_b32 v12, 4, v12\nv_add_u32 v13, v13, v12")
        e("v_lshlrev_b32 v11, 13, v3\nv_lshlrev_b32 v12, 4, v2\nv_add_u32 v11, v11, v12")
        e("s_and_b32 s34, s29, 1\ns_lshl_b32 s35, s28, 1\ns_add_u32 s35, s35, s34\ns_lshl_b32 s35, s35, 8\ns_lshr_b32 s34, s29, 1\ns_mul_i32 s34, s34, 72")
        e("v_add_u32 v9, s34, v1\nv_lshlrev_b32 v9, 1, v9")
        e("s_lshl_b32 s34, s34, 13\ns_add_u32 s35, s35, s34")
        e("s_waitcnt lgkmcnt(0)")
        if o.get("stamps"): e("v_writelane_b32 v127, s90, 0")
        e("s_load_dword s31, s[26:27], 0")
        e("s_mov_b32 s36, s4\ns_mov_b32 s37, s5\ns_movk_i32 s38, 1152\ns_mov_b32 s39, 0x20000")
        e("s_mov_b32 s48, s10\ns_mov_b32 s49, s11\ns_mov_b32 s50, %d\ns_mov_b32 s51, 0x20000" % (576*8192))
        e("s_add_u32 s40, s6, s33\ns_addc_u32 s41, s7, 0\ns_movk_i32 s42, 0x4000\ns_mov_b32 s43, 0x20000")
        e("s_add_u32 s44, s8, s33\ns_addc_u32 s45, s9, 0\ns_movk_i32 s46, 0x4000\ns_mov_b32 s47, 0x20000")
        self.dma_srds()
        e("s_cmp_eq_u32 s30, 8\ns_cbranch_scc1 L_qwave")
        e("s_cmp_lt_u32 s30, 4\ns_cbranch_scc1 L_vwave")
        so = lambda t: ['0', 's70', 's71', 's72'][t // 4]
        e("s_setprio 2")
        e("s_barrier")
        n1 = o.get("kn1", 16)
        def Kld(t): e(f"buffer_load_dwordx4 v[{32+4*t}:{35+4*t}], v13, s[40:43], {so(t)} offen offset:{(t%4)*1024} {nt}")
        for t in range(n1): Kld(t)
        self.stamp(6)
        e("s_barrier")
        for t in range(n1, 16): Kld(t)
        e("s_barrier")
        self.consts()
        self.epoch()
        self.stamp(1)
        if o.get("diagK"):
            e("s_waitcnt vmcnt(12)"); self.stamp(8)
            e("s_waitcnt vmcnt(8)"); self.stamp(9)
            e("s_waitcnt vmcnt(4)"); self.stamp(10)
            e("s_waitcnt vmcnt(0)"); self.stamp(5)
        e(f"v_mov_b32 v6, 0\ns_mov_b32 s66, 0")
        e("L_qfloop:")
        e(f"ds_read_b32 v12, v6 offset:{FL}\ns_waitcnt lgkmcnt(0)\nv_cmp_ne_u32 vcc, 1, v12")
        self.spin_tail("L_qfok", "L_qfloop", 1)
        e("s_branch L_qfloop")
        e("L_qfok:")
        e("v_bfe_u32 v6, v1, 2, 1\nv_lshlrev_b32 v6, 8, v6\nv_lshlrev_b32 v12, 6, v3\nv_add_u32 v6, v6, v12\nv_and_b32 v12, 3, v1\nv_lshlrev_b32 v12, 4, v12\nv_add_u32 v6, v6, v12")
        e(f"ds_read_b128 v[12:15], v6 offset:{QB}")
        self.stamp(2)
        e("s_waitcnt vmcnt(0) lgkmcnt(0)")
        self.stamp(3)
        D0 = [96+4*t if t < 6 else 24+4*(t-6) for t in range(8)]
        D1 = [32+4*t for t in range(8)]
        D = D0 + D1
        S = [16+t for t in range(8)] + [96+t for t in range(8)]
        for t in range(16):
            e(f"v_mfma_f32_16x16x32_bf16 v[{D[t]}:{D[t]+3}], v[12:15], v[{32+4*t}:{35+4*t}], 0")
        for half in range(2):
            for k in range(4):
                for t in range(8*half, 8*half+8):
                    if k == 0: e(f"v_mov_b32_dpp v{S[t]}, v{D[t]} quad_perm:[0,0,0,0] row_mask:0xf bank_mask:0xf")
                    else: e(f"v_add_f32_dpp v{S[t]}, v{D[t]+k}, v{S[t]} quad_perm:[{k},{k},{k},{k}] row_mask:0xf bank_mask:0xf")
        e("s_mov_b32 s64, 0x3db504f3")
        def rnd_pairs():
            for k in range(8): e(f"v_cvt_pk_bf16_f32 v{64+k}, v{S[2*k]}, v{S[2*k+1]}")
            for k in range(8): e(f"v_lshlrev_b32 v{S[2*k]}, 16, v{64+k}\nv_and_b32 v{S[2*k+1]}, 0xffff0000, v{64+k}")
        rnd_pairs()
        for t in range(16): e(f"v_mul_f32 v{S[t]}, s64, v{S[t]}")
        rnd_pairs()
        for k in range(5): e(f"v_max3_f32 v{64+k}, v{S[3*k]}, v{S[3*k+1]}, v{S[3*k+2]}")
        e(f"v_max3_f32 v64, v64, v65, v{S[15]}\nv_max3_f32 v66, v66, v67, v68\nv_max_f32 v64, v64, v66")
        self.row_allreduce("v_max_f32", ["v64"], steps=(8, 4))
        e("s_mov_b32 s64, 0x3fb8aa3b")
        for t in range(16): e(f"v_sub_f32 v{S[t]}, v{S[t]}, v64")
        for t in range(16): e(f"v_mul_f32 v{S[t]}, s64, v{S[t]}")
        for t in range(16): e(f"v_exp_f32 v{S[t]}, v{S[t]}")
        for k in range(8): e(f"v_cvt_pk_bf16_f32 v{72+k}, v{S[2*k]}, v{S[2*k+1]}")
        for k in range(8): e(f"v_add_f32 v{S[2*k]}, v{S[2*k]}, v{S[2*k+1]}")
        for k in range(4): e(f"v_add_f32 v{S[4*k]}, v{S[4*k]}, v{S[4*k+2]}")
        e(f"v_add_f32 v{S[0]}, v{S[0]}, v{S[4]}\nv_add_f32 v{S[8]}, v{S[8]}, v{S[12]}\nv_add_f32 v65, v{S[0]}, v{S[8]}")
        self.row_allreduce("v_add_f32", ["v65"], steps=(8, 4))
        e("s_and_b32 s64, s30, 3\nv_lshlrev_b32 v6, 7, v3\nv_bfe_u32 v12, v1, 2, 2\nv_lshlrev_b32 v12, 5, v12\nv_add_u32 v6, v6, v12\ns_lshl_b32 s65, s64, 8\nv_add_u32 v6, s65, v6")
        e("s_mov_b32 exec_lo, 0x11111111\ns_mov_b32 exec_hi, 0")
        e(f"ds_write_b128 v6, v[72:75] offset:{PL}\nds_write_b128 v6, v[76:79] offset:{PL+16}")
        e("s_mov_b64 exec, -1")
        e("s_lshl_b32 s65, s64, 2\nv_add_u32 v6, s65, v1")
        e("s_mov_b64 exec, 0x10001")
        e(f"ds_write_b32 v6, v64 offset:{MX}\nds_write_b32 v6, v65 offset:{LS}")
        e("s_mov_b64 exec, -1")
        e("s_waitcnt lgkmcnt(0)")
        self.stamp(4)
        e("s_barrier")
        e("s_setprio 0")
        e("s_cmp_lt_u32 s29, 9\ns_cbranch_scc1 L_kdmaA")
        e("s_cmp_lt_u32 s29, 15\ns_cbranch_scc0 L_roles")
        self.wo_dma(o.get("woearly", 6))
        e("s_branch L_roles")
        e("L_kdmaA:")
        self.wgu_dma(o.get("wgearly", 4))
        e("s_branch L_roles")
        e("L_vwave:")
        e("s_barrier")
        if o.get("codepf", False):
            e("s_cmp_eq_u32 s29, 15\ns_cbranch_scc0 L_nopf\ns_cmp_eq_u32 s30, 0\ns_cbranch_scc0 L_nopf")
            e("s_getpc_b64 s[64:65]")
            e("L_pfbase:")
            e("v_lshlrev_b32 v12, 7, v1")
            for k in range(2):
                e(f"v_add_u32 v6, {8192*k}, v12\nv_min_u32 v6, L_end-L_pfbase, v6\nglobal_load_dword v124, v6, s[64:65]")
            e("s_waitcnt vmcnt(0)")
            e("L_nopf:")
        self.masks(); self.consts(); self.epoch()
        e("s_barrier")
        nv1 = o.get("vn1", 8)
        def Vld(t): e(f"buffer_load_dwordx4 v[{32+4*t}:{35+4*t}], v8, s[44:47], {so(t)} offen offset:{(t%4)*1024} {nt}")
        for t in range(nv1): Vld(t)
        e("s_barrier")
        for t in range(nv1, 16): Vld(t)
        self.stamp(1)
        e("s_barrier")
        self.stamp(2)
        e("v_bfe_u32 v6, v1, 3, 1\nv_lshlrev_b32 v6, 7, v6\nv_lshlrev_b32 v12, 5, v3\nv_add_u32 v6, v6, v12\ns_lshl_b32 s64, s30, 8\nv_add_u32 v6, s64, v6")
        e(f"ds_read_b128 v[16:19], v6 offset:{PL}\nds_read_b128 v[20:23], v6 offset:{PL+16}")
        e("v_lshrrev_b32 v6, 1, v3\nv_lshlrev_b32 v6, 4, v6")
        e(f"ds_read_b128 v[24:27], v6 offset:{MX}")
        e("s_lshl_b32 s64, s30, 2\nv_add_u32 v6, s64, v6")
        e(f"ds_read_b32 v28, v6 offset:{MX}")
        e("s_waitcnt lgkmcnt(0)")
        e("v_max3_f32 v24, v24, v25, v26\nv_max_f32 v24, v24, v27\nv_sub_f32 v28, v28, v24\nv_mul_f32 v28, 0x3fb8aa3b, v28\nv_exp_f32 v28, v28")
        e("s_mov_b32 s64, 0x01000100\ns_mov_b32 s65, 0x03020302")
        for t in range(16):
            ab = 96 + 4*(t % 4)
            e(f"v_perm_b32 v29, v{16+t//2}, v{16+t//2}, {'s64' if t%2==0 else 's65'}")
            for r in range(4): e(f"v_and_b32 v{ab+r}, v29, v{120+r}")
            e(f"s_waitcnt vmcnt({15-t})")
            e(f"v_mfma_f32_16x16x32_bf16 v[12:15], v[{ab}:{ab+3}], v[{32+4*t}:{35+4*t}], {'0' if t==0 else 'v[12:15]'}")
        self.stamp(3)
        e("s_setprio 3")
        e("v_lshrrev_b32 v6, 1, v3\nv_lshlrev_b32 v6, 9, v6\nv_lshlrev_b32 v30, 5, v2\nv_add_u32 v6, v6, v30\nv_and_b32 v30, 1, v3\nv_lshlrev_b32 v30, 4, v30\nv_add_u32 v6, v6, v30")
        e("s_lshl_b32 s64, s30, 10\nv_add_u32 v6, s64, v6")
        for r in range(4): e(f"v_mul_f32 v{12+r}, v28, v{12+r}")
        e(f"ds_write_b128 v6, v[12:15] offset:{OP}")
        e("v_mov_b32 v6, 0\nv_mov_b32 v30, 1")
        e("s_mov_b64 exec, 1")
        e(f"ds_add_rtn_u32 v31, v6, v30 offset:{FL+4}")
        e("s_mov_b64 exec, -1")
        e("s_waitcnt lgkmcnt(0)")
        e("v_readfirstlane_b32 s64, v31")
        e("s_cmp_eq_u32 s64, 3\ns_cbranch_scc0 L_vdone")
        for w in range(4): e(f"ds_read_b128 v[{16+4*w}:{19+4*w}], v8 offset:{OP + 1024*w}")
        e(f"s_mul_i32 s67, s28, 18432\ns_mul_i32 s64, s29, 1152\ns_add_u32 s67, s67, s64\ns_add_u32 s67, s67, {H2}")
        e("v_add_u32 v6, s67, v8")
        e("s_waitcnt lgkmcnt(0)")
        for r in range(4): e(f"v_add_f32 v{16+r}, v{16+r}, v{20+r}\nv_add_f32 v{24+r}, v{24+r}, v{28+r}")
        for r in range(4): e(f"v_add_f32 v{16+r}, v{16+r}, v{24+r}")
        self.tagins(16)
        e("global_store_dwordx4 v6, v[16:19], s[26:27] sc1")
        e(f"v_mov_b32 v6, 0\nv_mov_b32 v30, 1\nds_write_b32 v6, v30 offset:{FL+8}")
        e("L_vdone:")
        e("s_setprio 0")
        self.stamp(4)
        e("s_branch L_roles")
        e("L_qwave:")
        e("s_setprio 3")
        e("buffer_load_dwordx4 v[24:27], v8, s[36:39], 0 offen")
        e("buffer_load_dwordx4 v[28:31], v8, s[36:39], 0 offen offset:1024")
        e("buffer_load_ushort v14, v9, s[36:39], 0 offen")
        e("buffer_load_ushort v15, v9, s[36:39], 0 offen offset:128")
        for i in range(18):
            e(f"buffer_load_dwordx4 v[{32+4*i}:{35+4*i}], v11, s[48:51], s35 offen {nt}")
            if i < 17: e("s_add_u32 s35, s35, 0x8000")
        e("v_mov_b32 v6, 0\nv_mov_b32 v16, 0\nv_mov_b32 v17, 0\nv_mov_b32 v18, 0\nv_mov_b32 v19, 0")
        e(f"ds_write_b128 v6, v[16:19] offset:{FL}")
        e("s_waitcnt lgkmcnt(0)")
        e("s_barrier")
        npf = 0
        self.masks(); self.consts()
        e(f"s_waitcnt vmcnt({18+npf})")
        self.stamp(1)
        e("v_mov_b32 v104, 0\nv_mov_b32 v105, 0\ns_mov_b32 s64, 0x3f803f80")
        for k in range(8):
            e(f"v_dot2_f32_bf16 v104, v{24+k}, s64, v104")
            e(f"v_dot2_f32_bf16 v105, v{24+k}, v{24+k}, v105")
        self.row_allreduce("v_add_f32", ["v104", "v105"])
        e("v_permlane16_swap_b32 v104, v105\nv_add_f32 v104, v104, v105\nv_mov_b32 v105, v104\nv_permlane32_swap_b32 v104, v105\nv_add_f32 v104, v104, v105")
        e("v_readlane_b32 s64, v104, 0\nv_readlane_b32 s65, v104, 16")
        self.ln_scalars("s64", "s65", "v104", "v105", "v106")
        e("v_and_b32 v6, 3, v1\nv_mul_u32_u24 v6, 48, v6\nv_lshrrev_b32 v12, 2, v1\nv_lshlrev_b32 v12, 1, v12\nv_add_u32 v6, v6, v12")
        for i, xv in enumerate(("v14", "v15")):
            e(f"v_lshlrev_b32 {xv}, 16, {xv}")
            self.ln_apply(xv, "v104", "v105", "v106", "v107", "v108")
        e(f"ds_write_b16 v6, v14 offset:{XT}")
        e("s_mov_b64 exec, 0xff")
        e(f"ds_write_b16 v6, v15 offset:{XT+32}")
        e("s_mov_b64 exec, -1")
        e("v_mul_u32_u24 v6, 48, v3")
        e("s_waitcnt lgkmcnt(0)")
        e(f"ds_read_b128 v[24:27], v6 offset:{XT}\nds_read_b128 v[28:31], v6 offset:{XT+16}\nds_read_b32 v16, v6 offset:{XT+32}")
        self.epoch()
        if o.get("diagQ"): self.stamp(9)
        e("s_mov_b32 s64, 0x01000100\ns_mov_b32 s65, 0x03020302")
        if o.get("diagQ"):
            e("s_waitcnt vmcnt(0)"); self.stamp(10)
        for i in range(18):
            src = f"v{24+i//2}" if i < 16 else "v16"
            ab = 104 + 4*(i % 3)
            e(f"v_perm_b32 v17, {src}, {src}, {'s64' if i%2==0 else 's65'}")
            for r in range(4): e(f"v_and_b32 v{ab+r}, v17, v{120+r}")
            e(f"s_waitcnt vmcnt({17-i+npf})")
            e(f"v_mfma_f32_16x16x32_bf16 v[116:119], v[{ab}:{ab+3}], v[{32+4*i}:{35+4*i}], {'0' if i==0 else 'v[116:119]'}")
        e(f"s_lshl_b32 s64, s28, 13\ns_lshl_b32 s65, s29, 9\ns_add_u32 s65, s65, s64\ns_add_u32 s65, s65, {H1}")
        e("v_lshlrev_b32 v6, 5, v2\nv_lshlrev_b32 v12, 4, v3\nv_add_u32 v6, v6, v12\nv_add_u32 v6, s65, v6")
        self.tagins(116)
        e("s_mov_b32 exec_lo, -1\ns_mov_b32 exec_hi, 0")
        e("global_store_dwordx4 v6, v[116:119], s[26:27] sc1")
        e("s_mov_b64 exec, -1")
        self.stamp(2)
        e("s_barrier")
        e(f"s_add_u32 s64, s64, {H1}\nv_add_u32 v6, s64, v8\nv_add_u32 v9, 4096, v6")
        if o.get("smemchk", False):
            regs = [64, 65] + list(range(67, 76)) + [88, 89, 92, 93, 94]
            e(f"s_lshl_b32 s33, s28, 13\ns_add_u32 s33, s33, {H1 + 508}\ns_add_u32 s34, s26, s33\ns_addc_u32 s35, s27, 0")
            e("s_lshr_b32 s33, s31, 24\ns_mov_b32 s66, 0")
            if o.get("h1sleep", 4): e(f"s_sleep {o.get('h1sleep', 4)}")
            e("L_smloop:")
            for k, r in enumerate(regs): e(f"s_load_dword s{r}, s[34:35], {512*k} glc")
            e("s_waitcnt lgkmcnt(0)")
            for k, r in enumerate(regs):
                e(f"s_xor_b32 s{r}, s{r}, s33")
                if k: e(f"s_or_b32 s64, s64, s{r}")
            e("s_and_b32 s64, s64, 0xff\ns_cbranch_scc0 L_smok")
            e("s_add_u32 s66, s66, 1\ns_cmp_gt_u32 s66, %d\ns_cbranch_scc1 L_smok" % o.get("maxspin", 20000))
            e("s_branch L_smloop")
            e("L_smok:")
            self.note(11, "s66")
        elif o.get("h1sleep", 48): e(f"s_sleep {o.get('h1sleep', 48)}")
        e("s_mov_b32 s66, 0")
        def h1loads():
            for i in range(8):
                e(f"global_load_dwordx4 v[{32+4*i}:{35+4*i}], {'v6' if i<4 else 'v9'}, s[26:27] offset:{(i%4)*1024} sc1")
        self.stamp(5)
        h1loads()
        self.stamp(6)
        e("s_barrier")
        e("L_h1loop:")
        e("s_waitcnt vmcnt(0)")
        self.validate([32+4*i for i in range(8)], "v100", "v101")
        self.spin_tail("L_h1ok", "L_h1loop", 2)
        h1loads()
        e("s_branch L_h1loop")
        e("L_h1ok:")
        self.note(12, "s66")
        for k in range(32): e(f"v_and_b32 v{32+k}, 0xffffff00, v{32+k}")
        for i in range(0, 8, 2):
            for r in range(4): e(f"v_add_f32 v{32+4*i+r}, v{32+4*i+r}, v{36+4*i+r}")
        for i in (0, 4):
            for r in range(4): e(f"v_add_f32 v{32+4*i+r}, v{32+4*i+r}, v{40+4*i+r}")
        for r in range(4): e(f"v_add_f32 v{32+r}, v{32+r}, v{48+r}")
        e("v_cvt_pk_bf16_f32 v32, v32, v33\nv_cvt_pk_bf16_f32 v33, v34, v35")
        e("v_lshlrev_b32 v6, 3, v1")
        e(f"ds_write_b64 v6, v[32:33] offset:{QB}")
        e("v_mov_b32 v6, 0\nv_mov_b32 v12, 1")
        e("s_waitcnt lgkmcnt(0)")
        e(f"ds_write_b32 v6, v12 offset:{FL}")
        e("s_waitcnt lgkmcnt(0)")
        self.stamp(3)
        e("s_setprio 0")
        e("s_barrier")
        e("v_mov_b32 v6, 0")
        e(f"ds_read_b128 v[32:35], v6 offset:{MX}\nds_read_b128 v[36:39], v6 offset:{MX+16}\nds_read_b128 v[40:43], v6 offset:{LS}\nds_read_b128 v[44:47], v6 offset:{LS+16}")
        e("s_waitcnt lgkmcnt(0)")
        for h in range(2):
            m = 32 + 4*h; l = 40 + 4*h; M = 16 + 2*h; L = 17 + 2*h
            e(f"v_max3_f32 v{M}, v{m}, v{m+1}, v{m+2}\nv_max_f32 v{M}, v{M}, v{m+3}")
            for k in range(4): e(f"v_sub_f32 v{m+k}, v{m+k}, v{M}")
            for k in range(4): e(f"v_mul_f32 v{m+k}, 0x3fb8aa3b, v{m+k}")
            for k in range(4): e(f"v_exp_f32 v{m+k}, v{m+k}")
            e(f"v_mul_f32 v{L}, v{m}, v{l}")
            for k in range(1, 4): e(f"v_fma_f32 v{L}, v{m+k}, v{l+k}, v{L}")
        self.tagins(16)
        e(f"s_mul_i32 s67, s28, 18432\ns_mul_i32 s64, s29, 1152\ns_add_u32 s67, s67, s64\ns_add_u32 s67, s67, {H2+1024}\nv_mov_b32 v6, s67")
        e("s_mov_b64 exec, 1")
        e("global_store_dwordx4 v6, v[16:19], s[26:27] sc1")
        e("s_mov_b64 exec, -1")
        self.stamp(4)
        e("L_roles:")
        self.stamp(7)
        e("s_cmp_lt_u32 s29, 9\ns_cbranch_scc1 L_roleA")
        e("s_cmp_lt_u32 s29, 15\ns_cbranch_scc0 L_fin")
        self.roleB1()
        e("L_roleA:")
        self.roleA()
        e("L_fin:")
        if o.get("stamps"):
            self.stamp(15)
            e(f"s_mul_i32 s64, s2, 9\ns_add_u32 s64, s64, s30\ns_lshl_b32 s64, s64, 6\ns_add_u32 s64, s64, {TS}")
            e("v_lshlrev_b32 v6, 2, v1\nv_add_u32 v6, s64, v6")
            e("s_mov_b64 exec, 0xffff")
            e("global_store_dword v6, v127, s[26:27]")
        e("L_end:")
        e("s_endpgm")
        return e.text()

    def dma_srds(self):
        e = self.e
        e("s_mov_b32 s52, s12\ns_mov_b32 s53, s13\ns_mov_b32 s54, %d\ns_mov_b32 s55, 0x20000" % (4096*1152))
        e(f"s_mov_b32 s76, s16\ns_mov_b32 s77, s17\ns_mov_b32 s78, {576*9216}\ns_mov_b32 s79, 0x20000")
        e(f"s_mov_b32 s80, s18\ns_mov_b32 s81, s19\ns_mov_b32 s82, {576*9216}\ns_mov_b32 s83, 0x20000")
        e(f"s_mov_b32 s84, s20\ns_mov_b32 s85, s21\ns_mov_b32 s86, {4608*1152}\ns_mov_b32 s87, 0x20000")
    def wait_pub(self, tag):
        e = self.e
        e(f"v_mov_b32 v6, 0\ns_mov_b32 s66, 0")
        e(f"L_{tag}loop:")
        e(f"ds_read_b32 v12, v6 offset:{FL+8}\ns_waitcnt lgkmcnt(0)\nv_cmp_ne_u32 vcc, 1, v12")
        self.spin_tail(f"L_{tag}ok", f"L_{tag}loop", 2)
        e(f"s_branch L_{tag}loop")
        e(f"L_{tag}ok:")
    def wo_dma(self, early):
        e = self.e
        e("s_and_b32 s64, s30, 3\ns_lshl_b32 s64, s64, 1")
        e("s_lshl_b32 s72, s28, 8\ns_lshl_b32 s65, s64, 5\ns_add_u32 s72, s72, s65\ns_mul_i32 s72, s72, 1152")
        e("s_sub_u32 s65, s29, 9\ns_mul_i32 s65, s65, 192\ns_add_u32 s72, s72, s65")
        e(f"s_mul_i32 s71, s64, 6144\ns_add_u32 s71, s71, {WB}")
        for i in range(3):
            e(f"v_add_u32 v100, {64*i}, v1\nv_mul_u32_u24 v101, 5462, v100\nv_lshrrev_b32 v101, 16, v101")
            e("v_mul_u32_u24 v102, 12, v101\nv_sub_u32 v102, v100, v102")
            e("v_bfe_u32 v103, v101, 3, 1\nv_lshlrev_b32 v103, 1, v103\nv_xor_b32 v102, v102, v103\nv_lshlrev_b32 v102, 4, v102")
            e(f"v_mul_u32_u24 v101, 1152, v101\nv_add_u32 v{104+i}, v101, v102")
        n = 0
        for blk in range(4):
            for i in range(3):
                if n == early: self.wait_pub("wo")
                e("s_mov_b32 m0, s71\ns_add_u32 s71, s71, 1024")
                e(f"buffer_load_dwordx4 v{104+i}, s[52:55], s72 offen nt lds")
                n += 1
            if blk < 3: e(f"s_add_u32 s72, s72, {16*1152}")
    def wgu_dma(self, early):
        e = self.e
        e("s_mul_i32 s32, s28, 9\ns_add_u32 s32, s32, s29")
        e("v_lshrrev_b32 v10, 2, v1\nv_mul_u32_u24 v10, 9216, v10\nv_and_b32 v12, 3, v1\nv_lshrrev_b32 v11, 5, v1\nv_lshlrev_b32 v11, 1, v11\nv_xor_b32 v12, v12, v11\nv_lshlrev_b32 v12, 4, v12\nv_add_u32 v10, v10, v12")
        e(f"s_and_b32 s64, s30, 3\ns_mul_i32 s65, s64, {16*9216}\ns_lshl_b32 s68, s32, 6\ns_add_u32 s68, s68, s65")
        e(f"s_lshl_b32 s69, s64, 10\ns_add_u32 s69, s69, {WB}")
        n = 0
        for m, srd in enumerate(("s[76:79]", "s[80:83]")):
            e(f"s_mov_b32 s64, s68\ns_add_u32 s65, s69, {36864*m}")
            for w in range(9):
                if n == early:
                    e("s_mov_b32 s73, s64\ns_mov_b32 s74, s65")
                    self.wait_pub("wg")
                    if self.o.get("wgdelay"): e(f"s_sleep {self.o['wgdelay']}")
                    e("s_mov_b32 s64, s73\ns_mov_b32 s65, s74")
                e("s_mov_b32 m0, s65\ns_add_u32 s65, s65, 4096")
                e(f"buffer_load_dwordx4 v10, {srd}, s64 offen nt lds")
                n += 1
                if w < 8: e(f"s_add_u32 s64, s64, {64*9216}")

    def roleB1(self):
        e = self.e; o = self.o
        e("s_cmp_eq_u32 s30, 8\ns_cbranch_scc1 L_b1w8a")
        e(f"s_mul_i32 s64, s28, 18432\ns_add_u32 s64, s64, {H2}")
        e("v_mul_u32_u24 v6, 1152, v2\nv_add_u32 v6, s64, v6\nv_add_u32 v9, 1024, v6")
        e("v_lshlrev_b32 v12, 5, v3\ns_lshl_b32 s65, s30, 7\nv_add_u32 v12, s65, v12\nv_add_u32 v6, v6, v12")
        e("s_cmp_lt_u32 s30, 4\ns_cbranch_scc0 L_b1nos")
        if o.get("h2sleep", 12): e(f"s_sleep {o.get('h2sleep', 12)}")
        e("L_b1nos:")
        def h2loads():
            e("global_load_dwordx4 v[64:67], v6, s[26:27] sc1\nglobal_load_dwordx4 v[68:71], v6, s[26:27] offset:16 sc1\nglobal_load_dwordx4 v[72:75], v9, s[26:27] sc1")
        h2loads()
        e("s_waitcnt vmcnt(0)")
        e("L_b1w8a:")
        e("s_barrier")
        self.stamp(8)
        e("s_cmp_eq_u32 s30, 8\ns_cbranch_scc1 L_b1w8")
        e("v_lshlrev_b32 v10, 3, v3\nv_bfe_u32 v12, v1, 2, 2\nv_add_u32 v10, v10, v12\nv_mul_u32_u24 v10, 192, v10\nv_and_b32 v12, 3, v1\nv_lshlrev_b32 v12, 3, v12\nv_add_u32 v10, v10, v12")
        e(f"s_mul_i32 s65, s30, 6144\ns_add_u32 s65, s65, {WB}\nv_add_u32 v10, s65, v10")
        e("v_and_b32 v12, 1, v3\nv_lshlrev_b32 v12, 5, v12\nv_add_u32 v11, v10, v12\nv_sub_u32 v10, v10, v12")
        for tau in range(6):
            a = "v11" if tau % 2 == 0 else "v10"
            e(f"ds_read_b64_tr_b16 v[{32+4*tau}:{33+4*tau}], {a} offset:{32*tau}")
            e(f"ds_read_b64_tr_b16 v[{34+4*tau}:{35+4*tau}], {a} offset:{32*tau + 768}")
        e("s_mov_b32 s66, 0")
        e("L_h2loop:")
        self.validate([64, 68, 72], "v100", "v101")
        self.spin_tail("L_h2ok", "L_h2loop", 2)
        h2loads()
        e("s_waitcnt vmcnt(0)\ns_branch L_h2loop")
        e("L_h2ok:")
        self.note(13, "s66")
        self.stamp(9)
        e("s_cmp_lt_u32 s30, 4\ns_cbranch_scc1 L_h2h0\nv_mov_b32 v72, v74\nv_mov_b32 v73, v75\nL_h2h0:")
        e("v_and_b32 v72, 0xffffff00, v72\nv_and_b32 v73, 0xffffff00, v73")
        e("v_mov_b32 v76, v72")
        self.row_allreduce("v_max_f32", ["v76"])
        e("v_sub_f32 v72, v72, v76\nv_mul_f32 v72, 0x3fb8aa3b, v72\nv_exp_f32 v72, v72")
        e("v_mul_f32 v73, v72, v73")
        self.row_allreduce("v_add_f32", ["v73"])
        e("v_rcp_f32 v73, v73")
        e("v_mul_f32 v72, v72, v73")
        for k in range(8): e(f"v_and_b32 v{64+k}, 0xffffff00, v{64+k}")
        for k in range(8): e(f"v_mul_f32 v{64+k}, v72, v{64+k}")
        self.row_allreduce("v_add_f32", [f"v{64+k}" for k in range(8)])
        for k in range(4): e(f"v_cvt_pk_bf16_f32 v{76+k}, v{64+2*k}, v{65+2*k}")
        e("s_waitcnt lgkmcnt(0)")
        for tau in range(6):
            e(f"v_mfma_f32_16x16x32_bf16 v[{80+4*tau}:{83+4*tau}], v[{32+4*tau}:{35+4*tau}], v[76:79], 0")
        e(f"v_lshlrev_b32 v6, 4, v3\ns_mul_i32 s64, s30, 384\nv_add_u32 v6, s64, v6")
        e("s_mov_b32 s64, 0x00010001\ns_mov_b32 s65, 0x00010001\ns_mov_b64 exec, s[64:65]")
        for tau in range(6):
            e(f"ds_write_b128 v6, v[{80+4*tau}:{83+4*tau}] offset:{WR + 64*tau}")
        e("s_mov_b64 exec, -1")
        e("L_b1w8:")
        e("s_waitcnt lgkmcnt(0)\ns_barrier")
        e("s_cmp_lt_u32 s30, 3\ns_cbranch_scc0 L_b1pubdone")
        e("v_and_b32 v6, 7, v1\nv_lshlrev_b32 v6, 4, v6\nv_lshrrev_b32 v12, 3, v1\nv_mul_u32_u24 v12, 384, v12\nv_add_u32 v6, v6, v12\ns_lshl_b32 s64, s30, 7\nv_add_u32 v6, s64, v6")
        e(f"ds_read_b128 v[16:19], v6 offset:{WR}")
        e(f"s_mul_i32 s64, s28, 2304\ns_sub_u32 s65, s29, 9\ns_mul_i32 s65, s65, 384\ns_add_u32 s64, s64, s65\ns_lshl_b32 s65, s30, 7\ns_add_u32 s64, s64, s65\ns_add_u32 s64, s64, {H3}")
        e("v_and_b32 v6, 7, v1\nv_lshlrev_b32 v6, 4, v6\nv_add_u32 v6, s64, v6")
        e("s_waitcnt lgkmcnt(0)")
        self.reduce_stride8(16, 20)
        self.tagins(16)
        e("s_mov_b64 exec, 0xff")
        e("global_store_dwordx4 v6, v[16:19], s[26:27] sc1")
        e("s_mov_b64 exec, -1")
        e("L_b1pubdone:")
        self.stamp(10)
        e("s_sub_u32 s32, s29, 9\ns_cmp_lt_u32 s32, 2\ns_cbranch_scc0 L_rho2\ns_lshl_b32 s64, s28, 1\ns_add_u32 s32, s32, s64\ns_branch L_reducer")
        e("L_rho2:\ns_cmp_eq_u32 s32, 2\ns_cbranch_scc0 L_fin\ns_cmp_lt_u32 s28, 4\ns_cbranch_scc0 L_fin\ns_add_u32 s32, s28, 32")
        e("L_reducer:")
        e("s_cmp_eq_u32 s30, 0\ns_cbranch_scc0 L_redh4")
        e(f"v_lshrrev_b32 v6, 2, v1\nv_mul_u32_u24 v6, 2304, v6\nv_and_b32 v12, 3, v1\nv_lshlrev_b32 v12, 4, v12\nv_add_u32 v6, v6, v12\ns_lshl_b32 s64, s32, 6\ns_add_u32 s64, s64, {H3}\nv_add_u32 v6, s64, v6")
        e("v_and_b32 v12, 3, v1\nv_lshlrev_b32 v12, 3, v12\ns_lshl_b32 s64, s32, 5\nv_add_u32 v12, s64, v12")
        e("buffer_load_dwordx2 v[40:41], v12, s[36:39], 0 offen")
        if o.get("rh3sleep", 8): e(f"s_sleep {o.get('rh3sleep', 8)}")
        e("s_mov_b32 s66, 0")
        e("L_rh3loop:")
        e("global_load_dwordx4 v[32:35], v6, s[26:27] sc1\ns_waitcnt vmcnt(0)")
        self.validate([32], "v100", "v101")
        self.spin_tail("L_rh3ok", "L_rh3loop", 4)
        e("s_branch L_rh3loop")
        e("L_rh3ok:")
        for r in range(4): e(f"v_and_b32 v{32+r}, 0xffffff00, v{32+r}")
        self.reduce_stride4(32, 36)
        e("v_lshlrev_b32 v44, 16, v40\nv_and_b32 v45, 0xffff0000, v40\nv_lshlrev_b32 v46, 16, v41\nv_and_b32 v47, 0xffff0000, v41")
        for r in range(4):
            self.Rnd(f"v{32+r}", f"v{32+r}")
            e(f"v_add_f32 v{44+r}, v{44+r}, v{32+r}")
            self.Rnd(f"v{44+r}", f"v{44+r}")
        e("L_redh4:")
        e("s_barrier")
        self.stamp(12)
        e(f"v_lshrrev_b32 v6, 2, v0\nv_mul_u32_u24 v6, 2304, v6\nv_and_b32 v12, 3, v0\nv_lshlrev_b32 v12, 4, v12\nv_add_u32 v6, v6, v12\ns_lshl_b32 s64, s32, 6\ns_add_u32 s64, s64, {H4}\nv_add_u32 v6, s64, v6")
        for k in range(o.get("h4sleepN", 1)): e(f"s_sleep {o.get('h4sleep', 40)}")
        e("s_mov_b32 s66, 0")
        e("L_h4loop:")
        e("global_load_dwordx4 v[32:35], v6, s[26:27] sc1\ns_waitcnt vmcnt(0)")
        self.validate([32], "v100", "v101")
        self.spin_tail("L_h4ok", "L_h4loop", o.get("h4retry", 4))
        e("s_branch L_h4loop")
        e("L_h4ok:")
        self.note(14, "s66")
        self.stamp(11)
        for r in range(4): e(f"v_and_b32 v{32+r}, 0xffffff00, v{32+r}")
        self.reduce_stride4(32, 36)
        e(f"v_and_b32 v6, 3, v1\nv_lshlrev_b32 v6, 4, v6\ns_lshl_b32 s64, s30, 6\nv_add_u32 v6, s64, v6")
        e("s_mov_b64 exec, 0xf")
        e(f"ds_write_b128 v6, v[32:35] offset:{FR}")
        e("s_mov_b64 exec, -1")
        e("s_waitcnt lgkmcnt(0)\ns_barrier")
        e("s_cmp_eq_u32 s30, 0\ns_cbranch_scc0 L_fin")
        e("v_and_b32 v6, 3, v1\nv_lshlrev_b32 v6, 4, v6\nv_lshrrev_b32 v12, 2, v1\nv_lshlrev_b32 v12, 6, v12\nv_add_u32 v6, v6, v12")
        for r in range(4): e(f"v_mov_b32 v{32+r}, 0")
        e("s_mov_b32 exec_lo, -1\ns_mov_b32 exec_hi, 0xf")
        e(f"ds_read_b128 v[32:35], v6 offset:{FR}")
        e("s_mov_b64 exec, -1")
        e("s_mov_b32 s52, s22\ns_mov_b32 s53, s23\ns_movk_i32 s54, 1152\ns_mov_b32 s55, 0x20000")
        e("v_and_b32 v6, 3, v1\nv_lshlrev_b32 v6, 3, v6\ns_lshl_b32 s64, s32, 5\nv_add_u32 v6, s64, v6")
        e("s_waitcnt lgkmcnt(0)")
        self.reduce_stride4(32, 36)
        for r in range(4):
            self.Rnd(f"v{32+r}", f"v{32+r}")
            e(f"v_add_f32 v{32+r}, v{44+r}, v{32+r}")
        e("v_cvt_pk_bf16_f32 v32, v32, v33\nv_cvt_pk_bf16_f32 v33, v34, v35")
        e("s_mov_b64 exec, 0xf")
        e("buffer_store_dwordx2 v[32:33], v6, s[52:55], 0 offen")
        e("s_mov_b64 exec, -1")
        e("s_cmp_eq_u32 s32, 0\ns_cbranch_scc0 L_fin")
        e("v_mov_b32 v6, 0\ns_mov_b64 exec, 1\nglobal_store_dword v6, v7, s[26:27] sc1\ns_mov_b64 exec, -1")
        e("s_branch L_fin")

    def roleA(self):
        e = self.e; o = self.o
        e("s_mul_i32 s32, s28, 9\ns_add_u32 s32, s32, s29")
        e(f"s_lshl_b32 s69, s30, 12\ns_add_u32 s69, s69, {WB}")
        e("v_lshlrev_b32 v10, 2, v2\nv_add_u32 v10, v10, v3\ns_lshl_b32 s34, s30, 6\nv_add_u32 v10, s34, v10\nv_lshlrev_b32 v10, 1, v10")
        e("buffer_load_ushort v126, v10, s[36:39], 0 offen")
        e(f"v_mul_u32_u24 v6, 2304, v3\nv_lshlrev_b32 v12, 4, v2\nv_add_u32 v6, v6, v12\ns_lshl_b32 s64, s30, 8\ns_add_u32 s64, s64, {H3}\nv_add_u32 v6, s64, v6")
        e("v_add_u32 v8, 9216, v6\nv_add_u32 v9, 18432, v6\nv_add_u32 v13, 27648, v6")
        e("v_lshrrev_b32 v14, 3, v1\nv_mul_u32_u24 v14, 1152, v14\nv_and_b32 v12, 7, v1\nv_bfe_u32 v11, v1, 4, 1\nv_lshlrev_b32 v11, 1, v11\nv_xor_b32 v12, v12, v11")
        e("v_xor_b32 v11, 4, v12\nv_lshlrev_b32 v12, 4, v12\nv_lshlrev_b32 v11, 4, v11\nv_add_u32 v15, v14, v11\nv_add_u32 v14, v14, v12")
        self.stamp(8)
        e("s_barrier")
        def h3loads():
            e("global_load_dwordx4 v[80:83], v6, s[26:27] sc1\nglobal_load_dwordx4 v[84:87], v8, s[26:27] sc1\nglobal_load_dwordx4 v[88:91], v9, s[26:27] sc1\nglobal_load_dwordx4 v[92:95], v13, s[26:27] sc1")
        h3loads()
        e(f"s_mul_i32 s64, s32, 36864\ns_lshl_b32 s65, s30, 7\ns_add_u32 s64, s64, s65\ns_add_u32 s65, s69, {2*36864}")
        for i in range(4):
            e("s_mov_b32 m0, s65\ns_add_u32 s65, s65, 1024")
            e(f"buffer_load_dwordx4 {'v14' if i%2==0 else 'v15'}, s[84:87], s64 offen nt lds")
            if i < 3: e(f"s_add_u32 s64, s64, {8*1152}")
        e("v_lshlrev_b32 v10, 3, v3\nv_bfe_u32 v12, v1, 2, 2\nv_add_u32 v10, v10, v12\nv_lshlrev_b32 v10, 6, v10\nv_and_b32 v12, 3, v1\nv_lshlrev_b32 v12, 3, v12\nv_add_u32 v10, v10, v12\nv_add_u32 v10, s69, v10")
        e("v_and_b32 v12, 1, v3\nv_lshlrev_b32 v12, 5, v12\nv_add_u32 v11, v10, v12\nv_xor_b32 v12, 32, v12\nv_add_u32 v10, v10, v12")
        e("s_waitcnt vmcnt(4)")
        e("s_mov_b32 s66, 0")
        e("L_h3loop:")
        self.validate([80, 84, 88, 92], "v100", "v101")
        self.spin_tail("L_h3ok", "L_h3loop", o.get("h3retry", 8))
        h3loads()
        e("s_waitcnt vmcnt(0)\ns_branch L_h3loop")
        e("L_h3ok:")
        self.note(13, "s66")
        self.stamp(9)
        for k in range(16): e(f"v_and_b32 v{80+k}, 0xffffff00, v{80+k}")
        for r in range(4):
            e(f"v_add_f32 v{80+r}, v{80+r}, v{84+r}\nv_add_f32 v{88+r}, v{88+r}, v{92+r}")
        for r in range(4): e(f"v_add_f32 v{80+r}, v{80+r}, v{88+r}")
        self.xrow_transpose_reduce(80)
        self.Rnd("v80", "v80")
        e("v_lshlrev_b32 v81, 16, v126\nv_add_f32 v80, v81, v80")
        self.Rnd("v80", "v80")
        e("v_mul_f32 v81, v80, v80\nv_mov_b32 v82, v80")
        self.row_allreduce("v_add_f32", ["v82", "v81"])
        e("v_permlane16_swap_b32 v82, v81\nv_add_f32 v82, v82, v81\nv_mov_b32 v81, v82\nv_permlane32_swap_b32 v82, v81\nv_add_f32 v82, v82, v81")
        e("v_lshlrev_b32 v6, 2, v1\ns_lshl_b32 s64, s30, 2\nv_add_u32 v6, s64, v6")
        e("s_mov_b64 exec, 0x10001")
        e(f"ds_write_b32 v6, v82 offset:{ST2}")
        e("s_mov_b64 exec, -1")
        e("s_waitcnt lgkmcnt(0)\ns_barrier")
        e("v_lshlrev_b32 v6, 2, v1\nv_mov_b32 v82, 0")
        e("s_mov_b64 exec, 0x01ff01ff")
        e(f"ds_read_b32 v82, v6 offset:{ST2}")
        e("s_mov_b64 exec, -1")
        def trw(m):
            lo = 36864*m
            for s in range(2):
                for tau in range(2):
                    fr = 32 + 16*m + 8*s + 4*tau
                    a = "v11" if tau == 0 else "v10"
                    off = lo + 2048*s
                    e(f"ds_read_b64_tr_b16 v[{fr}:{fr+1}], {a} offset:{off}")
                    e(f"ds_read_b64_tr_b16 v[{fr+2}:{fr+3}], {a} offset:{off+256}")
        trw(0)
        e("s_waitcnt lgkmcnt(7)")
        trw(1)
        self.row_allreduce("v_add_f32", ["v82"])
        e("v_readlane_b32 s64, v82, 0\nv_readlane_b32 s65, v82, 16")
        self.ln_scalars("s64", "s65", "v84", "v85", "v86")
        e("v_mov_b32 v89, v80")
        self.ln_apply("v89", "v84", "v85", "v86", "v87", "v88")
        e(f"v_lshlrev_b32 v6, 2, v2\nv_add_u32 v6, v6, v3\nv_lshlrev_b32 v6, 1, v6\ns_lshl_b32 s64, s30, 7\nv_add_u32 v6, s64, v6")
        e(f"ds_write_b16 v6, v89 offset:{HNL}")
        e("v_lshlrev_b32 v6, 4, v3\nv_add_u32 v6, s64, v6")
        e("s_waitcnt lgkmcnt(0)")
        e(f"ds_read_b128 v[84:87], v6 offset:{HNL}\nds_read_b128 v[88:91], v6 offset:{HNL+64}")
        e("s_waitcnt lgkmcnt(0)")
        for s in range(2):
            for m in range(2):
                for tau in range(2):
                    fr = 32 + 16*m + 8*s + 4*tau; d = 96 + 8*m + 4*tau
                    e(f"v_mfma_f32_16x16x32_bf16 v[{d}:{d+3}], v[{fr}:{fr+3}], v[{84+4*s}:{87+4*s}], {'0' if s==0 else f'v[{d}:{d+3}]'}")
        self.stamp(10)
        e(f"v_lshlrev_b32 v6, 4, v3\ns_lshl_b32 s64, s30, 8\nv_add_u32 v6, s64, v6")
        e("s_mov_b32 s64, 0x00010001\ns_mov_b32 s65, 0x00010001\ns_mov_b64 exec, s[64:65]")
        for k in range(4):
            e(f"ds_write_b128 v6, v[{96+4*k}:{99+4*k}] offset:{MR + 64*k}")
        e("s_mov_b64 exec, -1")
        e("v_lshlrev_b32 v10, 3, v3\nv_bfe_u32 v12, v1, 2, 2\nv_add_u32 v10, v10, v12\nv_lshlrev_b32 v10, 7, v10\nv_and_b32 v12, 3, v1\nv_lshlrev_b32 v12, 3, v12\nv_add_u32 v10, v10, v12")
        e("v_bfe_u32 v12, v1, 3, 1\nv_and_b32 v11, 1, v3\nv_lshlrev_b32 v11, 1, v11\nv_or_b32 v12, v12, v11\nv_lshlrev_b32 v12, 5, v12\nv_add_u32 v10, v10, v12")
        e(f"s_add_u32 s65, s69, {2*36864}\nv_add_u32 v10, s65, v10")
        e("s_waitcnt lgkmcnt(0)\ns_barrier")
        e("v_lshlrev_b32 v6, 4, v2\nv_lshlrev_b32 v12, 8, v3\nv_add_u32 v6, v6, v12")
        for r in range(4): e(f"v_mov_b32 v{92+r}, 0")
        e(f"ds_read_b128 v[84:87], v6 offset:{MR}\nds_read_b128 v[88:91], v6 offset:{MR+1024}")
        e("s_mov_b64 exec, 0xffff")
        e(f"ds_read_b128 v[92:95], v6 offset:{MR+2048}")
        e("s_mov_b64 exec, -1")
        e("s_waitcnt vmcnt(0)")
        for tau in range(4):
            e(f"v_xor_b32 v11, {32*tau}, v10")
            e(f"ds_read_b64_tr_b16 v[{64+4*tau}:{65+4*tau}], v11\nds_read_b64_tr_b16 v[{66+4*tau}:{67+4*tau}], v11 offset:512")
        e("s_waitcnt lgkmcnt(8)")
        for r in range(4): e(f"v_add_f32 v{84+r}, v{84+r}, v{88+r}")
        for r in range(4): e(f"v_add_f32 v{84+r}, v{84+r}, v{92+r}")
        self.xrow_transpose_reduce(84)
        self.Rnd("v84", "v84")
        e("v_mov_b32_dpp v85, v84 row_ror:8 row_mask:0xf bank_mask:0xf")
        e("v_max_f32 v86, 0, v84\nv_mul_f32 v86, v86, v85\nv_cvt_pk_bf16_f32 v86, v86, v86")
        e(f"v_lshlrev_b32 v6, 2, v2\nv_add_u32 v6, v6, v3\nv_lshlrev_b32 v6, 1, v6\ns_lshl_b32 s64, s30, 6\nv_add_u32 v6, s64, v6")
        e("s_mov_b32 s66, 0x00ff00ff\ns_mov_b32 s67, 0x00ff00ff\ns_mov_b64 exec, s[66:67]")
        e(f"ds_write_b16 v6, v86 offset:{HHL}")
        e("s_mov_b64 exec, -1")
        e("v_lshlrev_b32 v6, 4, v3\nv_add_u32 v6, s64, v6")
        e("s_waitcnt lgkmcnt(0)")
        e(f"ds_read_b128 v[84:87], v6 offset:{HHL}")
        e(f"s_mul_i32 s64, s32, 2304\ns_lshl_b32 s65, s30, 8\ns_add_u32 s64, s64, s65\ns_add_u32 s64, s64, {H4}")
        e("v_bfe_u32 v6, v1, 2, 2\nv_lshlrev_b32 v6, 6, v6\nv_lshlrev_b32 v12, 4, v3\nv_add_u32 v6, v6, v12\nv_add_u32 v6, s64, v6")
        e("s_waitcnt lgkmcnt(0)")
        for tau in range(4):
            e(f"v_mfma_f32_16x16x32_bf16 v[{96+4*tau}:{99+4*tau}], v[{64+4*tau}:{67+4*tau}], v[84:87], 0")
        for tau in range(1, 4):
            for r in range(4):
                e(f"v_mov_b32_dpp v{96+r}, v{96+4*tau+r} quad_perm:[0,1,2,3] row_mask:0xf bank_mask:{1<<tau:#x}")
        self.tagins(96)
        e("s_mov_b32 s64, 0x11111111\ns_mov_b32 s65, 0x11111111\ns_mov_b64 exec, s[64:65]")
        e("global_store_dwordx4 v6, v[96:99], s[26:27] sc1")
        e("s_mov_b64 exec, -1")
        self.stamp(11)

def build(opt=None):
    opt = opt or {}
    g = G(opt)
    body = g.gen()
    name = NAME + "_kernel"
    txt = HEADER + "; Override launch geometry by editing the next line (default: block=256,\n; grid=ceil(out_elems/256), lds=0). Harness parses it; keep it on one line.\n"
    txt += f"; @launch grid=(256,1,1) block=(576,1,1) lds={LDS_BYTES}\n"
    txt += f""".amdgcn_target "amdgcn-amd-amdhsa--gfx950"
.text
.globl {name}
.p2align 8
.type {name},@function
{name}:
{body}.section .rodata,"a"
.p2align 6
.amdhsa_kernel {name}
  .amdhsa_next_free_vgpr 128
  .amdhsa_next_free_sgpr 96
  .amdhsa_accum_offset 128
  .amdhsa_group_segment_fixed_size 0
  .amdhsa_kernarg_size 96
  .amdhsa_user_sgpr_count 2
  .amdhsa_user_sgpr_kernarg_segment_ptr 1
  .amdhsa_system_sgpr_workgroup_id_x 1
.end_amdhsa_kernel
"""
    return txt, g
if __name__ == "__main__":
    import json
    opt = json.loads(sys.argv[2]) if len(sys.argv) > 2 else {}
    txt, g = build(opt)
    open(sys.argv[1], "w").write(txt)
    print("instrs", g.e.count, "nops", g.e.nops)
```

```python
import sys
sys.path.insert(0, "work")
from emit import E
NAME = "sequential_preLN__sliding_block_cached__glu_gated_reglu__decode"
HEADER = open("cdna_kernels/" + NAME + ".s.ref").read().split("; Override launch geometry")[0]

H1 = 0x10000; H2 = 0x40000; H3 = 0x90000; H4 = 0xA0000; TS = 0x400000
XT = 0
FL = 256
QB = 512
MX = 1024
LS = 1056
PL = 1280
OP = 2560
ST2 = 6656
HNL = 6784
MR = 7936
HHL = 10240
WR = 6656
SC = 10816
FR = 9728
WB = 11264
LDS_BYTES = WB + 3 * 36864

class G:
    def __init__(self, opt):
        self.o = opt; self.e = E(); self.uid = 0
    def stamp(self, k):
        if not self.o.get("stamps"): return
        e = self.e
        e(f"s_memrealtime s[90:91]\ns_waitcnt lgkmcnt(0)\nv_writelane_b32 v127, s90, {k}")
    def note(self, k, sreg):
        if self.o.get("stamps"): self.e(f"v_writelane_b32 v127, {sreg}, {k}")
    def Rnd(self, d, s):
        self.e(f"v_cvt_pk_bf16_f32 {d}, {s}, {s}")
        self.e(f"v_and_b32 {d}, 0xffff0000, {d}")
    def row_allreduce(self, op, vs, steps=(8, 4, 2, 1)):
        for st in steps:
            for v in vs:
                self.e(f"{op}_dpp {v}, {v}, {v} row_ror:{st} row_mask:0xf bank_mask:0xf")
    def tagins(self, v4):
        for k in range(4):
            self.e(f"v_perm_b32 v{v4+k}, v{v4+k}, v7, s{56+k}")
    def validate(self, grans, t0, t1):
        e = self.e
        for i, gb in enumerate(grans):
            e(f"v_perm_b32 {t0}, v{gb+1}, v{gb}, s62")
            e(f"v_perm_b32 {t1}, v{gb+3}, v{gb+2}, s63")
            e(f"v_or_b32 {t0}, {t0}, {t1}")
            e(f"v_cmp_ne_u32 vcc, {t0}, v7")
            if len(grans) > 1:
                if i == 0: e("s_mov_b64 s[60:61], vcc")
                else: e("s_or_b64 s[60:61], s[60:61], vcc")
        if len(grans) > 1: e("s_mov_b64 vcc, s[60:61]")
    def spin_tail(self, okl, loopl, sleep):
        e = self.e
        e(f"s_cbranch_vccz {okl}")
        e("s_add_u32 s66, s66, 1\ns_cmp_gt_u32 s66, %d\ns_cbranch_scc1 %s" % (self.o.get("maxspin", 20000), okl))
        if sleep: e(f"s_sleep {sleep}")
    def masks(self):
        e = self.e
        e("v_and_b32 v6, 1, v1\nv_lshlrev_b32 v6, 4, v6\nv_mov_b32 v12, 0xffff\nv_lshlrev_b32 v12, v6, v12")
        e("v_bfe_u32 v6, v1, 1, 2")
        for r in range(4):
            e(f"v_cmp_eq_u32 vcc, {r}, v6\nv_cndmask_b32 v{120+r}, 0, v12, vcc")
    def consts(self):
        e = self.e
        e("s_mov_b32 s56, 0x07060500\ns_mov_b32 s57, 0x07060501\ns_mov_b32 s58, 0x07060502\ns_mov_b32 s59, 0x07060503")
        e("s_mov_b32 s62, 0x0c0c0400\ns_mov_b32 s63, 0x04000c0c")
    def epoch(self):
        e = self.e
        e("s_waitcnt lgkmcnt(0)")
        e("s_mul_i32 s31, s31, 0x19660d\ns_add_u32 s31, s31, 0x3c6ef35f\nv_mov_b32 v7, s31")
    def ln_scalars(self, s1, s2, vm, vs, vr):
        e = self.e
        e(f"s_mov_b32 s68, 0x3ae38e39")
        e(f"v_mov_b32 {vm}, {s1}\nv_mov_b32 {vs}, {s2}\nv_mul_f32 {vm}, s68, {vm}\nv_mul_f32 {vs}, s68, {vs}")
        e(f"v_fma_f32 {vs}, -{vm}, {vm}, {vs}")
        e(f"v_max_f32 {vs}, 0, {vs}")
        self.Rnd(vs, vs); self.Rnd(vm, vm)
        e(f"v_add_f32 {vs}, 0x3727c5ac, {vs}")
        self.Rnd(vs, vs)
        e(f"v_sqrt_f32 {vs}, {vs}")
        self.Rnd(vs, vs)
        e(f"v_rcp_f32 {vr}, {vs}")
    def ln_apply(self, x, vm, vs, vr, t0, t1):
        e = self.e
        e(f"v_sub_f32 {x}, {x}, {vm}")
        self.Rnd(x, x)
        e(f"v_mul_f32 {t0}, {x}, {vr}")
        e(f"v_fma_f32 {t1}, -{t0}, {vs}, {x}")
        e(f"v_fma_f32 {t0}, {t1}, {vr}, {t0}")
        e(f"v_cvt_pk_bf16_f32 {x}, {t0}, {t0}")
    def reduce_stride8(self, v, t):
        e = self.e
        for r in range(4): e(f"v_add_f32_dpp v{v+r}, v{v+r}, v{v+r} row_ror:8 row_mask:0xf bank_mask:0xf")
        self.xrow_allreduce(v, t)
    def xrow_allreduce(self, v, t):
        e = self.e
        for r in range(4): e(f"v_mov_b32 v{t+r}, v{v+r}")
        for r in range(4): e(f"v_permlane16_swap_b32 v{v+r}, v{t+r}")
        for r in range(4): e(f"v_add_f32 v{v+r}, v{v+r}, v{t+r}")
        for r in range(4): e(f"v_mov_b32 v{t+r}, v{v+r}")
        for r in range(4): e(f"v_permlane32_swap_b32 v{v+r}, v{t+r}")
        for r in range(4): e(f"v_add_f32 v{v+r}, v{v+r}, v{t+r}")
    def reduce_stride4(self, v, t):
        e = self.e
        for st in (8, 4):
            for r in range(4): e(f"v_add_f32_dpp v{v+r}, v{v+r}, v{v+r} row_ror:{st} row_mask:0xf bank_mask:0xf")
        self.xrow_allreduce(v, t)
    def xrow_transpose_reduce(self, v):
        e = self.e
        e(f"v_permlane16_swap_b32 v{v}, v{v+1}\nv_permlane16_swap_b32 v{v+2}, v{v+3}")
        e(f"v_add_f32 v{v}, v{v}, v{v+1}\nv_add_f32 v{v+2}, v{v+2}, v{v+3}")
        e(f"v_permlane32_swap_b32 v{v}, v{v+2}")
        e(f"v_add_f32 v{v}, v{v}, v{v+2}")

    def gen(self):
        e = self.e; o = self.o
        nt = o.get("kvflag", "nt")
        e("s_cmp_ge_u32 s2, 256\ns_cbranch_scc1 L_end")
        e("s_load_dwordx16 s[4:19], s[0:1], 0\ns_load_dwordx8 s[20:27], s[0:1], 64")
        if o.get("stamps"): e("v_mov_b32 v127, 0\ns_memrealtime s[90:91]")
        e("v_and_b32 v1, 63, v0\nv_lshrrev_b32 v6, 6, v0\nv_readfirstlane_b32 s30, v6")
        e("s_and_b32 s28, s2, 7\ns_lshl_b32 s28, s28, 1\ns_lshr_b32 s33, s2, 7\ns_or_b32 s28, s28, s33")
        e("s_lshr_b32 s29, s2, 3\ns_and_b32 s29, s29, 15")
        e("v_and_b32 v2, 15, v1\nv_lshrrev_b32 v3, 4, v1\nv_lshlrev_b32 v8, 4, v1")
        e(f"s_lshl_b32 s33, s28, 24\ns_lshl_b32 s64, s29, 16\ns_add_u32 s33, s33, s64\ns_add_u32 s33, s33, {61440*256}\ns_and_b32 s64, s30, 3\ns_lshl_b32 s64, s64, 14\ns_add_u32 s33, s33, s64")
        e("s_movk_i32 s70, 0x1000\ns_movk_i32 s71, 0x2000\ns_movk_i32 s72, 0x3000")
        e("v_bfe_u32 v13, v1, 2, 2\nv_lshlrev_b32 v13, 8, v13\nv_lshlrev_b32 v12, 6, v3\nv_add_u32 v13, v13, v12\nv_and_b32 v12, 3, v1\nv_lshlrev_b32 v12, 4, v12\nv_add_u32 v13, v13, v12")
        e("v_lshlrev_b32 v11, 13, v3\nv_lshlrev_b32 v12, 4, v2\nv_add_u32 v11, v11, v12")
        e("s_and_b32 s34, s29, 1\ns_lshl_b32 s35, s28, 1\ns_add_u32 s35, s35, s34\ns_lshl_b32 s35, s35, 8\ns_lshr_b32 s34, s29, 1\ns_mul_i32 s34, s34, 72")
        e("v_add_u32 v9, s34, v1\nv_lshlrev_b32 v9, 1, v9")
        e("s_lshl_b32 s34, s34, 13\ns_add_u32 s35, s35, s34")
        e("s_waitcnt lgkmcnt(0)")
        if o.get("stamps"): e("v_writelane_b32 v127, s90, 0")
        e("s_load_dword s31, s[26:27], 0")
        e("s_mov_b32 s36, s4\ns_mov_b32 s37, s5\ns_movk_i32 s38, 1152\ns_mov_b32 s39, 0x20000")
        e("s_mov_b32 s48, s10\ns_mov_b32 s49, s11\ns_mov_b32 s50, %d\ns_mov_b32 s51, 0x20000" % (576*8192))
        e("s_add_u32 s40, s6, s33\ns_addc_u32 s41, s7, 0\ns_movk_i32 s42, 0x4000\ns_mov_b32 s43, 0x20000")
        e("s_add_u32 s44, s8, s33\ns_addc_u32 s45, s9, 0\ns_movk_i32 s46, 0x4000\ns_mov_b32 s47, 0x20000")
        self.dma_srds()
        e("s_cmp_eq_u32 s30, 8\ns_cbranch_scc1 L_qwave")
        e("s_cmp_lt_u32 s30, 4\ns_cbranch_scc1 L_vwave")
        so = lambda t: ['0', 's70', 's71', 's72'][t // 4]
        e("s_setprio 2")
        e("s_barrier")
        n1 = o.get("kn1", 16)
        def Kld(t): e(f"buffer_load_dwordx4 v[{32+4*t}:{35+4*t}], v13, s[40:43], {so(t)} offen offset:{(t%4)*1024} {nt}")
        for t in range(n1): Kld(t)
        self.stamp(6)
        e("s_barrier")
        for t in range(n1, 16): Kld(t)
        e("s_barrier")
        self.consts()
        self.epoch()
        self.stamp(1)
        if o.get("diagK"):
            e("s_waitcnt vmcnt(12)"); self.stamp(8)
            e("s_waitcnt vmcnt(8)"); self.stamp(9)
            e("s_waitcnt vmcnt(4)"); self.stamp(10)
            e("s_waitcnt vmcnt(0)"); self.stamp(5)
        e(f"v_mov_b32 v6, 0\ns_mov_b32 s66, 0")
        e("L_qfloop:")
        e(f"ds_read_b32 v12, v6 offset:{FL}\ns_waitcnt lgkmcnt(0)\nv_cmp_ne_u32 vcc, 1, v12")
        self.spin_tail("L_qfok", "L_qfloop", 1)
        e("s_branch L_qfloop")
        e("L_qfok:")
        e("v_bfe_u32 v6, v1, 2, 1\nv_lshlrev_b32 v6, 8, v6\nv_lshlrev_b32 v12, 6, v3\nv_add_u32 v6, v6, v12\nv_and_b32 v12, 3, v1\nv_lshlrev_b32 v12, 4, v12\nv_add_u32 v6, v6, v12")
        e(f"ds_read_b128 v[12:15], v6 offset:{QB}")
        self.stamp(2)
        e("s_waitcnt vmcnt(0) lgkmcnt(0)")
        self.stamp(3)
        D0 = [96+4*t if t < 6 else 24+4*(t-6) for t in range(8)]
        D1 = [32+4*t for t in range(8)]
        D = D0 + D1
        S = [16+t for t in range(8)] + [96+t for t in range(8)]
        for t in range(16):
            e(f"v_mfma_f32_16x16x32_bf16 v[{D[t]}:{D[t]+3}], v[12:15], v[{32+4*t}:{35+4*t}], 0")
        for half in range(2):
            for k in range(4):
                for t in range(8*half, 8*half+8):
                    if k == 0: e(f"v_mov_b32_dpp v{S[t]}, v{D[t]} quad_perm:[0,0,0,0] row_mask:0xf bank_mask:0xf")
                    else: e(f"v_add_f32_dpp v{S[t]}, v{D[t]+k}, v{S[t]} quad_perm:[{k},{k},{k},{k}] row_mask:0xf bank_mask:0xf")
        e("s_mov_b32 s64, 0x3db504f3")
        def rnd_pairs():
            for k in range(8): e(f"v_cvt_pk_bf16_f32 v{64+k}, v{S[2*k]}, v{S[2*k+1]}")
            for k in range(8): e(f"v_lshlrev_b32 v{S[2*k]}, 16, v{64+k}\nv_and_b32 v{S[2*k+1]}, 0xffff0000, v{64+k}")
        rnd_pairs()
        for t in range(16): e(f"v_mul_f32 v{S[t]}, s64, v{S[t]}")
        rnd_pairs()
        for k in range(5): e(f"v_max3_f32 v{64+k}, v{S[3*k]}, v{S[3*k+1]}, v{S[3*k+2]}")
        e(f"v_max3_f32 v64, v64, v65, v{S[15]}\nv_max3_f32 v66, v66, v67, v68\nv_max_f32 v64, v64, v66")
        self.row_allreduce("v_max_f32", ["v64"], steps=(8, 4))
        e("s_mov_b32 s64, 0x3fb8aa3b")
        for t in range(16): e(f"v_sub_f32 v{S[t]}, v{S[t]}, v64")
        for t in range(16): e(f"v_mul_f32 v{S[t]}, s64, v{S[t]}")
        for t in range(16): e(f"v_exp_f32 v{S[t]}, v{S[t]}")
        for k in range(8): e(f"v_cvt_pk_bf16_f32 v{72+k}, v{S[2*k]}, v{S[2*k+1]}")
        for k in range(8): e(f"v_add_f32 v{S[2*k]}, v{S[2*k]}, v{S[2*k+1]}")
        for k in range(4): e(f"v_add_f32 v{S[4*k]}, v{S[4*k]}, v{S[4*k+2]}")
        e(f"v_add_f32 v{S[0]}, v{S[0]}, v{S[4]}\nv_add_f32 v{S[8]}, v{S[8]}, v{S[12]}\nv_add_f32 v65, v{S[0]}, v{S[8]}")
        self.row_allreduce("v_add_f32", ["v65"], steps=(8, 4))
        e("s_and_b32 s64, s30, 3\nv_lshlrev_b32 v6, 7, v3\nv_bfe_u32 v12, v1, 2, 2\nv_lshlrev_b32 v12, 5, v12\nv_add_u32 v6, v6, v12\ns_lshl_b32 s65, s64, 8\nv_add_u32 v6, s65, v6")
        e("s_mov_b32 exec_lo, 0x11111111\ns_mov_b32 exec_hi, 0")
        e(f"ds_write_b128 v6, v[72:75] offset:{PL}\nds_write_b128 v6, v[76:79] offset:{PL+16}")
        e("s_mov_b64 exec, -1")
        e("s_lshl_b32 s65, s64, 2\nv_add_u32 v6, s65, v1")
        e("s_mov_b64 exec, 0x10001")
        e(f"ds_write_b32 v6, v64 offset:{MX}\nds_write_b32 v6, v65 offset:{LS}")
        e("s_mov_b64 exec, -1")
        e("s_waitcnt lgkmcnt(0)")
        self.stamp(4)
        e("s_barrier")
        e("s_setprio 0")
        self.wait_pub("sf", 12)
        e("s_cmp_lt_u32 s29, 9\ns_cbranch_scc1 L_kpf\ns_cmp_lt_u32 s29, 15\ns_cbranch_scc0 L_roles")
        self.wo_dma(o.get("woearly", 12))
        e("s_branch L_roles")
        e("L_kpf:")
        if o.get("l2pf", True):
            self.l2_prefetch(o.get("pfearly", 11))
            e("s_waitcnt vmcnt(0)")
        self.stamp(5)
        self.wgu_dma(o.get("wgearly", 0))
        e("s_branch L_roles")
        e("L_vwave:")
        e("s_barrier")
        if o.get("codepf", False):
            e("s_cmp_eq_u32 s29, 15\ns_cbranch_scc0 L_nopf\ns_cmp_eq_u32 s30, 0\ns_cbranch_scc0 L_nopf")
            e("s_getpc_b64 s[64:65]")
            e("L_pfbase:")
            e("v_lshlrev_b32 v12, 7, v1")
            for k in range(2):
                e(f"v_add_u32 v6, {8192*k}, v12\nv_min_u32 v6, L_end-L_pfbase, v6\nglobal_load_dword v124, v6, s[64:65]")
            e("s_waitcnt vmcnt(0)")
            e("L_nopf:")
        if o.get("tlbtouch"):
            st = o["tlbtouch"]
            e("s_cmp_eq_u32 s30, 1\ns_cbranch_scc0 L_notouch")
            e(f"v_lshlrev_b32 v12, {st}, v1")
            for srd in ("s[52:55]", "s[76:79]", "s[80:83]", "s[84:87]"):
                e(f"buffer_load_dword v124, v12, {srd}, 0 offen")
            e("L_notouch:")
        self.masks(); self.consts(); self.epoch()
        e("s_barrier")
        nv1 = o.get("vn1", 6)
        def Vld(t): e(f"buffer_load_dwordx4 v[{32+4*t}:{35+4*t}], v8, s[44:47], {so(t)} offen offset:{(t%4)*1024} {nt}")
        if o.get("wopf", True): self.wo_prefetch()
        for t in range(nv1): Vld(t)
        e("s_barrier")
        for t in range(nv1, 16): Vld(t)
        self.stamp(1)
        e("s_barrier")
        self.stamp(2)
        e("v_bfe_u32 v6, v1, 3, 1\nv_lshlrev_b32 v6, 7, v6\nv_lshlrev_b32 v12, 5, v3\nv_add_u32 v6, v6, v12\ns_lshl_b32 s64, s30, 8\nv_add_u32 v6, s64, v6")
        e(f"ds_read_b128 v[16:19], v6 offset:{PL}\nds_read_b128 v[20:23], v6 offset:{PL+16}")
        e("v_lshrrev_b32 v6, 1, v3\nv_lshlrev_b32 v6, 4, v6")
        e(f"ds_read_b128 v[24:27], v6 offset:{MX}")
        e("s_lshl_b32 s64, s30, 2\nv_add_u32 v6, s64, v6")
        e(f"ds_read_b32 v28, v6 offset:{MX}")
        e("s_waitcnt lgkmcnt(0)")
        e("v_max3_f32 v24, v24, v25, v26\nv_max_f32 v24, v24, v27\nv_sub_f32 v28, v28, v24\nv_mul_f32 v28, 0x3fb8aa3b, v28\nv_exp_f32 v28, v28")
        e("s_mov_b32 s64, 0x01000100\ns_mov_b32 s65, 0x03020302")
        for t in range(16):
            ab = 96 + 4*(t % 4)
            e(f"v_perm_b32 v29, v{16+t//2}, v{16+t//2}, {'s64' if t%2==0 else 's65'}")
            for r in range(4): e(f"v_and_b32 v{ab+r}, v29, v{120+r}")
            e(f"s_waitcnt vmcnt({15-t})")
            e(f"v_mfma_f32_16x16x32_bf16 v[12:15], v[{ab}:{ab+3}], v[{32+4*t}:{35+4*t}], {'0' if t==0 else 'v[12:15]'}")
        self.stamp(3)
        e("s_setprio 3")
        e("v_lshrrev_b32 v6, 1, v3\nv_lshlrev_b32 v6, 9, v6\nv_lshlrev_b32 v30, 5, v2\nv_add_u32 v6, v6, v30\nv_and_b32 v30, 1, v3\nv_lshlrev_b32 v30, 4, v30\nv_add_u32 v6, v6, v30")
        e("s_lshl_b32 s64, s30, 10\nv_add_u32 v6, s64, v6")
        for r in range(4): e(f"v_mul_f32 v{12+r}, v28, v{12+r}")
        e(f"ds_write_b128 v6, v[12:15] offset:{OP}")
        e("v_mov_b32 v6, 0\nv_mov_b32 v30, 1")
        e("s_mov_b64 exec, 1")
        e(f"ds_add_rtn_u32 v31, v6, v30 offset:{FL+4}")
        e("s_mov_b64 exec, -1")
        e("s_waitcnt lgkmcnt(0)")
        e("v_readfirstlane_b32 s64, v31")
        e("s_cmp_eq_u32 s64, 3\ns_cbranch_scc0 L_vdone")
        for w in range(4): e(f"ds_read_b128 v[{16+4*w}:{19+4*w}], v8 offset:{OP + 1024*w}")
        e(f"s_mul_i32 s67, s28, 18432\ns_mul_i32 s64, s29, 1152\ns_add_u32 s67, s67, s64\ns_add_u32 s67, s67, {H2}")
        e("v_add_u32 v6, s67, v8")
        e("s_waitcnt lgkmcnt(0)")
        for r in range(4): e(f"v_add_f32 v{16+r}, v{16+r}, v{20+r}\nv_add_f32 v{24+r}, v{24+r}, v{28+r}")
        for r in range(4): e(f"v_add_f32 v{16+r}, v{16+r}, v{24+r}")
        self.tagins(16)
        e("global_store_dwordx4 v6, v[16:19], s[26:27] sc1")
        e(f"v_mov_b32 v6, 0\nv_mov_b32 v30, 1\nds_write_b32 v6, v30 offset:{FL+8}")
        e("L_vdone:")
        e("s_setprio 0")
        self.stamp(4)
        e("s_branch L_roles")
        e("L_qwave:")
        e("s_setprio 3")
        e("buffer_load_dwordx4 v[24:27], v8, s[36:39], 0 offen")
        e("buffer_load_dwordx4 v[28:31], v8, s[36:39], 0 offen offset:1024")
        e("buffer_load_ushort v14, v9, s[36:39], 0 offen")
        e("buffer_load_ushort v15, v9, s[36:39], 0 offen offset:128")
        for i in range(18):
            e(f"buffer_load_dwordx4 v[{32+4*i}:{35+4*i}], v11, s[48:51], s35 offen {nt}")
            if i < 17: e("s_add_u32 s35, s35, 0x8000")
        e("v_mov_b32 v6, 0\nv_mov_b32 v16, 0\nv_mov_b32 v17, 0\nv_mov_b32 v18, 0\nv_mov_b32 v19, 0")
        e(f"ds_write_b128 v6, v[16:19] offset:{FL}")
        e("s_waitcnt lgkmcnt(0)")
        e("s_barrier")
        npf = 0
        self.masks(); self.consts()
        e(f"s_waitcnt vmcnt({18+npf})")
        self.stamp(1)
        e("v_mov_b32 v104, 0\nv_mov_b32 v105, 0\ns_mov_b32 s64, 0x3f803f80")
        for k in range(8):
            e(f"v_dot2_f32_bf16 v104, v{24+k}, s64, v104")
            e(f"v_dot2_f32_bf16 v105, v{24+k}, v{24+k}, v105")
        self.row_allreduce("v_add_f32", ["v104", "v105"])
        e("v_permlane16_swap_b32 v104, v105\nv_add_f32 v104, v104, v105\nv_mov_b32 v105, v104\nv_permlane32_swap_b32 v104, v105\nv_add_f32 v104, v104, v105")
        e("v_readlane_b32 s64, v104, 0\nv_readlane_b32 s65, v104, 16")
        self.ln_scalars("s64", "s65", "v104", "v105", "v106")
        e("v_and_b32 v6, 3, v1\nv_mul_u32_u24 v6, 48, v6\nv_lshrrev_b32 v12, 2, v1\nv_lshlrev_b32 v12, 1, v12\nv_add_u32 v6, v6, v12")
        for i, xv in enumerate(("v14", "v15")):
            e(f"v_lshlrev_b32 {xv}, 16, {xv}")
            self.ln_apply(xv, "v104", "v105", "v106", "v107", "v108")
        e(f"ds_write_b16 v6, v14 offset:{XT}")
        e("s_mov_b64 exec, 0xff")
        e(f"ds_write_b16 v6, v15 offset:{XT+32}")
        e("s_mov_b64 exec, -1")
        e("v_mul_u32_u24 v6, 48, v3")
        e("s_waitcnt lgkmcnt(0)")
        e(f"ds_read_b128 v[24:27], v6 offset:{XT}\nds_read_b128 v[28:31], v6 offset:{XT+16}\nds_read_b32 v11, v6 offset:{XT+32}")
        self.epoch()
        if o.get("diagQ"): self.stamp(9)
        e("s_mov_b32 s64, 0x01000100\ns_mov_b32 s65, 0x03020302")
        slots = [104, 108, 112, 116] + [128 + 4*k for k in range(9)] + [16, 20, 12]
        def prep(i, ab):
            src = f"v{24+i//2}" if i < 16 else "v11"
            e(f"v_perm_b32 v10, {src}, {src}, {'s64' if i%2==0 else 's65'}")
            for r in range(4): e(f"v_and_b32 v{ab+r}, v10, v{120+r}")
        def mm(i, ab):
            e(f"s_waitcnt vmcnt({17-i})")
            e(f"v_mfma_f32_16x16x32_bf16 v[164:167], v[{ab}:{ab+3}], v[{32+4*i}:{35+4*i}], {'0' if i==0 else 'v[164:167]'}")
        for i in range(16): prep(i, slots[i])
        mm(0, slots[0]); mm(1, slots[1])
        prep(16, slots[0]); prep(17, slots[1])
        for i in range(2, 16): mm(i, slots[i])
        mm(16, slots[0]); mm(17, slots[1])
        e(f"s_lshl_b32 s64, s28, 13\ns_lshl_b32 s65, s29, 9\ns_add_u32 s65, s65, s64\ns_add_u32 s65, s65, {H1}")
        e("v_lshlrev_b32 v6, 5, v2\nv_lshlrev_b32 v12, 4, v3\nv_add_u32 v6, v6, v12\nv_add_u32 v6, s65, v6")
        self.tagins(164)
        e("s_mov_b32 exec_lo, -1\ns_mov_b32 exec_hi, 0")
        e("global_store_dwordx4 v6, v[164:167], s[26:27] sc1")
        e("s_mov_b64 exec, -1")
        self.stamp(2)
        e("s_barrier")
        e(f"s_add_u32 s64, s64, {H1}\nv_add_u32 v6, s64, v8\nv_add_u32 v9, 4096, v6")
        if o.get("smemchk", False):
            regs = [64, 65] + list(range(67, 76)) + [88, 89, 92, 93, 94]
            e(f"s_lshl_b32 s33, s28, 13\ns_add_u32 s33, s33, {H1 + 508}\ns_add_u32 s34, s26, s33\ns_addc_u32 s35, s27, 0")
            e("s_lshr_b32 s33, s31, 24\ns_mov_b32 s66, 0")
            if o.get("h1sleep", 4): e(f"s_sleep {o.get('h1sleep', 4)}")
            e("L_smloop:")
            for k, r in enumerate(regs): e(f"s_load_dword s{r}, s[34:35], {512*k} glc")
            e("s_waitcnt lgkmcnt(0)")
            for k, r in enumerate(regs):
                e(f"s_xor_b32 s{r}, s{r}, s33")
                if k: e(f"s_or_b32 s64, s64, s{r}")
            e("s_and_b32 s64, s64, 0xff\ns_cbranch_scc0 L_smok")
            e("s_add_u32 s66, s66, 1\ns_cmp_gt_u32 s66, %d\ns_cbranch_scc1 L_smok" % o.get("maxspin", 20000))
            e("s_branch L_smloop")
            e("L_smok:")
            self.note(11, "s66")
        elif o.get("h1sleep", 34): e(f"s_sleep {o.get('h1sleep', 34)}")
        e("s_mov_b32 s66, 0")
        def h1loads():
            for i in range(8):
                e(f"global_load_dwordx4 v[{32+4*i}:{35+4*i}], {'v6' if i<4 else 'v9'}, s[26:27] offset:{(i%4)*1024} sc1")
        self.stamp(5)
        h1loads()
        self.stamp(6)
        e("s_barrier")
        e("L_h1loop:")
        e("s_waitcnt vmcnt(0)")
        self.validate([32+4*i for i in range(8)], "v100", "v101")
        self.spin_tail("L_h1ok", "L_h1loop", 2)
        h1loads()
        e("s_branch L_h1loop")
        e("L_h1ok:")
        self.note(12, "s66")
        for k in range(32): e(f"v_and_b32 v{32+k}, 0xffffff00, v{32+k}")
        for i in range(0, 8, 2):
            for r in range(4): e(f"v_add_f32 v{32+4*i+r}, v{32+4*i+r}, v{36+4*i+r}")
        for i in (0, 4):
            for r in range(4): e(f"v_add_f32 v{32+4*i+r}, v{32+4*i+r}, v{40+4*i+r}")
        for r in range(4): e(f"v_add_f32 v{32+r}, v{32+r}, v{48+r}")
        e("v_cvt_pk_bf16_f32 v32, v32, v33\nv_cvt_pk_bf16_f32 v33, v34, v35")
        e("v_lshlrev_b32 v6, 3, v1")
        e(f"ds_write_b64 v6, v[32:33] offset:{QB}")
        e("v_mov_b32 v6, 0\nv_mov_b32 v12, 1")
        e("s_waitcnt lgkmcnt(0)")
        e(f"ds_write_b32 v6, v12 offset:{FL}")
        e("s_waitcnt lgkmcnt(0)")
        self.stamp(3)
        e("s_barrier")
        e("v_mov_b32 v6, 0")
        e(f"ds_read_b128 v[32:35], v6 offset:{MX}\nds_read_b128 v[36:39], v6 offset:{MX+16}\nds_read_b128 v[40:43], v6 offset:{LS}\nds_read_b128 v[44:47], v6 offset:{LS+16}")
        e("s_waitcnt lgkmcnt(0)")
        for h in range(2):
            m = 32 + 4*h; l = 40 + 4*h; M = 16 + 2*h; L = 17 + 2*h
            e(f"v_max3_f32 v{M}, v{m}, v{m+1}, v{m+2}\nv_max_f32 v{M}, v{M}, v{m+3}")
            for k in range(4): e(f"v_sub_f32 v{m+k}, v{m+k}, v{M}")
            for k in range(4): e(f"v_mul_f32 v{m+k}, 0x3fb8aa3b, v{m+k}")
            for k in range(4): e(f"v_exp_f32 v{m+k}, v{m+k}")
            e(f"v_mul_f32 v{L}, v{m}, v{l}")
            for k in range(1, 4): e(f"v_fma_f32 v{L}, v{m+k}, v{l+k}, v{L}")
        self.tagins(16)
        e(f"s_mul_i32 s67, s28, 18432\ns_mul_i32 s64, s29, 1152\ns_add_u32 s67, s67, s64\ns_add_u32 s67, s67, {H2+1024}\nv_mov_b32 v6, s67")
        e("s_mov_b64 exec, 1")
        e("global_store_dwordx4 v6, v[16:19], s[26:27] sc1")
        e("s_mov_b64 exec, -1")
        e(f"v_mov_b32 v6, 0\nv_mov_b32 v12, 1\nds_write_b32 v6, v12 offset:{FL+12}")
        self.stamp(4)
        e("L_roles:")
        self.stamp(7)
        e("s_cmp_lt_u32 s29, 9\ns_cbranch_scc1 L_roleA")
        e("s_cmp_lt_u32 s29, 15\ns_cbranch_scc0 L_fin")
        self.roleB1()
        e("L_roleA:")
        self.roleA()
        e("L_fin:")
        if o.get("stamps"):
            self.stamp(15)
            e(f"s_mul_i32 s64, s2, 9\ns_add_u32 s64, s64, s30\ns_lshl_b32 s64, s64, 6\ns_add_u32 s64, s64, {TS}")
            e("v_lshlrev_b32 v6, 2, v1\nv_add_u32 v6, s64, v6")
            e("s_mov_b64 exec, 0xffff")
            e("global_store_dword v6, v127, s[26:27]")
        e("L_end:")
        e("s_endpgm")
        return e.text()

    def dma_srds(self):
        e = self.e
        e("s_mov_b32 s52, s12\ns_mov_b32 s53, s13\ns_mov_b32 s54, %d\ns_mov_b32 s55, 0x20000" % (4096*1152))
        e(f"s_mov_b32 s76, s16\ns_mov_b32 s77, s17\ns_mov_b32 s78, {576*9216}\ns_mov_b32 s79, 0x20000")
        e(f"s_mov_b32 s80, s18\ns_mov_b32 s81, s19\ns_mov_b32 s82, {576*9216}\ns_mov_b32 s83, 0x20000")
        e(f"s_mov_b32 s84, s20\ns_mov_b32 s85, s21\ns_mov_b32 s86, {4608*1152}\ns_mov_b32 s87, 0x20000")
    def wo_prefetch(self):
        e = self.e
        e("s_and_b32 s64, s2, 7\ns_mul_i32 s64, s64, 589824\ns_lshr_b32 s65, s2, 3\ns_mul_i32 s65, s65, 18432\ns_add_u32 s64, s64, s65")
        e("s_and_b32 s65, s30, 3\ns_mul_i32 s65, s65, 4608\ns_add_u32 s64, s64, s65")
        fl = self.o.get("pfflag", "")
        for k in range(4):
            e(f"buffer_load_dwordx4 v[112:115], v8, s[52:55], s64 offen offset:{1024*k} {fl}")
        e("s_add_u32 s64, s64, 4096\ns_mov_b32 exec_lo, -1\ns_mov_b32 exec_hi, 0")
        e(f"buffer_load_dwordx4 v[112:115], v8, s[52:55], s64 offen {fl}")
        e("s_mov_b64 exec, -1")
    def l2_prefetch(self, early):
        e = self.e
        e("s_and_b32 s64, s28, 1\ns_mul_i32 s64, s64, 9\ns_add_u32 s64, s64, s29\ns_lshl_b32 s64, s64, 5\ns_and_b32 s65, s30, 3\ns_lshl_b32 s65, s65, 3\ns_add_u32 s73, s64, s65")
        e("s_mul_i32 s73, s73, 9216\ns_lshr_b32 s65, s28, 1\ns_mul_i32 s65, s65, 1152\ns_add_u32 s73, s73, s65")
        e("v_lshrrev_b32 v100, 3, v1\nv_mul_u32_u24 v100, 9216, v100\nv_and_b32 v101, 7, v1\nv_lshlrev_b32 v101, 4, v101\nv_add_u32 v100, v100, v101\nv_add_u32 v100, 1024, v100")
        e("v_lshlrev_b32 v101, 4, v1")
        fl = self.o.get("pfflag", "")
        n = 0
        def gate():
            if n == early:
                e("s_mov_b32 s74, s64")
                self.wait_pub("pf")
                e("s_mov_b32 s64, s74")
        for srd in ("s[76:79]", "s[80:83]"):
            e("s_mov_b32 s64, s73")
            for k in range(8):
                gate()
                e(f"buffer_load_dwordx4 v[112:115], v101, {srd}, s64 offen {fl}")
                n += 1
                if k < 7: e("s_add_u32 s64, s64, 9216")
            gate()
            e(f"buffer_load_dwordx4 v[112:115], v100, {srd}, s73 offen {fl}")
            n += 1
    def wait_pub(self, tag, off=8):
        e = self.e
        e(f"v_mov_b32 v6, 0\ns_mov_b32 s66, 0")
        e(f"L_{tag}loop:")
        e(f"ds_read_b32 v12, v6 offset:{FL+off}\ns_waitcnt lgkmcnt(0)\nv_cmp_ne_u32 vcc, 1, v12")
        self.spin_tail(f"L_{tag}ok", f"L_{tag}loop", 2)
        e(f"s_branch L_{tag}loop")
        e(f"L_{tag}ok:")
    def wo_dma(self, early):
        e = self.e
        e("s_and_b32 s64, s30, 3\ns_lshl_b32 s64, s64, 1")
        e("s_lshl_b32 s72, s28, 8\ns_lshl_b32 s65, s64, 5\ns_add_u32 s72, s72, s65\ns_mul_i32 s72, s72, 1152")
        e("s_sub_u32 s65, s29, 9\ns_mul_i32 s65, s65, 192\ns_add_u32 s72, s72, s65")
        e(f"s_mul_i32 s71, s64, 6144\ns_add_u32 s71, s71, {WB}")
        for i in range(3):
            e(f"v_add_u32 v100, {64*i}, v1\nv_mul_u32_u24 v101, 5462, v100\nv_lshrrev_b32 v101, 16, v101")
            e("v_mul_u32_u24 v102, 12, v101\nv_sub_u32 v102, v100, v102")
            e("v_bfe_u32 v103, v101, 3, 1\nv_lshlrev_b32 v103, 1, v103\nv_xor_b32 v102, v102, v103\nv_lshlrev_b32 v102, 4, v102")
            e(f"v_mul_u32_u24 v101, 1152, v101\nv_add_u32 v{104+i}, v101, v102")
        n = 0
        for blk in range(4):
            for i in range(3):
                if n == early: self.wait_pub("wo")
                e("s_mov_b32 m0, s71\ns_add_u32 s71, s71, 1024")
                e(f"buffer_load_dwordx4 v{104+i}, s[52:55], s72 offen {self.o.get('wodmaflag', 'nt')} lds")
                n += 1
            if blk < 3: e(f"s_add_u32 s72, s72, {16*1152}")
    def wgu_dma(self, early):
        e = self.e
        e("s_mul_i32 s32, s28, 9\ns_add_u32 s32, s32, s29")
        e("v_lshrrev_b32 v10, 2, v1\nv_mul_u32_u24 v10, 9216, v10\nv_and_b32 v12, 3, v1\nv_lshrrev_b32 v11, 5, v1\nv_lshlrev_b32 v11, 1, v11\nv_xor_b32 v12, v12, v11\nv_lshlrev_b32 v12, 4, v12\nv_add_u32 v10, v10, v12")
        e(f"s_and_b32 s64, s30, 3\ns_mul_i32 s65, s64, {16*9216}\ns_lshl_b32 s68, s32, 6\ns_add_u32 s68, s68, s65")
        e(f"s_lshl_b32 s69, s64, 10\ns_add_u32 s69, s69, {WB}")
        n = 0
        for m, srd in enumerate(("s[76:79]", "s[80:83]")):
            e(f"s_mov_b32 s64, s68\ns_add_u32 s65, s69, {36864*m}")
            for w in range(9):
                if n == early:
                    e("s_mov_b32 s73, s64\ns_mov_b32 s74, s65")
                    self.wait_pub("wg")
                    if self.o.get("wgdelay"): e(f"s_sleep {self.o['wgdelay']}")
                    e("s_mov_b32 s64, s73\ns_mov_b32 s65, s74")
                e("s_mov_b32 m0, s65\ns_add_u32 s65, s65, 4096")
                e(f"buffer_load_dwordx4 v10, {srd}, s64 offen nt lds")
                n += 1
                if w < 8: e(f"s_add_u32 s64, s64, {64*9216}")

    def roleB1(self):
        e = self.e; o = self.o
        e(f"s_mul_i32 s64, s28, 18432\ns_add_u32 s64, s64, {H2}")
        e("s_cmp_eq_u32 s30, 8\ns_cbranch_scc0 L_b1w")
        e("v_mul_u32_u24 v6, 1152, v2\nv_add_u32 v6, s64, v6\nv_add_u32 v6, 1024, v6")
        if o.get("st2sleep", 8): e(f"s_sleep {o.get('st2sleep', 8)}")
        e("s_mov_b32 s66, 0")
        e("L_stloop:")
        e("global_load_dwordx4 v[72:75], v6, s[26:27] sc1\ns_waitcnt vmcnt(0)")
        self.validate([72], "v100", "v101")
        self.spin_tail("L_stok", "L_stloop", 4)
        e("s_branch L_stloop")
        e("L_stok:")
        e("v_and_b32 v12, 1, v3\nv_cmp_eq_u32 vcc, 1, v12\nv_cndmask_b32 v72, v72, v74, vcc\nv_cndmask_b32 v73, v73, v75, vcc")
        e("v_and_b32 v72, 0xffffff00, v72\nv_and_b32 v73, 0xffffff00, v73")
        e("v_mov_b32 v76, v72")
        self.row_allreduce("v_max_f32", ["v76"])
        e("v_sub_f32 v72, v72, v76\nv_mul_f32 v72, 0x3fb8aa3b, v72\nv_exp_f32 v72, v72")
        e("v_mul_f32 v73, v72, v73")
        self.row_allreduce("v_add_f32", ["v73"])
        e("v_rcp_f32 v73, v73")
        e("v_mul_f32 v72, v72, v73")
        e("v_lshlrev_b32 v6, 2, v1")
        e("s_mov_b32 exec_lo, -1\ns_mov_b32 exec_hi, 0")
        e(f"ds_write_b32 v6, v72 offset:{SC}")
        e("s_mov_b64 exec, -1")
        e("s_setprio 0")
        e("s_waitcnt lgkmcnt(0)")
        self.stamp(13)
        e("s_barrier")
        e("s_branch L_b1w8")
        e("L_b1w:")
        e("v_mul_u32_u24 v6, 1152, v2\nv_add_u32 v6, s64, v6")
        e("v_lshlrev_b32 v12, 5, v3\ns_lshl_b32 s65, s30, 7\nv_add_u32 v12, s65, v12\nv_add_u32 v6, v6, v12")
        e("v_mov_b32 v64, v6")
        self.wait_pub("b1p", 8)
        e("v_mov_b32 v6, v64")
        if o.get("h2sleep", 12): e(f"s_sleep {o.get('h2sleep', 12)}")
        def h2loads():
            e("global_load_dwordx4 v[64:67], v6, s[26:27] sc1\nglobal_load_dwordx4 v[68:71], v6, s[26:27] offset:16 sc1")
        h2loads()
        e("v_lshlrev_b32 v10, 3, v3\nv_bfe_u32 v12, v1, 2, 2\nv_add_u32 v10, v10, v12\nv_mul_u32_u24 v10, 192, v10\nv_and_b32 v12, 3, v1\nv_lshlrev_b32 v12, 3, v12\nv_add_u32 v10, v10, v12")
        e(f"s_mul_i32 s65, s30, 6144\ns_add_u32 s65, s65, {WB}\nv_add_u32 v10, s65, v10")
        e("v_and_b32 v12, 1, v3\nv_lshlrev_b32 v12, 5, v12\nv_add_u32 v11, v10, v12\nv_sub_u32 v10, v10, v12")
        e("s_lshr_b32 s65, s30, 2\ns_lshl_b32 s65, s65, 6\nv_lshlrev_b32 v9, 2, v2\nv_add_u32 v9, s65, v9")
        self.stamp(5)
        e("s_waitcnt vmcnt(0)")
        self.stamp(6)
        e("s_barrier")
        self.stamp(8)
        e(f"ds_read_b32 v72, v9 offset:{SC}")
        for tau in range(6):
            a = "v11" if tau % 2 == 0 else "v10"
            e(f"ds_read_b64_tr_b16 v[{32+4*tau}:{33+4*tau}], {a} offset:{32*tau}")
            e(f"ds_read_b64_tr_b16 v[{34+4*tau}:{35+4*tau}], {a} offset:{32*tau + 768}")
        e("s_mov_b32 s66, 0")
        e("L_h2loop:")
        self.validate([64, 68], "v100", "v101")
        self.spin_tail("L_h2ok", "L_h2loop", o.get("h2retry", 2))
        h2loads()
        e("s_waitcnt vmcnt(0)\ns_branch L_h2loop")
        e("L_h2ok:")
        self.note(13, "s66")
        self.stamp(9)
        e("s_waitcnt lgkmcnt(12)")
        for k in range(8): e(f"v_mul_f32 v{64+k}, v72, v{64+k}")
        self.row_allreduce("v_add_f32", [f"v{64+k}" for k in range(8)])
        for k in range(4): e(f"v_cvt_pk_bf16_f32 v{76+k}, v{64+2*k}, v{65+2*k}")
        e("s_waitcnt lgkmcnt(0)")
        for tau in range(6):
            e(f"v_mfma_f32_16x16x32_bf16 v[{80+4*tau}:{83+4*tau}], v[{32+4*tau}:{35+4*tau}], v[76:79], 0")
        e(f"v_lshlrev_b32 v6, 4, v3\ns_mul_i32 s64, s30, 384\nv_add_u32 v6, s64, v6")
        e("s_mov_b32 s64, 0x00010001\ns_mov_b32 s65, 0x00010001\ns_mov_b64 exec, s[64:65]")
        for tau in range(6):
            e(f"ds_write_b128 v6, v[{80+4*tau}:{83+4*tau}] offset:{WR + 64*tau}")
        e("s_mov_b64 exec, -1")
        e("L_b1w8:")
        e("s_waitcnt lgkmcnt(0)\ns_barrier")
        e("s_cmp_lt_u32 s30, 3\ns_cbranch_scc0 L_b1pubdone")
        e("v_and_b32 v6, 7, v1\nv_lshlrev_b32 v6, 4, v6\nv_lshrrev_b32 v12, 3, v1\nv_mul_u32_u24 v12, 384, v12\nv_add_u32 v6, v6, v12\ns_lshl_b32 s64, s30, 7\nv_add_u32 v6, s64, v6")
        e(f"ds_read_b128 v[16:19], v6 offset:{WR}")
        e(f"s_mul_i32 s64, s28, 2304\ns_sub_u32 s65, s29, 9\ns_mul_i32 s65, s65, 384\ns_add_u32 s64, s64, s65\ns_lshl_b32 s65, s30, 7\ns_add_u32 s64, s64, s65\ns_add_u32 s64, s64, {H3}")
        e("v_and_b32 v6, 7, v1\nv_lshlrev_b32 v6, 4, v6\nv_add_u32 v6, s64, v6")
        e("s_waitcnt lgkmcnt(0)")
        self.reduce_stride8(16, 20)
        self.tagins(16)
        e("s_mov_b64 exec, 0xff")
        e("global_store_dwordx4 v6, v[16:19], s[26:27] sc1")
        e("s_mov_b64 exec, -1")
        e("L_b1pubdone:")
        self.stamp(10)
        e("s_sub_u32 s32, s29, 9\ns_cmp_lt_u32 s32, 2\ns_cbranch_scc0 L_rho2\ns_lshl_b32 s64, s28, 1\ns_add_u32 s32, s32, s64\ns_branch L_reducer")
        e("L_rho2:\ns_cmp_eq_u32 s32, 2\ns_cbranch_scc0 L_fin\ns_cmp_lt_u32 s28, 4\ns_cbranch_scc0 L_fin\ns_add_u32 s32, s28, 32")
        e("L_reducer:")
        e("s_cmp_eq_u32 s30, 0\ns_cbranch_scc0 L_redh4")
        e(f"v_lshrrev_b32 v6, 2, v1\nv_mul_u32_u24 v6, 2304, v6\nv_and_b32 v12, 3, v1\nv_lshlrev_b32 v12, 4, v12\nv_add_u32 v6, v6, v12\ns_lshl_b32 s64, s32, 6\ns_add_u32 s64, s64, {H3}\nv_add_u32 v6, s64, v6")
        e("v_and_b32 v12, 3, v1\nv_lshlrev_b32 v12, 3, v12\ns_lshl_b32 s64, s32, 5\nv_add_u32 v12, s64, v12")
        e("buffer_load_dwordx2 v[40:41], v12, s[36:39], 0 offen")
        if o.get("rh3sleep", 8): e(f"s_sleep {o.get('rh3sleep', 8)}")
        e("s_mov_b32 s66, 0")
        e("L_rh3loop:")
        e("global_load_dwordx4 v[32:35], v6, s[26:27] sc1\ns_waitcnt vmcnt(0)")
        self.validate([32], "v100", "v101")
        self.spin_tail("L_rh3ok", "L_rh3loop", 4)
        e("s_branch L_rh3loop")
        e("L_rh3ok:")
        for r in range(4): e(f"v_and_b32 v{32+r}, 0xffffff00, v{32+r}")
        self.reduce_stride4(32, 36)
        e("v_lshlrev_b32 v44, 16, v40\nv_and_b32 v45, 0xffff0000, v40\nv_lshlrev_b32 v46, 16, v41\nv_and_b32 v47, 0xffff0000, v41")
        for r in range(4):
            self.Rnd(f"v{32+r}", f"v{32+r}")
            e(f"v_add_f32 v{44+r}, v{44+r}, v{32+r}")
            self.Rnd(f"v{44+r}", f"v{44+r}")
        e("L_redh4:")
        e("s_barrier")
        self.stamp(12)
        e(f"v_lshrrev_b32 v6, 2, v0\nv_mul_u32_u24 v6, 2304, v6\nv_and_b32 v12, 3, v0\nv_lshlrev_b32 v12, 4, v12\nv_add_u32 v6, v6, v12\ns_lshl_b32 s64, s32, 6\ns_add_u32 s64, s64, {H4}\nv_add_u32 v6, s64, v6")
        for k in range(o.get("h4sleepN", 1)): e(f"s_sleep {o.get('h4sleep', 40)}")
        e("s_mov_b32 s66, 0")
        e("L_h4loop:")
        e("global_load_dwordx4 v[32:35], v6, s[26:27] sc1\ns_waitcnt vmcnt(0)")
        self.validate([32], "v100", "v101")
        self.spin_tail("L_h4ok", "L_h4loop", o.get("h4retry", 4))
        e("s_branch L_h4loop")
        e("L_h4ok:")
        self.note(14, "s66")
        self.stamp(11)
        for r in range(4): e(f"v_and_b32 v{32+r}, 0xffffff00, v{32+r}")
        self.reduce_stride4(32, 36)
        e(f"v_and_b32 v6, 3, v1\nv_lshlrev_b32 v6, 4, v6\ns_lshl_b32 s64, s30, 6\nv_add_u32 v6, s64, v6")
        e("s_mov_b64 exec, 0xf")
        e(f"ds_write_b128 v6, v[32:35] offset:{FR}")
        e("s_mov_b64 exec, -1")
        e("s_waitcnt lgkmcnt(0)\ns_barrier")
        e("s_cmp_eq_u32 s30, 0\ns_cbranch_scc0 L_fin")
        e("v_and_b32 v6, 3, v1\nv_lshlrev_b32 v6, 4, v6\nv_lshrrev_b32 v12, 2, v1\nv_lshlrev_b32 v12, 6, v12\nv_add_u32 v6, v6, v12")
        for r in range(4): e(f"v_mov_b32 v{32+r}, 0")
        e("s_mov_b32 exec_lo, -1\ns_mov_b32 exec_hi, 0xf")
        e(f"ds_read_b128 v[32:35], v6 offset:{FR}")
        e("s_mov_b64 exec, -1")
        e("s_mov_b32 s52, s22\ns_mov_b32 s53, s23\ns_movk_i32 s54, 1152\ns_mov_b32 s55, 0x20000")
        e("v_and_b32 v6, 3, v1\nv_lshlrev_b32 v6, 3, v6\ns_lshl_b32 s64, s32, 5\nv_add_u32 v6, s64, v6")
        e("s_waitcnt lgkmcnt(0)")
        self.reduce_stride4(32, 36)
        for r in range(4):
            self.Rnd(f"v{32+r}", f"v{32+r}")
            e(f"v_add_f32 v{32+r}, v{44+r}, v{32+r}")
        e("v_cvt_pk_bf16_f32 v32, v32, v33\nv_cvt_pk_bf16_f32 v33, v34, v35")
        e("s_mov_b64 exec, 0xf")
        e("buffer_store_dwordx2 v[32:33], v6, s[52:55], 0 offen")
        e("s_mov_b64 exec, -1")
        e("s_cmp_eq_u32 s32, 0\ns_cbranch_scc0 L_fin")
        e("v_mov_b32 v6, 0\ns_mov_b64 exec, 1\nglobal_store_dword v6, v7, s[26:27] sc1\ns_mov_b64 exec, -1")
        e("s_branch L_fin")

    def roleA(self):
        e = self.e; o = self.o
        e("s_setprio 0")
        e("s_mul_i32 s32, s28, 9\ns_add_u32 s32, s32, s29")
        e(f"s_lshl_b32 s69, s30, 12\ns_add_u32 s69, s69, {WB}")
        e("v_lshlrev_b32 v10, 2, v2\nv_add_u32 v10, v10, v3\ns_lshl_b32 s34, s30, 6\nv_add_u32 v10, s34, v10\nv_lshlrev_b32 v10, 1, v10")
        e("buffer_load_ushort v126, v10, s[36:39], 0 offen")
        e(f"v_mul_u32_u24 v6, 2304, v3\nv_lshlrev_b32 v12, 4, v2\nv_add_u32 v6, v6, v12\ns_lshl_b32 s64, s30, 8\ns_add_u32 s64, s64, {H3}\nv_add_u32 v6, s64, v6")
        e("v_add_u32 v8, 9216, v6\nv_add_u32 v9, 18432, v6\nv_add_u32 v13, 27648, v6")
        e("v_lshrrev_b32 v14, 3, v1\nv_mul_u32_u24 v14, 1152, v14\nv_and_b32 v12, 7, v1\nv_bfe_u32 v11, v1, 4, 1\nv_lshlrev_b32 v11, 1, v11\nv_xor_b32 v12, v12, v11")
        e("v_xor_b32 v11, 4, v12\nv_lshlrev_b32 v12, 4, v12\nv_lshlrev_b32 v11, 4, v11\nv_add_u32 v15, v14, v11\nv_add_u32 v14, v14, v12")
        self.stamp(8)
        e("s_barrier")
        def h3loads():
            e("global_load_dwordx4 v[80:83], v6, s[26:27] sc1\nglobal_load_dwordx4 v[84:87], v8, s[26:27] sc1\nglobal_load_dwordx4 v[88:91], v9, s[26:27] sc1\nglobal_load_dwordx4 v[92:95], v13, s[26:27] sc1")
        h3loads()
        e(f"s_mul_i32 s64, s32, 36864\ns_lshl_b32 s65, s30, 7\ns_add_u32 s64, s64, s65\ns_add_u32 s65, s69, {2*36864}")
        for i in range(4):
            e("s_mov_b32 m0, s65\ns_add_u32 s65, s65, 1024")
            e(f"buffer_load_dwordx4 {'v14' if i%2==0 else 'v15'}, s[84:87], s64 offen nt lds")
            if i < 3: e(f"s_add_u32 s64, s64, {8*1152}")
        e("v_lshlrev_b32 v10, 3, v3\nv_bfe_u32 v12, v1, 2, 2\nv_add_u32 v10, v10, v12\nv_lshlrev_b32 v10, 6, v10\nv_and_b32 v12, 3, v1\nv_lshlrev_b32 v12, 3, v12\nv_add_u32 v10, v10, v12\nv_add_u32 v10, s69, v10")
        e("v_and_b32 v12, 1, v3\nv_lshlrev_b32 v12, 5, v12\nv_add_u32 v11, v10, v12\nv_xor_b32 v12, 32, v12\nv_add_u32 v10, v10, v12")
        e("s_waitcnt vmcnt(4)")
        e("s_mov_b32 s66, 0")
        e("L_h3loop:")
        self.validate([80, 84, 88, 92], "v100", "v101")
        self.spin_tail("L_h3ok", "L_h3loop", o.get("h3retry", 8))
        h3loads()
        e("s_waitcnt vmcnt(0)\ns_branch L_h3loop")
        e("L_h3ok:")
        self.note(13, "s66")
        self.stamp(9)
        for k in range(16): e(f"v_and_b32 v{80+k}, 0xffffff00, v{80+k}")
        for r in range(4):
            e(f"v_add_f32 v{80+r}, v{80+r}, v{84+r}\nv_add_f32 v{88+r}, v{88+r}, v{92+r}")
        for r in range(4): e(f"v_add_f32 v{80+r}, v{80+r}, v{88+r}")
        self.xrow_transpose_reduce(80)
        self.Rnd("v80", "v80")
        e("v_lshlrev_b32 v81, 16, v126\nv_add_f32 v80, v81, v80")
        self.Rnd("v80", "v80")
        e("v_mul_f32 v81, v80, v80\nv_mov_b32 v82, v80")
        self.row_allreduce("v_add_f32", ["v82", "v81"])
        e("v_permlane16_swap_b32 v82, v81\nv_add_f32 v82, v82, v81\nv_mov_b32 v81, v82\nv_permlane32_swap_b32 v82, v81\nv_add_f32 v82, v82, v81")
        e("v_lshlrev_b32 v6, 2, v1\ns_lshl_b32 s64, s30, 2\nv_add_u32 v6, s64, v6")
        e("s_mov_b64 exec, 0x10001")
        e(f"ds_write_b32 v6, v82 offset:{ST2}")
        e("s_mov_b64 exec, -1")
        e("s_waitcnt lgkmcnt(0)\ns_barrier")
        e("v_lshlrev_b32 v6, 2, v1\nv_mov_b32 v82, 0")
        e("s_mov_b64 exec, 0x01ff01ff")
        e(f"ds_read_b32 v82, v6 offset:{ST2}")
        e("s_mov_b64 exec, -1")
        def trw(m):
            lo = 36864*m
            for s in range(2):
                for tau in range(2):
                    fr = 32 + 16*m + 8*s + 4*tau
                    a = "v11" if tau == 0 else "v10"
                    off = lo + 2048*s
                    e(f"ds_read_b64_tr_b16 v[{fr}:{fr+1}], {a} offset:{off}")
                    e(f"ds_read_b64_tr_b16 v[{fr+2}:{fr+3}], {a} offset:{off+256}")
        trw(0)
        e("s_waitcnt lgkmcnt(7)")
        trw(1)
        self.row_allreduce("v_add_f32", ["v82"])
        e("v_readlane_b32 s64, v82, 0\nv_readlane_b32 s65, v82, 16")
        self.ln_scalars("s64", "s65", "v84", "v85", "v86")
        e("v_mov_b32 v89, v80")
        self.ln_apply("v89", "v84", "v85", "v86", "v87", "v88")
        e(f"v_lshlrev_b32 v6, 2, v2\nv_add_u32 v6, v6, v3\nv_lshlrev_b32 v6, 1, v6\ns_lshl_b32 s64, s30, 7\nv_add_u32 v6, s64, v6")
        e(f"ds_write_b16 v6, v89 offset:{HNL}")
        e("v_lshlrev_b32 v6, 4, v3\nv_add_u32 v6, s64, v6")
        e("s_waitcnt lgkmcnt(0)")
        e(f"ds_read_b128 v[84:87], v6 offset:{HNL}\nds_read_b128 v[88:91], v6 offset:{HNL+64}")
        e("s_waitcnt lgkmcnt(0)")
        for s in range(2):
            for m in range(2):
                for tau in range(2):
                    fr = 32 + 16*m + 8*s + 4*tau; d = 96 + 8*m + 4*tau
                    e(f"v_mfma_f32_16x16x32_bf16 v[{d}:{d+3}], v[{fr}:{fr+3}], v[{84+4*s}:{87+4*s}], {'0' if s==0 else f'v[{d}:{d+3}]'}")
        self.stamp(10)
        e(f"v_lshlrev_b32 v6, 4, v3\ns_lshl_b32 s64, s30, 8\nv_add_u32 v6, s64, v6")
        e("s_mov_b32 s64, 0x00010001\ns_mov_b32 s65, 0x00010001\ns_mov_b64 exec, s[64:65]")
        for k in range(4):
            e(f"ds_write_b128 v6, v[{96+4*k}:{99+4*k}] offset:{MR + 64*k}")
        e("s_mov_b64 exec, -1")
        e("v_lshlrev_b32 v10, 3, v3\nv_bfe_u32 v12, v1, 2, 2\nv_add_u32 v10, v10, v12\nv_lshlrev_b32 v10, 7, v10\nv_and_b32 v12, 3, v1\nv_lshlrev_b32 v12, 3, v12\nv_add_u32 v10, v10, v12")
        e("v_bfe_u32 v12, v1, 3, 1\nv_and_b32 v11, 1, v3\nv_lshlrev_b32 v11, 1, v11\nv_or_b32 v12, v12, v11\nv_lshlrev_b32 v12, 5, v12\nv_add_u32 v10, v10, v12")
        e(f"s_add_u32 s65, s69, {2*36864}\nv_add_u32 v10, s65, v10")
        e("s_waitcnt lgkmcnt(0)\ns_barrier")
        e("v_lshlrev_b32 v6, 4, v2\nv_lshlrev_b32 v12, 8, v3\nv_add_u32 v6, v6, v12")
        for r in range(4): e(f"v_mov_b32 v{92+r}, 0")
        e(f"ds_read_b128 v[84:87], v6 offset:{MR}\nds_read_b128 v[88:91], v6 offset:{MR+1024}")
        e("s_mov_b64 exec, 0xffff")
        e(f"ds_read_b128 v[92:95], v6 offset:{MR+2048}")
        e("s_mov_b64 exec, -1")
        e("s_waitcnt vmcnt(0)")
        for tau in range(4):
            e(f"v_xor_b32 v11, {32*tau}, v10")
            e(f"ds_read_b64_tr_b16 v[{64+4*tau}:{65+4*tau}], v11\nds_read_b64_tr_b16 v[{66+4*tau}:{67+4*tau}], v11 offset:512")
        e("s_waitcnt lgkmcnt(8)")
        for r in range(4): e(f"v_add_f32 v{84+r}, v{84+r}, v{88+r}")
        for r in range(4): e(f"v_add_f32 v{84+r}, v{84+r}, v{92+r}")
        self.xrow_transpose_reduce(84)
        self.Rnd("v84", "v84")
        e("v_mov_b32_dpp v85, v84 row_ror:8 row_mask:0xf bank_mask:0xf")
        e("v_max_f32 v86, 0, v84\nv_mul_f32 v86, v86, v85\nv_cvt_pk_bf16_f32 v86, v86, v86")
        e(f"v_lshlrev_b32 v6, 2, v2\nv_add_u32 v6, v6, v3\nv_lshlrev_b32 v6, 1, v6\ns_lshl_b32 s64, s30, 6\nv_add_u32 v6, s64, v6")
        e("s_mov_b32 s66, 0x00ff00ff\ns_mov_b32 s67, 0x00ff00ff\ns_mov_b64 exec, s[66:67]")
        e(f"ds_write_b16 v6, v86 offset:{HHL}")
        e("s_mov_b64 exec, -1")
        e("v_lshlrev_b32 v6, 4, v3\nv_add_u32 v6, s64, v6")
        e("s_waitcnt lgkmcnt(0)")
        e(f"ds_read_b128 v[84:87], v6 offset:{HHL}")
        e(f"s_mul_i32 s64, s32, 2304\ns_lshl_b32 s65, s30, 8\ns_add_u32 s64, s64, s65\ns_add_u32 s64, s64, {H4}")
        e("v_bfe_u32 v6, v1, 2, 2\nv_lshlrev_b32 v6, 6, v6\nv_lshlrev_b32 v12, 4, v3\nv_add_u32 v6, v6, v12\nv_add_u32 v6, s64, v6")
        e("s_waitcnt lgkmcnt(0)")
        for tau in range(4):
            e(f"v_mfma_f32_16x16x32_bf16 v[{96+4*tau}:{99+4*tau}], v[{64+4*tau}:{67+4*tau}], v[84:87], 0")
        for tau in range(1, 4):
            for r in range(4):
                e(f"v_mov_b32_dpp v{96+r}, v{96+4*tau+r} quad_perm:[0,1,2,3] row_mask:0xf bank_mask:{1<<tau:#x}")
        self.tagins(96)
        e("s_mov_b32 s64, 0x11111111\ns_mov_b32 s65, 0x11111111\ns_mov_b64 exec, s[64:65]")
        e("global_store_dwordx4 v6, v[96:99], s[26:27] sc1")
        e("s_mov_b64 exec, -1")
        self.stamp(11)

def build(opt=None):
    opt = opt or {}
    g = G(opt)
    body = g.gen()
    name = NAME + "_kernel"
    txt = HEADER + "; Override launch geometry by editing the next line (default: block=256,\n; grid=ceil(out_elems/256), lds=0). Harness parses it; keep it on one line.\n"
    txt += f"; @launch grid=(256,1,1) block=(576,1,1) lds={LDS_BYTES}\n"
    txt += f""".amdgcn_target "amdgcn-amd-amdhsa--gfx950"
.text
.globl {name}
.p2align 8
.type {name},@function
{name}:
{body}.section .rodata,"a"
.p2align 6
.amdhsa_kernel {name}
  .amdhsa_next_free_vgpr 168
  .amdhsa_next_free_sgpr 96
  .amdhsa_accum_offset 168
  .amdhsa_group_segment_fixed_size 0
  .amdhsa_kernarg_size 96
  .amdhsa_user_sgpr_count 2
  .amdhsa_user_sgpr_kernarg_segment_ptr 1
  .amdhsa_system_sgpr_workgroup_id_x 1
.end_amdhsa_kernel
"""
    return txt, g
if __name__ == "__main__":
    import json
    opt = json.loads(sys.argv[2]) if len(sys.argv) > 2 else {}
    txt, g = build(opt)
    open(sys.argv[1], "w").write(txt)
    print("instrs", g.e.count, "nops", g.e.nops)
```

```python
import sys
sys.path.insert(0, "work")
from emit import E
NAME = "sequential_preLN__sliding_block_cached__glu_gated_reglu__decode"
HEADER = open("cdna_kernels/" + NAME + ".s.ref").read().split("; Override launch geometry")[0]

H1 = 0x10000; H2 = 0x40000; H3 = 0x90000; H4 = 0xA0000; TS = 0x400000
XT = 0
FL = 256
QB = 512
MX = 1024
LS = 1056
PL = 1280
OP = 2560
ST2 = 6656
HNL = 6784
MR = 7936
HHL = 10240
WR = 6656
SC = 10816
FR = 9728
WB = 11264
LDS_BYTES = WB + 3 * 36864

class G:
    def __init__(self, opt):
        self.o = opt; self.e = E(); self.uid = 0
    def stamp(self, k):
        if not self.o.get("stamps"): return
        e = self.e
        e(f"s_memrealtime s[90:91]\ns_waitcnt lgkmcnt(0)\nv_writelane_b32 v127, s90, {k}")
    def note(self, k, sreg):
        if self.o.get("stamps"): self.e(f"v_writelane_b32 v127, {sreg}, {k}")
    def Rnd(self, d, s):
        self.e(f"v_cvt_pk_bf16_f32 {d}, {s}, {s}")
        self.e(f"v_and_b32 {d}, 0xffff0000, {d}")
    def row_allreduce(self, op, vs, steps=(8, 4, 2, 1)):
        for st in steps:
            for v in vs:
                self.e(f"{op}_dpp {v}, {v}, {v} row_ror:{st} row_mask:0xf bank_mask:0xf")
    def tagins(self, v4):
        for k in range(4):
            self.e(f"v_perm_b32 v{v4+k}, v{v4+k}, v7, s{56+k}")
    def validate(self, grans, t0, t1):
        e = self.e
        for i, gb in enumerate(grans):
            e(f"v_perm_b32 {t0}, v{gb+1}, v{gb}, s62")
            e(f"v_perm_b32 {t1}, v{gb+3}, v{gb+2}, s63")
            e(f"v_or_b32 {t0}, {t0}, {t1}")
            e(f"v_cmp_ne_u32 vcc, {t0}, v7")
            if len(grans) > 1:
                if i == 0: e("s_mov_b64 s[60:61], vcc")
                else: e("s_or_b64 s[60:61], s[60:61], vcc")
        if len(grans) > 1: e("s_mov_b64 vcc, s[60:61]")
    def spin_tail(self, okl, loopl, sleep):
        e = self.e
        e(f"s_cbranch_vccz {okl}")
        e("s_add_u32 s66, s66, 1\ns_cmp_gt_u32 s66, %d\ns_cbranch_scc1 %s" % (self.o.get("maxspin", 20000), okl))
        if sleep: e(f"s_sleep {sleep}")
    def masks(self):
        e = self.e
        e("v_and_b32 v6, 1, v1\nv_lshlrev_b32 v6, 4, v6\nv_mov_b32 v12, 0xffff\nv_lshlrev_b32 v12, v6, v12")
        e("v_bfe_u32 v6, v1, 1, 2")
        for r in range(4):
            e(f"v_cmp_eq_u32 vcc, {r}, v6\nv_cndmask_b32 v{120+r}, 0, v12, vcc")
    def consts(self):
        e = self.e
        e("s_mov_b32 s56, 0x07060500\ns_mov_b32 s57, 0x07060501\ns_mov_b32 s58, 0x07060502\ns_mov_b32 s59, 0x07060503")
        e("s_mov_b32 s62, 0x0c0c0400\ns_mov_b32 s63, 0x04000c0c")
    def epoch(self):
        e = self.e
        e("s_waitcnt lgkmcnt(0)")
        e("s_mul_i32 s31, s31, 0x19660d\ns_add_u32 s31, s31, 0x3c6ef35f\nv_mov_b32 v7, s31")
    def ln_scalars(self, s1, s2, vm, vs, vr):
        e = self.e
        e(f"s_mov_b32 s68, 0x3ae38e39")
        e(f"v_mov_b32 {vm}, {s1}\nv_mov_b32 {vs}, {s2}\nv_mul_f32 {vm}, s68, {vm}\nv_mul_f32 {vs}, s68, {vs}")
        e(f"v_fma_f32 {vs}, -{vm}, {vm}, {vs}")
        e(f"v_max_f32 {vs}, 0, {vs}")
        self.Rnd(vs, vs); self.Rnd(vm, vm)
        e(f"v_add_f32 {vs}, 0x3727c5ac, {vs}")
        self.Rnd(vs, vs)
        e(f"v_sqrt_f32 {vs}, {vs}")
        self.Rnd(vs, vs)
        e(f"v_rcp_f32 {vr}, {vs}")
    def ln_apply(self, x, vm, vs, vr, t0, t1):
        e = self.e
        e(f"v_sub_f32 {x}, {x}, {vm}")
        self.Rnd(x, x)
        e(f"v_mul_f32 {t0}, {x}, {vr}")
        e(f"v_fma_f32 {t1}, -{t0}, {vs}, {x}")
        e(f"v_fma_f32 {t0}, {t1}, {vr}, {t0}")
        e(f"v_cvt_pk_bf16_f32 {x}, {t0}, {t0}")
    def reduce_stride8(self, v, t):
        e = self.e
        for r in range(4): e(f"v_add_f32_dpp v{v+r}, v{v+r}, v{v+r} row_ror:8 row_mask:0xf bank_mask:0xf")
        self.xrow_allreduce(v, t)
    def xrow_allreduce(self, v, t):
        e = self.e
        for r in range(4): e(f"v_mov_b32 v{t+r}, v{v+r}")
        for r in range(4): e(f"v_permlane16_swap_b32 v{v+r}, v{t+r}")
        for r in range(4): e(f"v_add_f32 v{v+r}, v{v+r}, v{t+r}")
        for r in range(4): e(f"v_mov_b32 v{t+r}, v{v+r}")
        for r in range(4): e(f"v_permlane32_swap_b32 v{v+r}, v{t+r}")
        for r in range(4): e(f"v_add_f32 v{v+r}, v{v+r}, v{t+r}")
    def reduce_stride4(self, v, t):
        e = self.e
        for st in (8, 4):
            for r in range(4): e(f"v_add_f32_dpp v{v+r}, v{v+r}, v{v+r} row_ror:{st} row_mask:0xf bank_mask:0xf")
        self.xrow_allreduce(v, t)
    def xrow_transpose_reduce(self, v):
        e = self.e
        e(f"v_permlane16_swap_b32 v{v}, v{v+1}\nv_permlane16_swap_b32 v{v+2}, v{v+3}")
        e(f"v_add_f32 v{v}, v{v}, v{v+1}\nv_add_f32 v{v+2}, v{v+2}, v{v+3}")
        e(f"v_permlane32_swap_b32 v{v}, v{v+2}")
        e(f"v_add_f32 v{v}, v{v}, v{v+2}")

    def gen(self):
        e = self.e; o = self.o
        nt = o.get("kvflag", "nt")
        if o.get("amp") and o.get("ampentry"): e("s_memrealtime s[94:95]")
        e("s_cmp_ge_u32 s2, 256\ns_cbranch_scc1 L_end")
        e("s_load_dwordx16 s[4:19], s[0:1], 0\ns_load_dwordx8 s[20:27], s[0:1], 64")
        if o.get("stamps"): e("v_mov_b32 v127, 0\ns_memrealtime s[90:91]")
        e("v_and_b32 v1, 63, v0\nv_lshrrev_b32 v6, 6, v0\nv_readfirstlane_b32 s30, v6")
        e("s_and_b32 s28, s2, 7\ns_lshl_b32 s28, s28, 1\ns_lshr_b32 s33, s2, 7\ns_or_b32 s28, s28, s33")
        e("s_lshr_b32 s29, s2, 3\ns_and_b32 s29, s29, 15")
        e("v_and_b32 v2, 15, v1\nv_lshrrev_b32 v3, 4, v1\nv_lshlrev_b32 v8, 4, v1")
        e(f"s_lshl_b32 s33, s28, 24\ns_lshl_b32 s64, s29, 16\ns_add_u32 s33, s33, s64\ns_add_u32 s33, s33, {61440*256}\ns_and_b32 s64, s30, 3\ns_lshl_b32 s64, s64, 14\ns_add_u32 s33, s33, s64")
        e("s_movk_i32 s70, 0x1000\ns_movk_i32 s71, 0x2000\ns_movk_i32 s72, 0x3000")
        e("v_bfe_u32 v13, v1, 2, 2\nv_lshlrev_b32 v13, 8, v13\nv_lshlrev_b32 v12, 6, v3\nv_add_u32 v13, v13, v12\nv_and_b32 v12, 3, v1\nv_lshlrev_b32 v12, 4, v12\nv_add_u32 v13, v13, v12")
        e("v_lshlrev_b32 v11, 13, v3\nv_lshlrev_b32 v12, 4, v2\nv_add_u32 v11, v11, v12")
        e("s_and_b32 s34, s29, 1\ns_lshl_b32 s35, s28, 1\ns_add_u32 s35, s35, s34\ns_lshl_b32 s35, s35, 8\ns_lshr_b32 s34, s29, 1\ns_mul_i32 s34, s34, 72")
        e("v_add_u32 v9, s34, v1\nv_lshlrev_b32 v9, 1, v9")
        e("s_lshl_b32 s34, s34, 13\ns_add_u32 s35, s35, s34")
        e("s_waitcnt lgkmcnt(0)")
        if o.get("stamps"): e("v_writelane_b32 v127, s90, 0")
        e("s_load_dword s31, s[26:27], 0")
        e("s_mov_b32 s36, s4\ns_mov_b32 s37, s5\ns_movk_i32 s38, 1152\ns_mov_b32 s39, 0x20000")
        e("s_mov_b32 s48, s10\ns_mov_b32 s49, s11\ns_mov_b32 s50, %d\ns_mov_b32 s51, 0x20000" % (576*8192))
        e("s_add_u32 s40, s6, s33\ns_addc_u32 s41, s7, 0\ns_movk_i32 s42, 0x4000\ns_mov_b32 s43, 0x20000")
        e("s_add_u32 s44, s8, s33\ns_addc_u32 s45, s9, 0\ns_movk_i32 s46, 0x4000\ns_mov_b32 s47, 0x20000")
        self.dma_srds()
        if o.get("amp"):
            e("s_cmp_eq_u32 s30, 0\ns_cbranch_scc0 L_amp0")
            if o.get("ampentry"): e("s_not_b32 s92, s94\nv_mov_b32 v124, s92\nv_mov_b32 v125, 0")
            else: e("s_memrealtime s[92:93]\ns_waitcnt lgkmcnt(0)\ns_not_b32 s92, s92\nv_mov_b32 v124, s92\nv_mov_b32 v125, 0")
            e("s_mov_b64 exec, 1\nglobal_atomic_umax v125, v124, s[24:25] sc1\ns_mov_b64 exec, -1")
            e("L_amp0:")
        e("s_cmp_eq_u32 s30, 8\ns_cbranch_scc1 L_qwave")
        e("s_cmp_lt_u32 s30, 4\ns_cbranch_scc1 L_vwave")
        so = lambda t: ['0', 's70', 's71', 's72'][t // 4]
        e("s_setprio 2")
        e("s_barrier")
        n1 = o.get("kn1", 16)
        def Kld(t): e(f"buffer_load_dwordx4 v[{32+4*t}:{35+4*t}], v13, s[40:43], {so(t)} offen offset:{(t%4)*1024} {nt}")
        for t in range(n1): Kld(t)
        self.stamp(6)
        e("s_barrier")
        for t in range(n1, 16): Kld(t)
        e("s_barrier")
        self.consts()
        self.epoch()
        self.stamp(1)
        if o.get("diagK"):
            e("s_waitcnt vmcnt(12)"); self.stamp(8)
            e("s_waitcnt vmcnt(8)"); self.stamp(9)
            e("s_waitcnt vmcnt(4)"); self.stamp(10)
            e("s_waitcnt vmcnt(0)"); self.stamp(5)
        e(f"v_mov_b32 v6, 0\ns_mov_b32 s66, 0")
        e("L_qfloop:")
        e(f"ds_read_b32 v12, v6 offset:{FL}\ns_waitcnt lgkmcnt(0)\nv_cmp_ne_u32 vcc, 1, v12")
        self.spin_tail("L_qfok", "L_qfloop", 1)
        e("s_branch L_qfloop")
        e("L_qfok:")
        e("v_bfe_u32 v6, v1, 2, 1\nv_lshlrev_b32 v6, 8, v6\nv_lshlrev_b32 v12, 6, v3\nv_add_u32 v6, v6, v12\nv_and_b32 v12, 3, v1\nv_lshlrev_b32 v12, 4, v12\nv_add_u32 v6, v6, v12")
        e(f"ds_read_b128 v[12:15], v6 offset:{QB}")
        self.stamp(2)
        e("s_waitcnt vmcnt(0) lgkmcnt(0)")
        self.stamp(3)
        D0 = [96+4*t if t < 6 else 24+4*(t-6) for t in range(8)]
        D1 = [32+4*t for t in range(8)]
        D = D0 + D1
        S = [16+t for t in range(8)] + [96+t for t in range(8)]
        for t in range(16):
            e(f"v_mfma_f32_16x16x32_bf16 v[{D[t]}:{D[t]+3}], v[12:15], v[{32+4*t}:{35+4*t}], 0")
        for half in range(2):
            for k in range(4):
                for t in range(8*half, 8*half+8):
                    if k == 0: e(f"v_mov_b32_dpp v{S[t]}, v{D[t]} quad_perm:[0,0,0,0] row_mask:0xf bank_mask:0xf")
                    else: e(f"v_add_f32_dpp v{S[t]}, v{D[t]+k}, v{S[t]} quad_perm:[{k},{k},{k},{k}] row_mask:0xf bank_mask:0xf")
        e("s_mov_b32 s64, 0x3db504f3")
        def rnd_pairs():
            for k in range(8): e(f"v_cvt_pk_bf16_f32 v{64+k}, v{S[2*k]}, v{S[2*k+1]}")
            for k in range(8): e(f"v_lshlrev_b32 v{S[2*k]}, 16, v{64+k}\nv_and_b32 v{S[2*k+1]}, 0xffff0000, v{64+k}")
        rnd_pairs()
        for t in range(16): e(f"v_mul_f32 v{S[t]}, s64, v{S[t]}")
        rnd_pairs()
        for k in range(5): e(f"v_max3_f32 v{64+k}, v{S[3*k]}, v{S[3*k+1]}, v{S[3*k+2]}")
        e(f"v_max3_f32 v64, v64, v65, v{S[15]}\nv_max3_f32 v66, v66, v67, v68\nv_max_f32 v64, v64, v66")
        self.row_allreduce("v_max_f32", ["v64"], steps=(8, 4))
        e("s_mov_b32 s64, 0x3fb8aa3b")
        for t in range(16): e(f"v_sub_f32 v{S[t]}, v{S[t]}, v64")
        for t in range(16): e(f"v_mul_f32 v{S[t]}, s64, v{S[t]}")
        for t in range(16): e(f"v_exp_f32 v{S[t]}, v{S[t]}")
        for k in range(8): e(f"v_cvt_pk_bf16_f32 v{72+k}, v{S[2*k]}, v{S[2*k+1]}")
        for k in range(8): e(f"v_add_f32 v{S[2*k]}, v{S[2*k]}, v{S[2*k+1]}")
        for k in range(4): e(f"v_add_f32 v{S[4*k]}, v{S[4*k]}, v{S[4*k+2]}")
        e(f"v_add_f32 v{S[0]}, v{S[0]}, v{S[4]}\nv_add_f32 v{S[8]}, v{S[8]}, v{S[12]}\nv_add_f32 v65, v{S[0]}, v{S[8]}")
        self.row_allreduce("v_add_f32", ["v65"], steps=(8, 4))
        e("s_and_b32 s64, s30, 3\nv_lshlrev_b32 v6, 7, v3\nv_bfe_u32 v12, v1, 2, 2\nv_lshlrev_b32 v12, 5, v12\nv_add_u32 v6, v6, v12\ns_lshl_b32 s65, s64, 8\nv_add_u32 v6, s65, v6")
        e("s_mov_b32 exec_lo, 0x11111111\ns_mov_b32 exec_hi, 0")
        e(f"ds_write_b128 v6, v[72:75] offset:{PL}\nds_write_b128 v6, v[76:79] offset:{PL+16}")
        e("s_mov_b64 exec, -1")
        e("s_lshl_b32 s65, s64, 2\nv_add_u32 v6, s65, v1")
        e("s_mov_b64 exec, 0x10001")
        e(f"ds_write_b32 v6, v64 offset:{MX}\nds_write_b32 v6, v65 offset:{LS}")
        e("s_mov_b64 exec, -1")
        e("s_waitcnt lgkmcnt(0)")
        self.stamp(4)
        e("s_barrier")
        e("s_setprio 0")
        self.wait_pub("sf", 12)
        e("s_cmp_lt_u32 s29, 9\ns_cbranch_scc1 L_kpf\ns_cmp_lt_u32 s29, 15\ns_cbranch_scc0 L_roles")
        self.wo_dma(o.get("woearly", 12))
        e("s_branch L_roles")
        e("L_kpf:")
        if o.get("l2pf", True):
            self.l2_prefetch(o.get("pfearly", 11))
            e("s_waitcnt vmcnt(0)")
        self.stamp(5)
        self.wgu_dma(o.get("wgearly", 0))
        e("s_branch L_roles")
        e("L_vwave:")
        e("s_barrier")
        if o.get("codepf", False):
            e("s_cmp_eq_u32 s29, 15\ns_cbranch_scc0 L_nopf\ns_cmp_eq_u32 s30, 0\ns_cbranch_scc0 L_nopf")
            e("s_getpc_b64 s[64:65]")
            e("L_pfbase:")
            e("v_lshlrev_b32 v12, 7, v1")
            for k in range(2):
                e(f"v_add_u32 v6, {8192*k}, v12\nv_min_u32 v6, L_end-L_pfbase, v6\nglobal_load_dword v124, v6, s[64:65]")
            e("s_waitcnt vmcnt(0)")
            e("L_nopf:")
        if o.get("tlbtouch"):
            st = o["tlbtouch"]
            e("s_cmp_eq_u32 s30, 1\ns_cbranch_scc0 L_notouch")
            e(f"v_lshlrev_b32 v12, {st}, v1")
            for srd in ("s[52:55]", "s[76:79]", "s[80:83]", "s[84:87]"):
                e(f"buffer_load_dword v124, v12, {srd}, 0 offen")
            e("L_notouch:")
        self.masks(); self.consts(); self.epoch()
        e("s_barrier")
        nv1 = o.get("vn1", 6)
        def Vld(t): e(f"buffer_load_dwordx4 v[{32+4*t}:{35+4*t}], v8, s[44:47], {so(t)} offen offset:{(t%4)*1024} {nt}")
        if o.get("wopf", True): self.wo_prefetch()
        for t in range(nv1): Vld(t)
        e("s_barrier")
        for t in range(nv1, 16): Vld(t)
        self.stamp(1)
        e("s_barrier")
        self.stamp(2)
        e("v_bfe_u32 v6, v1, 3, 1\nv_lshlrev_b32 v6, 7, v6\nv_lshlrev_b32 v12, 5, v3\nv_add_u32 v6, v6, v12\ns_lshl_b32 s64, s30, 8\nv_add_u32 v6, s64, v6")
        e(f"ds_read_b128 v[16:19], v6 offset:{PL}\nds_read_b128 v[20:23], v6 offset:{PL+16}")
        e("v_lshrrev_b32 v6, 1, v3\nv_lshlrev_b32 v6, 4, v6")
        e(f"ds_read_b128 v[24:27], v6 offset:{MX}")
        e("s_lshl_b32 s64, s30, 2\nv_add_u32 v6, s64, v6")
        e(f"ds_read_b32 v28, v6 offset:{MX}")
        e("s_waitcnt lgkmcnt(0)")
        e("v_max3_f32 v24, v24, v25, v26\nv_max_f32 v24, v24, v27\nv_sub_f32 v28, v28, v24\nv_mul_f32 v28, 0x3fb8aa3b, v28\nv_exp_f32 v28, v28")
        e("s_mov_b32 s64, 0x01000100\ns_mov_b32 s65, 0x03020302")
        for t in range(16):
            ab = 96 + 4*(t % 4)
            e(f"v_perm_b32 v29, v{16+t//2}, v{16+t//2}, {'s64' if t%2==0 else 's65'}")
            for r in range(4): e(f"v_and_b32 v{ab+r}, v29, v{120+r}")
            e(f"s_waitcnt vmcnt({15-t})")
            e(f"v_mfma_f32_16x16x32_bf16 v[12:15], v[{ab}:{ab+3}], v[{32+4*t}:{35+4*t}], {'0' if t==0 else 'v[12:15]'}")
        self.stamp(3)
        e("s_setprio 3")
        e("v_lshrrev_b32 v6, 1, v3\nv_lshlrev_b32 v6, 9, v6\nv_lshlrev_b32 v30, 5, v2\nv_add_u32 v6, v6, v30\nv_and_b32 v30, 1, v3\nv_lshlrev_b32 v30, 4, v30\nv_add_u32 v6, v6, v30")
        e("s_lshl_b32 s64, s30, 10\nv_add_u32 v6, s64, v6")
        for r in range(4): e(f"v_mul_f32 v{12+r}, v28, v{12+r}")
        e(f"ds_write_b128 v6, v[12:15] offset:{OP}")
        e("v_mov_b32 v6, 0\nv_mov_b32 v30, 1")
        e("s_mov_b64 exec, 1")
        e(f"ds_add_rtn_u32 v31, v6, v30 offset:{FL+4}")
        e("s_mov_b64 exec, -1")
        e("s_waitcnt lgkmcnt(0)")
        e("v_readfirstlane_b32 s64, v31")
        e("s_cmp_eq_u32 s64, 3\ns_cbranch_scc0 L_vdone")
        for w in range(4): e(f"ds_read_b128 v[{16+4*w}:{19+4*w}], v8 offset:{OP + 1024*w}")
        e(f"s_mul_i32 s67, s28, 18432\ns_mul_i32 s64, s29, 1152\ns_add_u32 s67, s67, s64\ns_add_u32 s67, s67, {H2}")
        e("v_add_u32 v6, s67, v8")
        e("s_waitcnt lgkmcnt(0)")
        for r in range(4): e(f"v_add_f32 v{16+r}, v{16+r}, v{20+r}\nv_add_f32 v{24+r}, v{24+r}, v{28+r}")
        for r in range(4): e(f"v_add_f32 v{16+r}, v{16+r}, v{24+r}")
        self.tagins(16)
        e("global_store_dwordx4 v6, v[16:19], s[26:27] sc1")
        e(f"v_mov_b32 v6, 0\nv_mov_b32 v30, 1\nds_write_b32 v6, v30 offset:{FL+8}")
        if o.get("amp") == "attn":
            e("s_memrealtime s[92:93]\ns_waitcnt lgkmcnt(0)\nv_mov_b32 v124, s92\nv_mov_b32 v125, 4")
            e("s_mov_b64 exec, 1\nglobal_atomic_umax v125, v124, s[24:25] sc1\ns_mov_b64 exec, -1")
        e("L_vdone:")
        e("s_setprio 0")
        self.stamp(4)
        e("s_branch L_roles")
        e("L_qwave:")
        e("s_setprio 3")
        e("buffer_load_dwordx4 v[24:27], v8, s[36:39], 0 offen")
        e("buffer_load_dwordx4 v[28:31], v8, s[36:39], 0 offen offset:1024")
        e("buffer_load_ushort v14, v9, s[36:39], 0 offen")
        e("buffer_load_ushort v15, v9, s[36:39], 0 offen offset:128")
        for i in range(18):
            e(f"buffer_load_dwordx4 v[{32+4*i}:{35+4*i}], v11, s[48:51], s35 offen {nt}")
            if i < 17: e("s_add_u32 s35, s35, 0x8000")
        e("v_mov_b32 v6, 0\nv_mov_b32 v16, 0\nv_mov_b32 v17, 0\nv_mov_b32 v18, 0\nv_mov_b32 v19, 0")
        e(f"ds_write_b128 v6, v[16:19] offset:{FL}")
        e("s_waitcnt lgkmcnt(0)")
        e("s_barrier")
        npf = 0
        self.masks(); self.consts()
        e(f"s_waitcnt vmcnt({18+npf})")
        self.stamp(1)
        e("v_mov_b32 v104, 0\nv_mov_b32 v105, 0\ns_mov_b32 s64, 0x3f803f80")
        for k in range(8):
            e(f"v_dot2_f32_bf16 v104, v{24+k}, s64, v104")
            e(f"v_dot2_f32_bf16 v105, v{24+k}, v{24+k}, v105")
        self.row_allreduce("v_add_f32", ["v104", "v105"])
        e("v_permlane16_swap_b32 v104, v105\nv_add_f32 v104, v104, v105\nv_mov_b32 v105, v104\nv_permlane32_swap_b32 v104, v105\nv_add_f32 v104, v104, v105")
        e("v_readlane_b32 s64, v104, 0\nv_readlane_b32 s65, v104, 16")
        self.ln_scalars("s64", "s65", "v104", "v105", "v106")
        e("v_and_b32 v6, 3, v1\nv_mul_u32_u24 v6, 48, v6\nv_lshrrev_b32 v12, 2, v1\nv_lshlrev_b32 v12, 1, v12\nv_add_u32 v6, v6, v12")
        for i, xv in enumerate(("v14", "v15")):
            e(f"v_lshlrev_b32 {xv}, 16, {xv}")
            self.ln_apply(xv, "v104", "v105", "v106", "v107", "v108")
        e(f"ds_write_b16 v6, v14 offset:{XT}")
        e("s_mov_b64 exec, 0xff")
        e(f"ds_write_b16 v6, v15 offset:{XT+32}")
        e("s_mov_b64 exec, -1")
        e("v_mul_u32_u24 v6, 48, v3")
        e("s_waitcnt lgkmcnt(0)")
        e(f"ds_read_b128 v[24:27], v6 offset:{XT}\nds_read_b128 v[28:31], v6 offset:{XT+16}\nds_read_b32 v11, v6 offset:{XT+32}")
        self.epoch()
        if o.get("diagQ"): self.stamp(9)
        e("s_mov_b32 s64, 0x01000100\ns_mov_b32 s65, 0x03020302")
        slots = [104, 108, 112, 116] + [128 + 4*k for k in range(9)] + [16, 20, 12]
        def prep(i, ab):
            src = f"v{24+i//2}" if i < 16 else "v11"
            e(f"v_perm_b32 v10, {src}, {src}, {'s64' if i%2==0 else 's65'}")
            for r in range(4): e(f"v_and_b32 v{ab+r}, v10, v{120+r}")
        def mm(i, ab):
            e(f"s_waitcnt vmcnt({17-i})")
            e(f"v_mfma_f32_16x16x32_bf16 v[164:167], v[{ab}:{ab+3}], v[{32+4*i}:{35+4*i}], {'0' if i==0 else 'v[164:167]'}")
        for i in range(16): prep(i, slots[i])
        mm(0, slots[0]); mm(1, slots[1])
        prep(16, slots[0]); prep(17, slots[1])
        for i in range(2, 16): mm(i, slots[i])
        mm(16, slots[0]); mm(17, slots[1])
        e(f"s_lshl_b32 s64, s28, 13\ns_lshl_b32 s65, s29, 9\ns_add_u32 s65, s65, s64\ns_add_u32 s65, s65, {H1}")
        e("v_lshlrev_b32 v6, 5, v2\nv_lshlrev_b32 v12, 4, v3\nv_add_u32 v6, v6, v12\nv_add_u32 v6, s65, v6")
        self.tagins(164)
        e("s_mov_b32 exec_lo, -1\ns_mov_b32 exec_hi, 0")
        e("global_store_dwordx4 v6, v[164:167], s[26:27] sc1")
        e("s_mov_b64 exec, -1")
        self.stamp(2)
        e("s_barrier")
        e(f"s_add_u32 s64, s64, {H1}\nv_add_u32 v6, s64, v8\nv_add_u32 v9, 4096, v6")
        if o.get("smemchk", False):
            regs = [64, 65] + list(range(67, 76)) + [88, 89, 92, 93, 94]
            e(f"s_lshl_b32 s33, s28, 13\ns_add_u32 s33, s33, {H1 + 508}\ns_add_u32 s34, s26, s33\ns_addc_u32 s35, s27, 0")
            e("s_lshr_b32 s33, s31, 24\ns_mov_b32 s66, 0")
            if o.get("h1sleep", 4): e(f"s_sleep {o.get('h1sleep', 4)}")
            e("L_smloop:")
            for k, r in enumerate(regs): e(f"s_load_dword s{r}, s[34:35], {512*k} glc")
            e("s_waitcnt lgkmcnt(0)")
            for k, r in enumerate(regs):
                e(f"s_xor_b32 s{r}, s{r}, s33")
                if k: e(f"s_or_b32 s64, s64, s{r}")
            e("s_and_b32 s64, s64, 0xff\ns_cbranch_scc0 L_smok")
            e("s_add_u32 s66, s66, 1\ns_cmp_gt_u32 s66, %d\ns_cbranch_scc1 L_smok" % o.get("maxspin", 20000))
            e("s_branch L_smloop")
            e("L_smok:")
            self.note(11, "s66")
        elif o.get("h1sleep", 34): e(f"s_sleep {o.get('h1sleep', 34)}")
        e("s_mov_b32 s66, 0")
        def h1loads():
            for i in range(8):
                e(f"global_load_dwordx4 v[{32+4*i}:{35+4*i}], {'v6' if i<4 else 'v9'}, s[26:27] offset:{(i%4)*1024} sc1")
        self.stamp(5)
        h1loads()
        self.stamp(6)
        e("s_barrier")
        e("L_h1loop:")
        e("s_waitcnt vmcnt(0)")
        self.validate([32+4*i for i in range(8)], "v100", "v101")
        self.spin_tail("L_h1ok", "L_h1loop", 2)
        h1loads()
        e("s_branch L_h1loop")
        e("L_h1ok:")
        self.note(12, "s66")
        for k in range(32): e(f"v_and_b32 v{32+k}, 0xffffff00, v{32+k}")
        for i in range(0, 8, 2):
            for r in range(4): e(f"v_add_f32 v{32+4*i+r}, v{32+4*i+r}, v{36+4*i+r}")
        for i in (0, 4):
            for r in range(4): e(f"v_add_f32 v{32+4*i+r}, v{32+4*i+r}, v{40+4*i+r}")
        for r in range(4): e(f"v_add_f32 v{32+r}, v{32+r}, v{48+r}")
        e("v_cvt_pk_bf16_f32 v32, v32, v33\nv_cvt_pk_bf16_f32 v33, v34, v35")
        e("v_lshlrev_b32 v6, 3, v1")
        e(f"ds_write_b64 v6, v[32:33] offset:{QB}")
        e("v_mov_b32 v6, 0\nv_mov_b32 v12, 1")
        e("s_waitcnt lgkmcnt(0)")
        e(f"ds_write_b32 v6, v12 offset:{FL}")
        e("s_waitcnt lgkmcnt(0)")
        self.stamp(3)
        e("s_barrier")
        e("v_mov_b32 v6, 0")
        e(f"ds_read_b128 v[32:35], v6 offset:{MX}\nds_read_b128 v[36:39], v6 offset:{MX+16}\nds_read_b128 v[40:43], v6 offset:{LS}\nds_read_b128 v[44:47], v6 offset:{LS+16}")
        e("s_waitcnt lgkmcnt(0)")
        for h in range(2):
            m = 32 + 4*h; l = 40 + 4*h; M = 16 + 2*h; L = 17 + 2*h
            e(f"v_max3_f32 v{M}, v{m}, v{m+1}, v{m+2}\nv_max_f32 v{M}, v{M}, v{m+3}")
            for k in range(4): e(f"v_sub_f32 v{m+k}, v{m+k}, v{M}")
            for k in range(4): e(f"v_mul_f32 v{m+k}, 0x3fb8aa3b, v{m+k}")
            for k in range(4): e(f"v_exp_f32 v{m+k}, v{m+k}")
            e(f"v_mul_f32 v{L}, v{m}, v{l}")
            for k in range(1, 4): e(f"v_fma_f32 v{L}, v{m+k}, v{l+k}, v{L}")
        self.tagins(16)
        e(f"s_mul_i32 s67, s28, 18432\ns_mul_i32 s64, s29, 1152\ns_add_u32 s67, s67, s64\ns_add_u32 s67, s67, {H2+1024}\nv_mov_b32 v6, s67")
        e("s_mov_b64 exec, 1")
        e("global_store_dwordx4 v6, v[16:19], s[26:27] sc1")
        e("s_mov_b64 exec, -1")
        e(f"v_mov_b32 v6, 0\nv_mov_b32 v12, 1\nds_write_b32 v6, v12 offset:{FL+12}")
        self.stamp(4)
        e("L_roles:")
        self.stamp(7)
        e("s_cmp_lt_u32 s29, 9\ns_cbranch_scc1 L_roleA")
        e("s_cmp_lt_u32 s29, 15\ns_cbranch_scc0 L_fin")
        self.roleB1()
        e("L_roleA:")
        self.roleA()
        e("L_fin:")
        if o.get("stamps"):
            self.stamp(15)
            e(f"s_mul_i32 s64, s2, 9\ns_add_u32 s64, s64, s30\ns_lshl_b32 s64, s64, 6\ns_add_u32 s64, s64, {TS}")
            e("v_lshlrev_b32 v6, 2, v1\nv_add_u32 v6, s64, v6")
            e("s_mov_b64 exec, 0xffff")
            e("global_store_dword v6, v127, s[26:27]")
        e("L_end:")
        e("s_endpgm")
        return e.text()

    def dma_srds(self):
        e = self.e
        e("s_mov_b32 s52, s12\ns_mov_b32 s53, s13\ns_mov_b32 s54, %d\ns_mov_b32 s55, 0x20000" % (4096*1152))
        e(f"s_mov_b32 s76, s16\ns_mov_b32 s77, s17\ns_mov_b32 s78, {576*9216}\ns_mov_b32 s79, 0x20000")
        e(f"s_mov_b32 s80, s18\ns_mov_b32 s81, s19\ns_mov_b32 s82, {576*9216}\ns_mov_b32 s83, 0x20000")
        e(f"s_mov_b32 s84, s20\ns_mov_b32 s85, s21\ns_mov_b32 s86, {4608*1152}\ns_mov_b32 s87, 0x20000")
    def wo_prefetch(self):
        e = self.e
        e("s_and_b32 s64, s2, 7\ns_mul_i32 s64, s64, 589824\ns_lshr_b32 s65, s2, 3\ns_mul_i32 s65, s65, 18432\ns_add_u32 s64, s64, s65")
        e("s_and_b32 s65, s30, 3\ns_mul_i32 s65, s65, 4608\ns_add_u32 s64, s64, s65")
        fl = self.o.get("pfflag", "")
        for k in range(4):
            e(f"buffer_load_dwordx4 v[112:115], v8, s[52:55], s64 offen offset:{1024*k} {fl}")
        e("s_add_u32 s64, s64, 4096\ns_mov_b32 exec_lo, -1\ns_mov_b32 exec_hi, 0")
        e(f"buffer_load_dwordx4 v[112:115], v8, s[52:55], s64 offen {fl}")
        e("s_mov_b64 exec, -1")
    def l2_prefetch(self, early):
        e = self.e
        e("s_and_b32 s64, s28, 1\ns_mul_i32 s64, s64, 9\ns_add_u32 s64, s64, s29\ns_lshl_b32 s64, s64, 5\ns_and_b32 s65, s30, 3\ns_lshl_b32 s65, s65, 3\ns_add_u32 s73, s64, s65")
        e("s_mul_i32 s73, s73, 9216\ns_lshr_b32 s65, s28, 1\ns_mul_i32 s65, s65, 1152\ns_add_u32 s73, s73, s65")
        e("v_lshrrev_b32 v100, 3, v1\nv_mul_u32_u24 v100, 9216, v100\nv_and_b32 v101, 7, v1\nv_lshlrev_b32 v101, 4, v101\nv_add_u32 v100, v100, v101\nv_add_u32 v100, 1024, v100")
        e("v_lshlrev_b32 v101, 4, v1")
        fl = self.o.get("pfflag", "")
        n = 0
        def gate():
            if n == early:
                e("s_mov_b32 s74, s64")
                self.wait_pub("pf")
                e("s_mov_b32 s64, s74")
        for srd in ("s[76:79]", "s[80:83]"):
            e("s_mov_b32 s64, s73")
            for k in range(8):
                gate()
                e(f"buffer_load_dwordx4 v[112:115], v101, {srd}, s64 offen {fl}")
                n += 1
                if k < 7: e("s_add_u32 s64, s64, 9216")
            gate()
            e(f"buffer_load_dwordx4 v[112:115], v100, {srd}, s73 offen {fl}")
            n += 1
    def wait_pub(self, tag, off=8):
        e = self.e
        e(f"v_mov_b32 v6, 0\ns_mov_b32 s66, 0")
        e(f"L_{tag}loop:")
        e(f"ds_read_b32 v12, v6 offset:{FL+off}\ns_waitcnt lgkmcnt(0)\nv_cmp_ne_u32 vcc, 1, v12")
        self.spin_tail(f"L_{tag}ok", f"L_{tag}loop", 2)
        e(f"s_branch L_{tag}loop")
        e(f"L_{tag}ok:")
    def wo_dma(self, early):
        e = self.e
        e("s_and_b32 s64, s30, 3\ns_lshl_b32 s64, s64, 1")
        e("s_lshl_b32 s72, s28, 8\ns_lshl_b32 s65, s64, 5\ns_add_u32 s72, s72, s65\ns_mul_i32 s72, s72, 1152")
        e("s_sub_u32 s65, s29, 9\ns_mul_i32 s65, s65, 192\ns_add_u32 s72, s72, s65")
        e(f"s_mul_i32 s71, s64, 6144\ns_add_u32 s71, s71, {WB}")
        for i in range(3):
            e(f"v_add_u32 v100, {64*i}, v1\nv_mul_u32_u24 v101, 5462, v100\nv_lshrrev_b32 v101, 16, v101")
            e("v_mul_u32_u24 v102, 12, v101\nv_sub_u32 v102, v100, v102")
            e("v_bfe_u32 v103, v101, 3, 1\nv_lshlrev_b32 v103, 1, v103\nv_xor_b32 v102, v102, v103\nv_lshlrev_b32 v102, 4, v102")
            e(f"v_mul_u32_u24 v101, 1152, v101\nv_add_u32 v{104+i}, v101, v102")
        n = 0
        for blk in range(4):
            for i in range(3):
                if n == early: self.wait_pub("wo")
                e("s_mov_b32 m0, s71\ns_add_u32 s71, s71, 1024")
                e(f"buffer_load_dwordx4 v{104+i}, s[52:55], s72 offen {self.o.get('wodmaflag', 'nt')} lds")
                n += 1
            if blk < 3: e(f"s_add_u32 s72, s72, {16*1152}")
    def wgu_dma(self, early):
        e = self.e
        e("s_mul_i32 s32, s28, 9\ns_add_u32 s32, s32, s29")
        e("v_lshrrev_b32 v10, 2, v1\nv_mul_u32_u24 v10, 9216, v10\nv_and_b32 v12, 3, v1\nv_lshrrev_b32 v11, 5, v1\nv_lshlrev_b32 v11, 1, v11\nv_xor_b32 v12, v12, v11\nv_lshlrev_b32 v12, 4, v12\nv_add_u32 v10, v10, v12")
        e(f"s_and_b32 s64, s30, 3\ns_mul_i32 s65, s64, {16*9216}\ns_lshl_b32 s68, s32, 6\ns_add_u32 s68, s68, s65")
        e(f"s_lshl_b32 s69, s64, 10\ns_add_u32 s69, s69, {WB}")
        n = 0
        for m, srd in enumerate(("s[76:79]", "s[80:83]")):
            e(f"s_mov_b32 s64, s68\ns_add_u32 s65, s69, {36864*m}")
            for w in range(9):
                if n == early:
                    e("s_mov_b32 s73, s64\ns_mov_b32 s74, s65")
                    self.wait_pub("wg")
                    if self.o.get("wgdelay"): e(f"s_sleep {self.o['wgdelay']}")
                    e("s_mov_b32 s64, s73\ns_mov_b32 s65, s74")
                e("s_mov_b32 m0, s65\ns_add_u32 s65, s65, 4096")
                e(f"buffer_load_dwordx4 v10, {srd}, s64 offen nt lds")
                n += 1
                if w < 8: e(f"s_add_u32 s64, s64, {64*9216}")

    def roleB1(self):
        e = self.e; o = self.o
        e(f"s_mul_i32 s64, s28, 18432\ns_add_u32 s64, s64, {H2}")
        e("s_cmp_eq_u32 s30, 8\ns_cbranch_scc0 L_b1w")
        e("v_mul_u32_u24 v6, 1152, v2\nv_add_u32 v6, s64, v6\nv_add_u32 v6, 1024, v6")
        if o.get("st2sleep", 8): e(f"s_sleep {o.get('st2sleep', 8)}")
        e("s_mov_b32 s66, 0")
        e("L_stloop:")
        e("global_load_dwordx4 v[72:75], v6, s[26:27] sc1\ns_waitcnt vmcnt(0)")
        self.validate([72], "v100", "v101")
        self.spin_tail("L_stok", "L_stloop", 4)
        e("s_branch L_stloop")
        e("L_stok:")
        e("v_and_b32 v12, 1, v3\nv_cmp_eq_u32 vcc, 1, v12\nv_cndmask_b32 v72, v72, v74, vcc\nv_cndmask_b32 v73, v73, v75, vcc")
        e("v_and_b32 v72, 0xffffff00, v72\nv_and_b32 v73, 0xffffff00, v73")
        e("v_mov_b32 v76, v72")
        self.row_allreduce("v_max_f32", ["v76"])
        e("v_sub_f32 v72, v72, v76\nv_mul_f32 v72, 0x3fb8aa3b, v72\nv_exp_f32 v72, v72")
        e("v_mul_f32 v73, v72, v73")
        self.row_allreduce("v_add_f32", ["v73"])
        e("v_rcp_f32 v73, v73")
        e("v_mul_f32 v72, v72, v73")
        e("v_lshlrev_b32 v6, 2, v1")
        e("s_mov_b32 exec_lo, -1\ns_mov_b32 exec_hi, 0")
        e(f"ds_write_b32 v6, v72 offset:{SC}")
        e("s_mov_b64 exec, -1")
        e("s_setprio 0")
        e("s_waitcnt lgkmcnt(0)")
        self.stamp(13)
        e("s_barrier")
        e("s_branch L_b1w8")
        e("L_b1w:")
        e("v_mul_u32_u24 v6, 1152, v2\nv_add_u32 v6, s64, v6")
        e("v_lshlrev_b32 v12, 5, v3\ns_lshl_b32 s65, s30, 7\nv_add_u32 v12, s65, v12\nv_add_u32 v6, v6, v12")
        e("v_mov_b32 v64, v6")
        self.wait_pub("b1p", 8)
        e("v_mov_b32 v6, v64")
        if o.get("h2sleep", 12): e(f"s_sleep {o.get('h2sleep', 12)}")
        def h2loads():
            e("global_load_dwordx4 v[64:67], v6, s[26:27] sc1\nglobal_load_dwordx4 v[68:71], v6, s[26:27] offset:16 sc1")
        h2loads()
        e("v_lshlrev_b32 v10, 3, v3\nv_bfe_u32 v12, v1, 2, 2\nv_add_u32 v10, v10, v12\nv_mul_u32_u24 v10, 192, v10\nv_and_b32 v12, 3, v1\nv_lshlrev_b32 v12, 3, v12\nv_add_u32 v10, v10, v12")
        e(f"s_mul_i32 s65, s30, 6144\ns_add_u32 s65, s65, {WB}\nv_add_u32 v10, s65, v10")
        e("v_and_b32 v12, 1, v3\nv_lshlrev_b32 v12, 5, v12\nv_add_u32 v11, v10, v12\nv_sub_u32 v10, v10, v12")
        e("s_lshr_b32 s65, s30, 2\ns_lshl_b32 s65, s65, 6\nv_lshlrev_b32 v9, 2, v2\nv_add_u32 v9, s65, v9")
        self.stamp(5)
        e("s_waitcnt vmcnt(0)")
        self.stamp(6)
        e("s_barrier")
        self.stamp(8)
        e(f"ds_read_b32 v72, v9 offset:{SC}")
        for tau in range(6):
            a = "v11" if tau % 2 == 0 else "v10"
            e(f"ds_read_b64_tr_b16 v[{32+4*tau}:{33+4*tau}], {a} offset:{32*tau}")
            e(f"ds_read_b64_tr_b16 v[{34+4*tau}:{35+4*tau}], {a} offset:{32*tau + 768}")
        e("s_mov_b32 s66, 0")
        e("L_h2loop:")
        self.validate([64, 68], "v100", "v101")
        self.spin_tail("L_h2ok", "L_h2loop", o.get("h2retry", 2))
        h2loads()
        e("s_waitcnt vmcnt(0)\ns_branch L_h2loop")
        e("L_h2ok:")
        self.note(13, "s66")
        self.stamp(9)
        e("s_waitcnt lgkmcnt(12)")
        for k in range(8): e(f"v_mul_f32 v{64+k}, v72, v{64+k}")
        self.row_allreduce("v_add_f32", [f"v{64+k}" for k in range(8)])
        for k in range(4): e(f"v_cvt_pk_bf16_f32 v{76+k}, v{64+2*k}, v{65+2*k}")
        e("s_waitcnt lgkmcnt(0)")
        for tau in range(6):
            e(f"v_mfma_f32_16x16x32_bf16 v[{80+4*tau}:{83+4*tau}], v[{32+4*tau}:{35+4*tau}], v[76:79], 0")
        e(f"v_lshlrev_b32 v6, 4, v3\ns_mul_i32 s64, s30, 384\nv_add_u32 v6, s64, v6")
        e("s_mov_b32 s64, 0x00010001\ns_mov_b32 s65, 0x00010001\ns_mov_b64 exec, s[64:65]")
        for tau in range(6):
            e(f"ds_write_b128 v6, v[{80+4*tau}:{83+4*tau}] offset:{WR + 64*tau}")
        e("s_mov_b64 exec, -1")
        e("L_b1w8:")
        e("s_waitcnt lgkmcnt(0)\ns_barrier")
        e("s_cmp_lt_u32 s30, 3\ns_cbranch_scc0 L_b1pubdone")
        e("v_and_b32 v6, 7, v1\nv_lshlrev_b32 v6, 4, v6\nv_lshrrev_b32 v12, 3, v1\nv_mul_u32_u24 v12, 384, v12\nv_add_u32 v6, v6, v12\ns_lshl_b32 s64, s30, 7\nv_add_u32 v6, s64, v6")
        e(f"ds_read_b128 v[16:19], v6 offset:{WR}")
        e(f"s_mul_i32 s64, s28, 2304\ns_sub_u32 s65, s29, 9\ns_mul_i32 s65, s65, 384\ns_add_u32 s64, s64, s65\ns_lshl_b32 s65, s30, 7\ns_add_u32 s64, s64, s65\ns_add_u32 s64, s64, {H3}")
        e("v_and_b32 v6, 7, v1\nv_lshlrev_b32 v6, 4, v6\nv_add_u32 v6, s64, v6")
        e("s_waitcnt lgkmcnt(0)")
        self.reduce_stride8(16, 20)
        self.tagins(16)
        e("s_mov_b64 exec, 0xff")
        e("global_store_dwordx4 v6, v[16:19], s[26:27] sc1")
        e("s_mov_b64 exec, -1")
        e("L_b1pubdone:")
        self.stamp(10)
        e("s_sub_u32 s32, s29, 9\ns_cmp_lt_u32 s32, 2\ns_cbranch_scc0 L_rho2\ns_lshl_b32 s64, s28, 1\ns_add_u32 s32, s32, s64\ns_branch L_reducer")
        e("L_rho2:\ns_cmp_eq_u32 s32, 2\ns_cbranch_scc0 L_fin\ns_cmp_lt_u32 s28, 4\ns_cbranch_scc0 L_fin\ns_add_u32 s32, s28, 32")
        e("L_reducer:")
        e("s_cmp_eq_u32 s30, 0\ns_cbranch_scc0 L_redh4")
        e(f"v_lshrrev_b32 v6, 2, v1\nv_mul_u32_u24 v6, 2304, v6\nv_and_b32 v12, 3, v1\nv_lshlrev_b32 v12, 4, v12\nv_add_u32 v6, v6, v12\ns_lshl_b32 s64, s32, 6\ns_add_u32 s64, s64, {H3}\nv_add_u32 v6, s64, v6")
        e("v_and_b32 v12, 3, v1\nv_lshlrev_b32 v12, 3, v12\ns_lshl_b32 s64, s32, 5\nv_add_u32 v12, s64, v12")
        e("buffer_load_dwordx2 v[40:41], v12, s[36:39], 0 offen")
        if o.get("rh3sleep", 8): e(f"s_sleep {o.get('rh3sleep', 8)}")
        e("s_mov_b32 s66, 0")
        e("L_rh3loop:")
        e("global_load_dwordx4 v[32:35], v6, s[26:27] sc1\ns_waitcnt vmcnt(0)")
        self.validate([32], "v100", "v101")
        self.spin_tail("L_rh3ok", "L_rh3loop", 4)
        e("s_branch L_rh3loop")
        e("L_rh3ok:")
        for r in range(4): e(f"v_and_b32 v{32+r}, 0xffffff00, v{32+r}")
        self.reduce_stride4(32, 36)
        e("v_lshlrev_b32 v44, 16, v40\nv_and_b32 v45, 0xffff0000, v40\nv_lshlrev_b32 v46, 16, v41\nv_and_b32 v47, 0xffff0000, v41")
        for r in range(4):
            self.Rnd(f"v{32+r}", f"v{32+r}")
            e(f"v_add_f32 v{44+r}, v{44+r}, v{32+r}")
            self.Rnd(f"v{44+r}", f"v{44+r}")
        e("L_redh4:")
        e("s_barrier")
        self.stamp(12)
        e(f"v_lshrrev_b32 v6, 2, v0\nv_mul_u32_u24 v6, 2304, v6\nv_and_b32 v12, 3, v0\nv_lshlrev_b32 v12, 4, v12\nv_add_u32 v6, v6, v12\ns_lshl_b32 s64, s32, 6\ns_add_u32 s64, s64, {H4}\nv_add_u32 v6, s64, v6")
        for k in range(o.get("h4sleepN", 1)): e(f"s_sleep {o.get('h4sleep', 40)}")
        e("s_mov_b32 s66, 0")
        e("L_h4loop:")
        e("global_load_dwordx4 v[32:35], v6, s[26:27] sc1\ns_waitcnt vmcnt(0)")
        self.validate([32], "v100", "v101")
        self.spin_tail("L_h4ok", "L_h4loop", o.get("h4retry", 4))
        e("s_branch L_h4loop")
        e("L_h4ok:")
        self.note(14, "s66")
        self.stamp(11)
        for r in range(4): e(f"v_and_b32 v{32+r}, 0xffffff00, v{32+r}")
        self.reduce_stride4(32, 36)
        e(f"v_and_b32 v6, 3, v1\nv_lshlrev_b32 v6, 4, v6\ns_lshl_b32 s64, s30, 6\nv_add_u32 v6, s64, v6")
        e("s_mov_b64 exec, 0xf")
        e(f"ds_write_b128 v6, v[32:35] offset:{FR}")
        e("s_mov_b64 exec, -1")
        e("s_waitcnt lgkmcnt(0)\ns_barrier")
        e("s_cmp_eq_u32 s30, 0\ns_cbranch_scc0 L_fin")
        e("v_and_b32 v6, 3, v1\nv_lshlrev_b32 v6, 4, v6\nv_lshrrev_b32 v12, 2, v1\nv_lshlrev_b32 v12, 6, v12\nv_add_u32 v6, v6, v12")
        for r in range(4): e(f"v_mov_b32 v{32+r}, 0")
        e("s_mov_b32 exec_lo, -1\ns_mov_b32 exec_hi, 0xf")
        e(f"ds_read_b128 v[32:35], v6 offset:{FR}")
        e("s_mov_b64 exec, -1")
        e("s_mov_b32 s52, s22\ns_mov_b32 s53, s23\ns_movk_i32 s54, 1152\ns_mov_b32 s55, 0x20000")
        e("v_and_b32 v6, 3, v1\nv_lshlrev_b32 v6, 3, v6\ns_lshl_b32 s64, s32, 5\nv_add_u32 v6, s64, v6")
        e("s_waitcnt lgkmcnt(0)")
        self.reduce_stride4(32, 36)
        for r in range(4):
            self.Rnd(f"v{32+r}", f"v{32+r}")
            e(f"v_add_f32 v{32+r}, v{44+r}, v{32+r}")
        e("v_cvt_pk_bf16_f32 v32, v32, v33\nv_cvt_pk_bf16_f32 v33, v34, v35")
        e("s_mov_b64 exec, 0xf")
        e("buffer_store_dwordx2 v[32:33], v6, s[52:55], 0 offen")
        e("s_mov_b64 exec, -1")
        e("s_cmp_eq_u32 s32, 0\ns_cbranch_scc0 L_fin")
        e("v_mov_b32 v6, 0\ns_mov_b64 exec, 1\nglobal_store_dword v6, v7, s[26:27] sc1\ns_mov_b64 exec, -1")
        if o.get("amp"):
            e("s_memrealtime s[92:93]\nv_mov_b32 v6, 0\nglobal_load_dwordx2 v[32:33], v6, s[24:25] sc1\ns_waitcnt vmcnt(0) lgkmcnt(0)")
            e("v_readfirstlane_b32 s64, v32\nv_readfirstlane_b32 s65, v33\ns_not_b32 s64, s64")
            if o["amp"] == "attn": e("s_sub_u32 s65, s65, s64")
            else: e("s_sub_u32 s65, s92, s64")
            e(f"s_min_u32 s65, s65, 5000\ns_mul_i32 s65, s65, {o.get('ampk', 2)}\ns_add_u32 s65, s65, s92")
            e("L_ampspin:\ns_memrealtime s[66:67]\ns_waitcnt lgkmcnt(0)\ns_sub_u32 s66, s66, s65\ns_cmp_lt_i32 s66, 0\ns_cbranch_scc1 L_ampspin")
        e("s_branch L_fin")

    def roleA(self):
        e = self.e; o = self.o
        e("s_setprio 0")
        e("s_mul_i32 s32, s28, 9\ns_add_u32 s32, s32, s29")
        e(f"s_lshl_b32 s69, s30, 12\ns_add_u32 s69, s69, {WB}")
        e("v_lshlrev_b32 v10, 2, v2\nv_add_u32 v10, v10, v3\ns_lshl_b32 s34, s30, 6\nv_add_u32 v10, s34, v10\nv_lshlrev_b32 v10, 1, v10")
        e("buffer_load_ushort v126, v10, s[36:39], 0 offen")
        e(f"v_mul_u32_u24 v6, 2304, v3\nv_lshlrev_b32 v12, 4, v2\nv_add_u32 v6, v6, v12\ns_lshl_b32 s64, s30, 8\ns_add_u32 s64, s64, {H3}\nv_add_u32 v6, s64, v6")
        e("v_add_u32 v8, 9216, v6\nv_add_u32 v9, 18432, v6\nv_add_u32 v13, 27648, v6")
        e("v_lshrrev_b32 v14, 3, v1\nv_mul_u32_u24 v14, 1152, v14\nv_and_b32 v12, 7, v1\nv_bfe_u32 v11, v1, 4, 1\nv_lshlrev_b32 v11, 1, v11\nv_xor_b32 v12, v12, v11")
        e("v_xor_b32 v11, 4, v12\nv_lshlrev_b32 v12, 4, v12\nv_lshlrev_b32 v11, 4, v11\nv_add_u32 v15, v14, v11\nv_add_u32 v14, v14, v12")
        self.stamp(8)
        e("s_barrier")
        def h3loads():
            e("global_load_dwordx4 v[80:83], v6, s[26:27] sc1\nglobal_load_dwordx4 v[84:87], v8, s[26:27] sc1\nglobal_load_dwordx4 v[88:91], v9, s[26:27] sc1\nglobal_load_dwordx4 v[92:95], v13, s[26:27] sc1")
        h3loads()
        e(f"s_mul_i32 s64, s32, 36864\ns_lshl_b32 s65, s30, 7\ns_add_u32 s64, s64, s65\ns_add_u32 s65, s69, {2*36864}")
        for i in range(4):
            e("s_mov_b32 m0, s65\ns_add_u32 s65, s65, 1024")
            e(f"buffer_load_dwordx4 {'v14' if i%2==0 else 'v15'}, s[84:87], s64 offen nt lds")
            if i < 3: e(f"s_add_u32 s64, s64, {8*1152}")
        e("v_lshlrev_b32 v10, 3, v3\nv_bfe_u32 v12, v1, 2, 2\nv_add_u32 v10, v10, v12\nv_lshlrev_b32 v10, 6, v10\nv_and_b32 v12, 3, v1\nv_lshlrev_b32 v12, 3, v12\nv_add_u32 v10, v10, v12\nv_add_u32 v10, s69, v10")
        e("v_and_b32 v12, 1, v3\nv_lshlrev_b32 v12, 5, v12\nv_add_u32 v11, v10, v12\nv_xor_b32 v12, 32, v12\nv_add_u32 v10, v10, v12")
        e("s_waitcnt vmcnt(4)")
        e("s_mov_b32 s66, 0")
        e("L_h3loop:")
        self.validate([80, 84, 88, 92], "v100", "v101")
        self.spin_tail("L_h3ok", "L_h3loop", o.get("h3retry", 8))
        h3loads()
        e("s_waitcnt vmcnt(0)\ns_branch L_h3loop")
        e("L_h3ok:")
        self.note(13, "s66")
        self.stamp(9)
        for k in range(16): e(f"v_and_b32 v{80+k}, 0xffffff00, v{80+k}")
        for r in range(4):
            e(f"v_add_f32 v{80+r}, v{80+r}, v{84+r}\nv_add_f32 v{88+r}, v{88+r}, v{92+r}")
        for r in range(4): e(f"v_add_f32 v{80+r}, v{80+r}, v{88+r}")
        self.xrow_transpose_reduce(80)
        self.Rnd("v80", "v80")
        e("v_lshlrev_b32 v81, 16, v126\nv_add_f32 v80, v81, v80")
        self.Rnd("v80", "v80")
        e("v_mul_f32 v81, v80, v80\nv_mov_b32 v82, v80")
        self.row_allreduce("v_add_f32", ["v82", "v81"])
        e("v_permlane16_swap_b32 v82, v81\nv_add_f32 v82, v82, v81\nv_mov_b32 v81, v82\nv_permlane32_swap_b32 v82, v81\nv_add_f32 v82, v82, v81")
        e("v_lshlrev_b32 v6, 2, v1\ns_lshl_b32 s64, s30, 2\nv_add_u32 v6, s64, v6")
        e("s_mov_b64 exec, 0x10001")
        e(f"ds_write_b32 v6, v82 offset:{ST2}")
        e("s_mov_b64 exec, -1")
        e("s_waitcnt lgkmcnt(0)\ns_barrier")
        e("v_lshlrev_b32 v6, 2, v1\nv_mov_b32 v82, 0")
        e("s_mov_b64 exec, 0x01ff01ff")
        e(f"ds_read_b32 v82, v6 offset:{ST2}")
        e("s_mov_b64 exec, -1")
        def trw(m):
            lo = 36864*m
            for s in range(2):
                for tau in range(2):
                    fr = 32 + 16*m + 8*s + 4*tau
                    a = "v11" if tau == 0 else "v10"
                    off = lo + 2048*s
                    e(f"ds_read_b64_tr_b16 v[{fr}:{fr+1}], {a} offset:{off}")
                    e(f"ds_read_b64_tr_b16 v[{fr+2}:{fr+3}], {a} offset:{off+256}")
        trw(0)
        e("s_waitcnt lgkmcnt(7)")
        trw(1)
        self.row_allreduce("v_add_f32", ["v82"])
        e("v_readlane_b32 s64, v82, 0\nv_readlane_b32 s65, v82, 16")
        self.ln_scalars("s64", "s65", "v84", "v85", "v86")
        e("v_mov_b32 v89, v80")
        self.ln_apply("v89", "v84", "v85", "v86", "v87", "v88")
        e(f"v_lshlrev_b32 v6, 2, v2\nv_add_u32 v6, v6, v3\nv_lshlrev_b32 v6, 1, v6\ns_lshl_b32 s64, s30, 7\nv_add_u32 v6, s64, v6")
        e(f"ds_write_b16 v6, v89 offset:{HNL}")
        e("v_lshlrev_b32 v6, 4, v3\nv_add_u32 v6, s64, v6")
        e("s_waitcnt lgkmcnt(0)")
        e(f"ds_read_b128 v[84:87], v6 offset:{HNL}\nds_read_b128 v[88:91], v6 offset:{HNL+64}")
        e("s_waitcnt lgkmcnt(0)")
        for s in range(2):
            for m in range(2):
                for tau in range(2):
                    fr = 32 + 16*m + 8*s + 4*tau; d = 96 + 8*m + 4*tau
                    e(f"v_mfma_f32_16x16x32_bf16 v[{d}:{d+3}], v[{fr}:{fr+3}], v[{84+4*s}:{87+4*s}], {'0' if s==0 else f'v[{d}:{d+3}]'}")
        self.stamp(10)
        e(f"v_lshlrev_b32 v6, 4, v3\ns_lshl_b32 s64, s30, 8\nv_add_u32 v6, s64, v6")
        e("s_mov_b32 s64, 0x00010001\ns_mov_b32 s65, 0x00010001\ns_mov_b64 exec, s[64:65]")
        for k in range(4):
            e(f"ds_write_b128 v6, v[{96+4*k}:{99+4*k}] offset:{MR + 64*k}")
        e("s_mov_b64 exec, -1")
        e("v_lshlrev_b32 v10, 3, v3\nv_bfe_u32 v12, v1, 2, 2\nv_add_u32 v10, v10, v12\nv_lshlrev_b32 v10, 7, v10\nv_and_b32 v12, 3, v1\nv_lshlrev_b32 v12, 3, v12\nv_add_u32 v10, v10, v12")
        e("v_bfe_u32 v12, v1, 3, 1\nv_and_b32 v11, 1, v3\nv_lshlrev_b32 v11, 1, v11\nv_or_b32 v12, v12, v11\nv_lshlrev_b32 v12, 5, v12\nv_add_u32 v10, v10, v12")
        e(f"s_add_u32 s65, s69, {2*36864}\nv_add_u32 v10, s65, v10")
        e("s_waitcnt lgkmcnt(0)\ns_barrier")
        e("v_lshlrev_b32 v6, 4, v2\nv_lshlrev_b32 v12, 8, v3\nv_add_u32 v6, v6, v12")
        for r in range(4): e(f"v_mov_b32 v{92+r}, 0")
        e(f"ds_read_b128 v[84:87], v6 offset:{MR}\nds_read_b128 v[88:91], v6 offset:{MR+1024}")
        e("s_mov_b64 exec, 0xffff")
        e(f"ds_read_b128 v[92:95], v6 offset:{MR+2048}")
        e("s_mov_b64 exec, -1")
        e("s_waitcnt vmcnt(0)")
        for tau in range(4):
            e(f"v_xor_b32 v11, {32*tau}, v10")
            e(f"ds_read_b64_tr_b16 v[{64+4*tau}:{65+4*tau}], v11\nds_read_b64_tr_b16 v[{66+4*tau}:{67+4*tau}], v11 offset:512")
        e("s_waitcnt lgkmcnt(8)")
        for r in range(4): e(f"v_add_f32 v{84+r}, v{84+r}, v{88+r}")
        for r in range(4): e(f"v_add_f32 v{84+r}, v{84+r}, v{92+r}")
        self.xrow_transpose_reduce(84)
        self.Rnd("v84", "v84")
        e("v_mov_b32_dpp v85, v84 row_ror:8 row_mask:0xf bank_mask:0xf")
        e("v_max_f32 v86, 0, v84\nv_mul_f32 v86, v86, v85\nv_cvt_pk_bf16_f32 v86, v86, v86")
        e(f"v_lshlrev_b32 v6, 2, v2\nv_add_u32 v6, v6, v3\nv_lshlrev_b32 v6, 1, v6\ns_lshl_b32 s64, s30, 6\nv_add_u32 v6, s64, v6")
        e("s_mov_b32 s66, 0x00ff00ff\ns_mov_b32 s67, 0x00ff00ff\ns_mov_b64 exec, s[66:67]")
        e(f"ds_write_b16 v6, v86 offset:{HHL}")
        e("s_mov_b64 exec, -1")
        e("v_lshlrev_b32 v6, 4, v3\nv_add_u32 v6, s64, v6")
        e("s_waitcnt lgkmcnt(0)")
        e(f"ds_read_b128 v[84:87], v6 offset:{HHL}")
        e(f"s_mul_i32 s64, s32, 2304\ns_lshl_b32 s65, s30, 8\ns_add_u32 s64, s64, s65\ns_add_u32 s64, s64, {H4}")
        e("v_bfe_u32 v6, v1, 2, 2\nv_lshlrev_b32 v6, 6, v6\nv_lshlrev_b32 v12, 4, v3\nv_add_u32 v6, v6, v12\nv_add_u32 v6, s64, v6")
        e("s_waitcnt lgkmcnt(0)")
        for tau in range(4):
            e(f"v_mfma_f32_16x16x32_bf16 v[{96+4*tau}:{99+4*tau}], v[{64+4*tau}:{67+4*tau}], v[84:87], 0")
        for tau in range(1, 4):
            for r in range(4):
                e(f"v_mov_b32_dpp v{96+r}, v{96+4*tau+r} quad_perm:[0,1,2,3] row_mask:0xf bank_mask:{1<<tau:#x}")
        self.tagins(96)
        e("s_mov_b32 s64, 0x11111111\ns_mov_b32 s65, 0x11111111\ns_mov_b64 exec, s[64:65]")
        e("global_store_dwordx4 v6, v[96:99], s[26:27] sc1")
        e("s_mov_b64 exec, -1")
        self.stamp(11)

def build(opt=None):
    opt = opt or {}
    g = G(opt)
    body = g.gen()
    name = NAME + "_kernel"
    txt = HEADER + "; Override launch geometry by editing the next line (default: block=256,\n; grid=ceil(out_elems/256), lds=0). Harness parses it; keep it on one line.\n"
    txt += f"; @launch grid=(256,1,1) block=(576,1,1) lds={LDS_BYTES}\n"
    txt += f""".amdgcn_target "amdgcn-amd-amdhsa--gfx950"
.text
.globl {name}
.p2align 8
.type {name},@function
{name}:
{body}.section .rodata,"a"
.p2align 6
.amdhsa_kernel {name}
  .amdhsa_next_free_vgpr 168
  .amdhsa_next_free_sgpr 96
  .amdhsa_accum_offset 168
  .amdhsa_group_segment_fixed_size 0
  .amdhsa_kernarg_size 96
  .amdhsa_user_sgpr_count 2
  .amdhsa_user_sgpr_kernarg_segment_ptr 1
  .amdhsa_system_sgpr_workgroup_id_x 1
.end_amdhsa_kernel
"""
    return txt, g
if __name__ == "__main__":
    import json
    opt = json.loads(sys.argv[2]) if len(sys.argv) > 2 else {}
    txt, g = build(opt)
    open(sys.argv[1], "w").write(txt)
    print("instrs", g.e.count, "nops", g.e.nops)
```

```python
import sys
sys.path.insert(0, "work")
from emit import E
NAME = "sequential_preLN__sliding_block_cached__glu_gated_reglu__decode"
HEADER = open("cdna_kernels/" + NAME + ".s.ref").read().split("; Override launch geometry")[0]

H1 = 0x10000; H2 = 0x40000; H3 = 0x90000; H4 = 0xA0000; TS = 0x400000
FAST = 0x100000
XT = 0
FL = 256
QB = 512
MX = 1024
LS = 1056
PL = 1280
OP = 2560
ST2 = 6656
HNL = 6784
MR = 7936
HHL = 12544
ONES = 13120
WR = 6656
SC = 10816
FR = 9728
WB = 13312
LDS_BYTES = WB + 3 * 36864

class G:
    def __init__(self, opt):
        self.o = opt; self.e = E(); self.uid = 0
    def stamp(self, k):
        if not self.o.get("stamps"): return
        e = self.e
        e(f"s_memrealtime s[90:91]\ns_waitcnt lgkmcnt(0)\nv_writelane_b32 v127, s90, {k}")
    def note(self, k, sreg):
        if self.o.get("stamps"): self.e(f"v_writelane_b32 v127, {sreg}, {k}")
    def Rnd(self, d, s):
        self.e(f"v_cvt_pk_bf16_f32 {d}, {s}, {s}")
        self.e(f"v_and_b32 {d}, 0xffff0000, {d}")
    def row_allreduce(self, op, vs, steps=(8, 4, 2, 1)):
        for st in steps:
            for v in vs:
                self.e(f"{op}_dpp {v}, {v}, {v} row_ror:{st} row_mask:0xf bank_mask:0xf")
    def tagins(self, v4):
        for k in range(4):
            self.e(f"v_perm_b32 v{v4+k}, v{v4+k}, v7, s{56+k}")
    def dual_store(self, vaddr, data):
        e = self.e
        if self.o.get("fast", True):
            e(f"v_add_u32 v125, {FAST}, {vaddr}")
            e(f"global_store_dwordx4 v125, {data}, s[26:27]")
        e(f"global_store_dwordx4 {vaddr}, {data}, s[26:27] sc1")
    def spin_fast(self, okl, tag, sleep, addrs):
        e = self.e; o = self.o
        e(f"s_cbranch_vccz {okl}")
        e("s_add_u32 s66, s66, 1\ns_cmp_gt_u32 s66, %d\ns_cbranch_scc1 %s" % (o.get("maxspin", 20000), okl))
        if o.get("fast", True):
            e(f"s_cmp_eq_u32 s66, {o.get('nfast', 24)}\ns_cbranch_scc0 L_{tag}keep")
            for a in addrs: e(f"v_subrev_u32 {a}, {FAST}, {a}")
            e(f"L_{tag}keep:")
        if sleep: e(f"s_sleep {sleep}")
    def validate(self, grans, t0, t1):
        e = self.e
        for i, gb in enumerate(grans):
            e(f"v_perm_b32 {t0}, v{gb+1}, v{gb}, s62")
            e(f"v_perm_b32 {t1}, v{gb+3}, v{gb+2}, s63")
            e(f"v_or_b32 {t0}, {t0}, {t1}")
            e(f"v_cmp_ne_u32 vcc, {t0}, v7")
            if len(grans) > 1:
                if i == 0: e("s_mov_b64 s[60:61], vcc")
                else: e("s_or_b64 s[60:61], s[60:61], vcc")
        if len(grans) > 1: e("s_mov_b64 vcc, s[60:61]")
    def spin_tail(self, okl, loopl, sleep):
        e = self.e
        e(f"s_cbranch_vccz {okl}")
        e("s_add_u32 s66, s66, 1\ns_cmp_gt_u32 s66, %d\ns_cbranch_scc1 %s" % (self.o.get("maxspin", 20000), okl))
        if sleep: e(f"s_sleep {sleep}")
    def masks(self):
        e = self.e
        e("v_and_b32 v6, 1, v1\nv_lshlrev_b32 v6, 4, v6\nv_mov_b32 v12, 0xffff\nv_lshlrev_b32 v12, v6, v12")
        e("v_bfe_u32 v6, v1, 1, 2")
        for r in range(4):
            e(f"v_cmp_eq_u32 vcc, {r}, v6\nv_cndmask_b32 v{120+r}, 0, v12, vcc")
    def consts(self):
        e = self.e
        e("s_mov_b32 s56, 0x07060500\ns_mov_b32 s57, 0x07060501\ns_mov_b32 s58, 0x07060502\ns_mov_b32 s59, 0x07060503")
        e("s_mov_b32 s62, 0x0c0c0400\ns_mov_b32 s63, 0x04000c0c")
    def epoch(self):
        e = self.e
        e("s_waitcnt lgkmcnt(0)")
        e("s_mul_i32 s31, s31, 0x19660d\ns_add_u32 s31, s31, 0x3c6ef35f\nv_mov_b32 v7, s31")
    def ln_scalars(self, s1, s2, vm, vs, vr):
        e = self.e
        e(f"s_mov_b32 s68, 0x3ae38e39")
        e(f"v_mov_b32 {vm}, {s1}\nv_mov_b32 {vs}, {s2}\nv_mul_f32 {vm}, s68, {vm}\nv_mul_f32 {vs}, s68, {vs}")
        e(f"v_fma_f32 {vs}, -{vm}, {vm}, {vs}")
        e(f"v_max_f32 {vs}, 0, {vs}")
        self.Rnd(vs, vs); self.Rnd(vm, vm)
        e(f"v_add_f32 {vs}, 0x3727c5ac, {vs}")
        self.Rnd(vs, vs)
        e(f"v_sqrt_f32 {vs}, {vs}")
        self.Rnd(vs, vs)
        e(f"v_rcp_f32 {vr}, {vs}")
    def ln_apply(self, x, vm, vs, vr, t0, t1):
        e = self.e
        e(f"v_sub_f32 {x}, {x}, {vm}")
        self.Rnd(x, x)
        e(f"v_mul_f32 {t0}, {x}, {vr}")
        e(f"v_fma_f32 {t1}, -{t0}, {vs}, {x}")
        e(f"v_fma_f32 {t0}, {t1}, {vr}, {t0}")
        e(f"v_cvt_pk_bf16_f32 {x}, {t0}, {t0}")
    def reduce_stride8(self, v, t):
        e = self.e
        for r in range(4): e(f"v_add_f32_dpp v{v+r}, v{v+r}, v{v+r} row_ror:8 row_mask:0xf bank_mask:0xf")
        self.xrow_allreduce(v, t)
    def xrow_allreduce(self, v, t):
        e = self.e
        for r in range(4): e(f"v_mov_b32 v{t+r}, v{v+r}")
        for r in range(4): e(f"v_permlane16_swap_b32 v{v+r}, v{t+r}")
        for r in range(4): e(f"v_add_f32 v{v+r}, v{v+r}, v{t+r}")
        for r in range(4): e(f"v_mov_b32 v{t+r}, v{v+r}")
        for r in range(4): e(f"v_permlane32_swap_b32 v{v+r}, v{t+r}")
        for r in range(4): e(f"v_add_f32 v{v+r}, v{v+r}, v{t+r}")
    def reduce_stride4(self, v, t):
        e = self.e
        for st in (8, 4):
            for r in range(4): e(f"v_add_f32_dpp v{v+r}, v{v+r}, v{v+r} row_ror:{st} row_mask:0xf bank_mask:0xf")
        self.xrow_allreduce(v, t)
    def xrow_transpose_reduce(self, v):
        e = self.e
        e(f"v_permlane16_swap_b32 v{v}, v{v+1}\nv_permlane16_swap_b32 v{v+2}, v{v+3}")
        e(f"v_add_f32 v{v}, v{v}, v{v+1}\nv_add_f32 v{v+2}, v{v+2}, v{v+3}")
        e(f"v_permlane32_swap_b32 v{v}, v{v+2}")
        e(f"v_add_f32 v{v}, v{v}, v{v+2}")

    def gen(self):
        e = self.e; o = self.o
        nt = o.get("kvflag", "nt")
        e("L_start:")
        if o.get("amp") and o.get("ampentry"): e("s_memrealtime s[94:95]")
        e("s_cmp_ge_u32 s2, 256\ns_cbranch_scc1 L_end")
        e("s_load_dwordx16 s[4:19], s[0:1], 0\ns_load_dwordx8 s[20:27], s[0:1], 64")
        if o.get("codepf", True):
            e("s_getpc_b64 s[64:65]")
            e("L_pfbase:")
            e("s_lshr_b32 s66, s2, 3\ns_lshl_b32 s66, s66, 9\nv_lshlrev_b32 v6, 7, v0\nv_add_u32 v6, s66, v6\nv_min_u32 v6, L_end-L_pfbase, v6")
            e("v_cmp_gt_u32 vcc, 4, v0\ns_and_saveexec_b64 s[66:67], vcc\ns_cbranch_execz L_pfskip")
            e("global_load_dword v124, v6, s[64:65]")
            e("L_pfskip:\ns_mov_b64 exec, s[66:67]")
        if o.get("stamps"): e("v_mov_b32 v127, 0\ns_memrealtime s[90:91]")
        e("v_and_b32 v1, 63, v0\nv_lshrrev_b32 v6, 6, v0\nv_readfirstlane_b32 s30, v6")
        e("s_and_b32 s28, s2, 7\ns_lshl_b32 s28, s28, 1\ns_lshr_b32 s33, s2, 7\ns_or_b32 s28, s28, s33")
        e("s_lshr_b32 s29, s2, 3\ns_and_b32 s29, s29, 15")
        e("v_and_b32 v2, 15, v1\nv_lshrrev_b32 v3, 4, v1\nv_lshlrev_b32 v8, 4, v1")
        e(f"s_lshl_b32 s33, s28, 24\ns_lshl_b32 s64, s29, 16\ns_add_u32 s33, s33, s64\ns_add_u32 s33, s33, {61440*256}\ns_and_b32 s64, s30, 3\ns_lshl_b32 s64, s64, 14\ns_add_u32 s33, s33, s64")
        e("s_movk_i32 s70, 0x1000\ns_movk_i32 s71, 0x2000\ns_movk_i32 s72, 0x3000")
        e("v_bfe_u32 v13, v1, 2, 2\nv_lshlrev_b32 v13, 8, v13\nv_lshlrev_b32 v12, 6, v3\nv_add_u32 v13, v13, v12\nv_and_b32 v12, 3, v1\nv_lshlrev_b32 v12, 4, v12\nv_add_u32 v13, v13, v12")
        e("v_lshlrev_b32 v11, 13, v3\nv_lshlrev_b32 v12, 4, v2\nv_add_u32 v11, v11, v12")
        e("s_and_b32 s34, s29, 1\ns_lshl_b32 s35, s28, 1\ns_add_u32 s35, s35, s34\ns_lshl_b32 s35, s35, 8\ns_lshr_b32 s34, s29, 1\ns_mul_i32 s34, s34, 72")
        e("v_add_u32 v9, s34, v1\nv_lshlrev_b32 v9, 1, v9")
        e("s_lshl_b32 s34, s34, 13\ns_add_u32 s35, s35, s34")
        e("s_movk_i32 s38, 1152\ns_mov_b32 s39, 0x20000\ns_mov_b32 s50, %d\ns_mov_b32 s51, 0x20000" % (576*8192))
        e("s_movk_i32 s42, 0x4000\ns_mov_b32 s43, 0x20000\ns_movk_i32 s46, 0x4000\ns_mov_b32 s47, 0x20000")
        e("s_waitcnt lgkmcnt(0)")
        if o.get("stamps"): e("v_writelane_b32 v127, s90, 0")
        e("s_mov_b32 s36, s4\ns_mov_b32 s37, s5\ns_mov_b32 s48, s10\ns_mov_b32 s49, s11")
        e("s_add_u32 s40, s6, s33\ns_addc_u32 s41, s7, 0")
        e("s_add_u32 s44, s8, s33\ns_addc_u32 s45, s9, 0")
        so = lambda t: ['0', 's70', 's71', 's72'][t // 4]
        n1 = o.get("kn1", 16)
        def Kld(t): e(f"buffer_load_dwordx4 v[{32+4*t}:{35+4*t}], v13, s[40:43], {so(t)} offen offset:{(t%4)*1024} {nt}")
        e("s_cmp_eq_u32 s30, 8\ns_cbranch_scc1 L_qfirst")
        e("s_cmp_lt_u32 s30, 4\ns_cbranch_scc1 L_vfirst")
        e("s_setprio 2")
        e("s_barrier")
        for t in range(n1): Kld(t)
        self.common_setup()
        self.stamp(6)
        e("s_barrier")
        for t in range(n1, 16): Kld(t)
        e("s_branch L_kmain")
        e("L_vfirst:")
        e("s_barrier")
        self.common_setup()
        e("s_branch L_vwave")
        e("L_qfirst:")
        e("s_setprio 3")
        e("buffer_load_dwordx4 v[24:27], v8, s[36:39], 0 offen")
        e("buffer_load_dwordx4 v[28:31], v8, s[36:39], 0 offen offset:1024")
        e("buffer_load_ushort v14, v9, s[36:39], 0 offen")
        e("buffer_load_ushort v15, v9, s[36:39], 0 offen offset:128")
        for i in range(18):
            e(f"buffer_load_dwordx4 v[{32+4*i}:{35+4*i}], v11, s[48:51], s35 offen {nt}")
            if i < 17: e("s_add_u32 s35, s35, 0x8000")
        e("v_mov_b32 v6, 0\nv_mov_b32 v16, 0\nv_mov_b32 v17, 0\nv_mov_b32 v18, 0\nv_mov_b32 v19, 0")
        e(f"ds_write_b128 v6, v[16:19] offset:{FL}")
        e("s_waitcnt lgkmcnt(0)")
        e("s_barrier")
        self.common_setup()
        self.qwave()
        e("s_branch L_roles")
        e("L_kmain:")
        self.consts()
        self.epoch()
        self.stamp(1)
        if o.get("diagK"):
            e("s_waitcnt vmcnt(12)"); self.stamp(8)
            e("s_waitcnt vmcnt(8)"); self.stamp(9)
            e("s_waitcnt vmcnt(4)"); self.stamp(10)
            e("s_waitcnt vmcnt(0)"); self.stamp(5)
        e(f"v_mov_b32 v6, 0\ns_mov_b32 s66, 0")
        e("L_qfloop:")
        e(f"ds_read_b32 v12, v6 offset:{FL}\ns_waitcnt lgkmcnt(0)\nv_cmp_ne_u32 vcc, 1, v12")
        self.spin_tail("L_qfok", "L_qfloop", 1)
        e("s_branch L_qfloop")
        e("L_qfok:")
        e("v_bfe_u32 v6, v1, 2, 1\nv_lshlrev_b32 v6, 8, v6\nv_lshlrev_b32 v12, 6, v3\nv_add_u32 v6, v6, v12\nv_and_b32 v12, 3, v1\nv_lshlrev_b32 v12, 4, v12\nv_add_u32 v6, v6, v12")
        e(f"ds_read_b128 v[12:15], v6 offset:{QB}")
        self.stamp(2)
        e("s_waitcnt vmcnt(0) lgkmcnt(0)")
        self.stamp(3)
        D0 = [96+4*t if t < 6 else 24+4*(t-6) for t in range(8)]
        D1 = [32+4*t for t in range(8)]
        D = D0 + D1
        S = [16+t for t in range(8)] + [96+t for t in range(8)]
        for t in range(16):
            e(f"v_mfma_f32_16x16x32_bf16 v[{D[t]}:{D[t]+3}], v[12:15], v[{32+4*t}:{35+4*t}], 0")
        for half in range(2):
            for k in range(4):
                for t in range(8*half, 8*half+8):
                    if k == 0: e(f"v_mov_b32_dpp v{S[t]}, v{D[t]} quad_perm:[0,0,0,0] row_mask:0xf bank_mask:0xf")
                    else: e(f"v_add_f32_dpp v{S[t]}, v{D[t]+k}, v{S[t]} quad_perm:[{k},{k},{k},{k}] row_mask:0xf bank_mask:0xf")
        e("s_mov_b32 s64, 0x3db504f3")
        def rnd_pairs():
            for k in range(8): e(f"v_cvt_pk_bf16_f32 v{64+k}, v{S[2*k]}, v{S[2*k+1]}")
            for k in range(8): e(f"v_lshlrev_b32 v{S[2*k]}, 16, v{64+k}\nv_and_b32 v{S[2*k+1]}, 0xffff0000, v{64+k}")
        rnd_pairs()
        for t in range(16): e(f"v_mul_f32 v{S[t]}, s64, v{S[t]}")
        rnd_pairs()
        for k in range(5): e(f"v_max3_f32 v{64+k}, v{S[3*k]}, v{S[3*k+1]}, v{S[3*k+2]}")
        e(f"v_max3_f32 v64, v64, v65, v{S[15]}\nv_max3_f32 v66, v66, v67, v68\nv_max_f32 v64, v64, v66")
        self.row_allreduce("v_max_f32", ["v64"], steps=(8, 4))
        e("s_mov_b32 s64, 0x3fb8aa3b")
        for t in range(16): e(f"v_sub_f32 v{S[t]}, v{S[t]}, v64")
        for t in range(16): e(f"v_mul_f32 v{S[t]}, s64, v{S[t]}")
        for t in range(16): e(f"v_exp_f32 v{S[t]}, v{S[t]}")
        for k in range(8): e(f"v_cvt_pk_bf16_f32 v{72+k}, v{S[2*k]}, v{S[2*k+1]}")
        for k in range(8): e(f"v_add_f32 v{S[2*k]}, v{S[2*k]}, v{S[2*k+1]}")
        for k in range(4): e(f"v_add_f32 v{S[4*k]}, v{S[4*k]}, v{S[4*k+2]}")
        e(f"v_add_f32 v{S[0]}, v{S[0]}, v{S[4]}\nv_add_f32 v{S[8]}, v{S[8]}, v{S[12]}\nv_add_f32 v65, v{S[0]}, v{S[8]}")
        self.row_allreduce("v_add_f32", ["v65"], steps=(8, 4))
        e("s_and_b32 s64, s30, 3\nv_lshlrev_b32 v6, 7, v3\nv_bfe_u32 v12, v1, 2, 2\nv_lshlrev_b32 v12, 5, v12\nv_add_u32 v6, v6, v12\ns_lshl_b32 s65, s64, 8\nv_add_u32 v6, s65, v6")
        e("s_mov_b32 exec_lo, 0x11111111\ns_mov_b32 exec_hi, 0")
        e(f"ds_write_b128 v6, v[72:75] offset:{PL}\nds_write_b128 v6, v[76:79] offset:{PL+16}")
        e("s_mov_b64 exec, -1")
        e("s_lshl_b32 s65, s64, 2\nv_add_u32 v6, s65, v1")
        e("s_mov_b64 exec, 0x10001")
        e(f"ds_write_b32 v6, v64 offset:{MX}\nds_write_b32 v6, v65 offset:{LS}")
        e("s_mov_b64 exec, -1")
        e("s_waitcnt lgkmcnt(0)")
        self.stamp(4)
        e("s_barrier")
        e("s_setprio 0")
        self.wait_pub("sf", 12)
        e("s_cmp_lt_u32 s29, 9\ns_cbranch_scc1 L_kdA\ns_cmp_lt_u32 s29, 15\ns_cbranch_scc0 L_roles")
        self.wo_dma(o.get("woearly", 12))
        e("s_branch L_roles")
        e("L_kdA:")
        self.stamp(5)
        self.wgu_dma(o.get("wgearly", 9))
        e("s_branch L_roles")
        e("L_vwave:")
        if o.get("tlbtouch"):
            st = o["tlbtouch"]
            e("s_cmp_eq_u32 s30, 1\ns_cbranch_scc0 L_notouch")
            e(f"v_lshlrev_b32 v12, {st}, v1")
            for srd in ("s[52:55]", "s[76:79]", "s[80:83]", "s[84:87]"):
                e(f"buffer_load_dword v124, v12, {srd}, 0 offen")
            e("L_notouch:")
        if o.get("fast", True) and o.get("warmF", True):
            e("s_cmp_eq_u32 s30, 1\ns_cbranch_scc0 L_nowarm")
            e(f"s_lshl_b32 s64, s28, 13\ns_lshl_b32 s65, s29, 9\ns_add_u32 s64, s64, s65\ns_add_u32 s64, s64, {H1+FAST}")
            e(f"s_mul_i32 s65, s28, 18432\ns_mul_i32 s66, s29, 1152\ns_add_u32 s65, s65, s66\ns_add_u32 s65, s65, {H2+FAST-512}")
            e("v_lshlrev_b32 v12, 7, v1\nv_mov_b32 v6, s65\nv_mov_b32 v16, s64\nv_cmp_gt_u32 vcc, 4, v1\nv_cndmask_b32 v6, v6, v16, vcc\nv_add_u32 v6, v6, v12")
            e("s_mov_b64 exec, 0x1fff\nglobal_load_dword v124, v6, s[26:27]\ns_mov_b64 exec, -1")
            e("L_nowarm:")
        self.masks(); self.consts(); self.epoch()
        e("s_barrier")
        def Vld(t): e(f"buffer_load_dwordx4 v[{32+4*t}:{35+4*t}], v8, s[44:47], {so(t)} offen offset:{(t%4)*1024} {nt}")
        self.weights_prefetch()
        for t in range(16): Vld(t)
        self.stamp(1)
        e("s_barrier")
        self.stamp(2)
        e("v_bfe_u32 v6, v1, 3, 1\nv_lshlrev_b32 v6, 7, v6\nv_lshlrev_b32 v12, 5, v3\nv_add_u32 v6, v6, v12\ns_lshl_b32 s64, s30, 8\nv_add_u32 v6, s64, v6")
        e(f"ds_read_b128 v[16:19], v6 offset:{PL}\nds_read_b128 v[20:23], v6 offset:{PL+16}")
        e("v_lshrrev_b32 v6, 1, v3\nv_lshlrev_b32 v6, 4, v6")
        e(f"ds_read_b128 v[24:27], v6 offset:{MX}")
        e("s_lshl_b32 s64, s30, 2\nv_add_u32 v6, s64, v6")
        e(f"ds_read_b32 v28, v6 offset:{MX}")
        e("s_waitcnt lgkmcnt(0)")
        e("v_max3_f32 v24, v24, v25, v26\nv_max_f32 v24, v24, v27\nv_sub_f32 v28, v28, v24\nv_mul_f32 v28, 0x3fb8aa3b, v28\nv_exp_f32 v28, v28")
        e("s_mov_b32 s64, 0x01000100\ns_mov_b32 s65, 0x03020302")
        for t in range(16):
            ab = 96 + 4*(t % 4)
            e(f"v_perm_b32 v29, v{16+t//2}, v{16+t//2}, {'s64' if t%2==0 else 's65'}")
            for r in range(4): e(f"v_and_b32 v{ab+r}, v29, v{120+r}")
            e(f"s_waitcnt vmcnt({15-t})")
            e(f"v_mfma_f32_16x16x32_bf16 v[12:15], v[{ab}:{ab+3}], v[{32+4*t}:{35+4*t}], {'0' if t==0 else 'v[12:15]'}")
        self.stamp(3)
        e("s_setprio 3")
        e("v_lshrrev_b32 v6, 1, v3\nv_lshlrev_b32 v6, 9, v6\nv_lshlrev_b32 v30, 5, v2\nv_add_u32 v6, v6, v30\nv_and_b32 v30, 1, v3\nv_lshlrev_b32 v30, 4, v30\nv_add_u32 v6, v6, v30")
        e("s_lshl_b32 s64, s30, 10\nv_add_u32 v6, s64, v6")
        for r in range(4): e(f"v_mul_f32 v{12+r}, v28, v{12+r}")
        e(f"ds_write_b128 v6, v[12:15] offset:{OP}")
        e("v_mov_b32 v6, 0\nv_mov_b32 v30, 1")
        e("s_mov_b64 exec, 1")
        e(f"ds_add_rtn_u32 v31, v6, v30 offset:{FL+4}")
        e("s_mov_b64 exec, -1")
        e("s_waitcnt lgkmcnt(0)")
        e("v_readfirstlane_b32 s64, v31")
        e("s_cmp_eq_u32 s64, 3\ns_cbranch_scc0 L_vdone")
        for w in range(4): e(f"ds_read_b128 v[{16+4*w}:{19+4*w}], v8 offset:{OP + 1024*w}")
        e(f"s_mul_i32 s67, s28, 18432\ns_mul_i32 s64, s29, 1152\ns_add_u32 s67, s67, s64\ns_add_u32 s67, s67, {H2}")
        e("v_add_u32 v6, s67, v8")
        e("s_waitcnt lgkmcnt(0)")
        for r in range(4): e(f"v_add_f32 v{16+r}, v{16+r}, v{20+r}\nv_add_f32 v{24+r}, v{24+r}, v{28+r}")
        for r in range(4): e(f"v_add_f32 v{16+r}, v{16+r}, v{24+r}")
        self.tagins(16)
        self.dual_store("v6", "v[16:19]")
        e(f"v_mov_b32 v6, 0\nv_mov_b32 v30, 1\nds_write_b32 v6, v30 offset:{FL+8}")
        if o.get("amp") == "attn":
            e("s_memrealtime s[92:93]\ns_waitcnt lgkmcnt(0)\nv_mov_b32 v124, s92\nv_mov_b32 v125, 4")
            e("s_mov_b64 exec, 1\nglobal_atomic_umax v125, v124, s[24:25] sc1\ns_mov_b64 exec, -1")
        e("L_vdone:")
        e("s_setprio 0")
        self.stamp(4)
        e("s_branch L_roles")
        e("L_roles:")
        self.stamp(7)
        e("s_cmp_lt_u32 s29, 9\ns_cbranch_scc1 L_roleA")
        e("s_cmp_lt_u32 s29, 15\ns_cbranch_scc0 L_fin")
        self.roleB1()
        e("L_roleA:")
        self.roleA()
        e("L_fin:")
        if o.get("stamps"):
            self.stamp(15)
            e(f"s_mul_i32 s64, s2, 9\ns_add_u32 s64, s64, s30\ns_lshl_b32 s64, s64, 6\ns_add_u32 s64, s64, {TS}")
            e("v_lshlrev_b32 v6, 2, v1\nv_add_u32 v6, s64, v6")
            e("s_mov_b64 exec, 0xffff")
            e("global_store_dword v6, v127, s[26:27]")
        e("L_end:")
        e("s_endpgm")
        return e.text()

    def qwave(self):
        e = self.e; o = self.o; nt = o.get("kvflag", "nt")
        npf = 0
        self.masks(); self.consts()
        e(f"s_waitcnt vmcnt({18+npf})")
        self.stamp(1)
        e("v_mov_b32 v104, 0\nv_mov_b32 v105, 0\ns_mov_b32 s64, 0x3f803f80")
        for k in range(8):
            e(f"v_dot2_f32_bf16 v104, v{24+k}, s64, v104")
            e(f"v_dot2_f32_bf16 v105, v{24+k}, v{24+k}, v105")
        self.row_allreduce("v_add_f32", ["v104", "v105"])
        e("v_permlane16_swap_b32 v104, v105\nv_add_f32 v104, v104, v105\nv_mov_b32 v105, v104\nv_permlane32_swap_b32 v104, v105\nv_add_f32 v104, v104, v105")
        e("v_readlane_b32 s64, v104, 0\nv_readlane_b32 s65, v104, 16")
        self.ln_scalars("s64", "s65", "v104", "v105", "v106")
        e("v_and_b32 v6, 3, v1\nv_mul_u32_u24 v6, 48, v6\nv_lshrrev_b32 v12, 2, v1\nv_lshlrev_b32 v12, 1, v12\nv_add_u32 v6, v6, v12")
        for i, xv in enumerate(("v14", "v15")):
            e(f"v_lshlrev_b32 {xv}, 16, {xv}")
            self.ln_apply(xv, "v104", "v105", "v106", "v107", "v108")
        e(f"ds_write_b16 v6, v14 offset:{XT}")
        e("s_mov_b64 exec, 0xff")
        e(f"ds_write_b16 v6, v15 offset:{XT+32}")
        e("s_mov_b64 exec, -1")
        e("v_mul_u32_u24 v6, 48, v3")
        e("s_waitcnt lgkmcnt(0)")
        e(f"ds_read_b128 v[24:27], v6 offset:{XT}\nds_read_b128 v[28:31], v6 offset:{XT+16}\nds_read_b32 v11, v6 offset:{XT+32}")
        self.epoch()
        if o.get("diagQ"): self.stamp(9)
        e("s_mov_b32 s64, 0x01000100\ns_mov_b32 s65, 0x03020302")
        slots = [104, 108, 112, 116] + [128 + 4*k for k in range(9)] + [16, 20, 12]
        def prep(i, ab):
            src = f"v{24+i//2}" if i < 16 else "v11"
            e(f"v_perm_b32 v10, {src}, {src}, {'s64' if i%2==0 else 's65'}")
            for r in range(4): e(f"v_and_b32 v{ab+r}, v10, v{120+r}")
        def mm(i, ab):
            e(f"s_waitcnt vmcnt({17-i})")
            e(f"v_mfma_f32_16x16x32_bf16 v[164:167], v[{ab}:{ab+3}], v[{32+4*i}:{35+4*i}], {'0' if i==0 else 'v[164:167]'}")
        for i in range(16): prep(i, slots[i])
        mm(0, slots[0]); mm(1, slots[1])
        prep(16, slots[0]); prep(17, slots[1])
        for i in range(2, 16): mm(i, slots[i])
        mm(16, slots[0]); mm(17, slots[1])
        e(f"s_lshl_b32 s64, s28, 13\ns_lshl_b32 s65, s29, 9\ns_add_u32 s65, s65, s64\ns_add_u32 s65, s65, {H1}")
        e("v_lshlrev_b32 v6, 5, v2\nv_lshlrev_b32 v12, 4, v3\nv_add_u32 v6, v6, v12\nv_add_u32 v6, s65, v6")
        self.tagins(164)
        e("s_mov_b32 exec_lo, -1\ns_mov_b32 exec_hi, 0")
        self.dual_store("v6", "v[164:167]")
        e("s_mov_b64 exec, -1")
        self.stamp(2)
        e("s_barrier")
        e(f"s_add_u32 s64, s64, {H1 + (FAST if o.get('fast', True) else 0)}\nv_add_u32 v6, s64, v8\nv_add_u32 v9, 4096, v6")
        if o.get("smemchk", False):
            regs = [64, 65] + list(range(67, 76)) + [88, 89, 92, 93, 94]
            e(f"s_lshl_b32 s33, s28, 13\ns_add_u32 s33, s33, {H1 + 508}\ns_add_u32 s34, s26, s33\ns_addc_u32 s35, s27, 0")
            e("s_lshr_b32 s33, s31, 24\ns_mov_b32 s66, 0")
            if o.get("h1sleep", 4): e(f"s_sleep {o.get('h1sleep', 4)}")
            e("L_smloop:")
            for k, r in enumerate(regs): e(f"s_load_dword s{r}, s[34:35], {512*k} glc")
            e("s_waitcnt lgkmcnt(0)")
            for k, r in enumerate(regs):
                e(f"s_xor_b32 s{r}, s{r}, s33")
                if k: e(f"s_or_b32 s64, s64, s{r}")
            e("s_and_b32 s64, s64, 0xff\ns_cbranch_scc0 L_smok")
            e("s_add_u32 s66, s66, 1\ns_cmp_gt_u32 s66, %d\ns_cbranch_scc1 L_smok" % o.get("maxspin", 20000))
            e("s_branch L_smloop")
            e("L_smok:")
            self.note(11, "s66")
        elif o.get("h1sleep", 16): e(f"s_sleep {o.get('h1sleep', 16)}")
        e("s_mov_b32 s66, 0")
        def h1loads(base):
            for i in range(8):
                e(f"global_load_dwordx4 v[{base+4*i}:{base+4*i+3}], {'v6' if i<4 else 'v9'}, s[26:27] offset:{(i%4)*1024} sc1")
        self.stamp(5)
        h1loads(32)
        self.stamp(6)
        gap = o.get("h1gap", 40)
        if gap:
            e(f"s_sleep {gap}")
            h1loads(64)
            e("s_waitcnt vmcnt(8)")
            self.validate([32+4*i for i in range(8)], "v100", "v101")
            e("s_cbranch_vccz L_h1ok")
            e("s_waitcnt vmcnt(0)")
            for k in range(32): e(f"v_mov_b32 v{32+k}, v{64+k}")
        e("L_h1loop:")
        e("s_waitcnt vmcnt(0)")
        self.validate([32+4*i for i in range(8)], "v100", "v101")
        self.spin_fast("L_h1ok", "h1", 2, ["v6", "v9"])
        h1loads(32)
        e("s_branch L_h1loop")
        e("L_h1ok:")
        self.note(12, "s66")
        for k in range(32): e(f"v_and_b32 v{32+k}, 0xffffff00, v{32+k}")
        for i in range(0, 8, 2):
            for r in range(4): e(f"v_add_f32 v{32+4*i+r}, v{32+4*i+r}, v{36+4*i+r}")
        for i in (0, 4):
            for r in range(4): e(f"v_add_f32 v{32+4*i+r}, v{32+4*i+r}, v{40+4*i+r}")
        for r in range(4): e(f"v_add_f32 v{32+r}, v{32+r}, v{48+r}")
        e("v_cvt_pk_bf16_f32 v32, v32, v33\nv_cvt_pk_bf16_f32 v33, v34, v35")
        e("v_lshlrev_b32 v6, 3, v1")
        e(f"ds_write_b64 v6, v[32:33] offset:{QB}")
        e("v_mov_b32 v6, 0\nv_mov_b32 v12, 1")
        e("s_waitcnt lgkmcnt(0)")
        e(f"ds_write_b32 v6, v12 offset:{FL}")
        e("s_waitcnt lgkmcnt(0)")
        self.stamp(3)
        e("s_waitcnt vmcnt(0)")
        e("s_barrier")
        e("v_mov_b32 v6, 0")
        e(f"ds_read_b128 v[32:35], v6 offset:{MX}\nds_read_b128 v[36:39], v6 offset:{MX+16}\nds_read_b128 v[40:43], v6 offset:{LS}\nds_read_b128 v[44:47], v6 offset:{LS+16}")
        e("s_waitcnt lgkmcnt(0)")
        for h in range(2):
            m = 32 + 4*h; l = 40 + 4*h; M = 16 + 2*h; L = 17 + 2*h
            e(f"v_max3_f32 v{M}, v{m}, v{m+1}, v{m+2}\nv_max_f32 v{M}, v{M}, v{m+3}")
            for k in range(4): e(f"v_sub_f32 v{m+k}, v{m+k}, v{M}")
            for k in range(4): e(f"v_mul_f32 v{m+k}, 0x3fb8aa3b, v{m+k}")
            for k in range(4): e(f"v_exp_f32 v{m+k}, v{m+k}")
            e(f"v_mul_f32 v{L}, v{m}, v{l}")
            for k in range(1, 4): e(f"v_fma_f32 v{L}, v{m+k}, v{l+k}, v{L}")
        self.tagins(16)
        e(f"s_mul_i32 s67, s28, 18432\ns_mul_i32 s64, s29, 1152\ns_add_u32 s67, s67, s64\ns_add_u32 s67, s67, {H2+1024}\nv_mov_b32 v6, s67")
        e("s_mov_b64 exec, 1")
        self.dual_store("v6", "v[16:19]")
        e("s_mov_b64 exec, -1")
        e(f"v_mov_b32 v6, 0\nv_mov_b32 v12, 1\nds_write_b32 v6, v12 offset:{FL+12}")
        self.stamp(4)
    def common_setup(self):
        e = self.e; o = self.o
        e("s_load_dword s31, s[26:27], 0")
        self.dma_srds()
        if o.get("amp"):
            self.uid += 1
            e(f"s_cmp_eq_u32 s30, 0\ns_cbranch_scc0 L_amp{self.uid}")
            if o.get("ampentry"): e("s_not_b32 s92, s94\nv_mov_b32 v124, s92\nv_mov_b32 v125, 0")
            else: e("s_memrealtime s[92:93]\ns_waitcnt lgkmcnt(0)\ns_not_b32 s92, s92\nv_mov_b32 v124, s92\nv_mov_b32 v125, 0")
            e("s_mov_b64 exec, 1\nglobal_atomic_umax v125, v124, s[24:25] sc1\ns_mov_b64 exec, -1")
            e(f"L_amp{self.uid}:")
    def dma_srds(self):
        e = self.e
        e("s_mov_b32 s52, s12\ns_mov_b32 s53, s13\ns_mov_b32 s54, %d\ns_mov_b32 s55, 0x20000" % (4096*1152))
        e(f"s_mov_b32 s76, s16\ns_mov_b32 s77, s17\ns_mov_b32 s78, {576*9216}\ns_mov_b32 s79, 0x20000")
        e(f"s_mov_b32 s80, s18\ns_mov_b32 s81, s19\ns_mov_b32 s82, {576*9216}\ns_mov_b32 s83, 0x20000")
        e(f"s_mov_b32 s84, s20\ns_mov_b32 s85, s21\ns_mov_b32 s86, {4608*1152}\ns_mov_b32 s87, 0x20000")
    def weights_prefetch(self):
        e = self.e; fl = self.o.get("pfflag", ""); which = self.o.get("pfw", "ogu")
        d = "v[112:115]"
        def contig(srd, xbytes, jbytes, vbytes):
            e(f"s_and_b32 s64, s2, 7\ns_mul_i32 s64, s64, {xbytes}\ns_lshr_b32 s65, s2, 3\ns_mul_i32 s65, s65, {jbytes}\ns_add_u32 s64, s64, s65")
            e(f"s_and_b32 s65, s30, 3\ns_mul_i32 s65, s65, {vbytes}\ns_add_u32 s64, s64, s65")
            off = 0
            while off < vbytes:
                rem = vbytes - off
                if off and off % 4096 == 0: e("s_add_u32 s64, s64, 4096")
                if rem < 1024:
                    lanes = rem // 16
                    e(f"s_mov_b64 exec, {hex((1 << lanes) - 1)}") if lanes <= 31 else e(f"s_mov_b32 exec_lo, -1\ns_mov_b32 exec_hi, {hex((1 << (lanes-32)) - 1)}")
                e(f"buffer_load_dwordx4 {d}, v8, {srd}, s64 offen offset:{off % 4096} {fl}")
                if rem < 1024: e("s_mov_b64 exec, -1")
                off += 1024
        if "o" in which: contig("s[52:55]", 589824, 18432, 4608)
        if "g" in which or "u" in which:
            e("s_lshr_b32 s64, s2, 3\ns_mul_i32 s64, s64, 18\ns_and_b32 s65, s30, 3\ns_add_u32 s73, s64, s65\ns_add_u32 s74, s64, 17")
            e("s_and_b32 s65, s2, 7\ns_mul_i32 s75, s65, 1152")
            e("v_lshrrev_b32 v100, 3, v1\nv_lshlrev_b32 v100, 2, v100\nv_add_u32 v100, s73, v100\nv_min_u32 v100, s74, v100\nv_mul_u32_u24 v100, 9216, v100")
            e("v_and_b32 v101, 7, v1\nv_lshlrev_b32 v101, 4, v101\nv_add_u32 v100, v100, v101\nv_add_u32 v100, 1024, v100")
            for key, srd in (("g", "s[76:79]"), ("u", "s[80:83]")):
                if key not in which: continue
                for k in range(5):
                    if k == 4: e("s_and_b32 s65, s30, 3\ns_cmp_lt_u32 s65, 2\ns_cbranch_scc0 L_pfk" + key)
                    e(f"s_add_u32 s64, s73, {4*k}\ns_mul_i32 s64, s64, 9216\ns_add_u32 s64, s64, s75")
                    e(f"buffer_load_dwordx4 {d}, v8, {srd}, s64 offen {fl}")
                e(f"L_pfk{key}:")
                e("s_mov_b32 exec_lo, -1\ns_mov_b32 exec_hi, 0xff")
                e(f"buffer_load_dwordx4 {d}, v100, {srd}, s75 offen {fl}")
                e("s_mov_b64 exec, -1")
        if "d" in which: contig("s[84:87]", 663552, 20736, 5184)
    def wait_pub(self, tag, off=8):
        e = self.e
        e(f"v_mov_b32 v6, 0\ns_mov_b32 s66, 0")
        e(f"L_{tag}loop:")
        e(f"ds_read_b32 v12, v6 offset:{FL+off}\ns_waitcnt lgkmcnt(0)\nv_cmp_ne_u32 vcc, 1, v12")
        self.spin_tail(f"L_{tag}ok", f"L_{tag}loop", 2)
        e(f"s_branch L_{tag}loop")
        e(f"L_{tag}ok:")
    def wo_dma(self, early):
        e = self.e
        e("s_and_b32 s64, s30, 3\ns_lshl_b32 s64, s64, 1")
        e("s_lshl_b32 s72, s28, 8\ns_lshl_b32 s65, s64, 5\ns_add_u32 s72, s72, s65\ns_mul_i32 s72, s72, 1152")
        e("s_sub_u32 s65, s29, 9\ns_mul_i32 s65, s65, 192\ns_add_u32 s72, s72, s65")
        e(f"s_mul_i32 s71, s64, 6144\ns_add_u32 s71, s71, {WB}")
        for i in range(3):
            e(f"v_add_u32 v100, {64*i}, v1\nv_mul_u32_u24 v101, 5462, v100\nv_lshrrev_b32 v101, 16, v101")
            e("v_mul_u32_u24 v102, 12, v101\nv_sub_u32 v102, v100, v102")
            e("v_bfe_u32 v103, v101, 3, 1\nv_lshlrev_b32 v103, 1, v103\nv_xor_b32 v102, v102, v103\nv_lshlrev_b32 v102, 4, v102")
            e(f"v_mul_u32_u24 v101, 1152, v101\nv_add_u32 v{104+i}, v101, v102")
        n = 0
        for blk in range(4):
            for i in range(3):
                if n == early: self.wait_pub("wo")
                e("s_mov_b32 m0, s71\ns_add_u32 s71, s71, 1024")
                e(f"buffer_load_dwordx4 v{104+i}, s[52:55], s72 offen {self.o.get('wodmaflag', 'nt')} lds")
                n += 1
            if blk < 3: e(f"s_add_u32 s72, s72, {16*1152}")
    def wgu_dma(self, early):
        e = self.e
        e("s_mul_i32 s32, s28, 9\ns_add_u32 s32, s32, s29")
        e("v_lshrrev_b32 v10, 2, v1\nv_mul_u32_u24 v10, 9216, v10\nv_and_b32 v12, 3, v1\nv_lshrrev_b32 v11, 5, v1\nv_lshlrev_b32 v11, 1, v11\nv_xor_b32 v12, v12, v11\nv_lshlrev_b32 v12, 4, v12\nv_add_u32 v10, v10, v12")
        e(f"s_and_b32 s64, s30, 3\ns_mul_i32 s65, s64, {16*9216}\ns_lshl_b32 s68, s32, 6\ns_add_u32 s68, s68, s65")
        e(f"s_lshl_b32 s69, s64, 10\ns_add_u32 s69, s69, {WB}")
        e("v_lshrrev_b32 v14, 3, v1\nv_mul_u32_u24 v14, 1152, v14\nv_and_b32 v12, 7, v1\nv_bfe_u32 v11, v1, 4, 1\nv_lshlrev_b32 v11, 1, v11\nv_xor_b32 v12, v12, v11")
        e("s_and_b32 s65, s64, 1\ns_lshl_b32 s65, s65, 2\nv_xor_b32 v12, s65, v12\nv_lshlrev_b32 v12, 4, v12\nv_add_u32 v14, v14, v12")
        e(f"s_mul_i32 s75, s32, 36864\ns_mul_i32 s65, s64, {8*1152}\ns_add_u32 s75, s75, s65")
        n = 0
        for m, srd in enumerate(("s[76:79]", "s[80:83]")):
            e(f"s_mov_b32 s64, s68\ns_add_u32 s65, s69, {36864*m}")
            for w in range(9):
                if n == early:
                    e("s_mov_b32 s73, s64\ns_mov_b32 s74, s65")
                    self.wait_pub("wg")
                    e("s_mov_b32 s64, s73\ns_mov_b32 s65, s74")
                e("s_mov_b32 m0, s65\ns_add_u32 s65, s65, 4096")
                e(f"buffer_load_dwordx4 v10, {srd}, s64 offen nt lds")
                n += 1
                if w < 8: e(f"s_add_u32 s64, s64, {64*9216}")
        e(f"s_add_u32 s65, s69, {2*36864}")
        for w in range(9):
            e("s_mov_b32 m0, s65\ns_add_u32 s65, s65, 4096")
            e(f"buffer_load_dwordx4 v14, s[84:87], s75 offen nt lds")
            if w < 8: e("s_add_u32 s75, s75, 128")

    def roleB1(self):
        e = self.e; o = self.o
        e(f"s_mul_i32 s64, s28, 18432\ns_add_u32 s64, s64, {H2 + (FAST if o.get('fast', True) else 0)}")
        e("s_cmp_eq_u32 s30, 8\ns_cbranch_scc0 L_b1w")
        e("v_mul_u32_u24 v6, 1152, v2\nv_add_u32 v6, s64, v6\nv_add_u32 v6, 1024, v6")
        if o.get("st2sleep", 2): e(f"s_sleep {o.get('st2sleep', 2)}")
        e("s_mov_b32 s66, 0")
        e("L_stloop:")
        e("global_load_dwordx4 v[72:75], v6, s[26:27] sc1\ns_waitcnt vmcnt(0)")
        self.validate([72], "v100", "v101")
        self.spin_fast("L_stok", "st", 2, ["v6"])
        e("s_branch L_stloop")
        e("L_stok:")
        e("v_and_b32 v12, 1, v3\nv_cmp_eq_u32 vcc, 1, v12\nv_cndmask_b32 v72, v72, v74, vcc\nv_cndmask_b32 v73, v73, v75, vcc")
        e("v_and_b32 v72, 0xffffff00, v72\nv_and_b32 v73, 0xffffff00, v73")
        e("v_mov_b32 v76, v72")
        self.row_allreduce("v_max_f32", ["v76"])
        e("v_sub_f32 v72, v72, v76\nv_mul_f32 v72, 0x3fb8aa3b, v72\nv_exp_f32 v72, v72")
        e("v_mul_f32 v73, v72, v73")
        self.row_allreduce("v_add_f32", ["v73"])
        e("v_rcp_f32 v73, v73")
        e("v_mul_f32 v72, v72, v73")
        e("v_lshlrev_b32 v6, 2, v1")
        e("s_mov_b32 exec_lo, -1\ns_mov_b32 exec_hi, 0")
        e(f"ds_write_b32 v6, v72 offset:{SC}")
        e("s_mov_b64 exec, -1")
        e("s_setprio 0")
        e("s_waitcnt lgkmcnt(0)")
        self.stamp(13)
        e("s_barrier")
        e("s_branch L_b1w8")
        e("L_b1w:")
        e("v_mul_u32_u24 v6, 1152, v2\nv_add_u32 v6, s64, v6")
        e("v_lshlrev_b32 v12, 5, v3\ns_lshl_b32 s65, s30, 7\nv_add_u32 v12, s65, v12\nv_add_u32 v6, v6, v12")
        def h2loads():
            e("global_load_dwordx4 v[64:67], v6, s[26:27] sc1\nglobal_load_dwordx4 v[68:71], v6, s[26:27] offset:16 sc1")
        e("v_lshlrev_b32 v10, 3, v3\nv_bfe_u32 v12, v1, 2, 2\nv_add_u32 v10, v10, v12\nv_mul_u32_u24 v10, 192, v10\nv_and_b32 v12, 3, v1\nv_lshlrev_b32 v12, 3, v12\nv_add_u32 v10, v10, v12")
        e(f"s_mul_i32 s65, s30, 6144\ns_add_u32 s65, s65, {WB}\nv_add_u32 v10, s65, v10")
        e("v_and_b32 v12, 1, v3\nv_lshlrev_b32 v12, 5, v12\nv_add_u32 v11, v10, v12\nv_sub_u32 v10, v10, v12")
        e("s_lshr_b32 s65, s30, 2\ns_lshl_b32 s65, s65, 6\nv_lshlrev_b32 v9, 2, v2\nv_add_u32 v9, s65, v9")
        e(f"v_lshlrev_b32 v13, 4, v3\ns_mul_i32 s65, s30, 384\nv_add_u32 v13, s65, v13")
        self.stamp(5)
        e("s_waitcnt vmcnt(0)")
        e("s_barrier")
        self.stamp(8)
        e(f"ds_read_b32 v72, v9 offset:{SC}")
        for tau in range(6):
            a = "v11" if tau % 2 == 0 else "v10"
            e(f"ds_read_b64_tr_b16 v[{32+4*tau}:{33+4*tau}], {a} offset:{32*tau}")
            e(f"ds_read_b64_tr_b16 v[{34+4*tau}:{35+4*tau}], {a} offset:{32*tau + 768}")
        if o.get("h2sleep", 0): e(f"s_sleep {o.get('h2sleep', 0)}")
        e("s_mov_b32 s66, 0")
        h2loads()
        e("L_h2loop:")
        e("s_waitcnt vmcnt(0)")
        self.validate([64, 68], "v100", "v101")
        self.spin_fast("L_h2ok", "h2", o.get("h2retry", 0), ["v6"])
        h2loads()
        e("s_branch L_h2loop")
        e("L_h2ok:")
        self.note(13, "s66")
        self.stamp(9)
        e("s_waitcnt lgkmcnt(0)")
        for k in range(8): e(f"v_mul_f32 v{64+k}, v72, v{64+k}")
        self.row_allreduce("v_add_f32", [f"v{64+k}" for k in range(8)])
        for k in range(4): e(f"v_cvt_pk_bf16_f32 v{76+k}, v{64+2*k}, v{65+2*k}")
        e("s_waitcnt lgkmcnt(0)")
        for tau in range(6):
            e(f"v_mfma_f32_16x16x32_bf16 v[{80+4*tau}:{83+4*tau}], v[{32+4*tau}:{35+4*tau}], v[76:79], 0")
        e("s_mov_b32 s64, 0x00010001\ns_mov_b32 s65, 0x00010001\ns_mov_b64 exec, s[64:65]")
        for tau in range(6):
            e(f"ds_write_b128 v13, v[{80+4*tau}:{83+4*tau}] offset:{WR + 64*tau}")
        e("s_mov_b64 exec, -1")
        e("L_b1w8:")
        e("s_waitcnt lgkmcnt(0)\ns_barrier")
        e("s_cmp_lt_u32 s30, 3\ns_cbranch_scc0 L_b1pubdone")
        e("v_and_b32 v6, 7, v1\nv_lshlrev_b32 v6, 4, v6\nv_lshrrev_b32 v12, 3, v1\nv_mul_u32_u24 v12, 384, v12\nv_add_u32 v6, v6, v12\ns_lshl_b32 s64, s30, 7\nv_add_u32 v6, s64, v6")
        e(f"ds_read_b128 v[16:19], v6 offset:{WR}")
        e(f"s_mul_i32 s64, s28, 2304\ns_sub_u32 s65, s29, 9\ns_mul_i32 s65, s65, 384\ns_add_u32 s64, s64, s65\ns_lshl_b32 s65, s30, 7\ns_add_u32 s64, s64, s65\ns_add_u32 s64, s64, {H3}")
        e("v_and_b32 v6, 7, v1\nv_lshlrev_b32 v6, 4, v6\nv_add_u32 v6, s64, v6")
        e("s_waitcnt lgkmcnt(0)")
        self.reduce_stride8(16, 20)
        self.tagins(16)
        e("s_mov_b64 exec, 0xff")
        e("global_store_dwordx4 v6, v[16:19], s[26:27] sc1")
        e("s_mov_b64 exec, -1")
        e("L_b1pubdone:")
        self.stamp(10)
        e("s_sub_u32 s32, s29, 9\ns_cmp_lt_u32 s32, 2\ns_cbranch_scc0 L_rho2\ns_lshl_b32 s64, s28, 1\ns_add_u32 s32, s32, s64\ns_branch L_reducer")
        e("L_rho2:\ns_cmp_eq_u32 s32, 2\ns_cbranch_scc0 L_fin\ns_cmp_lt_u32 s28, 4\ns_cbranch_scc0 L_fin\ns_add_u32 s32, s28, 32")
        e("L_reducer:")
        e("s_cmp_eq_u32 s30, 0\ns_cbranch_scc0 L_redh4")
        e(f"v_lshrrev_b32 v6, 2, v1\nv_mul_u32_u24 v6, 2304, v6\nv_and_b32 v12, 3, v1\nv_lshlrev_b32 v12, 4, v12\nv_add_u32 v6, v6, v12\ns_lshl_b32 s64, s32, 6\ns_add_u32 s64, s64, {H3}\nv_add_u32 v6, s64, v6")
        e("v_and_b32 v12, 3, v1\nv_lshlrev_b32 v12, 3, v12\ns_lshl_b32 s64, s32, 5\nv_add_u32 v12, s64, v12")
        e("buffer_load_dwordx2 v[40:41], v12, s[36:39], 0 offen")
        if o.get("rh3sleep", 8): e(f"s_sleep {o.get('rh3sleep', 8)}")
        e("s_mov_b32 s66, 0")
        e("L_rh3loop:")
        e("global_load_dwordx4 v[32:35], v6, s[26:27] sc1\ns_waitcnt vmcnt(0)")
        self.validate([32], "v100", "v101")
        self.spin_tail("L_rh3ok", "L_rh3loop", 4)
        e("s_branch L_rh3loop")
        e("L_rh3ok:")
        for r in range(4): e(f"v_and_b32 v{32+r}, 0xffffff00, v{32+r}")
        self.reduce_stride4(32, 36)
        e("v_lshlrev_b32 v44, 16, v40\nv_and_b32 v45, 0xffff0000, v40\nv_lshlrev_b32 v46, 16, v41\nv_and_b32 v47, 0xffff0000, v41")
        for r in range(4):
            self.Rnd(f"v{32+r}", f"v{32+r}")
            e(f"v_add_f32 v{44+r}, v{44+r}, v{32+r}")
            self.Rnd(f"v{44+r}", f"v{44+r}")
        e("L_redh4:")
        e("s_barrier")
        self.stamp(12)
        e(f"v_lshrrev_b32 v6, 2, v0\nv_mul_u32_u24 v6, 2304, v6\nv_and_b32 v12, 3, v0\nv_lshlrev_b32 v12, 4, v12\nv_add_u32 v6, v6, v12\ns_lshl_b32 s64, s32, 6\ns_add_u32 s64, s64, {H4}\nv_add_u32 v6, s64, v6")
        for k in range(o.get("h4sleepN", 1)): e(f"s_sleep {o.get('h4sleep', 40)}")
        e("s_mov_b32 s66, 0")
        e("L_h4loop:")
        e("global_load_dwordx4 v[32:35], v6, s[26:27] sc1\ns_waitcnt vmcnt(0)")
        self.validate([32], "v100", "v101")
        self.spin_tail("L_h4ok", "L_h4loop", o.get("h4retry", 4))
        e("s_branch L_h4loop")
        e("L_h4ok:")
        self.note(14, "s66")
        self.stamp(11)
        for r in range(4): e(f"v_and_b32 v{32+r}, 0xffffff00, v{32+r}")
        self.reduce_stride4(32, 36)
        e(f"v_and_b32 v6, 3, v1\nv_lshlrev_b32 v6, 4, v6\ns_lshl_b32 s64, s30, 6\nv_add_u32 v6, s64, v6")
        e("s_mov_b64 exec, 0xf")
        e(f"ds_write_b128 v6, v[32:35] offset:{FR}")
        e("s_mov_b64 exec, -1")
        e("s_waitcnt lgkmcnt(0)\ns_barrier")
        e("s_cmp_eq_u32 s30, 0\ns_cbranch_scc0 L_fin")
        e("v_and_b32 v6, 3, v1\nv_lshlrev_b32 v6, 4, v6\nv_lshrrev_b32 v12, 2, v1\nv_lshlrev_b32 v12, 6, v12\nv_add_u32 v6, v6, v12")
        for r in range(4): e(f"v_mov_b32 v{32+r}, 0")
        e("s_mov_b32 exec_lo, -1\ns_mov_b32 exec_hi, 0xf")
        e(f"ds_read_b128 v[32:35], v6 offset:{FR}")
        e("s_mov_b64 exec, -1")
        e("s_mov_b32 s52, s22\ns_mov_b32 s53, s23\ns_movk_i32 s54, 1152\ns_mov_b32 s55, 0x20000")
        e("v_and_b32 v6, 3, v1\nv_lshlrev_b32 v6, 3, v6\ns_lshl_b32 s64, s32, 5\nv_add_u32 v6, s64, v6")
        e("s_waitcnt lgkmcnt(0)")
        self.reduce_stride4(32, 36)
        for r in range(4):
            self.Rnd(f"v{32+r}", f"v{32+r}")
            e(f"v_add_f32 v{32+r}, v{44+r}, v{32+r}")
        e("v_cvt_pk_bf16_f32 v32, v32, v33\nv_cvt_pk_bf16_f32 v33, v34, v35")
        e("s_mov_b64 exec, 0xf")
        e("buffer_store_dwordx2 v[32:33], v6, s[52:55], 0 offen")
        e("s_mov_b64 exec, -1")
        e("s_cmp_eq_u32 s32, 0\ns_cbranch_scc0 L_fin")
        e("v_mov_b32 v6, 0\ns_mov_b64 exec, 1\nglobal_store_dword v6, v7, s[26:27] sc1\ns_mov_b64 exec, -1")
        if o.get("amp"):
            e("s_memrealtime s[92:93]\nv_mov_b32 v6, 0\nglobal_load_dwordx2 v[32:33], v6, s[24:25] sc1\ns_waitcnt vmcnt(0) lgkmcnt(0)")
            e("v_readfirstlane_b32 s64, v32\nv_readfirstlane_b32 s65, v33\ns_not_b32 s64, s64")
            if o["amp"] == "attn": e("s_sub_u32 s65, s65, s64")
            else: e("s_sub_u32 s65, s92, s64")
            e(f"s_min_u32 s65, s65, 5000\ns_mul_i32 s65, s65, {o.get('ampk', 2)}\ns_add_u32 s65, s65, s92")
            e("L_ampspin:\ns_memrealtime s[66:67]\ns_waitcnt lgkmcnt(0)\ns_sub_u32 s66, s66, s65\ns_cmp_lt_i32 s66, 0\ns_cbranch_scc1 L_ampspin")
        e("s_branch L_fin")

    def roleA(self):
        e = self.e; o = self.o
        e("s_setprio 0")
        e("s_mul_i32 s32, s28, 9\ns_add_u32 s32, s32, s29")
        e(f"s_lshl_b32 s69, s30, 12\ns_add_u32 s69, s69, {WB}")
        e("v_lshlrev_b32 v4, 2, v2\nv_add_u32 v4, v4, v3")
        e("s_lshl_b32 s34, s30, 6\nv_add_u32 v10, s34, v4\nv_lshlrev_b32 v10, 1, v10")
        e("buffer_load_ushort v126, v10, s[36:39], 0 offen")
        e(f"v_mov_b32 v12, 0x3f803f80\nv_lshlrev_b32 v10, 2, v1\ns_mov_b32 exec_lo, -1\ns_mov_b32 exec_hi, 0\nds_write_b32 v10, v12 offset:{ONES}\ns_mov_b64 exec, -1")
        e(f"v_mul_u32_u24 v128, 2304, v3\nv_lshlrev_b32 v12, 4, v2\nv_add_u32 v128, v128, v12\ns_lshl_b32 s64, s30, 8\ns_add_u32 s64, s64, {H3}\nv_add_u32 v128, s64, v128")
        e("v_add_u32 v129, 9216, v128\nv_add_u32 v130, 18432, v128\nv_add_u32 v131, 27648, v128")
        e(f"s_lshl_b32 s64, s30, 7\ns_add_u32 s64, s64, {HNL}\nv_lshlrev_b32 v132, 1, v4\nv_add_u32 v132, s64, v132")
        e(f"v_lshlrev_b32 v133, 4, v3\nv_add_u32 v12, s64, v133\nv_add_u32 v133, {ONES}, v133\nv_cmp_eq_u32 vcc, 1, v2\nv_cndmask_b32 v133, v12, v133, vcc")
        e(f"s_lshl_b32 s64, s30, 9\ns_add_u32 s64, s64, {MR}\nv_lshlrev_b32 v134, 4, v3\nv_lshlrev_b32 v12, 8, v2\nv_add_u32 v134, v134, v12\nv_add_u32 v134, s64, v134")
        e(f"v_lshlrev_b32 v135, 4, v2\nv_lshlrev_b32 v12, 9, v3\nv_add_u32 v135, v135, v12\nv_add_u32 v135, {MR}, v135")
        e(f"s_lshl_b32 s64, s30, 6\ns_add_u32 s64, s64, {HHL}\nv_lshlrev_b32 v136, 1, v4\nv_add_u32 v136, s64, v136\nv_lshlrev_b32 v137, 4, v3\nv_add_u32 v137, s64, v137")
        e(f"s_mul_i32 s64, s32, 2304\ns_lshl_b32 s65, s30, 8\ns_add_u32 s64, s64, s65\ns_add_u32 s64, s64, {H4}")
        e("v_bfe_u32 v138, v1, 2, 2\nv_lshlrev_b32 v138, 6, v138\nv_lshlrev_b32 v12, 4, v3\nv_add_u32 v138, v138, v12\nv_add_u32 v138, s64, v138")
        e(f"v_lshlrev_b32 v140, 2, v1\nv_add_u32 v140, {ST2}, v140\ns_lshl_b32 s64, s30, 2\nv_add_u32 v139, s64, v140")
        e("v_lshlrev_b32 v10, 3, v3\nv_bfe_u32 v12, v1, 2, 2\nv_add_u32 v5, v10, v12\nv_lshlrev_b32 v10, 6, v5\nv_and_b32 v12, 3, v1\nv_lshlrev_b32 v12, 3, v12\nv_add_u32 v10, v10, v12\nv_add_u32 v10, s69, v10")
        e("v_lshlrev_b32 v13, 7, v5\nv_add_u32 v13, v13, v12")
        e("v_and_b32 v12, 1, v3\nv_lshlrev_b32 v12, 5, v12\nv_add_u32 v11, v10, v12\nv_xor_b32 v12, 32, v12\nv_add_u32 v10, v10, v12")
        e("v_bfe_u32 v12, v1, 3, 1\nv_and_b32 v5, 1, v3\nv_lshlrev_b32 v5, 1, v5\nv_or_b32 v12, v12, v5\nv_lshlrev_b32 v12, 5, v12\nv_add_u32 v13, v13, v12")
        e(f"s_add_u32 s65, s69, {2*36864}\nv_add_u32 v13, s65, v13")
        self.stamp(8)
        e("s_waitcnt vmcnt(0) lgkmcnt(0)\ns_barrier")
        def trw(m):
            lo = 36864*m
            for s in range(2):
                for tau in range(2):
                    fr = 32 + 16*m + 8*s + 4*tau
                    a = "v11" if tau == 0 else "v10"
                    off = lo + 2048*s
                    e(f"ds_read_b64_tr_b16 v[{fr}:{fr+1}], {a} offset:{off}")
                    e(f"ds_read_b64_tr_b16 v[{fr+2}:{fr+3}], {a} offset:{off+256}")
        trw(0)
        if o.get("h3sleep", 0): e(f"s_sleep {o['h3sleep']}")
        for i in range(4): e(f"global_load_dwordx4 v[{80+4*i}:{83+4*i}], v{128+i}, s[26:27] sc1")
        e("s_waitcnt lgkmcnt(0)")
        trw(1)
        e("s_waitcnt lgkmcnt(0)")
        for tau in range(4):
            e(f"v_xor_b32 v12, {32*tau}, v13")
            e(f"ds_read_b64_tr_b16 v[{64+4*tau}:{65+4*tau}], v12\nds_read_b64_tr_b16 v[{66+4*tau}:{67+4*tau}], v12 offset:512")
        e("v_lshlrev_b32 v126, 16, v126")
        e("s_mov_b32 s66, 0")
        e("L_h3loop:")
        e("s_waitcnt vmcnt(0)")
        for i in range(4):
            gb = 80 + 4*i
            e(f"v_perm_b32 v100, v{gb+1}, v{gb}, s62\nv_perm_b32 v101, v{gb+3}, v{gb+2}, s63\nv_or_b32 v100, v100, v101")
            e(f"v_cmp_ne_u32 s[{40+2*i}:{41+2*i}], v100, v7")
        e("s_or_b64 s[48:49], s[40:41], s[42:43]\ns_or_b64 s[50:51], s[44:45], s[46:47]\ns_or_b64 s[48:49], s[48:49], s[50:51]")
        e("s_cbranch_scc0 L_h3ok")
        e("s_add_u32 s66, s66, 1\ns_cmp_gt_u32 s66, %d\ns_cbranch_scc1 L_h3ok" % o.get("maxspin", 20000))
        if o.get("h3retry", 1): e(f"s_sleep {o.get('h3retry', 1)}")
        for i in range(4):
            e(f"s_mov_b64 exec, s[{40+2*i}:{41+2*i}]\ns_cbranch_execz L_h3s{i}")
            e(f"global_load_dwordx4 v[{80+4*i}:{83+4*i}], v{128+i}, s[26:27] sc1")
            e(f"L_h3s{i}:")
        e("s_mov_b64 exec, -1\ns_branch L_h3loop")
        e("L_h3ok:")
        self.note(13, "s66")
        self.stamp(9)
        for r in range(4):
            e(f"v_add_f32 v{80+r}, v{80+r}, v{84+r}\nv_add_f32 v{88+r}, v{88+r}, v{92+r}")
        for r in range(4): e(f"v_add_f32 v{80+r}, v{80+r}, v{88+r}")
        self.xrow_transpose_reduce(80)
        self.Rnd("v80", "v80")
        e("v_add_f32 v80, v126, v80")
        e("v_cvt_pk_bf16_f32 v81, v80, v80")
        e("ds_write_b16 v132, v81")
        e("v_and_b32 v82, 0xffff0000, v81")
        e("v_mul_f32 v83, v82, v82")
        e("s_waitcnt lgkmcnt(0)")
        e("ds_read_b128 v[84:87], v133\nds_read_b128 v[88:91], v133 offset:64")
        self.row_allreduce("v_add_f32", ["v82", "v83"])
        e("v_permlane16_swap_b32 v82, v83\nv_add_f32 v82, v82, v83\nv_mov_b32 v83, v82\nv_permlane32_swap_b32 v82, v83\nv_add_f32 v82, v82, v83")
        e("s_waitcnt lgkmcnt(0)")
        for s in range(2):
            for m in range(2):
                for tau in range(2):
                    fr = 32 + 16*m + 8*s + 4*tau; d = 96 + 8*m + 4*tau
                    e(f"v_mfma_f32_16x16x32_bf16 v[{d}:{d+3}], v[{fr}:{fr+3}], v[{84+4*s}:{87+4*s}], {'0' if s==0 else f'v[{d}:{d+3}]'}")
        e("s_mov_b64 exec, 0x10001")
        e("ds_write_b32 v139, v82")
        e("s_mov_b32 s64, 0x00030003\ns_mov_b32 s65, 0x00030003\ns_mov_b64 exec, s[64:65]")
        for k in range(4):
            e(f"ds_write_b128 v134, v[{96+4*k}:{99+4*k}] offset:{64*k}")
        e("s_mov_b64 exec, -1")
        self.stamp(10)
        for r in range(4): e(f"v_mov_b32 v{92+r}, 0\nv_mov_b32 v{108+r}, 0")
        e("v_mov_b32 v82, 0")
        e("s_waitcnt lgkmcnt(0)\ns_barrier")
        e("s_mov_b64 exec, 0x01ff01ff")
        e("ds_read_b32 v82, v140")
        e("s_mov_b64 exec, -1")
        e("ds_read_b128 v[84:87], v135\nds_read_b128 v[88:91], v135 offset:2048")
        e("ds_read_b128 v[100:103], v135 offset:256\nds_read_b128 v[104:107], v135 offset:2304")
        e("s_mov_b64 exec, 0xffff")
        e("ds_read_b128 v[92:95], v135 offset:4096\nds_read_b128 v[108:111], v135 offset:4352")
        e("s_mov_b64 exec, -1")
        e("s_waitcnt lgkmcnt(6)")
        self.row_allreduce("v_add_f32", ["v82"])
        e("v_readlane_b32 s64, v82, 0\nv_readlane_b32 s65, v82, 16")
        e("s_waitcnt lgkmcnt(0)")
        for r in range(4): e(f"v_add_f32 v{84+r}, v{84+r}, v{88+r}\nv_add_f32 v{100+r}, v{100+r}, v{104+r}")
        self.ln_scalars("s64", "s65", "v112", "v113", "v114")
        for r in range(4): e(f"v_add_f32 v{84+r}, v{84+r}, v{92+r}\nv_add_f32 v{100+r}, v{100+r}, v{108+r}")
        e("v_permlane16_swap_b32 v84, v85\nv_permlane16_swap_b32 v86, v87\nv_permlane16_swap_b32 v100, v101\nv_permlane16_swap_b32 v102, v103")
        e("v_add_f32 v84, v84, v85\nv_add_f32 v86, v86, v87\nv_add_f32 v100, v100, v101\nv_add_f32 v102, v102, v103")
        e("v_permlane32_swap_b32 v84, v86\nv_permlane32_swap_b32 v100, v102")
        e("v_add_f32 v84, v84, v86\nv_add_f32 v100, v100, v102")
        e("v_fma_f32 v84, -v112, v100, v84")
        e("v_mul_f32 v85, v84, v114\nv_fma_f32 v86, -v85, v113, v84\nv_fma_f32 v85, v86, v114, v85")
        self.Rnd("v84", "v85")
        e("v_mov_b32_dpp v85, v84 row_ror:8 row_mask:0xf bank_mask:0xf")
        e("v_max_f32 v86, 0, v84\nv_mul_f32 v86, v86, v85\nv_cvt_pk_bf16_f32 v86, v86, v86")
        e("s_mov_b32 s66, 0x00ff00ff\ns_mov_b32 s67, 0x00ff00ff\ns_mov_b64 exec, s[66:67]")
        e("ds_write_b16 v136, v86")
        e("s_mov_b64 exec, -1")
        e("s_waitcnt lgkmcnt(0)")
        e("ds_read_b128 v[84:87], v137")
        e("s_waitcnt lgkmcnt(0)")
        for tau in range(4):
            e(f"v_mfma_f32_16x16x32_bf16 v[{96+4*tau}:{99+4*tau}], v[{64+4*tau}:{67+4*tau}], v[84:87], 0")
        e("s_mov_b32 s64, 0x11111111\ns_mov_b32 s65, 0x11111111")
        for tau in range(1, 4):
            for r in range(4):
                e(f"v_mov_b32_dpp v{96+r}, v{96+4*tau+r} quad_perm:[0,1,2,3] row_mask:0xf bank_mask:{1<<tau:#x}")
        self.tagins(96)
        e("s_mov_b64 exec, s[64:65]")
        e("global_store_dwordx4 v138, v[96:99], s[26:27] sc1")
        e("s_mov_b64 exec, -1")
        self.stamp(11)

def build(opt=None):
    opt = opt or {}
    g = G(opt)
    body = g.gen()
    name = NAME + "_kernel"
    txt = HEADER + "; Override launch geometry by editing the next line (default: block=256,\n; grid=ceil(out_elems/256), lds=0). Harness parses it; keep it on one line.\n"
    txt += f"; @launch grid=(256,1,1) block=(576,1,1) lds={LDS_BYTES}\n"
    txt += f""".amdgcn_target "amdgcn-amd-amdhsa--gfx950"
.text
.globl {name}
.p2align 8
.type {name},@function
{name}:
{body}.section .rodata,"a"
.p2align 6
.amdhsa_kernel {name}
  .amdhsa_next_free_vgpr 168
  .amdhsa_next_free_sgpr 96
  .amdhsa_accum_offset 168
  .amdhsa_group_segment_fixed_size 0
  .amdhsa_kernarg_size 96
  .amdhsa_user_sgpr_count 2
  .amdhsa_user_sgpr_kernarg_segment_ptr 1
  .amdhsa_system_sgpr_workgroup_id_x 1
.end_amdhsa_kernel
"""
    return txt, g
if __name__ == "__main__":
    import json
    opt = json.loads(sys.argv[2]) if len(sys.argv) > 2 else {}
    txt, g = build(opt)
    open(sys.argv[1], "w").write(txt)
    print("instrs", g.e.count, "nops", g.e.nops)
```

```python
import sys
sys.path.insert(0, "work")
from emit import E
NAME = "sequential_preLN__sliding_block_cached__glu_gated_reglu__decode"
HEADER = open("cdna_kernels/" + NAME + ".s.ref").read().split("; Override launch geometry")[0]

H1 = 0x10000; H2 = 0x40000; H3 = 0x90000; H4 = 0xA0000; TS = 0x400000
FAST = 0x100000
H2F = 0x180000
STF = 0x1C0000
XT = 0
FL = 256
QB = 512
MX = 1024
LS = 1056
PL = 1280
OP = 2560
ST2 = 6656
HNL = 6784
MR = 7936
HHL = 12544
ONES = 13120
WR = 6656
SC = 10816
FR = 9728
WB = 13312
LDS_BYTES = WB + 3 * 36864

class G:
    def __init__(self, opt):
        self.o = opt; self.e = E(); self.uid = 0
    def stamp(self, k):
        if not self.o.get("stamps"): return
        if self.o.get("stamps") == "min" and k != 15: return
        e = self.e
        e(f"s_memrealtime s[90:91]\ns_waitcnt lgkmcnt(0)\nv_writelane_b32 v127, s90, {k}")
    def note(self, k, sreg):
        if self.o.get("stamps") and self.o.get("stamps") != "min": self.e(f"v_writelane_b32 v127, {sreg}, {k}")
    def Rnd(self, d, s):
        self.e(f"v_cvt_pk_bf16_f32 {d}, {s}, {s}")
        self.e(f"v_and_b32 {d}, 0xffff0000, {d}")
    def row_allreduce(self, op, vs, steps=(8, 4, 2, 1)):
        for st in steps:
            for v in vs:
                self.e(f"{op}_dpp {v}, {v}, {v} row_ror:{st} row_mask:0xf bank_mask:0xf")
    def tagins(self, v4):
        for k in range(4):
            self.e(f"v_perm_b32 v{v4+k}, v{v4+k}, v7, s{56+k}")
    def dual_store(self, vaddr, data, vfast=None):
        e = self.e
        if self.o.get("fast", True):
            if vfast is None:
                e(f"v_add_u32 v125, {FAST}, {vaddr}"); vfast = "v125"
            e(f"global_store_dwordx4 {vfast}, {data}, s[26:27]")
        e(f"global_store_dwordx4 {vaddr}, {data}, s[26:27] sc1")
    def spin_fast(self, okl, tag, sleep, addrs=None, switch=None):
        e = self.e; o = self.o
        e(f"s_cbranch_vccz {okl}")
        e("s_add_u32 s66, s66, 1\ns_cmp_gt_u32 s66, %d\ns_cbranch_scc1 %s" % (o.get("maxspin", 20000), okl))
        if o.get("fast", True):
            e(f"s_cmp_eq_u32 s66, {o.get('nfast', 24)}\ns_cbranch_scc0 L_{tag}keep")
            if addrs:
                for a in addrs: e(f"v_subrev_u32 {a}, {FAST}, {a}")
            if switch: e(switch)
            e(f"L_{tag}keep:")
        if sleep: e(f"s_sleep {sleep}")
    def validate(self, grans, t0, t1):
        e = self.e
        for i, gb in enumerate(grans):
            e(f"v_perm_b32 {t0}, v{gb+1}, v{gb}, s62")
            e(f"v_perm_b32 {t1}, v{gb+3}, v{gb+2}, s63")
            e(f"v_or_b32 {t0}, {t0}, {t1}")
            e(f"v_cmp_ne_u32 vcc, {t0}, v7")
            if len(grans) > 1:
                if i == 0: e("s_mov_b64 s[60:61], vcc")
                else: e("s_or_b64 s[60:61], s[60:61], vcc")
        if len(grans) > 1: e("s_mov_b64 vcc, s[60:61]")
    def spin_tail(self, okl, loopl, sleep):
        e = self.e
        e(f"s_cbranch_vccz {okl}")
        e("s_add_u32 s66, s66, 1\ns_cmp_gt_u32 s66, %d\ns_cbranch_scc1 %s" % (self.o.get("maxspin", 20000), okl))
        if sleep: e(f"s_sleep {sleep}")
    def masks(self):
        e = self.e
        e("v_and_b32 v6, 1, v1\nv_lshlrev_b32 v6, 4, v6\nv_mov_b32 v12, 0xffff\nv_lshlrev_b32 v12, v6, v12")
        e("v_bfe_u32 v6, v1, 1, 2")
        for r in range(4):
            e(f"v_cmp_eq_u32 vcc, {r}, v6\nv_cndmask_b32 v{120+r}, 0, v12, vcc")
    def consts(self):
        e = self.e
        e("s_mov_b32 s56, 0x07060500\ns_mov_b32 s57, 0x07060501\ns_mov_b32 s58, 0x07060502\ns_mov_b32 s59, 0x07060503")
        e("s_mov_b32 s62, 0x0c0c0400\ns_mov_b32 s63, 0x04000c0c")
    def epoch(self):
        e = self.e
        e("s_waitcnt lgkmcnt(0)")
        e("s_mul_i32 s31, s31, 0x19660d\ns_add_u32 s31, s31, 0x3c6ef35f\nv_mov_b32 v7, s31")
    def ln_scalars(self, s1, s2, vm, vs, vr):
        e = self.e
        e(f"s_mov_b32 s68, 0x3ae38e39")
        e(f"v_mov_b32 {vm}, {s1}\nv_mov_b32 {vs}, {s2}\nv_mul_f32 {vm}, s68, {vm}\nv_mul_f32 {vs}, s68, {vs}")
        e(f"v_fma_f32 {vs}, -{vm}, {vm}, {vs}")
        e(f"v_max_f32 {vs}, 0, {vs}")
        self.Rnd(vs, vs); self.Rnd(vm, vm)
        e(f"v_add_f32 {vs}, 0x3727c5ac, {vs}")
        self.Rnd(vs, vs)
        e(f"v_sqrt_f32 {vs}, {vs}")
        self.Rnd(vs, vs)
        e(f"v_rcp_f32 {vr}, {vs}")
    def ln_apply(self, x, vm, vs, vr, t0, t1):
        e = self.e
        e(f"v_sub_f32 {x}, {x}, {vm}")
        self.Rnd(x, x)
        e(f"v_mul_f32 {t0}, {x}, {vr}")
        e(f"v_fma_f32 {t1}, -{t0}, {vs}, {x}")
        e(f"v_fma_f32 {t0}, {t1}, {vr}, {t0}")
        e(f"v_cvt_pk_bf16_f32 {x}, {t0}, {t0}")
    def reduce_stride8(self, v, t):
        e = self.e
        for r in range(4): e(f"v_add_f32_dpp v{v+r}, v{v+r}, v{v+r} row_ror:8 row_mask:0xf bank_mask:0xf")
        self.xrow_allreduce(v, t)
    def xrow_allreduce(self, v, t):
        e = self.e
        for r in range(4): e(f"v_mov_b32 v{t+r}, v{v+r}")
        for r in range(4): e(f"v_permlane16_swap_b32 v{v+r}, v{t+r}")
        for r in range(4): e(f"v_add_f32 v{v+r}, v{v+r}, v{t+r}")
        for r in range(4): e(f"v_mov_b32 v{t+r}, v{v+r}")
        for r in range(4): e(f"v_permlane32_swap_b32 v{v+r}, v{t+r}")
        for r in range(4): e(f"v_add_f32 v{v+r}, v{v+r}, v{t+r}")
    def reduce_stride4(self, v, t):
        e = self.e
        for st in (8, 4):
            for r in range(4): e(f"v_add_f32_dpp v{v+r}, v{v+r}, v{v+r} row_ror:{st} row_mask:0xf bank_mask:0xf")
        self.xrow_allreduce(v, t)
    def xrow_transpose_reduce(self, v):
        e = self.e
        e(f"v_permlane16_swap_b32 v{v}, v{v+1}\nv_permlane16_swap_b32 v{v+2}, v{v+3}")
        e(f"v_add_f32 v{v}, v{v}, v{v+1}\nv_add_f32 v{v+2}, v{v+2}, v{v+3}")
        e(f"v_permlane32_swap_b32 v{v}, v{v+2}")
        e(f"v_add_f32 v{v}, v{v}, v{v+2}")

    def gen(self):
        e = self.e; o = self.o
        nt = o.get("kvflag", "nt")
        e("L_start:")
        if o.get("amp") and o.get("ampentry"): e("s_memrealtime s[94:95]")
        e("s_cmp_ge_u32 s2, 256\ns_cbranch_scc1 L_end")
        e("s_load_dwordx16 s[4:19], s[0:1], 0\ns_load_dwordx8 s[20:27], s[0:1], 64")
        if o.get("codepf", True):
            e("s_getpc_b64 s[64:65]")
            e("L_pfbase:")
            e("s_lshr_b32 s66, s2, 3\ns_lshl_b32 s66, s66, 9\nv_lshlrev_b32 v6, 7, v0\nv_add_u32 v6, s66, v6\nv_min_u32 v6, L_end-L_pfbase, v6")
            e("v_cmp_gt_u32 vcc, 4, v0\ns_and_saveexec_b64 s[66:67], vcc\ns_cbranch_execz L_pfskip")
            e("global_load_dword v124, v6, s[64:65]")
            e("L_pfskip:\ns_mov_b64 exec, s[66:67]")
        if o.get("stamps"): e("v_mov_b32 v127, 0\ns_memrealtime s[90:91]")
        e("v_and_b32 v1, 63, v0\nv_lshrrev_b32 v6, 6, v0\nv_readfirstlane_b32 s30, v6")
        e("s_and_b32 s28, s2, 7\ns_lshl_b32 s28, s28, 1\ns_lshr_b32 s33, s2, 7\ns_or_b32 s28, s28, s33")
        e("s_lshr_b32 s29, s2, 3\ns_and_b32 s29, s29, 15")
        e("v_and_b32 v2, 15, v1\nv_lshrrev_b32 v3, 4, v1\nv_lshlrev_b32 v8, 4, v1")
        e(f"s_lshl_b32 s33, s28, 24\ns_lshl_b32 s64, s29, 16\ns_add_u32 s33, s33, s64\ns_add_u32 s33, s33, {61440*256}\ns_and_b32 s64, s30, 3\ns_lshl_b32 s64, s64, 14\ns_add_u32 s33, s33, s64")
        e("s_movk_i32 s70, 0x1000\ns_movk_i32 s71, 0x2000\ns_movk_i32 s72, 0x3000")
        e("v_bfe_u32 v13, v1, 2, 2\nv_lshlrev_b32 v13, 8, v13\nv_lshlrev_b32 v12, 6, v3\nv_add_u32 v13, v13, v12\nv_and_b32 v12, 3, v1\nv_lshlrev_b32 v12, 4, v12\nv_add_u32 v13, v13, v12")
        e("v_lshlrev_b32 v11, 13, v3\nv_lshlrev_b32 v12, 4, v2\nv_add_u32 v11, v11, v12")
        e("s_and_b32 s34, s29, 1\ns_lshl_b32 s35, s28, 1\ns_add_u32 s35, s35, s34\ns_lshl_b32 s35, s35, 8\ns_lshr_b32 s34, s29, 1\ns_mul_i32 s34, s34, 72")
        e("v_add_u32 v9, s34, v1\nv_lshlrev_b32 v9, 1, v9")
        e("s_lshl_b32 s34, s34, 13\ns_add_u32 s35, s35, s34")
        e("s_movk_i32 s38, 1152\ns_mov_b32 s39, 0x20000\ns_mov_b32 s50, %d\ns_mov_b32 s51, 0x20000" % (576*8192))
        e("s_movk_i32 s42, 0x4000\ns_mov_b32 s43, 0x20000\ns_movk_i32 s46, 0x4000\ns_mov_b32 s47, 0x20000")
        e("s_waitcnt lgkmcnt(0)")
        if o.get("stamps"): e("v_writelane_b32 v127, s90, 0")
        e("s_mov_b32 s36, s4\ns_mov_b32 s37, s5\ns_mov_b32 s48, s10\ns_mov_b32 s49, s11")
        e("s_add_u32 s40, s6, s33\ns_addc_u32 s41, s7, 0")
        e("s_add_u32 s44, s8, s33\ns_addc_u32 s45, s9, 0")
        so = lambda t: ['0', 's70', 's71', 's72'][t // 4]
        n1 = o.get("kn1", 16)
        def Kld(t): e(f"buffer_load_dwordx4 v[{32+4*t}:{35+4*t}], v13, s[40:43], {so(t)} offen offset:{(t%4)*1024} {nt}")
        e("s_cmp_eq_u32 s30, 8\ns_cbranch_scc1 L_qfirst")
        e("s_cmp_lt_u32 s30, 4\ns_cbranch_scc1 L_vfirst")
        e("s_setprio 2")
        e("s_barrier")
        for t in range(n1): Kld(t)
        self.common_setup()
        self.stamp(6)
        e("s_barrier")
        for t in range(n1, 16): Kld(t)
        e("s_branch L_kmain")
        e("L_vfirst:")
        e("s_barrier")
        self.common_setup()
        e("s_branch L_vwave")
        e("L_qfirst:")
        e("s_setprio 3")
        e("buffer_load_dwordx4 v[24:27], v8, s[36:39], 0 offen")
        e("buffer_load_dwordx4 v[28:31], v8, s[36:39], 0 offen offset:1024")
        e("buffer_load_ushort v14, v9, s[36:39], 0 offen")
        e("buffer_load_ushort v15, v9, s[36:39], 0 offen offset:128")
        for i in range(18):
            e(f"buffer_load_dwordx4 v[{32+4*i}:{35+4*i}], v11, s[48:51], s35 offen {nt}")
            if i < 17: e("s_add_u32 s35, s35, 0x8000")
        e("v_mov_b32 v6, 0\nv_mov_b32 v16, 0\nv_mov_b32 v17, 0\nv_mov_b32 v18, 0\nv_mov_b32 v19, 0")
        e(f"ds_write_b128 v6, v[16:19] offset:{FL}")
        e("s_waitcnt lgkmcnt(0)")
        e("s_barrier")
        self.common_setup()
        self.qwave()
        e("s_branch L_roles")
        e("L_kmain:")
        self.consts()
        self.epoch()
        self.stamp(1)
        if o.get("diagK"):
            e("s_waitcnt vmcnt(12)"); self.stamp(8)
            e("s_waitcnt vmcnt(8)"); self.stamp(9)
            e("s_waitcnt vmcnt(4)"); self.stamp(10)
            e("s_waitcnt vmcnt(0)"); self.stamp(5)
        e(f"v_mov_b32 v6, 0\ns_mov_b32 s66, 0")
        e("L_qfloop:")
        e(f"ds_read_b32 v12, v6 offset:{FL}\ns_waitcnt lgkmcnt(0)\nv_cmp_ne_u32 vcc, 1, v12")
        self.spin_tail("L_qfok", "L_qfloop", 1)
        e("s_branch L_qfloop")
        e("L_qfok:")
        e("v_bfe_u32 v6, v1, 2, 1\nv_lshlrev_b32 v6, 8, v6\nv_lshlrev_b32 v12, 6, v3\nv_add_u32 v6, v6, v12\nv_and_b32 v12, 3, v1\nv_lshlrev_b32 v12, 4, v12\nv_add_u32 v6, v6, v12")
        e(f"ds_read_b128 v[12:15], v6 offset:{QB}")
        self.stamp(2)
        e("s_waitcnt vmcnt(0) lgkmcnt(0)")
        self.stamp(3)
        D0 = [96+4*t if t < 6 else 24+4*(t-6) for t in range(8)]
        D1 = [32+4*t for t in range(8)]
        D = D0 + D1
        S = [16+t for t in range(8)] + [96+t for t in range(8)]
        for t in range(16):
            e(f"v_mfma_f32_16x16x32_bf16 v[{D[t]}:{D[t]+3}], v[12:15], v[{32+4*t}:{35+4*t}], 0")
        for half in range(2):
            for k in range(4):
                for t in range(8*half, 8*half+8):
                    if k == 0: e(f"v_mov_b32_dpp v{S[t]}, v{D[t]} quad_perm:[0,0,0,0] row_mask:0xf bank_mask:0xf")
                    else: e(f"v_add_f32_dpp v{S[t]}, v{D[t]+k}, v{S[t]} quad_perm:[{k},{k},{k},{k}] row_mask:0xf bank_mask:0xf")
        e("s_mov_b32 s64, 0x3db504f3")
        def rnd_pairs():
            for k in range(8): e(f"v_cvt_pk_bf16_f32 v{64+k}, v{S[2*k]}, v{S[2*k+1]}")
            for k in range(8): e(f"v_lshlrev_b32 v{S[2*k]}, 16, v{64+k}\nv_and_b32 v{S[2*k+1]}, 0xffff0000, v{64+k}")
        rnd_pairs()
        for t in range(16): e(f"v_mul_f32 v{S[t]}, s64, v{S[t]}")
        rnd_pairs()
        for k in range(5): e(f"v_max3_f32 v{64+k}, v{S[3*k]}, v{S[3*k+1]}, v{S[3*k+2]}")
        e(f"v_max3_f32 v64, v64, v65, v{S[15]}\nv_max3_f32 v66, v66, v67, v68\nv_max_f32 v64, v64, v66")
        self.row_allreduce("v_max_f32", ["v64"], steps=(8, 4))
        e("s_mov_b32 s64, 0x3fb8aa3b")
        for t in range(16): e(f"v_sub_f32 v{S[t]}, v{S[t]}, v64")
        for t in range(16): e(f"v_mul_f32 v{S[t]}, s64, v{S[t]}")
        for t in range(16): e(f"v_exp_f32 v{S[t]}, v{S[t]}")
        for k in range(8): e(f"v_cvt_pk_bf16_f32 v{72+k}, v{S[2*k]}, v{S[2*k+1]}")
        for k in range(8): e(f"v_add_f32 v{S[2*k]}, v{S[2*k]}, v{S[2*k+1]}")
        for k in range(4): e(f"v_add_f32 v{S[4*k]}, v{S[4*k]}, v{S[4*k+2]}")
        e(f"v_add_f32 v{S[0]}, v{S[0]}, v{S[4]}\nv_add_f32 v{S[8]}, v{S[8]}, v{S[12]}\nv_add_f32 v65, v{S[0]}, v{S[8]}")
        self.row_allreduce("v_add_f32", ["v65"], steps=(8, 4))
        e("s_and_b32 s64, s30, 3\nv_lshlrev_b32 v6, 7, v3\nv_bfe_u32 v12, v1, 2, 2\nv_lshlrev_b32 v12, 5, v12\nv_add_u32 v6, v6, v12\ns_lshl_b32 s65, s64, 8\nv_add_u32 v6, s65, v6")
        e("s_mov_b32 exec_lo, 0x11111111\ns_mov_b32 exec_hi, 0")
        e(f"ds_write_b128 v6, v[72:75] offset:{PL}\nds_write_b128 v6, v[76:79] offset:{PL+16}")
        e("s_mov_b64 exec, -1")
        e("s_lshl_b32 s65, s64, 2\nv_add_u32 v6, s65, v1")
        e("s_mov_b64 exec, 0x10001")
        e(f"ds_write_b32 v6, v64 offset:{MX}\nds_write_b32 v6, v65 offset:{LS}")
        e("s_mov_b64 exec, -1")
        e("s_waitcnt lgkmcnt(0)")
        self.stamp(4)
        e("s_barrier")
        e("s_setprio 0")
        self.wait_pub("sf", 12)
        e("s_cmp_lt_u32 s29, 9\ns_cbranch_scc1 L_kdA\ns_cmp_lt_u32 s29, 15\ns_cbranch_scc0 L_roles")
        self.wo_dma(o.get("woearly", 12))
        e("s_branch L_roles")
        e("L_kdA:")
        self.stamp(5)
        self.wgu_dma(o.get("wgearly", 9))
        e("s_branch L_roles")
        e("L_vwave:")
        if o.get("tlbtouch"):
            st = o["tlbtouch"]
            e("s_cmp_eq_u32 s30, 1\ns_cbranch_scc0 L_notouch")
            e(f"v_lshlrev_b32 v12, {st}, v1")
            for srd in ("s[52:55]", "s[76:79]", "s[80:83]", "s[84:87]"):
                e(f"buffer_load_dword v124, v12, {srd}, 0 offen")
            e("L_notouch:")
        if o.get("fast", True) and o.get("warmF", True):
            e("s_cmp_eq_u32 s30, 1\ns_cbranch_scc0 L_nowarm")
            e(f"s_lshl_b32 s64, s28, 13\ns_lshl_b32 s65, s29, 9\ns_add_u32 s64, s64, s65\ns_add_u32 s64, s64, {H1+FAST}")
            e(f"s_lshl_b32 s65, s28, 14\ns_lshl_b32 s66, s29, 10\ns_add_u32 s65, s65, s66\ns_add_u32 s65, s65, {H2F-512}")
            e(f"s_lshl_b32 s66, s28, 8\ns_add_u32 s66, s66, {STF-12*128}")
            e("v_lshlrev_b32 v12, 7, v1\nv_mov_b32 v6, s65\nv_mov_b32 v16, s64\nv_cmp_gt_u32 vcc, 4, v1\nv_cndmask_b32 v6, v6, v16, vcc")
            e("v_mov_b32 v16, s66\nv_cmp_lt_u32 vcc, 11, v1\nv_cndmask_b32 v6, v6, v16, vcc\nv_add_u32 v6, v6, v12")
            e("s_mov_b64 exec, 0x3fff\nglobal_load_dword v124, v6, s[26:27]\ns_mov_b64 exec, -1")
            e("L_nowarm:")
        self.masks(); self.consts(); self.epoch()
        e("s_barrier")
        def Vld(t): e(f"buffer_load_dwordx4 v[{32+4*t}:{35+4*t}], v8, s[44:47], {so(t)} offen offset:{(t%4)*1024} {nt}")
        self.weights_prefetch()
        for t in range(16): Vld(t)
        self.stamp(1)
        e("s_barrier")
        self.stamp(2)
        e("v_bfe_u32 v6, v1, 3, 1\nv_lshlrev_b32 v6, 7, v6\nv_lshlrev_b32 v12, 5, v3\nv_add_u32 v6, v6, v12\ns_lshl_b32 s64, s30, 8\nv_add_u32 v6, s64, v6")
        e(f"ds_read_b128 v[16:19], v6 offset:{PL}\nds_read_b128 v[20:23], v6 offset:{PL+16}")
        e("v_lshrrev_b32 v6, 1, v3\nv_lshlrev_b32 v6, 4, v6")
        e(f"ds_read_b128 v[24:27], v6 offset:{MX}")
        e("s_lshl_b32 s64, s30, 2\nv_add_u32 v6, s64, v6")
        e(f"ds_read_b32 v28, v6 offset:{MX}")
        e("s_waitcnt lgkmcnt(0)")
        e("v_max3_f32 v24, v24, v25, v26\nv_max_f32 v24, v24, v27\nv_sub_f32 v28, v28, v24\nv_mul_f32 v28, 0x3fb8aa3b, v28\nv_exp_f32 v28, v28")
        e("s_mov_b32 s64, 0x01000100\ns_mov_b32 s65, 0x03020302")
        for t in range(16):
            ab = 96 + 4*(t % 4)
            e(f"v_perm_b32 v29, v{16+t//2}, v{16+t//2}, {'s64' if t%2==0 else 's65'}")
            for r in range(4): e(f"v_and_b32 v{ab+r}, v29, v{120+r}")
            e(f"s_waitcnt vmcnt({15-t})")
            e(f"v_mfma_f32_16x16x32_bf16 v[12:15], v[{ab}:{ab+3}], v[{32+4*t}:{35+4*t}], {'0' if t==0 else 'v[12:15]'}")
        self.stamp(3)
        e("s_setprio 3")
        e("v_lshrrev_b32 v6, 1, v3\nv_lshlrev_b32 v6, 9, v6\nv_lshlrev_b32 v30, 5, v2\nv_add_u32 v6, v6, v30\nv_and_b32 v30, 1, v3\nv_lshlrev_b32 v30, 4, v30\nv_add_u32 v6, v6, v30")
        e("s_lshl_b32 s64, s30, 10\nv_add_u32 v6, s64, v6")
        for r in range(4): e(f"v_mul_f32 v{12+r}, v28, v{12+r}")
        e(f"ds_write_b128 v6, v[12:15] offset:{OP}")
        e("v_mov_b32 v6, 0\nv_mov_b32 v30, 1")
        e("s_mov_b64 exec, 1")
        e(f"ds_add_rtn_u32 v31, v6, v30 offset:{FL+4}")
        e("s_mov_b64 exec, -1")
        e("s_waitcnt lgkmcnt(0)")
        e("v_readfirstlane_b32 s64, v31")
        e("s_cmp_eq_u32 s64, 3\ns_cbranch_scc0 L_vdone")
        for w in range(4): e(f"ds_read_b128 v[{16+4*w}:{19+4*w}], v8 offset:{OP + 1024*w}")
        e(f"s_mul_i32 s67, s28, 18432\ns_mul_i32 s64, s29, 1152\ns_add_u32 s67, s67, s64\ns_add_u32 s67, s67, {H2}")
        e("v_add_u32 v6, s67, v8")
        e(f"s_lshl_b32 s64, s28, 14\ns_lshl_b32 s65, s29, 4\ns_add_u32 s64, s64, s65\ns_add_u32 s64, s64, {H2F}")
        e("v_lshrrev_b32 v12, 3, v1\nv_lshlrev_b32 v12, 11, v12\nv_and_b32 v13, 1, v1\nv_lshlrev_b32 v13, 10, v13\nv_add_u32 v12, v12, v13\nv_bfe_u32 v13, v1, 1, 2\nv_lshlrev_b32 v13, 8, v13\nv_add_u32 v12, v12, v13\nv_add_u32 v12, s64, v12")
        e("s_waitcnt lgkmcnt(0)")
        for r in range(4): e(f"v_add_f32 v{16+r}, v{16+r}, v{20+r}\nv_add_f32 v{24+r}, v{24+r}, v{28+r}")
        for r in range(4): e(f"v_add_f32 v{16+r}, v{16+r}, v{24+r}")
        self.tagins(16)
        self.dual_store("v6", "v[16:19]", "v12")
        e(f"v_mov_b32 v6, 0\nv_mov_b32 v30, 1\nds_write_b32 v6, v30 offset:{FL+8}")
        if o.get("amp") == "attn":
            e("s_memrealtime s[92:93]\ns_waitcnt lgkmcnt(0)\nv_mov_b32 v124, s92\nv_mov_b32 v125, 4")
            e("s_mov_b64 exec, 1\nglobal_atomic_umax v125, v124, s[24:25] sc1\ns_mov_b64 exec, -1")
        e("L_vdone:")
        e("s_setprio 0")
        self.stamp(4)
        e("s_branch L_roles")
        e("L_roles:")
        self.stamp(7)
        e("s_cmp_lt_u32 s29, 9\ns_cbranch_scc1 L_roleA")
        e("s_cmp_lt_u32 s29, 15\ns_cbranch_scc0 L_fin")
        self.roleB1()
        e("L_roleA:")
        self.roleA()
        e("L_fin:")
        if o.get("stamps"):
            self.stamp(15)
            e(f"s_mul_i32 s64, s2, 9\ns_add_u32 s64, s64, s30\ns_lshl_b32 s64, s64, 6\ns_add_u32 s64, s64, {TS}")
            e("v_lshlrev_b32 v6, 2, v1\nv_add_u32 v6, s64, v6")
            e("s_mov_b64 exec, 0xffff")
            e("global_store_dword v6, v127, s[26:27]")
        e("L_end:")
        e("s_endpgm")
        return e.text()

    def qwave(self):
        e = self.e; o = self.o; nt = o.get("kvflag", "nt")
        npf = 0
        self.masks(); self.consts()
        e(f"s_waitcnt vmcnt({18+npf})")
        self.stamp(1)
        e("v_mov_b32 v104, 0\nv_mov_b32 v105, 0\ns_mov_b32 s64, 0x3f803f80")
        for k in range(8):
            e(f"v_dot2_f32_bf16 v104, v{24+k}, s64, v104")
            e(f"v_dot2_f32_bf16 v105, v{24+k}, v{24+k}, v105")
        self.row_allreduce("v_add_f32", ["v104", "v105"])
        e("v_permlane16_swap_b32 v104, v105\nv_add_f32 v104, v104, v105\nv_mov_b32 v105, v104\nv_permlane32_swap_b32 v104, v105\nv_add_f32 v104, v104, v105")
        e("v_readlane_b32 s64, v104, 0\nv_readlane_b32 s65, v104, 16")
        self.ln_scalars("s64", "s65", "v104", "v105", "v106")
        e("v_and_b32 v6, 3, v1\nv_mul_u32_u24 v6, 48, v6\nv_lshrrev_b32 v12, 2, v1\nv_lshlrev_b32 v12, 1, v12\nv_add_u32 v6, v6, v12")
        for i, xv in enumerate(("v14", "v15")):
            e(f"v_lshlrev_b32 {xv}, 16, {xv}")
            self.ln_apply(xv, "v104", "v105", "v106", "v107", "v108")
        e(f"ds_write_b16 v6, v14 offset:{XT}")
        e("s_mov_b64 exec, 0xff")
        e(f"ds_write_b16 v6, v15 offset:{XT+32}")
        e("s_mov_b64 exec, -1")
        e("v_mul_u32_u24 v6, 48, v3")
        e("s_waitcnt lgkmcnt(0)")
        e(f"ds_read_b128 v[24:27], v6 offset:{XT}\nds_read_b128 v[28:31], v6 offset:{XT+16}\nds_read_b32 v11, v6 offset:{XT+32}")
        self.epoch()
        if o.get("diagQ"): self.stamp(9)
        e("s_mov_b32 s64, 0x01000100\ns_mov_b32 s65, 0x03020302")
        slots = [104, 108, 112, 116] + [128 + 4*k for k in range(9)] + [16, 20, 12]
        def prep(i, ab):
            src = f"v{24+i//2}" if i < 16 else "v11"
            e(f"v_perm_b32 v10, {src}, {src}, {'s64' if i%2==0 else 's65'}")
            for r in range(4): e(f"v_and_b32 v{ab+r}, v10, v{120+r}")
        def mm(i, ab):
            e(f"s_waitcnt vmcnt({17-i})")
            e(f"v_mfma_f32_16x16x32_bf16 v[164:167], v[{ab}:{ab+3}], v[{32+4*i}:{35+4*i}], {'0' if i==0 else 'v[164:167]'}")
        for i in range(16): prep(i, slots[i])
        if o.get("diagQ"):
            self.stamp(10)
            e("s_waitcnt vmcnt(0)"); self.stamp(11)
        mm(0, slots[0]); mm(1, slots[1])
        prep(16, slots[0]); prep(17, slots[1])
        for i in range(2, 16): mm(i, slots[i])
        mm(16, slots[0]); mm(17, slots[1])
        e(f"s_lshl_b32 s64, s28, 13\ns_lshl_b32 s65, s29, 9\ns_add_u32 s65, s65, s64\ns_add_u32 s65, s65, {H1}")
        e("v_lshlrev_b32 v6, 5, v2\nv_lshlrev_b32 v12, 4, v3\nv_add_u32 v6, v6, v12\nv_add_u32 v6, s65, v6")
        self.tagins(164)
        e("s_mov_b32 exec_lo, -1\ns_mov_b32 exec_hi, 0")
        self.dual_store("v6", "v[164:167]")
        e("s_mov_b64 exec, -1")
        self.stamp(2)
        e("s_barrier")
        e(f"s_add_u32 s64, s64, {H1 + (FAST if o.get('fast', True) else 0)}\nv_add_u32 v6, s64, v8\nv_add_u32 v9, 4096, v6")
        if o.get("smemchk", False):
            regs = [64, 65] + list(range(67, 76)) + [88, 89, 92, 93, 94]
            e(f"s_lshl_b32 s33, s28, 13\ns_add_u32 s33, s33, {H1 + 508}\ns_add_u32 s34, s26, s33\ns_addc_u32 s35, s27, 0")
            e("s_lshr_b32 s33, s31, 24\ns_mov_b32 s66, 0")
            if o.get("h1sleep", 4): e(f"s_sleep {o.get('h1sleep', 4)}")
            e("L_smloop:")
            for k, r in enumerate(regs): e(f"s_load_dword s{r}, s[34:35], {512*k} glc")
            e("s_waitcnt lgkmcnt(0)")
            for k, r in enumerate(regs):
                e(f"s_xor_b32 s{r}, s{r}, s33")
                if k: e(f"s_or_b32 s64, s64, s{r}")
            e("s_and_b32 s64, s64, 0xff\ns_cbranch_scc0 L_smok")
            e("s_add_u32 s66, s66, 1\ns_cmp_gt_u32 s66, %d\ns_cbranch_scc1 L_smok" % o.get("maxspin", 20000))
            e("s_branch L_smloop")
            e("L_smok:")
            self.note(11, "s66")
        elif o.get("h1sleep", 30): e(f"s_sleep {o.get('h1sleep', 30)}")
        e("s_mov_b32 s66, 0")
        def h1loads(base):
            for i in range(8):
                e(f"global_load_dwordx4 v[{base+4*i}:{base+4*i+3}], {'v6' if i<4 else 'v9'}, s[26:27] offset:{(i%4)*1024} sc1")
        self.stamp(5)
        h1loads(32)
        self.stamp(6)
        gap = o.get("h1gap", 36)
        if gap:
            e(f"s_sleep {gap}")
            h1loads(64)
            e("s_waitcnt vmcnt(8)")
            self.validate([32+4*i for i in range(8)], "v100", "v101")
            e("s_cbranch_vccz L_h1ok")
            h1loads(128)
            e("s_waitcnt vmcnt(8)")
            self.validate([64+4*i for i in range(8)], "v100", "v101")
            e("s_cbranch_vccnz L_h1c")
            for k in range(32): e(f"v_mov_b32 v{32+k}, v{64+k}")
            e("s_branch L_h1ok")
            e("L_h1c:")
            e("s_waitcnt vmcnt(0)")
            for k in range(32): e(f"v_mov_b32 v{32+k}, v{128+k}")
        e("L_h1loop:")
        e("s_waitcnt vmcnt(0)")
        self.validate([32+4*i for i in range(8)], "v100", "v101")
        self.spin_fast("L_h1ok", "h1", 2, ["v6", "v9"])
        h1loads(32)
        e("s_branch L_h1loop")
        e("L_h1ok:")
        self.note(12, "s66")
        for k in range(32): e(f"v_and_b32 v{32+k}, 0xffffff00, v{32+k}")
        for i in range(0, 8, 2):
            for r in range(4): e(f"v_add_f32 v{32+4*i+r}, v{32+4*i+r}, v{36+4*i+r}")
        for i in (0, 4):
            for r in range(4): e(f"v_add_f32 v{32+4*i+r}, v{32+4*i+r}, v{40+4*i+r}")
        for r in range(4): e(f"v_add_f32 v{32+r}, v{32+r}, v{48+r}")
        e("v_cvt_pk_bf16_f32 v32, v32, v33\nv_cvt_pk_bf16_f32 v33, v34, v35")
        e("v_lshlrev_b32 v6, 3, v1")
        e(f"ds_write_b64 v6, v[32:33] offset:{QB}")
        e("v_mov_b32 v6, 0\nv_mov_b32 v12, 1")
        e("s_waitcnt lgkmcnt(0)")
        e(f"ds_write_b32 v6, v12 offset:{FL}")
        e("s_waitcnt lgkmcnt(0)")
        self.stamp(3)
        e("s_waitcnt vmcnt(0)")
        e("s_barrier")
        e("v_mov_b32 v6, 0")
        e(f"ds_read_b128 v[32:35], v6 offset:{MX}\nds_read_b128 v[36:39], v6 offset:{MX+16}\nds_read_b128 v[40:43], v6 offset:{LS}\nds_read_b128 v[44:47], v6 offset:{LS+16}")
        e("s_waitcnt lgkmcnt(0)")
        for h in range(2):
            m = 32 + 4*h; l = 40 + 4*h; M = 16 + 2*h; L = 17 + 2*h
            e(f"v_max3_f32 v{M}, v{m}, v{m+1}, v{m+2}\nv_max_f32 v{M}, v{M}, v{m+3}")
            for k in range(4): e(f"v_sub_f32 v{m+k}, v{m+k}, v{M}")
            for k in range(4): e(f"v_mul_f32 v{m+k}, 0x3fb8aa3b, v{m+k}")
            for k in range(4): e(f"v_exp_f32 v{m+k}, v{m+k}")
            e(f"v_mul_f32 v{L}, v{m}, v{l}")
            for k in range(1, 4): e(f"v_fma_f32 v{L}, v{m+k}, v{l+k}, v{L}")
        self.tagins(16)
        e(f"s_mul_i32 s67, s28, 18432\ns_mul_i32 s64, s29, 1152\ns_add_u32 s67, s67, s64\ns_add_u32 s67, s67, {H2+1024}\nv_mov_b32 v6, s67")
        e(f"s_lshl_b32 s64, s28, 8\ns_lshl_b32 s65, s29, 4\ns_add_u32 s64, s64, s65\ns_add_u32 s64, s64, {STF}\nv_mov_b32 v12, s64")
        e("s_mov_b64 exec, 1")
        self.dual_store("v6", "v[16:19]", "v12")
        e("s_mov_b64 exec, -1")
        e(f"v_mov_b32 v6, 0\nv_mov_b32 v12, 1\nds_write_b32 v6, v12 offset:{FL+12}")
        self.stamp(4)
    def common_setup(self):
        e = self.e; o = self.o
        e("s_load_dword s31, s[26:27], 0")
        self.dma_srds()
        if o.get("amp"):
            self.uid += 1
            e(f"s_cmp_eq_u32 s30, 0\ns_cbranch_scc0 L_amp{self.uid}")
            if o.get("ampentry"): e("s_not_b32 s92, s94\nv_mov_b32 v124, s92\nv_mov_b32 v125, 0")
            else: e("s_memrealtime s[92:93]\ns_waitcnt lgkmcnt(0)\ns_not_b32 s92, s92\nv_mov_b32 v124, s92\nv_mov_b32 v125, 0")
            e("s_mov_b64 exec, 1\nglobal_atomic_umax v125, v124, s[24:25] sc1\ns_mov_b64 exec, -1")
            e(f"L_amp{self.uid}:")
    def dma_srds(self):
        e = self.e
        e("s_mov_b32 s52, s12\ns_mov_b32 s53, s13\ns_mov_b32 s54, %d\ns_mov_b32 s55, 0x20000" % (4096*1152))
        e(f"s_mov_b32 s76, s16\ns_mov_b32 s77, s17\ns_mov_b32 s78, {576*9216}\ns_mov_b32 s79, 0x20000")
        e(f"s_mov_b32 s80, s18\ns_mov_b32 s81, s19\ns_mov_b32 s82, {576*9216}\ns_mov_b32 s83, 0x20000")
        e(f"s_mov_b32 s84, s20\ns_mov_b32 s85, s21\ns_mov_b32 s86, {4608*1152}\ns_mov_b32 s87, 0x20000")
    def weights_prefetch(self):
        e = self.e; fl = self.o.get("pfflag", ""); which = self.o.get("pfw", "og")
        d = "v[112:115]"
        def contig(srd, xbytes, jbytes, vbytes):
            e(f"s_and_b32 s64, s2, 7\ns_mul_i32 s64, s64, {xbytes}\ns_lshr_b32 s65, s2, 3\ns_mul_i32 s65, s65, {jbytes}\ns_add_u32 s64, s64, s65")
            e(f"s_and_b32 s65, s30, 3\ns_mul_i32 s65, s65, {vbytes}\ns_add_u32 s64, s64, s65")
            off = 0
            while off < vbytes:
                rem = vbytes - off
                if off and off % 4096 == 0: e("s_add_u32 s64, s64, 4096")
                if rem < 1024:
                    lanes = rem // 16
                    e(f"s_mov_b64 exec, {hex((1 << lanes) - 1)}") if lanes <= 31 else e(f"s_mov_b32 exec_lo, -1\ns_mov_b32 exec_hi, {hex((1 << (lanes-32)) - 1)}")
                e(f"buffer_load_dwordx4 {d}, v8, {srd}, s64 offen offset:{off % 4096} {fl}")
                if rem < 1024: e("s_mov_b64 exec, -1")
                off += 1024
        if "o" in which: contig("s[52:55]", 589824, 18432, 4608)
        if "g" in which or "u" in which:
            e("s_lshr_b32 s64, s2, 3\ns_mul_i32 s64, s64, 18\ns_and_b32 s65, s30, 3\ns_add_u32 s73, s64, s65\ns_add_u32 s74, s64, 17")
            e("s_and_b32 s65, s2, 7\ns_mul_i32 s75, s65, 1152")
            e("v_lshrrev_b32 v100, 3, v1\nv_lshlrev_b32 v100, 2, v100\nv_add_u32 v100, s73, v100\nv_min_u32 v100, s74, v100\nv_mul_u32_u24 v100, 9216, v100")
            e("v_and_b32 v101, 7, v1\nv_lshlrev_b32 v101, 4, v101\nv_add_u32 v100, v100, v101\nv_add_u32 v100, 1024, v100")
            for key, srd in (("g", "s[76:79]"), ("u", "s[80:83]")):
                if key not in which: continue
                for k in range(5):
                    if k == 4: e("s_and_b32 s65, s30, 3\ns_cmp_lt_u32 s65, 2\ns_cbranch_scc0 L_pfk" + key)
                    e(f"s_add_u32 s64, s73, {4*k}\ns_mul_i32 s64, s64, 9216\ns_add_u32 s64, s64, s75")
                    e(f"buffer_load_dwordx4 {d}, v8, {srd}, s64 offen {fl}")
                e(f"L_pfk{key}:")
                e("s_mov_b32 exec_lo, -1\ns_mov_b32 exec_hi, 0xff")
                e(f"buffer_load_dwordx4 {d}, v100, {srd}, s75 offen {fl}")
                e("s_mov_b64 exec, -1")
        if "d" in which: contig("s[84:87]", 663552, 20736, 5184)
    def wait_pub(self, tag, off=8):
        e = self.e
        e(f"v_mov_b32 v6, 0\ns_mov_b32 s66, 0")
        e(f"L_{tag}loop:")
        e(f"ds_read_b32 v12, v6 offset:{FL+off}\ns_waitcnt lgkmcnt(0)\nv_cmp_ne_u32 vcc, 1, v12")
        self.spin_tail(f"L_{tag}ok", f"L_{tag}loop", 2)
        e(f"s_branch L_{tag}loop")
        e(f"L_{tag}ok:")
    def wo_dma(self, early):
        e = self.e
        e("s_and_b32 s64, s30, 3\ns_lshl_b32 s64, s64, 1")
        e("s_lshl_b32 s72, s28, 8\ns_lshl_b32 s65, s64, 5\ns_add_u32 s72, s72, s65\ns_mul_i32 s72, s72, 1152")
        e("s_sub_u32 s65, s29, 9\ns_mul_i32 s65, s65, 192\ns_add_u32 s72, s72, s65")
        e(f"s_mul_i32 s71, s64, 6144\ns_add_u32 s71, s71, {WB}")
        for i in range(3):
            e(f"v_add_u32 v100, {64*i}, v1\nv_mul_u32_u24 v101, 5462, v100\nv_lshrrev_b32 v101, 16, v101")
            e("v_mul_u32_u24 v102, 12, v101\nv_sub_u32 v102, v100, v102")
            e("v_bfe_u32 v103, v101, 3, 1\nv_lshlrev_b32 v103, 1, v103\nv_xor_b32 v102, v102, v103\nv_lshlrev_b32 v102, 4, v102")
            e(f"v_mul_u32_u24 v101, 1152, v101\nv_add_u32 v{104+i}, v101, v102")
        n = 0
        for blk in range(4):
            for i in range(3):
                if n == early: self.wait_pub("wo")
                e("s_mov_b32 m0, s71\ns_add_u32 s71, s71, 1024")
                e(f"buffer_load_dwordx4 v{104+i}, s[52:55], s72 offen {self.o.get('wodmaflag', 'nt')} lds")
                n += 1
            if blk < 3: e(f"s_add_u32 s72, s72, {16*1152}")
    def wgu_dma(self, early):
        e = self.e; o = self.o
        lateU = "u" not in o.get("pfw", "og")
        e("s_mul_i32 s32, s28, 9\ns_add_u32 s32, s32, s29")
        e("v_lshrrev_b32 v10, 2, v1\nv_mul_u32_u24 v10, 9216, v10\nv_and_b32 v12, 3, v1\nv_lshrrev_b32 v11, 5, v1\nv_lshlrev_b32 v11, 1, v11\nv_xor_b32 v12, v12, v11\nv_lshlrev_b32 v12, 4, v12\nv_add_u32 v10, v10, v12")
        e(f"s_and_b32 s64, s30, 3\ns_mul_i32 s65, s64, {16*9216}\ns_lshl_b32 s68, s32, 6\ns_add_u32 s68, s68, s65")
        e(f"s_lshl_b32 s69, s64, 10\ns_add_u32 s69, s69, {WB}")
        e("v_lshrrev_b32 v14, 3, v1\nv_mul_u32_u24 v14, 1152, v14\nv_and_b32 v12, 7, v1\nv_bfe_u32 v11, v1, 4, 1\nv_lshlrev_b32 v11, 1, v11\nv_xor_b32 v12, v12, v11")
        e("s_and_b32 s65, s64, 1\ns_lshl_b32 s65, s65, 2\nv_xor_b32 v12, s65, v12\nv_lshlrev_b32 v12, 4, v12\nv_add_u32 v14, v14, v12")
        e(f"s_mul_i32 s75, s32, 36864\ns_mul_i32 s65, s64, {8*1152}\ns_add_u32 s75, s75, s65")
        ops = []
        def narrow(m, srd):
            ops.append(("pre", f"s_mov_b32 s64, s68\ns_add_u32 s65, s69, {36864*m}"))
            for w in range(9):
                ops.append(("ld", "s_mov_b32 m0, s65\ns_add_u32 s65, s65, 4096\n" + f"buffer_load_dwordx4 v10, {srd}, s64 offen nt lds" + (f"\ns_add_u32 s64, s64, {64*9216}" if w < 8 else "")))
        def wd():
            ops.append(("pre", f"s_add_u32 s65, s69, {2*36864}\ns_mov_b32 s64, s75"))
            for w in range(9):
                ops.append(("ld", "s_mov_b32 m0, s65\ns_add_u32 s65, s65, 4096\n" + "buffer_load_dwordx4 v14, s[84:87], s64 offen nt lds" + ("\ns_add_u32 s64, s64, 128" if w < 8 else "")))
        def pfM(srd, first):
            if first:
                ops.append(("pre", "s_and_b32 s64, s28, 1\ns_mul_i32 s64, s64, 9\ns_add_u32 s64, s64, s29\ns_lshl_b32 s64, s64, 5\ns_and_b32 s65, s30, 3\ns_lshl_b32 s65, s65, 3\ns_add_u32 s64, s64, s65\n"
                            "s_mul_i32 s64, s64, 9216\ns_lshr_b32 s65, s28, 1\ns_mul_i32 s65, s65, 1152\ns_add_u32 s33, s64, s65\n"
                            "v_lshrrev_b32 v100, 3, v1\nv_mul_u32_u24 v100, 9216, v100\nv_and_b32 v101, 7, v1\nv_lshlrev_b32 v101, 4, v101\nv_add_u32 v100, v100, v101\nv_add_u32 v100, 1024, v100"))
            ops.append(("pre", "s_mov_b32 s64, s33"))
            for k in range(8):
                ops.append(("ld", f"buffer_load_dwordx4 v[112:115], v8, {srd}, s64 offen" + ("\ns_add_u32 s64, s64, 9216" if k < 7 else "")))
            ops.append(("ld", f"buffer_load_dwordx4 v[112:115], v100, {srd}, s33 offen"))
        wdfirst = o.get("wdfirst", False)
        lateG = "g" not in o.get("pfw", "og")
        if lateG:
            pfM("s[76:79]", True); pfM("s[80:83]", False)
            ops.append(("pre", "s_waitcnt vmcnt(9)")); narrow(0, "s[76:79]")
            ops.append(("pre", "s_waitcnt vmcnt(9)")); narrow(1, "s[80:83]"); wd()
        elif lateU:
            pfM("s[80:83]", True); narrow(0, "s[76:79]"); ops.append(("pre", "s_waitcnt vmcnt(9)")); narrow(1, "s[80:83]"); wd()
        elif wdfirst:
            wd(); narrow(0, "s[76:79]"); narrow(1, "s[80:83]")
        else:
            narrow(0, "s[76:79]"); narrow(1, "s[80:83]"); wd()
        n = 0
        for kind, txt in ops:
            if kind == "ld":
                if n == early:
                    e("s_mov_b32 s73, s64\ns_mov_b32 s74, s65")
                    self.wait_pub("wg")
                    e("s_mov_b32 s64, s73\ns_mov_b32 s65, s74")
                n += 1
            e(txt)

    def roleB1(self):
        e = self.e; o = self.o
        e(f"s_mul_i32 s64, s28, 18432\ns_add_u32 s64, s64, {H2}")
        e("s_cmp_eq_u32 s30, 8\ns_cbranch_scc0 L_b1w")
        e("v_mul_u32_u24 v9, 1152, v2\nv_add_u32 v9, s64, v9\nv_add_u32 v9, 1024, v9")
        if o.get("fast", True): e(f"s_lshl_b32 s65, s28, 8\ns_add_u32 s65, s65, {STF}\nv_lshlrev_b32 v6, 4, v2\nv_add_u32 v6, s65, v6")
        else: e("v_mov_b32 v6, v9")
        if o.get("st2sleep", 2): e(f"s_sleep {o.get('st2sleep', 2)}")
        e("s_mov_b32 s66, 0")
        e("L_stloop:")
        e("global_load_dwordx4 v[72:75], v6, s[26:27] sc1\ns_waitcnt vmcnt(0)")
        self.validate([72], "v100", "v101")
        self.spin_fast("L_stok", "st", 2, switch="v_mov_b32 v6, v9")
        e("s_branch L_stloop")
        e("L_stok:")
        e("v_and_b32 v12, 1, v3\nv_cmp_eq_u32 vcc, 1, v12\nv_cndmask_b32 v72, v72, v74, vcc\nv_cndmask_b32 v73, v73, v75, vcc")
        e("v_and_b32 v72, 0xffffff00, v72\nv_and_b32 v73, 0xffffff00, v73")
        e("v_mov_b32 v76, v72")
        self.row_allreduce("v_max_f32", ["v76"])
        e("v_sub_f32 v72, v72, v76\nv_mul_f32 v72, 0x3fb8aa3b, v72\nv_exp_f32 v72, v72")
        e("v_mul_f32 v73, v72, v73")
        self.row_allreduce("v_add_f32", ["v73"])
        e("v_rcp_f32 v73, v73")
        e("v_mul_f32 v72, v72, v73")
        e("v_lshlrev_b32 v6, 2, v1")
        e("s_mov_b32 exec_lo, -1\ns_mov_b32 exec_hi, 0")
        e(f"ds_write_b32 v6, v72 offset:{SC}")
        e("s_mov_b64 exec, -1")
        e("s_setprio 0")
        e("s_waitcnt lgkmcnt(0)")
        self.stamp(13)
        e("s_barrier")
        e("s_branch L_b1w8")
        e("L_b1w:")
        e("v_mul_u32_u24 v15, 1152, v2\nv_add_u32 v15, s64, v15")
        e("v_lshlrev_b32 v12, 5, v3\ns_lshl_b32 s65, s30, 7\nv_add_u32 v12, s65, v12\nv_add_u32 v15, v15, v12")
        if o.get("fast", True):
            e(f"s_lshl_b32 s64, s28, 14\ns_lshl_b32 s65, s30, 11\ns_add_u32 s64, s64, s65\ns_add_u32 s64, s64, {H2F}\nv_add_u32 v6, s64, v8\nv_add_u32 v14, 1024, v6")
        else: e("v_mov_b32 v6, v15\nv_add_u32 v14, 16, v15")
        def h2loads():
            e("global_load_dwordx4 v[64:67], v6, s[26:27] sc1\nglobal_load_dwordx4 v[68:71], v14, s[26:27] sc1")
        e("v_lshlrev_b32 v10, 3, v3\nv_bfe_u32 v12, v1, 2, 2\nv_add_u32 v10, v10, v12\nv_mul_u32_u24 v10, 192, v10\nv_and_b32 v12, 3, v1\nv_lshlrev_b32 v12, 3, v12\nv_add_u32 v10, v10, v12")
        e(f"s_mul_i32 s65, s30, 6144\ns_add_u32 s65, s65, {WB}\nv_add_u32 v10, s65, v10")
        e("v_and_b32 v12, 1, v3\nv_lshlrev_b32 v12, 5, v12\nv_add_u32 v11, v10, v12\nv_sub_u32 v10, v10, v12")
        e("s_lshr_b32 s65, s30, 2\ns_lshl_b32 s65, s65, 6\nv_lshlrev_b32 v9, 2, v2\nv_add_u32 v9, s65, v9")
        e(f"v_lshlrev_b32 v13, 4, v3\ns_mul_i32 s65, s30, 384\nv_add_u32 v13, s65, v13")
        self.stamp(5)
        e("s_waitcnt vmcnt(0)")
        e("s_barrier")
        self.stamp(8)
        e(f"ds_read_b32 v72, v9 offset:{SC}")
        for tau in range(6):
            a = "v11" if tau % 2 == 0 else "v10"
            e(f"ds_read_b64_tr_b16 v[{32+4*tau}:{33+4*tau}], {a} offset:{32*tau}")
            e(f"ds_read_b64_tr_b16 v[{34+4*tau}:{35+4*tau}], {a} offset:{32*tau + 768}")
        if o.get("h2sleep", 0): e(f"s_sleep {o.get('h2sleep', 0)}")
        e("s_mov_b32 s66, 0")
        h2loads()
        e("L_h2loop:")
        e("s_waitcnt vmcnt(0)")
        self.validate([64, 68], "v100", "v101")
        self.spin_fast("L_h2ok", "h2", o.get("h2retry", 0), switch="v_mov_b32 v6, v15\nv_add_u32 v14, 16, v15")
        h2loads()
        e("s_branch L_h2loop")
        e("L_h2ok:")
        self.note(13, "s66")
        self.stamp(9)
        e("s_waitcnt lgkmcnt(0)")
        for k in range(8): e(f"v_mul_f32 v{64+k}, v72, v{64+k}")
        self.row_allreduce("v_add_f32", [f"v{64+k}" for k in range(8)])
        for k in range(4): e(f"v_cvt_pk_bf16_f32 v{76+k}, v{64+2*k}, v{65+2*k}")
        e("s_waitcnt lgkmcnt(0)")
        for tau in range(6):
            e(f"v_mfma_f32_16x16x32_bf16 v[{80+4*tau}:{83+4*tau}], v[{32+4*tau}:{35+4*tau}], v[76:79], 0")
        e("s_mov_b32 s64, 0x00010001\ns_mov_b32 s65, 0x00010001\ns_mov_b64 exec, s[64:65]")
        for tau in range(6):
            e(f"ds_write_b128 v13, v[{80+4*tau}:{83+4*tau}] offset:{WR + 64*tau}")
        e("s_mov_b64 exec, -1")
        e("L_b1w8:")
        e("s_waitcnt lgkmcnt(0)\ns_barrier")
        e("s_cmp_lt_u32 s30, 3\ns_cbranch_scc0 L_b1pubdone")
        e("v_and_b32 v6, 7, v1\nv_lshlrev_b32 v6, 4, v6\nv_lshrrev_b32 v12, 3, v1\nv_mul_u32_u24 v12, 384, v12\nv_add_u32 v6, v6, v12\ns_lshl_b32 s64, s30, 7\nv_add_u32 v6, s64, v6")
        e(f"ds_read_b128 v[16:19], v6 offset:{WR}")
        e(f"s_mul_i32 s64, s28, 2304\ns_sub_u32 s65, s29, 9\ns_mul_i32 s65, s65, 384\ns_add_u32 s64, s64, s65\ns_lshl_b32 s65, s30, 7\ns_add_u32 s64, s64, s65\ns_add_u32 s64, s64, {H3}")
        e("v_and_b32 v6, 7, v1\nv_lshlrev_b32 v6, 4, v6\nv_add_u32 v6, s64, v6")
        e("s_waitcnt lgkmcnt(0)")
        self.reduce_stride8(16, 20)
        self.tagins(16)
        e("s_mov_b64 exec, 0xff")
        e("global_store_dwordx4 v6, v[16:19], s[26:27] sc1")
        e("s_mov_b64 exec, -1")
        e("L_b1pubdone:")
        self.stamp(10)
        e("s_sub_u32 s32, s29, 9\ns_cmp_lt_u32 s32, 2\ns_cbranch_scc0 L_rho2\ns_lshl_b32 s64, s28, 1\ns_add_u32 s32, s32, s64\ns_branch L_reducer")
        e("L_rho2:\ns_cmp_eq_u32 s32, 2\ns_cbranch_scc0 L_fin\ns_cmp_lt_u32 s28, 4\ns_cbranch_scc0 L_fin\ns_add_u32 s32, s28, 32")
        e("L_reducer:")
        e("s_cmp_eq_u32 s30, 0\ns_cbranch_scc0 L_redh4")
        e(f"v_lshrrev_b32 v6, 2, v1\nv_mul_u32_u24 v6, 2304, v6\nv_and_b32 v12, 3, v1\nv_lshlrev_b32 v12, 4, v12\nv_add_u32 v6, v6, v12\ns_lshl_b32 s64, s32, 6\ns_add_u32 s64, s64, {H3}\nv_add_u32 v6, s64, v6")
        e("v_and_b32 v12, 3, v1\nv_lshlrev_b32 v12, 3, v12\ns_lshl_b32 s64, s32, 5\nv_add_u32 v12, s64, v12")
        e("buffer_load_dwordx2 v[40:41], v12, s[36:39], 0 offen")
        if o.get("rh3sleep", 8): e(f"s_sleep {o.get('rh3sleep', 8)}")
        e("s_mov_b32 s66, 0")
        e("L_rh3loop:")
        e("global_load_dwordx4 v[32:35], v6, s[26:27] sc1\ns_waitcnt vmcnt(0)")
        self.validate([32], "v100", "v101")
        self.spin_tail("L_rh3ok", "L_rh3loop", 4)
        e("s_branch L_rh3loop")
        e("L_rh3ok:")
        for r in range(4): e(f"v_and_b32 v{32+r}, 0xffffff00, v{32+r}")
        self.reduce_stride4(32, 36)
        e("v_lshlrev_b32 v44, 16, v40\nv_and_b32 v45, 0xffff0000, v40\nv_lshlrev_b32 v46, 16, v41\nv_and_b32 v47, 0xffff0000, v41")
        for r in range(4):
            self.Rnd(f"v{32+r}", f"v{32+r}")
            e(f"v_add_f32 v{44+r}, v{44+r}, v{32+r}")
            self.Rnd(f"v{44+r}", f"v{44+r}")
        e("L_redh4:")
        e("s_barrier")
        self.stamp(12)
        e(f"v_lshrrev_b32 v6, 2, v0\nv_mul_u32_u24 v6, 2304, v6\nv_and_b32 v12, 3, v0\nv_lshlrev_b32 v12, 4, v12\nv_add_u32 v6, v6, v12\ns_lshl_b32 s64, s32, 6\ns_add_u32 s64, s64, {H4}\nv_add_u32 v6, s64, v6")
        for k in range(o.get("h4sleepN", 1)): e(f"s_sleep {o.get('h4sleep', 40)}")
        e("s_mov_b32 s66, 0")
        e("L_h4loop:")
        e("global_load_dwordx4 v[32:35], v6, s[26:27] sc1\ns_waitcnt vmcnt(0)")
        self.validate([32], "v100", "v101")
        self.spin_tail("L_h4ok", "L_h4loop", o.get("h4retry", 4))
        e("s_branch L_h4loop")
        e("L_h4ok:")
        self.note(14, "s66")
        self.stamp(11)
        for r in range(4): e(f"v_and_b32 v{32+r}, 0xffffff00, v{32+r}")
        self.reduce_stride4(32, 36)
        e(f"v_and_b32 v6, 3, v1\nv_lshlrev_b32 v6, 4, v6\ns_lshl_b32 s64, s30, 6\nv_add_u32 v6, s64, v6")
        e("s_mov_b64 exec, 0xf")
        e(f"ds_write_b128 v6, v[32:35] offset:{FR}")
        e("s_mov_b64 exec, -1")
        e("s_waitcnt lgkmcnt(0)\ns_barrier")
        e("s_cmp_eq_u32 s30, 0\ns_cbranch_scc0 L_fin")
        e("v_and_b32 v6, 3, v1\nv_lshlrev_b32 v6, 4, v6\nv_lshrrev_b32 v12, 2, v1\nv_lshlrev_b32 v12, 6, v12\nv_add_u32 v6, v6, v12")
        for r in range(4): e(f"v_mov_b32 v{32+r}, 0")
        e("s_mov_b32 exec_lo, -1\ns_mov_b32 exec_hi, 0xf")
        e(f"ds_read_b128 v[32:35], v6 offset:{FR}")
        e("s_mov_b64 exec, -1")
        e("s_mov_b32 s52, s22\ns_mov_b32 s53, s23\ns_movk_i32 s54, 1152\ns_mov_b32 s55, 0x20000")
        e("v_and_b32 v6, 3, v1\nv_lshlrev_b32 v6, 3, v6\ns_lshl_b32 s64, s32, 5\nv_add_u32 v6, s64, v6")
        e("s_waitcnt lgkmcnt(0)")
        self.reduce_stride4(32, 36)
        for r in range(4):
            self.Rnd(f"v{32+r}", f"v{32+r}")
            e(f"v_add_f32 v{32+r}, v{44+r}, v{32+r}")
        e("v_cvt_pk_bf16_f32 v32, v32, v33\nv_cvt_pk_bf16_f32 v33, v34, v35")
        e("s_mov_b64 exec, 0xf")
        e("buffer_store_dwordx2 v[32:33], v6, s[52:55], 0 offen")
        e("s_mov_b64 exec, -1")
        e("s_cmp_eq_u32 s32, 0\ns_cbranch_scc0 L_fin")
        e("v_mov_b32 v6, 0\ns_mov_b64 exec, 1\nglobal_store_dword v6, v7, s[26:27] sc1\ns_mov_b64 exec, -1")
        if o.get("amp"):
            e("s_memrealtime s[92:93]\nv_mov_b32 v6, 0\nglobal_load_dwordx2 v[32:33], v6, s[24:25] sc1\ns_waitcnt vmcnt(0) lgkmcnt(0)")
            e("v_readfirstlane_b32 s64, v32\nv_readfirstlane_b32 s65, v33\ns_not_b32 s64, s64")
            if o["amp"] == "attn": e("s_sub_u32 s65, s65, s64")
            else: e("s_sub_u32 s65, s92, s64")
            e(f"s_min_u32 s65, s65, 5000\ns_mul_i32 s65, s65, {o.get('ampk', 2)}\ns_add_u32 s65, s65, s92")
            e("L_ampspin:\ns_memrealtime s[66:67]\ns_waitcnt lgkmcnt(0)\ns_sub_u32 s66, s66, s65\ns_cmp_lt_i32 s66, 0\ns_cbranch_scc1 L_ampspin")
        e("s_branch L_fin")

    def roleA(self):
        e = self.e; o = self.o
        e("s_setprio 0")
        e("s_mul_i32 s32, s28, 9\ns_add_u32 s32, s32, s29")
        e(f"s_lshl_b32 s69, s30, 12\ns_add_u32 s69, s69, {WB}")
        e("v_lshlrev_b32 v4, 2, v2\nv_add_u32 v4, v4, v3")
        e("s_lshl_b32 s34, s30, 6\nv_add_u32 v10, s34, v4\nv_lshlrev_b32 v10, 1, v10")
        e("buffer_load_ushort v126, v10, s[36:39], 0 offen")
        e(f"v_mov_b32 v12, 0x3f803f80\nv_lshlrev_b32 v10, 2, v1\ns_mov_b32 exec_lo, -1\ns_mov_b32 exec_hi, 0\nds_write_b32 v10, v12 offset:{ONES}\ns_mov_b64 exec, -1")
        e(f"v_mul_u32_u24 v128, 2304, v3\nv_lshlrev_b32 v12, 4, v2\nv_add_u32 v128, v128, v12\ns_lshl_b32 s64, s30, 8\ns_add_u32 s64, s64, {H3}\nv_add_u32 v128, s64, v128")
        e("v_add_u32 v129, 9216, v128\nv_add_u32 v130, 18432, v128\nv_add_u32 v131, 27648, v128")
        e(f"s_lshl_b32 s64, s30, 7\ns_add_u32 s64, s64, {HNL}\nv_lshlrev_b32 v132, 1, v4\nv_add_u32 v132, s64, v132")
        e(f"v_lshlrev_b32 v133, 4, v3\nv_add_u32 v12, s64, v133\nv_add_u32 v133, {ONES}, v133\nv_cmp_eq_u32 vcc, 1, v2\nv_cndmask_b32 v133, v12, v133, vcc")
        e(f"s_lshl_b32 s64, s30, 9\ns_add_u32 s64, s64, {MR}\nv_lshlrev_b32 v134, 4, v3\nv_lshlrev_b32 v12, 8, v2\nv_add_u32 v134, v134, v12\nv_add_u32 v134, s64, v134")
        e(f"v_lshlrev_b32 v135, 4, v2\nv_lshlrev_b32 v12, 9, v3\nv_add_u32 v135, v135, v12\nv_add_u32 v135, {MR}, v135")
        e(f"s_lshl_b32 s64, s30, 6\ns_add_u32 s64, s64, {HHL}\nv_lshlrev_b32 v136, 1, v4\nv_add_u32 v136, s64, v136\nv_lshlrev_b32 v137, 4, v3\nv_add_u32 v137, s64, v137")
        e(f"s_mul_i32 s64, s32, 2304\ns_lshl_b32 s65, s30, 8\ns_add_u32 s64, s64, s65\ns_add_u32 s64, s64, {H4}")
        e("v_bfe_u32 v138, v1, 2, 2\nv_lshlrev_b32 v138, 6, v138\nv_lshlrev_b32 v12, 4, v3\nv_add_u32 v138, v138, v12\nv_add_u32 v138, s64, v138")
        e(f"v_lshlrev_b32 v140, 2, v1\nv_add_u32 v140, {ST2}, v140\ns_lshl_b32 s64, s30, 2\nv_add_u32 v139, s64, v140")
        e("v_lshlrev_b32 v10, 3, v3\nv_bfe_u32 v12, v1, 2, 2\nv_add_u32 v5, v10, v12\nv_lshlrev_b32 v10, 6, v5\nv_and_b32 v12, 3, v1\nv_lshlrev_b32 v12, 3, v12\nv_add_u32 v10, v10, v12\nv_add_u32 v10, s69, v10")
        e("v_lshlrev_b32 v13, 7, v5\nv_add_u32 v13, v13, v12")
        e("v_and_b32 v12, 1, v3\nv_lshlrev_b32 v12, 5, v12\nv_add_u32 v11, v10, v12\nv_xor_b32 v12, 32, v12\nv_add_u32 v10, v10, v12")
        e("v_bfe_u32 v12, v1, 3, 1\nv_and_b32 v5, 1, v3\nv_lshlrev_b32 v5, 1, v5\nv_or_b32 v12, v12, v5\nv_lshlrev_b32 v12, 5, v12\nv_add_u32 v13, v13, v12")
        e(f"s_add_u32 s65, s69, {2*36864}\nv_add_u32 v13, s65, v13")
        for r in range(8): e(f"v_mov_b32 v{144+r}, 0")
        e("v_mov_b32 v152, 0\nv_mov_b32 v153, 0x3ae38e39")
        e("s_mov_b32 s52, 0x00030003\ns_mov_b32 s53, 0x00030003\ns_mov_b32 s54, 0x00ff00ff\ns_mov_b32 s55, 0x00ff00ff\ns_mov_b32 s70, 0x11111111\ns_mov_b32 s71, 0x11111111")
        self.stamp(8)
        e("s_cmp_ge_u32 s30, 4\ns_cbranch_scc0 L_aw0\ns_cmp_lt_u32 s30, 8\ns_cbranch_scc0 L_aw0\ns_waitcnt vmcnt(%d)\ns_branch L_aw1\nL_aw0:\ns_waitcnt vmcnt(0)\nL_aw1:" % (1 if (o.get("wdfirst", False) and "u" in o.get("pfw", "og")) else 9))
        e("s_waitcnt lgkmcnt(0)\ns_barrier")
        def trw(m):
            lo = 36864*m
            for s in range(2):
                for tau in range(2):
                    fr = 32 + 16*m + 8*s + 4*tau
                    a = "v11" if tau == 0 else "v10"
                    off = lo + 2048*s
                    e(f"ds_read_b64_tr_b16 v[{fr}:{fr+1}], {a} offset:{off}")
                    e(f"ds_read_b64_tr_b16 v[{fr+2}:{fr+3}], {a} offset:{off+256}")
        trw(0)
        if o.get("h3sleep", 0): e(f"s_sleep {o['h3sleep']}")
        for i in range(4): e(f"global_load_dwordx4 v[{80+4*i}:{83+4*i}], v{128+i}, s[26:27] sc1")
        e("s_waitcnt lgkmcnt(0)")
        trw(1)
        e("s_mov_b32 s66, 0")
        e("L_h3loop:")
        e("s_waitcnt vmcnt(0)")
        for i in range(4):
            gb = 80 + 4*i
            e(f"v_perm_b32 v100, v{gb+1}, v{gb}, s62\nv_perm_b32 v101, v{gb+3}, v{gb+2}, s63\nv_or_b32 v100, v100, v101")
            e(f"v_cmp_ne_u32 s[{40+2*i}:{41+2*i}], v100, v7")
        e("s_or_b64 s[48:49], s[40:41], s[42:43]\ns_or_b64 s[50:51], s[44:45], s[46:47]\ns_or_b64 s[48:49], s[48:49], s[50:51]")
        e("s_cbranch_scc0 L_h3ok")
        e("s_add_u32 s66, s66, 1\ns_cmp_gt_u32 s66, %d\ns_cbranch_scc1 L_h3ok" % o.get("maxspin", 20000))
        if o.get("h3retry", 1): e(f"s_sleep {o.get('h3retry', 1)}")
        for i in range(4):
            e(f"s_mov_b64 exec, s[{40+2*i}:{41+2*i}]\ns_cbranch_execz L_h3s{i}")
            e(f"global_load_dwordx4 v[{80+4*i}:{83+4*i}], v{128+i}, s[26:27] sc1")
            e(f"L_h3s{i}:")
        e("s_mov_b64 exec, -1\ns_branch L_h3loop")
        e("L_h3ok:")
        self.note(13, "s66")
        self.stamp(9)
        e("v_lshlrev_b32 v126, 16, v126")
        for r in range(4):
            e(f"v_add_f32 v{80+r}, v{80+r}, v{84+r}\nv_add_f32 v{88+r}, v{88+r}, v{92+r}")
        for r in range(4): e(f"v_add_f32 v{80+r}, v{80+r}, v{88+r}")
        self.xrow_transpose_reduce(80)
        self.Rnd("v80", "v80")
        e("v_fma_f32 v80, v126, 1.0, v80") if False else e("v_add_f32 v80, v126, v80")
        e("v_cvt_pk_bf16_f32 v81, v80, v80")
        e("ds_write_b16 v132, v81")
        e("v_and_b32 v82, 0xffff0000, v81")
        e("v_mul_f32 v83, v82, v82")
        e("v_add_f32_dpp v82, v82, v82 row_ror:8 row_mask:0xf bank_mask:0xf")
        e("v_add_f32_dpp v83, v83, v83 row_ror:8 row_mask:0xf bank_mask:0xf")
        e("s_waitcnt lgkmcnt(0)")
        e("ds_read_b128 v[84:87], v133\nds_read_b128 v[88:91], v133 offset:64")
        self.row_allreduce("v_add_f32", ["v82", "v83"], steps=(4, 2, 1))
        e("v_permlane16_swap_b32 v82, v83\nv_add_f32 v82, v82, v83\nv_mov_b32 v83, v82\nv_permlane32_swap_b32 v82, v83\nv_add_f32 v82, v82, v83")
        e("s_waitcnt lgkmcnt(0)")
        for s in range(2):
            for m in range(2):
                for tau in range(2):
                    fr = 32 + 16*m + 8*s + 4*tau; d = 96 + 8*m + 4*tau
                    e(f"v_mfma_f32_16x16x32_bf16 v[{d}:{d+3}], v[{fr}:{fr+3}], v[{84+4*s}:{87+4*s}], {'0' if s==0 else f'v[{d}:{d+3}]'}")
        e("s_mov_b64 exec, 0x10001")
        e("ds_write_b32 v139, v82")
        e("s_mov_b64 exec, s[52:53]")
        for k in range(4):
            e(f"ds_write_b128 v134, v[{96+4*k}:{99+4*k}] offset:{64*k}")
        e("s_mov_b64 exec, 0x01ff01ff")
        self.stamp(10)
        e("s_waitcnt vmcnt(0) lgkmcnt(0)\ns_barrier")
        e("ds_read_b32 v152, v140")
        e("s_mov_b64 exec, -1")
        e("ds_read_b128 v[84:87], v135\nds_read_b128 v[88:91], v135 offset:2048")
        e("ds_read_b128 v[100:103], v135 offset:256\nds_read_b128 v[104:107], v135 offset:2304")
        e("s_mov_b64 exec, 0xffff")
        e("ds_read_b128 v[144:147], v135 offset:4096\nds_read_b128 v[148:151], v135 offset:4352")
        e("s_mov_b64 exec, -1")
        for tau in range(4):
            e(f"v_xor_b32 v12, {32*tau}, v13")
            e(f"ds_read_b64_tr_b16 v[{64+4*tau}:{65+4*tau}], v12\nds_read_b64_tr_b16 v[{66+4*tau}:{67+4*tau}], v12 offset:512")
        e("s_waitcnt lgkmcnt(8)")
        def dpp(st): e(f"v_add_f32_dpp v152, v152, v152 row_ror:{st} row_mask:0xf bank_mask:0xf")
        dpp(8)
        e("v_add_f32 v84, v84, v88\nv_add_f32 v100, v100, v104")
        dpp(4)
        e("v_add_f32 v85, v85, v89\nv_add_f32 v101, v101, v105")
        dpp(2)
        e("v_add_f32 v86, v86, v90\nv_add_f32 v102, v102, v106")
        dpp(1)
        e("v_add_f32 v87, v87, v91\nv_add_f32 v103, v103, v107")
        e("v_readlane_b32 s64, v152, 0\nv_readlane_b32 s65, v152, 16")
        e("v_add_f32 v84, v84, v144\nv_add_f32 v100, v100, v148")
        e("v_mul_f32 v112, s64, v153\nv_mul_f32 v113, s65, v153")
        e("v_add_f32 v85, v85, v145\nv_add_f32 v101, v101, v149")
        e("v_fma_f32 v113, -v112, v112, v113")
        e("v_add_f32 v86, v86, v146\nv_add_f32 v102, v102, v150")
        e("v_max_f32 v113, 0, v113")
        e("v_add_f32 v87, v87, v147\nv_add_f32 v103, v103, v151")
        e("v_cvt_pk_bf16_f32 v113, v113, v113\nv_cvt_pk_bf16_f32 v112, v112, v112")
        e("v_permlane16_swap_b32 v84, v85")
        e("v_and_b32 v113, 0xffff0000, v113\nv_and_b32 v112, 0xffff0000, v112")
        e("v_permlane16_swap_b32 v86, v87")
        e("v_add_f32 v113, 0x3727c5ac, v113")
        e("v_permlane16_swap_b32 v100, v101")
        e("v_cvt_pk_bf16_f32 v113, v113, v113")
        e("v_permlane16_swap_b32 v102, v103")
        e("v_and_b32 v113, 0xffff0000, v113")
        e("v_add_f32 v84, v84, v85\nv_add_f32 v86, v86, v87")
        e("v_sqrt_f32 v113, v113")
        e("v_add_f32 v100, v100, v101\nv_add_f32 v102, v102, v103")
        e("v_cvt_pk_bf16_f32 v113, v113, v113")
        e("v_permlane32_swap_b32 v84, v86")
        e("v_and_b32 v113, 0xffff0000, v113")
        e("v_permlane32_swap_b32 v100, v102")
        e("v_rcp_f32 v114, v113")
        e("v_add_f32 v84, v84, v86\nv_add_f32 v100, v100, v102")
        e("v_fma_f32 v84, -v112, v100, v84")
        e("v_mul_f32 v85, v84, v114\nv_fma_f32 v86, -v85, v113, v84\nv_fma_f32 v85, v86, v114, v85")
        self.Rnd("v84", "v85")
        e("v_mov_b32_dpp v85, v84 row_ror:8 row_mask:0xf bank_mask:0xf")
        e("v_max_f32 v86, 0, v84\nv_mul_f32 v86, v86, v85\nv_cvt_pk_bf16_f32 v86, v86, v86")
        e("s_mov_b64 exec, s[54:55]")
        e("ds_write_b16 v136, v86")
        e("s_mov_b64 exec, -1")
        e("s_waitcnt lgkmcnt(0)")
        e("ds_read_b128 v[84:87], v137")
        e("s_waitcnt lgkmcnt(0)")
        for tau in range(4):
            e(f"v_mfma_f32_16x16x32_bf16 v[{96+4*tau}:{99+4*tau}], v[{64+4*tau}:{67+4*tau}], v[84:87], 0")
        for tau in range(1, 4):
            for r in range(4):
                e(f"v_mov_b32_dpp v{96+r}, v{96+4*tau+r} quad_perm:[0,1,2,3] row_mask:0xf bank_mask:{1<<tau:#x}")
        self.tagins(96)
        e("s_mov_b64 exec, s[70:71]")
        e("global_store_dwordx4 v138, v[96:99], s[26:27] sc1")
        e("s_mov_b64 exec, -1")
        self.stamp(11)

def build(opt=None):
    opt = opt or {}
    g = G(opt)
    body = g.gen()
    name = NAME + "_kernel"
    txt = HEADER + "; Override launch geometry by editing the next line (default: block=256,\n; grid=ceil(out_elems/256), lds=0). Harness parses it; keep it on one line.\n"
    txt += f"; @launch grid=(256,1,1) block=(576,1,1) lds={LDS_BYTES}\n"
    txt += f""".amdgcn_target "amdgcn-amd-amdhsa--gfx950"
.text
.globl {name}
.p2align 8
.type {name},@function
{name}:
{body}.section .rodata,"a"
.p2align 6
.amdhsa_kernel {name}
  .amdhsa_next_free_vgpr 168
  .amdhsa_next_free_sgpr 96
  .amdhsa_accum_offset 168
  .amdhsa_group_segment_fixed_size 0
  .amdhsa_kernarg_size 96
  .amdhsa_user_sgpr_count 2
  .amdhsa_user_sgpr_kernarg_segment_ptr 1
  .amdhsa_system_sgpr_workgroup_id_x 1
.end_amdhsa_kernel
"""
    return txt, g
if __name__ == "__main__":
    import json
    opt = json.loads(sys.argv[2]) if len(sys.argv) > 2 else {}
    txt, g = build(opt)
    open(sys.argv[1], "w").write(txt)
    print("instrs", g.e.count, "nops", g.e.nops)
```

```python
import sys
sys.path.insert(0, "work")
from emit import E
NAME = "sequential_preLN__sliding_block_cached__glu_gated_reglu__decode"
HEADER = open("cdna_kernels/" + NAME + ".s.ref").read().split("; Override launch geometry")[0]

H1 = 0x10000; H2 = 0x40000; H3 = 0x90000; H4 = 0xA0000; TS = 0x400000
FAST = 0x100000
H2F = 0x180000
STF = 0x1C0000
XT = 0
FL = 256
QB = 512
MX = 1024
LS = 1056
PL = 1280
OP = 2560
ST2 = 6656
HNL = 6784
MR = 7936
HHL = 12544
ONES = 13120
WR = 6656
SC = 10816
FR = 9728
WB = 13312
LDS_BYTES = WB + 3 * 36864

class G:
    def __init__(self, opt):
        self.o = opt; self.e = E(); self.uid = 0
    def stamp(self, k):
        if not self.o.get("stamps"): return
        if self.o.get("stamps") == "min" and k != 15: return
        e = self.e
        e(f"s_memrealtime s[90:91]\ns_waitcnt lgkmcnt(0)\nv_writelane_b32 v127, s90, {k}")
    def mile(self, name, wave=None):
        if self.o.get("amp") != name: return
        e = self.e; self.uid += 1
        if wave is not None: e(f"s_cmp_eq_u32 s30, {wave}\ns_cbranch_scc0 L_ml{self.uid}")
        e("s_memrealtime s[92:93]\ns_waitcnt lgkmcnt(0)\nv_mov_b32 v124, s92\nv_mov_b32 v125, 4")
        e("s_mov_b64 s[94:95], exec\ns_mov_b64 exec, 1\nglobal_atomic_umax v125, v124, s[24:25] sc1\ns_mov_b64 exec, s[94:95]")
        e(f"L_ml{self.uid}:")
    def note(self, k, sreg):
        if self.o.get("stamps") and self.o.get("stamps") != "min": self.e(f"v_writelane_b32 v127, {sreg}, {k}")
    def Rnd(self, d, s):
        self.e(f"v_cvt_pk_bf16_f32 {d}, {s}, {s}")
        self.e(f"v_and_b32 {d}, 0xffff0000, {d}")
    def row_allreduce(self, op, vs, steps=(8, 4, 2, 1)):
        for st in steps:
            for v in vs:
                self.e(f"{op}_dpp {v}, {v}, {v} row_ror:{st} row_mask:0xf bank_mask:0xf")
    def tagins(self, v4):
        for k in range(4):
            self.e(f"v_perm_b32 v{v4+k}, v{v4+k}, v7, s{56+k}")
    def dual_store(self, vaddr, data, vfast=None):
        e = self.e
        if self.o.get("fast", True):
            if vfast is None:
                e(f"v_add_u32 v125, {FAST}, {vaddr}"); vfast = "v125"
            e(f"global_store_dwordx4 {vfast}, {data}, s[26:27]")
        e(f"global_store_dwordx4 {vaddr}, {data}, s[26:27] sc1")
    def spin_fast(self, okl, tag, sleep, addrs=None, switch=None):
        e = self.e; o = self.o
        e(f"s_cbranch_vccz {okl}")
        e("s_add_u32 s66, s66, 1\ns_cmp_gt_u32 s66, %d\ns_cbranch_scc1 %s" % (o.get("maxspin", 20000), okl))
        if o.get("fast", True):
            e(f"s_cmp_eq_u32 s66, {o.get('nfast', 24)}\ns_cbranch_scc0 L_{tag}keep")
            if addrs:
                for a in addrs: e(f"v_subrev_u32 {a}, {FAST}, {a}")
            if switch: e(switch)
            e(f"L_{tag}keep:")
        if sleep: e(f"s_sleep {sleep}")
    def validate(self, grans, t0, t1):
        e = self.e
        for i, gb in enumerate(grans):
            e(f"v_perm_b32 {t0}, v{gb+1}, v{gb}, s62")
            e(f"v_perm_b32 {t1}, v{gb+3}, v{gb+2}, s63")
            e(f"v_or_b32 {t0}, {t0}, {t1}")
            e(f"v_cmp_ne_u32 vcc, {t0}, v7")
            if len(grans) > 1:
                if i == 0: e("s_mov_b64 s[60:61], vcc")
                else: e("s_or_b64 s[60:61], s[60:61], vcc")
        if len(grans) > 1: e("s_mov_b64 vcc, s[60:61]")
    def spin_tail(self, okl, loopl, sleep):
        e = self.e
        e(f"s_cbranch_vccz {okl}")
        e("s_add_u32 s66, s66, 1\ns_cmp_gt_u32 s66, %d\ns_cbranch_scc1 %s" % (self.o.get("maxspin", 20000), okl))
        if sleep: e(f"s_sleep {sleep}")
    def masks(self):
        e = self.e
        e("v_and_b32 v6, 1, v1\nv_lshlrev_b32 v6, 4, v6\nv_mov_b32 v12, 0xffff\nv_lshlrev_b32 v12, v6, v12")
        e("v_bfe_u32 v6, v1, 1, 2")
        for r in range(4):
            e(f"v_cmp_eq_u32 vcc, {r}, v6\nv_cndmask_b32 v{120+r}, 0, v12, vcc")
    def consts(self):
        e = self.e
        e("s_mov_b32 s56, 0x07060500\ns_mov_b32 s57, 0x07060501\ns_mov_b32 s58, 0x07060502\ns_mov_b32 s59, 0x07060503")
        e("s_mov_b32 s62, 0x0c0c0400\ns_mov_b32 s63, 0x04000c0c")
    def epoch(self):
        e = self.e
        e("s_waitcnt lgkmcnt(0)")
        e("s_mul_i32 s31, s31, 0x19660d\ns_add_u32 s31, s31, 0x3c6ef35f\nv_mov_b32 v7, s31")
    def ln_scalars(self, s1, s2, vm, vs, vr):
        e = self.e
        e(f"s_mov_b32 s68, 0x3ae38e39")
        e(f"v_mov_b32 {vm}, {s1}\nv_mov_b32 {vs}, {s2}\nv_mul_f32 {vm}, s68, {vm}\nv_mul_f32 {vs}, s68, {vs}")
        e(f"v_fma_f32 {vs}, -{vm}, {vm}, {vs}")
        e(f"v_max_f32 {vs}, 0, {vs}")
        self.Rnd(vs, vs); self.Rnd(vm, vm)
        e(f"v_add_f32 {vs}, 0x3727c5ac, {vs}")
        self.Rnd(vs, vs)
        e(f"v_sqrt_f32 {vs}, {vs}")
        self.Rnd(vs, vs)
        e(f"v_rcp_f32 {vr}, {vs}")
    def ln_apply(self, x, vm, vs, vr, t0, t1):
        e = self.e
        e(f"v_sub_f32 {x}, {x}, {vm}")
        self.Rnd(x, x)
        e(f"v_mul_f32 {t0}, {x}, {vr}")
        e(f"v_fma_f32 {t1}, -{t0}, {vs}, {x}")
        e(f"v_fma_f32 {t0}, {t1}, {vr}, {t0}")
        e(f"v_cvt_pk_bf16_f32 {x}, {t0}, {t0}")
    def reduce_stride8(self, v, t):
        e = self.e
        for r in range(4): e(f"v_add_f32_dpp v{v+r}, v{v+r}, v{v+r} row_ror:8 row_mask:0xf bank_mask:0xf")
        self.xrow_allreduce(v, t)
    def xrow_allreduce(self, v, t):
        e = self.e
        for r in range(4): e(f"v_mov_b32 v{t+r}, v{v+r}")
        for r in range(4): e(f"v_permlane16_swap_b32 v{v+r}, v{t+r}")
        for r in range(4): e(f"v_add_f32 v{v+r}, v{v+r}, v{t+r}")
        for r in range(4): e(f"v_mov_b32 v{t+r}, v{v+r}")
        for r in range(4): e(f"v_permlane32_swap_b32 v{v+r}, v{t+r}")
        for r in range(4): e(f"v_add_f32 v{v+r}, v{v+r}, v{t+r}")
    def reduce_stride4(self, v, t):
        e = self.e
        for st in (8, 4):
            for r in range(4): e(f"v_add_f32_dpp v{v+r}, v{v+r}, v{v+r} row_ror:{st} row_mask:0xf bank_mask:0xf")
        self.xrow_allreduce(v, t)
    def xrow_transpose_reduce(self, v):
        e = self.e
        e(f"v_permlane16_swap_b32 v{v}, v{v+1}\nv_permlane16_swap_b32 v{v+2}, v{v+3}")
        e(f"v_add_f32 v{v}, v{v}, v{v+1}\nv_add_f32 v{v+2}, v{v+2}, v{v+3}")
        e(f"v_permlane32_swap_b32 v{v}, v{v+2}")
        e(f"v_add_f32 v{v}, v{v}, v{v+2}")

    def gen(self):
        e = self.e; o = self.o
        nt = o.get("kvflag", "nt")
        e("L_start:")
        if o.get("amp") and o.get("ampentry"): e("s_memrealtime s[94:95]")
        e("s_cmp_ge_u32 s2, 256\ns_cbranch_scc1 L_end")
        e("s_load_dwordx16 s[4:19], s[0:1], 0\ns_load_dwordx8 s[20:27], s[0:1], 64")
        if o.get("codepf", True):
            e("s_getpc_b64 s[64:65]")
            e("L_pfbase:")
            e("s_lshr_b32 s66, s2, 3\ns_lshl_b32 s66, s66, 9\nv_lshlrev_b32 v6, 7, v0\nv_add_u32 v6, s66, v6\nv_min_u32 v6, L_end-L_pfbase, v6")
            e("v_cmp_gt_u32 vcc, 4, v0\ns_and_saveexec_b64 s[66:67], vcc\ns_cbranch_execz L_pfskip")
            e("global_load_dword v124, v6, s[64:65]")
            e("L_pfskip:\ns_mov_b64 exec, s[66:67]")
        if o.get("stamps"): e("v_mov_b32 v127, 0\ns_memrealtime s[90:91]")
        e("v_and_b32 v1, 63, v0\nv_lshrrev_b32 v6, 6, v0\nv_readfirstlane_b32 s30, v6")
        e("s_and_b32 s28, s2, 7\ns_lshl_b32 s28, s28, 1\ns_lshr_b32 s33, s2, 7\ns_or_b32 s28, s28, s33")
        e("s_lshr_b32 s29, s2, 3\ns_and_b32 s29, s29, 15")
        e("v_and_b32 v2, 15, v1\nv_lshrrev_b32 v3, 4, v1\nv_lshlrev_b32 v8, 4, v1")
        e(f"s_lshl_b32 s33, s28, 24\ns_lshl_b32 s64, s29, 16\ns_add_u32 s33, s33, s64\ns_add_u32 s33, s33, {61440*256}\ns_and_b32 s64, s30, 3\ns_lshl_b32 s64, s64, 14\ns_add_u32 s33, s33, s64")
        e("s_movk_i32 s70, 0x1000\ns_movk_i32 s71, 0x2000\ns_movk_i32 s72, 0x3000")
        e("v_bfe_u32 v13, v1, 2, 2\nv_lshlrev_b32 v13, 8, v13\nv_lshlrev_b32 v12, 6, v3\nv_add_u32 v13, v13, v12\nv_and_b32 v12, 3, v1\nv_lshlrev_b32 v12, 4, v12\nv_add_u32 v13, v13, v12")
        e("v_lshlrev_b32 v11, 13, v3\nv_lshlrev_b32 v12, 4, v2\nv_add_u32 v11, v11, v12")
        e("s_and_b32 s34, s29, 1\ns_lshl_b32 s35, s28, 1\ns_add_u32 s35, s35, s34\ns_lshl_b32 s35, s35, 8\ns_lshr_b32 s34, s29, 1\ns_mul_i32 s34, s34, 72")
        e("v_add_u32 v9, s34, v1\nv_lshlrev_b32 v9, 1, v9")
        e("s_lshl_b32 s34, s34, 13\ns_add_u32 s35, s35, s34")
        e("s_movk_i32 s38, 1152\ns_mov_b32 s39, 0x20000\ns_mov_b32 s50, %d\ns_mov_b32 s51, 0x20000" % (576*8192))
        e("s_movk_i32 s42, 0x4000\ns_mov_b32 s43, 0x20000\ns_movk_i32 s46, 0x4000\ns_mov_b32 s47, 0x20000")
        e("s_waitcnt lgkmcnt(0)")
        if o.get("stamps"): e("v_writelane_b32 v127, s90, 0")
        e("s_mov_b32 s36, s4\ns_mov_b32 s37, s5\ns_mov_b32 s48, s10\ns_mov_b32 s49, s11")
        e("s_add_u32 s40, s6, s33\ns_addc_u32 s41, s7, 0")
        e("s_add_u32 s44, s8, s33\ns_addc_u32 s45, s9, 0")
        so = lambda t: ['0', 's70', 's71', 's72'][t // 4]
        n1 = o.get("kn1", 16)
        def Kld(t): e(f"buffer_load_dwordx4 v[{32+4*t}:{35+4*t}], v13, s[40:43], {so(t)} offen offset:{(t%4)*1024} {nt}")
        e("s_cmp_eq_u32 s30, 8\ns_cbranch_scc1 L_qfirst")
        e("s_cmp_lt_u32 s30, 4\ns_cbranch_scc1 L_vfirst")
        e("s_setprio 2")
        e("s_barrier")
        for t in range(n1): Kld(t)
        self.common_setup()
        self.stamp(6)
        e("s_barrier")
        for t in range(n1, 16): Kld(t)
        e("s_branch L_kmain")
        e("L_vfirst:")
        e("s_barrier")
        self.common_setup()
        e("s_branch L_vwave")
        e("L_qfirst:")
        e("s_setprio 3")
        e("buffer_load_dwordx4 v[24:27], v8, s[36:39], 0 offen")
        e("buffer_load_dwordx4 v[28:31], v8, s[36:39], 0 offen offset:1024")
        e("buffer_load_ushort v14, v9, s[36:39], 0 offen")
        e("buffer_load_ushort v15, v9, s[36:39], 0 offen offset:128")
        for i in range(18):
            e(f"buffer_load_dwordx4 v[{32+4*i}:{35+4*i}], v11, s[48:51], s35 offen {nt}")
            if i < 17: e("s_add_u32 s35, s35, 0x8000")
        e("v_mov_b32 v6, 0\nv_mov_b32 v16, 0\nv_mov_b32 v17, 0\nv_mov_b32 v18, 0\nv_mov_b32 v19, 0")
        e(f"ds_write_b128 v6, v[16:19] offset:{FL}")
        e("s_waitcnt lgkmcnt(0)")
        e("s_barrier")
        self.common_setup()
        self.qwave()
        e("s_branch L_roles")
        e("L_kmain:")
        self.consts()
        self.epoch()
        self.stamp(1)
        if o.get("diagK"):
            e("s_waitcnt vmcnt(12)"); self.stamp(8)
            e("s_waitcnt vmcnt(8)"); self.stamp(9)
            e("s_waitcnt vmcnt(4)"); self.stamp(10)
            e("s_waitcnt vmcnt(0)"); self.stamp(5)
        e(f"v_mov_b32 v6, 0\ns_mov_b32 s66, 0")
        e("L_qfloop:")
        e(f"ds_read_b32 v12, v6 offset:{FL}\ns_waitcnt lgkmcnt(0)\nv_cmp_ne_u32 vcc, 1, v12")
        self.spin_tail("L_qfok", "L_qfloop", 1)
        e("s_branch L_qfloop")
        e("L_qfok:")
        e("v_bfe_u32 v6, v1, 2, 1\nv_lshlrev_b32 v6, 8, v6\nv_lshlrev_b32 v12, 6, v3\nv_add_u32 v6, v6, v12\nv_and_b32 v12, 3, v1\nv_lshlrev_b32 v12, 4, v12\nv_add_u32 v6, v6, v12")
        e(f"ds_read_b128 v[12:15], v6 offset:{QB}")
        self.stamp(2)
        e("s_waitcnt vmcnt(0) lgkmcnt(0)")
        self.stamp(3)
        D0 = [96+4*t if t < 6 else 24+4*(t-6) for t in range(8)]
        D1 = [32+4*t for t in range(8)]
        D = D0 + D1
        S = [16+t for t in range(8)] + [96+t for t in range(8)]
        for t in range(16):
            e(f"v_mfma_f32_16x16x32_bf16 v[{D[t]}:{D[t]+3}], v[12:15], v[{32+4*t}:{35+4*t}], 0")
        for half in range(2):
            for k in range(4):
                for t in range(8*half, 8*half+8):
                    if k == 0: e(f"v_mov_b32_dpp v{S[t]}, v{D[t]} quad_perm:[0,0,0,0] row_mask:0xf bank_mask:0xf")
                    else: e(f"v_add_f32_dpp v{S[t]}, v{D[t]+k}, v{S[t]} quad_perm:[{k},{k},{k},{k}] row_mask:0xf bank_mask:0xf")
        e("s_mov_b32 s64, 0x3db504f3")
        def rnd_pairs():
            for k in range(8): e(f"v_cvt_pk_bf16_f32 v{64+k}, v{S[2*k]}, v{S[2*k+1]}")
            for k in range(8): e(f"v_lshlrev_b32 v{S[2*k]}, 16, v{64+k}\nv_and_b32 v{S[2*k+1]}, 0xffff0000, v{64+k}")
        rnd_pairs()
        for t in range(16): e(f"v_mul_f32 v{S[t]}, s64, v{S[t]}")
        rnd_pairs()
        for k in range(5): e(f"v_max3_f32 v{64+k}, v{S[3*k]}, v{S[3*k+1]}, v{S[3*k+2]}")
        e(f"v_max3_f32 v64, v64, v65, v{S[15]}\nv_max3_f32 v66, v66, v67, v68\nv_max_f32 v64, v64, v66")
        self.row_allreduce("v_max_f32", ["v64"], steps=(8, 4))
        e("s_mov_b32 s64, 0x3fb8aa3b")
        for t in range(16): e(f"v_sub_f32 v{S[t]}, v{S[t]}, v64")
        for t in range(16): e(f"v_mul_f32 v{S[t]}, s64, v{S[t]}")
        for t in range(16): e(f"v_exp_f32 v{S[t]}, v{S[t]}")
        for k in range(8): e(f"v_cvt_pk_bf16_f32 v{72+k}, v{S[2*k]}, v{S[2*k+1]}")
        for k in range(8): e(f"v_add_f32 v{S[2*k]}, v{S[2*k]}, v{S[2*k+1]}")
        for k in range(4): e(f"v_add_f32 v{S[4*k]}, v{S[4*k]}, v{S[4*k+2]}")
        e(f"v_add_f32 v{S[0]}, v{S[0]}, v{S[4]}\nv_add_f32 v{S[8]}, v{S[8]}, v{S[12]}\nv_add_f32 v65, v{S[0]}, v{S[8]}")
        self.row_allreduce("v_add_f32", ["v65"], steps=(8, 4))
        e("s_and_b32 s64, s30, 3\nv_lshlrev_b32 v6, 7, v3\nv_bfe_u32 v12, v1, 2, 2\nv_lshlrev_b32 v12, 5, v12\nv_add_u32 v6, v6, v12\ns_lshl_b32 s65, s64, 8\nv_add_u32 v6, s65, v6")
        e("s_mov_b32 exec_lo, 0x11111111\ns_mov_b32 exec_hi, 0")
        e(f"ds_write_b128 v6, v[72:75] offset:{PL}\nds_write_b128 v6, v[76:79] offset:{PL+16}")
        e("s_mov_b64 exec, -1")
        e("s_lshl_b32 s65, s64, 2\nv_add_u32 v6, s65, v1")
        e("s_mov_b64 exec, 0x10001")
        e(f"ds_write_b32 v6, v64 offset:{MX}\nds_write_b32 v6, v65 offset:{LS}")
        e("s_mov_b64 exec, -1")
        e("s_waitcnt lgkmcnt(0)")
        self.stamp(4)
        e("s_barrier")
        e("s_setprio 0")
        self.wait_pub("sf", 12)
        e("s_cmp_lt_u32 s29, 9\ns_cbranch_scc1 L_kdA\ns_cmp_lt_u32 s29, 15\ns_cbranch_scc0 L_roles")
        self.wo_dma(o.get("woearly", 12))
        e("s_branch L_roles")
        e("L_kdA:")
        self.stamp(5)
        self.wgu_dma(o.get("wgearly", 9))
        e("s_branch L_roles")
        e("L_vwave:")
        if o.get("tlbtouch"):
            st = o["tlbtouch"]
            e("s_cmp_eq_u32 s30, 1\ns_cbranch_scc0 L_notouch")
            e(f"v_lshlrev_b32 v12, {st}, v1")
            for srd in ("s[52:55]", "s[76:79]", "s[80:83]", "s[84:87]"):
                e(f"buffer_load_dword v124, v12, {srd}, 0 offen")
            e("L_notouch:")
        if o.get("fast", True) and o.get("warmF", True):
            e("s_cmp_eq_u32 s30, 1\ns_cbranch_scc0 L_nowarm")
            e(f"s_lshl_b32 s64, s28, 13\ns_lshl_b32 s65, s29, 9\ns_add_u32 s64, s64, s65\ns_add_u32 s64, s64, {H1+FAST}")
            e(f"s_lshl_b32 s65, s28, 14\ns_lshl_b32 s66, s29, 10\ns_add_u32 s65, s65, s66\ns_add_u32 s65, s65, {H2F-512}")
            e(f"s_lshl_b32 s66, s28, 8\ns_add_u32 s66, s66, {STF-12*128}")
            e("v_lshlrev_b32 v12, 7, v1\nv_mov_b32 v6, s65\nv_mov_b32 v16, s64\nv_cmp_gt_u32 vcc, 4, v1\nv_cndmask_b32 v6, v6, v16, vcc")
            e("v_mov_b32 v16, s66\nv_cmp_lt_u32 vcc, 11, v1\nv_cndmask_b32 v6, v6, v16, vcc\nv_add_u32 v6, v6, v12")
            e("s_mov_b64 exec, 0x3fff\nglobal_load_dword v124, v6, s[26:27]\ns_mov_b64 exec, -1")
            e("L_nowarm:")
        self.masks(); self.consts(); self.epoch()
        e("s_barrier")
        def Vld(t): e(f"buffer_load_dwordx4 v[{32+4*t}:{35+4*t}], v8, s[44:47], {so(t)} offen offset:{(t%4)*1024} {nt}")
        self.weights_prefetch()
        for t in range(16): Vld(t)
        self.stamp(1)
        e("s_barrier")
        self.stamp(2)
        self.mile("bp", 0)
        e("v_bfe_u32 v6, v1, 3, 1\nv_lshlrev_b32 v6, 7, v6\nv_lshlrev_b32 v12, 5, v3\nv_add_u32 v6, v6, v12\ns_lshl_b32 s64, s30, 8\nv_add_u32 v6, s64, v6")
        e(f"ds_read_b128 v[16:19], v6 offset:{PL}\nds_read_b128 v[20:23], v6 offset:{PL+16}")
        e("v_lshrrev_b32 v6, 1, v3\nv_lshlrev_b32 v6, 4, v6")
        e(f"ds_read_b128 v[24:27], v6 offset:{MX}")
        e("s_lshl_b32 s64, s30, 2\nv_add_u32 v6, s64, v6")
        e(f"ds_read_b32 v28, v6 offset:{MX}")
        e("s_waitcnt lgkmcnt(0)")
        e("v_max3_f32 v24, v24, v25, v26\nv_max_f32 v24, v24, v27\nv_sub_f32 v28, v28, v24\nv_mul_f32 v28, 0x3fb8aa3b, v28\nv_exp_f32 v28, v28")
        e("s_mov_b32 s64, 0x01000100\ns_mov_b32 s65, 0x03020302")
        for t in range(16):
            ab = 96 + 4*(t % 4)
            e(f"v_perm_b32 v29, v{16+t//2}, v{16+t//2}, {'s64' if t%2==0 else 's65'}")
            for r in range(4): e(f"v_and_b32 v{ab+r}, v29, v{120+r}")
            e(f"s_waitcnt vmcnt({15-t})")
            e(f"v_mfma_f32_16x16x32_bf16 v[12:15], v[{ab}:{ab+3}], v[{32+4*t}:{35+4*t}], {'0' if t==0 else 'v[12:15]'}")
        self.stamp(3)
        e("s_setprio 3")
        e("v_lshrrev_b32 v6, 1, v3\nv_lshlrev_b32 v6, 9, v6\nv_lshlrev_b32 v30, 5, v2\nv_add_u32 v6, v6, v30\nv_and_b32 v30, 1, v3\nv_lshlrev_b32 v30, 4, v30\nv_add_u32 v6, v6, v30")
        e("s_lshl_b32 s64, s30, 10\nv_add_u32 v6, s64, v6")
        for r in range(4): e(f"v_mul_f32 v{12+r}, v28, v{12+r}")
        e(f"ds_write_b128 v6, v[12:15] offset:{OP}")
        e("v_mov_b32 v6, 0\nv_mov_b32 v30, 1")
        e("s_mov_b64 exec, 1")
        e(f"ds_add_rtn_u32 v31, v6, v30 offset:{FL+4}")
        e("s_mov_b64 exec, -1")
        e("s_waitcnt lgkmcnt(0)")
        e("v_readfirstlane_b32 s64, v31")
        e("s_cmp_eq_u32 s64, 3\ns_cbranch_scc0 L_vdone")
        for w in range(4): e(f"ds_read_b128 v[{16+4*w}:{19+4*w}], v8 offset:{OP + 1024*w}")
        e(f"s_mul_i32 s67, s28, 18432\ns_mul_i32 s64, s29, 1152\ns_add_u32 s67, s67, s64\ns_add_u32 s67, s67, {H2}")
        e("v_add_u32 v6, s67, v8")
        e(f"s_lshl_b32 s64, s28, 14\ns_lshl_b32 s65, s29, 4\ns_add_u32 s64, s64, s65\ns_add_u32 s64, s64, {H2F}")
        e("v_lshrrev_b32 v12, 3, v1\nv_lshlrev_b32 v12, 11, v12\nv_and_b32 v13, 1, v1\nv_lshlrev_b32 v13, 10, v13\nv_add_u32 v12, v12, v13\nv_bfe_u32 v13, v1, 1, 2\nv_lshlrev_b32 v13, 8, v13\nv_add_u32 v12, v12, v13\nv_add_u32 v12, s64, v12")
        e("s_waitcnt lgkmcnt(0)")
        for r in range(4): e(f"v_add_f32 v{16+r}, v{16+r}, v{20+r}\nv_add_f32 v{24+r}, v{24+r}, v{28+r}")
        for r in range(4): e(f"v_add_f32 v{16+r}, v{16+r}, v{24+r}")
        self.tagins(16)
        self.dual_store("v6", "v[16:19]", "v12")
        e(f"v_mov_b32 v6, 0\nv_mov_b32 v30, 1\nds_write_b32 v6, v30 offset:{FL+8}")
        if o.get("amp") == "attn":
            e("s_memrealtime s[92:93]\ns_waitcnt lgkmcnt(0)\nv_mov_b32 v124, s92\nv_mov_b32 v125, 4")
            e("s_mov_b64 exec, 1\nglobal_atomic_umax v125, v124, s[24:25] sc1\ns_mov_b64 exec, -1")
        e("L_vdone:")
        e("s_setprio 0")
        self.stamp(4)
        e("s_branch L_roles")
        e("L_roles:")
        self.stamp(7)
        e("s_cmp_lt_u32 s29, 9\ns_cbranch_scc1 L_roleA")
        e("s_cmp_lt_u32 s29, 15\ns_cbranch_scc0 L_fin")
        self.roleB1()
        e("L_roleA:")
        self.roleA()
        e("L_fin:")
        if o.get("stamps"):
            self.stamp(15)
            e(f"s_mul_i32 s64, s2, 9\ns_add_u32 s64, s64, s30\ns_lshl_b32 s64, s64, 6\ns_add_u32 s64, s64, {TS}")
            e("v_lshlrev_b32 v6, 2, v1\nv_add_u32 v6, s64, v6")
            e("s_mov_b64 exec, 0xffff")
            e("global_store_dword v6, v127, s[26:27]")
        e("L_end:")
        e("s_endpgm")
        return e.text()

    def qwave(self):
        e = self.e; o = self.o; nt = o.get("kvflag", "nt")
        npf = 0
        self.masks(); self.consts()
        e(f"s_waitcnt vmcnt({18+npf})")
        self.stamp(1)
        e("v_mov_b32 v104, 0\nv_mov_b32 v105, 0\ns_mov_b32 s64, 0x3f803f80")
        for k in range(8):
            e(f"v_dot2_f32_bf16 v104, v{24+k}, s64, v104")
            e(f"v_dot2_f32_bf16 v105, v{24+k}, v{24+k}, v105")
        self.row_allreduce("v_add_f32", ["v104", "v105"])
        e("v_permlane16_swap_b32 v104, v105\nv_add_f32 v104, v104, v105\nv_mov_b32 v105, v104\nv_permlane32_swap_b32 v104, v105\nv_add_f32 v104, v104, v105")
        e("v_readlane_b32 s64, v104, 0\nv_readlane_b32 s65, v104, 16")
        self.ln_scalars("s64", "s65", "v104", "v105", "v106")
        e("v_and_b32 v6, 3, v1\nv_mul_u32_u24 v6, 48, v6\nv_lshrrev_b32 v12, 2, v1\nv_lshlrev_b32 v12, 1, v12\nv_add_u32 v6, v6, v12")
        for i, xv in enumerate(("v14", "v15")):
            e(f"v_lshlrev_b32 {xv}, 16, {xv}")
            self.ln_apply(xv, "v104", "v105", "v106", "v107", "v108")
        e(f"ds_write_b16 v6, v14 offset:{XT}")
        e("s_mov_b64 exec, 0xff")
        e(f"ds_write_b16 v6, v15 offset:{XT+32}")
        e("s_mov_b64 exec, -1")
        e("v_mul_u32_u24 v6, 48, v3")
        e("s_waitcnt lgkmcnt(0)")
        e(f"ds_read_b128 v[24:27], v6 offset:{XT}\nds_read_b128 v[28:31], v6 offset:{XT+16}\nds_read_b32 v11, v6 offset:{XT+32}")
        self.epoch()
        if o.get("diagQ"): self.stamp(9)
        e("s_mov_b32 s64, 0x01000100\ns_mov_b32 s65, 0x03020302")
        slots = [104, 108, 112, 116] + [128 + 4*k for k in range(9)] + [16, 20, 12]
        def prep(i, ab):
            src = f"v{24+i//2}" if i < 16 else "v11"
            e(f"v_perm_b32 v10, {src}, {src}, {'s64' if i%2==0 else 's65'}")
            for r in range(4): e(f"v_and_b32 v{ab+r}, v10, v{120+r}")
        def mm(i, ab):
            e(f"s_waitcnt vmcnt({17-i})")
            e(f"v_mfma_f32_16x16x32_bf16 v[164:167], v[{ab}:{ab+3}], v[{32+4*i}:{35+4*i}], {'0' if i==0 else 'v[164:167]'}")
        for i in range(16): prep(i, slots[i])
        if o.get("diagQ"):
            self.stamp(10)
            e("s_waitcnt vmcnt(0)"); self.stamp(11)
        mm(0, slots[0]); mm(1, slots[1])
        prep(16, slots[0]); prep(17, slots[1])
        for i in range(2, 16): mm(i, slots[i])
        mm(16, slots[0]); mm(17, slots[1])
        e(f"s_lshl_b32 s64, s28, 13\ns_lshl_b32 s65, s29, 9\ns_add_u32 s65, s65, s64\ns_add_u32 s65, s65, {H1}")
        e("v_lshlrev_b32 v6, 5, v2\nv_lshlrev_b32 v12, 4, v3\nv_add_u32 v6, v6, v12\nv_add_u32 v6, s65, v6")
        self.tagins(164)
        e("s_mov_b32 exec_lo, -1\ns_mov_b32 exec_hi, 0")
        self.dual_store("v6", "v[164:167]")
        e("s_mov_b64 exec, -1")
        self.stamp(2)
        self.mile("qpub")
        e("s_barrier")
        e(f"s_add_u32 s64, s64, {H1 + (FAST if o.get('fast', True) else 0)}\nv_add_u32 v6, s64, v8\nv_add_u32 v9, 4096, v6")
        if o.get("smemchk", False):
            regs = [64, 65] + list(range(67, 76)) + [88, 89, 92, 93, 94]
            e(f"s_lshl_b32 s33, s28, 13\ns_add_u32 s33, s33, {H1 + 508}\ns_add_u32 s34, s26, s33\ns_addc_u32 s35, s27, 0")
            e("s_lshr_b32 s33, s31, 24\ns_mov_b32 s66, 0")
            if o.get("h1sleep", 4): e(f"s_sleep {o.get('h1sleep', 4)}")
            e("L_smloop:")
            for k, r in enumerate(regs): e(f"s_load_dword s{r}, s[34:35], {512*k} glc")
            e("s_waitcnt lgkmcnt(0)")
            for k, r in enumerate(regs):
                e(f"s_xor_b32 s{r}, s{r}, s33")
                if k: e(f"s_or_b32 s64, s64, s{r}")
            e("s_and_b32 s64, s64, 0xff\ns_cbranch_scc0 L_smok")
            e("s_add_u32 s66, s66, 1\ns_cmp_gt_u32 s66, %d\ns_cbranch_scc1 L_smok" % o.get("maxspin", 20000))
            e("s_branch L_smloop")
            e("L_smok:")
            self.note(11, "s66")
        elif o.get("h1sleep", 30): e(f"s_sleep {o.get('h1sleep', 30)}")
        e("s_mov_b32 s66, 0")
        def h1loads(base):
            for i in range(8):
                e(f"global_load_dwordx4 v[{base+4*i}:{base+4*i+3}], {'v6' if i<4 else 'v9'}, s[26:27] offset:{(i%4)*1024} sc1")
        self.stamp(5)
        h1loads(32)
        self.stamp(6)
        gap = o.get("h1gap", 36)
        if gap:
            e(f"s_sleep {gap}")
            h1loads(64)
            e("s_waitcnt vmcnt(8)")
            self.validate([32+4*i for i in range(8)], "v100", "v101")
            e("s_cbranch_vccz L_h1ok")
            h1loads(128)
            e("s_waitcnt vmcnt(8)")
            self.validate([64+4*i for i in range(8)], "v100", "v101")
            e("s_cbranch_vccnz L_h1c")
            for k in range(32): e(f"v_mov_b32 v{32+k}, v{64+k}")
            e("s_branch L_h1ok")
            e("L_h1c:")
            e("s_waitcnt vmcnt(0)")
            for k in range(32): e(f"v_mov_b32 v{32+k}, v{128+k}")
        e("L_h1loop:")
        e("s_waitcnt vmcnt(0)")
        self.validate([32+4*i for i in range(8)], "v100", "v101")
        self.spin_fast("L_h1ok", "h1", 2, ["v6", "v9"])
        h1loads(32)
        e("s_branch L_h1loop")
        e("L_h1ok:")
        self.note(12, "s66")
        for k in range(32): e(f"v_and_b32 v{32+k}, 0xffffff00, v{32+k}")
        for i in range(0, 8, 2):
            for r in range(4): e(f"v_add_f32 v{32+4*i+r}, v{32+4*i+r}, v{36+4*i+r}")
        for i in (0, 4):
            for r in range(4): e(f"v_add_f32 v{32+4*i+r}, v{32+4*i+r}, v{40+4*i+r}")
        for r in range(4): e(f"v_add_f32 v{32+r}, v{32+r}, v{48+r}")
        e("v_cvt_pk_bf16_f32 v32, v32, v33\nv_cvt_pk_bf16_f32 v33, v34, v35")
        e("v_lshlrev_b32 v6, 3, v1")
        e(f"ds_write_b64 v6, v[32:33] offset:{QB}")
        e("v_mov_b32 v6, 0\nv_mov_b32 v12, 1")
        e("s_waitcnt lgkmcnt(0)")
        e(f"ds_write_b32 v6, v12 offset:{FL}")
        e("s_waitcnt lgkmcnt(0)")
        self.stamp(3)
        self.mile("qf")
        e("s_waitcnt vmcnt(0)")
        e("s_barrier")
        e("v_mov_b32 v6, 0")
        e(f"ds_read_b128 v[32:35], v6 offset:{MX}\nds_read_b128 v[36:39], v6 offset:{MX+16}\nds_read_b128 v[40:43], v6 offset:{LS}\nds_read_b128 v[44:47], v6 offset:{LS+16}")
        e("s_waitcnt lgkmcnt(0)")
        for h in range(2):
            m = 32 + 4*h; l = 40 + 4*h; M = 16 + 2*h; L = 17 + 2*h
            e(f"v_max3_f32 v{M}, v{m}, v{m+1}, v{m+2}\nv_max_f32 v{M}, v{M}, v{m+3}")
            for k in range(4): e(f"v_sub_f32 v{m+k}, v{m+k}, v{M}")
            for k in range(4): e(f"v_mul_f32 v{m+k}, 0x3fb8aa3b, v{m+k}")
            for k in range(4): e(f"v_exp_f32 v{m+k}, v{m+k}")
            e(f"v_mul_f32 v{L}, v{m}, v{l}")
            for k in range(1, 4): e(f"v_fma_f32 v{L}, v{m+k}, v{l+k}, v{L}")
        self.tagins(16)
        e(f"s_mul_i32 s67, s28, 18432\ns_mul_i32 s64, s29, 1152\ns_add_u32 s67, s67, s64\ns_add_u32 s67, s67, {H2+1024}\nv_mov_b32 v6, s67")
        e(f"s_lshl_b32 s64, s28, 8\ns_lshl_b32 s65, s29, 4\ns_add_u32 s64, s64, s65\ns_add_u32 s64, s64, {STF}\nv_mov_b32 v12, s64")
        e("s_mov_b64 exec, 1")
        self.dual_store("v6", "v[16:19]", "v12")
        e("s_mov_b64 exec, -1")
        e(f"v_mov_b32 v6, 0\nv_mov_b32 v12, 1\nds_write_b32 v6, v12 offset:{FL+12}")
        self.stamp(4)
    def common_setup(self):
        e = self.e; o = self.o
        e("s_load_dword s31, s[26:27], 0")
        self.dma_srds()
        if o.get("amp"):
            self.uid += 1
            e(f"s_cmp_eq_u32 s30, 0\ns_cbranch_scc0 L_amp{self.uid}")
            if o.get("ampentry"): e("s_not_b32 s92, s94\nv_mov_b32 v124, s92\nv_mov_b32 v125, 0")
            else: e("s_memrealtime s[92:93]\ns_waitcnt lgkmcnt(0)\ns_not_b32 s92, s92\nv_mov_b32 v124, s92\nv_mov_b32 v125, 0")
            e("s_mov_b64 exec, 1\nglobal_atomic_umax v125, v124, s[24:25] sc1\ns_mov_b64 exec, -1")
            e(f"L_amp{self.uid}:")
    def dma_srds(self):
        e = self.e
        e("s_mov_b32 s52, s12\ns_mov_b32 s53, s13\ns_mov_b32 s54, %d\ns_mov_b32 s55, 0x20000" % (4096*1152))
        e(f"s_mov_b32 s76, s16\ns_mov_b32 s77, s17\ns_mov_b32 s78, {576*9216}\ns_mov_b32 s79, 0x20000")
        e(f"s_mov_b32 s80, s18\ns_mov_b32 s81, s19\ns_mov_b32 s82, {576*9216}\ns_mov_b32 s83, 0x20000")
        e(f"s_mov_b32 s84, s20\ns_mov_b32 s85, s21\ns_mov_b32 s86, {4608*1152}\ns_mov_b32 s87, 0x20000")
    def weights_prefetch(self):
        e = self.e; fl = self.o.get("pfflag", ""); which = self.o.get("pfw", "og")
        d = "v[112:115]"
        def contig(srd, xbytes, jbytes, vbytes):
            e(f"s_and_b32 s64, s2, 7\ns_mul_i32 s64, s64, {xbytes}\ns_lshr_b32 s65, s2, 3\ns_mul_i32 s65, s65, {jbytes}\ns_add_u32 s64, s64, s65")
            e(f"s_and_b32 s65, s30, 3\ns_mul_i32 s65, s65, {vbytes}\ns_add_u32 s64, s64, s65")
            off = 0
            while off < vbytes:
                rem = vbytes - off
                if off and off % 4096 == 0: e("s_add_u32 s64, s64, 4096")
                if rem < 1024:
                    lanes = rem // 16
                    e(f"s_mov_b64 exec, {hex((1 << lanes) - 1)}") if lanes <= 31 else e(f"s_mov_b32 exec_lo, -1\ns_mov_b32 exec_hi, {hex((1 << (lanes-32)) - 1)}")
                e(f"buffer_load_dwordx4 {d}, v8, {srd}, s64 offen offset:{off % 4096} {fl}")
                if rem < 1024: e("s_mov_b64 exec, -1")
                off += 1024
        if "o" in which: contig("s[52:55]", 589824, 18432, 4608)
        if "g" in which or "u" in which:
            e("s_lshr_b32 s64, s2, 3\ns_mul_i32 s64, s64, 18\ns_and_b32 s65, s30, 3\ns_add_u32 s73, s64, s65\ns_add_u32 s74, s64, 17")
            e("s_and_b32 s65, s2, 7\ns_mul_i32 s75, s65, 1152")
            e("v_lshrrev_b32 v100, 3, v1\nv_lshlrev_b32 v100, 2, v100\nv_add_u32 v100, s73, v100\nv_min_u32 v100, s74, v100\nv_mul_u32_u24 v100, 9216, v100")
            e("v_and_b32 v101, 7, v1\nv_lshlrev_b32 v101, 4, v101\nv_add_u32 v100, v100, v101\nv_add_u32 v100, 1024, v100")
            for key, srd in (("g", "s[76:79]"), ("u", "s[80:83]")):
                if key not in which: continue
                for k in range(5):
                    if k == 4: e("s_and_b32 s65, s30, 3\ns_cmp_lt_u32 s65, 2\ns_cbranch_scc0 L_pfk" + key)
                    e(f"s_add_u32 s64, s73, {4*k}\ns_mul_i32 s64, s64, 9216\ns_add_u32 s64, s64, s75")
                    e(f"buffer_load_dwordx4 {d}, v8, {srd}, s64 offen {fl}")
                e(f"L_pfk{key}:")
                e("s_mov_b32 exec_lo, -1\ns_mov_b32 exec_hi, 0xff")
                e(f"buffer_load_dwordx4 {d}, v100, {srd}, s75 offen {fl}")
                e("s_mov_b64 exec, -1")
        if "d" in which: contig("s[84:87]", 663552, 20736, 5184)
    def wait_pub(self, tag, off=8):
        e = self.e
        e(f"v_mov_b32 v6, 0\ns_mov_b32 s66, 0")
        e(f"L_{tag}loop:")
        e(f"ds_read_b32 v12, v6 offset:{FL+off}\ns_waitcnt lgkmcnt(0)\nv_cmp_ne_u32 vcc, 1, v12")
        self.spin_tail(f"L_{tag}ok", f"L_{tag}loop", 2)
        e(f"s_branch L_{tag}loop")
        e(f"L_{tag}ok:")
    def wo_dma(self, early):
        e = self.e
        e("s_and_b32 s64, s30, 3\ns_lshl_b32 s64, s64, 1")
        e("s_lshl_b32 s72, s28, 8\ns_lshl_b32 s65, s64, 5\ns_add_u32 s72, s72, s65\ns_mul_i32 s72, s72, 1152")
        e("s_sub_u32 s65, s29, 9\ns_mul_i32 s65, s65, 192\ns_add_u32 s72, s72, s65")
        e(f"s_mul_i32 s71, s64, 6144\ns_add_u32 s71, s71, {WB}")
        for i in range(3):
            e(f"v_add_u32 v100, {64*i}, v1\nv_mul_u32_u24 v101, 5462, v100\nv_lshrrev_b32 v101, 16, v101")
            e("v_mul_u32_u24 v102, 12, v101\nv_sub_u32 v102, v100, v102")
            e("v_bfe_u32 v103, v101, 3, 1\nv_lshlrev_b32 v103, 1, v103\nv_xor_b32 v102, v102, v103\nv_lshlrev_b32 v102, 4, v102")
            e(f"v_mul_u32_u24 v101, 1152, v101\nv_add_u32 v{104+i}, v101, v102")
        n = 0
        for blk in range(4):
            for i in range(3):
                if n == early: self.wait_pub("wo")
                e("s_mov_b32 m0, s71\ns_add_u32 s71, s71, 1024")
                e(f"buffer_load_dwordx4 v{104+i}, s[52:55], s72 offen {self.o.get('wodmaflag', 'nt')} lds")
                n += 1
            if blk < 3: e(f"s_add_u32 s72, s72, {16*1152}")
    def wgu_dma(self, early):
        e = self.e; o = self.o
        lateU = "u" not in o.get("pfw", "og")
        e("s_mul_i32 s32, s28, 9\ns_add_u32 s32, s32, s29")
        e("v_lshrrev_b32 v10, 2, v1\nv_mul_u32_u24 v10, 9216, v10\nv_and_b32 v12, 3, v1\nv_lshrrev_b32 v11, 5, v1\nv_lshlrev_b32 v11, 1, v11\nv_xor_b32 v12, v12, v11\nv_lshlrev_b32 v12, 4, v12\nv_add_u32 v10, v10, v12")
        e(f"s_and_b32 s64, s30, 3\ns_mul_i32 s65, s64, {16*9216}\ns_lshl_b32 s68, s32, 6\ns_add_u32 s68, s68, s65")
        e(f"s_lshl_b32 s69, s64, 10\ns_add_u32 s69, s69, {WB}")
        e("v_lshrrev_b32 v14, 3, v1\nv_mul_u32_u24 v14, 1152, v14\nv_and_b32 v12, 7, v1\nv_bfe_u32 v11, v1, 4, 1\nv_lshlrev_b32 v11, 1, v11\nv_xor_b32 v12, v12, v11")
        e("s_and_b32 s65, s64, 1\ns_lshl_b32 s65, s65, 2\nv_xor_b32 v12, s65, v12\nv_lshlrev_b32 v12, 4, v12\nv_add_u32 v14, v14, v12")
        e(f"s_mul_i32 s75, s32, 36864\ns_mul_i32 s65, s64, {8*1152}\ns_add_u32 s75, s75, s65")
        ops = []
        def narrow(m, srd):
            ops.append(("pre", f"s_mov_b32 s64, s68\ns_add_u32 s65, s69, {36864*m}"))
            for w in range(9):
                ops.append(("ld", "s_mov_b32 m0, s65\ns_add_u32 s65, s65, 4096\n" + f"buffer_load_dwordx4 v10, {srd}, s64 offen nt lds" + (f"\ns_add_u32 s64, s64, {64*9216}" if w < 8 else "")))
        def wd():
            ops.append(("pre", f"s_add_u32 s65, s69, {2*36864}\ns_mov_b32 s64, s75"))
            for w in range(9):
                ops.append(("ld", "s_mov_b32 m0, s65\ns_add_u32 s65, s65, 4096\n" + "buffer_load_dwordx4 v14, s[84:87], s64 offen nt lds" + ("\ns_add_u32 s64, s64, 128" if w < 8 else "")))
        def pfM(srd, first):
            if first:
                ops.append(("pre", "s_and_b32 s64, s28, 1\ns_mul_i32 s64, s64, 9\ns_add_u32 s64, s64, s29\ns_lshl_b32 s64, s64, 5\ns_and_b32 s65, s30, 3\ns_lshl_b32 s65, s65, 3\ns_add_u32 s64, s64, s65\n"
                            "s_mul_i32 s64, s64, 9216\ns_lshr_b32 s65, s28, 1\ns_mul_i32 s65, s65, 1152\ns_add_u32 s33, s64, s65\n"
                            "v_lshrrev_b32 v100, 3, v1\nv_mul_u32_u24 v100, 9216, v100\nv_and_b32 v101, 7, v1\nv_lshlrev_b32 v101, 4, v101\nv_add_u32 v100, v100, v101\nv_add_u32 v100, 1024, v100"))
            ops.append(("pre", "s_mov_b32 s64, s33"))
            for k in range(8):
                ops.append(("ld", f"buffer_load_dwordx4 v[112:115], v8, {srd}, s64 offen" + ("\ns_add_u32 s64, s64, 9216" if k < 7 else "")))
            ops.append(("ld", f"buffer_load_dwordx4 v[112:115], v100, {srd}, s33 offen"))
        wdfirst = o.get("wdfirst", False)
        lateG = "g" not in o.get("pfw", "og")
        if lateG:
            pfM("s[76:79]", True); pfM("s[80:83]", False)
            ops.append(("pre", "s_waitcnt vmcnt(9)")); narrow(0, "s[76:79]")
            ops.append(("pre", "s_waitcnt vmcnt(9)")); narrow(1, "s[80:83]"); wd()
        elif lateU:
            pfM("s[80:83]", True); narrow(0, "s[76:79]"); ops.append(("pre", "s_waitcnt vmcnt(9)")); narrow(1, "s[80:83]"); wd()
        elif wdfirst:
            wd(); narrow(0, "s[76:79]"); narrow(1, "s[80:83]")
        else:
            narrow(0, "s[76:79]"); narrow(1, "s[80:83]"); wd()
        n = 0
        for kind, txt in ops:
            if kind == "ld":
                if n == early:
                    e("s_mov_b32 s73, s64\ns_mov_b32 s74, s65")
                    self.wait_pub("wg")
                    e("s_mov_b32 s64, s73\ns_mov_b32 s65, s74")
                n += 1
            e(txt)

    def roleB1(self):
        e = self.e; o = self.o
        e(f"s_mul_i32 s64, s28, 18432\ns_add_u32 s64, s64, {H2}")
        e("s_cmp_eq_u32 s30, 8\ns_cbranch_scc0 L_b1w")
        e("v_mul_u32_u24 v9, 1152, v2\nv_add_u32 v9, s64, v9\nv_add_u32 v9, 1024, v9")
        if o.get("fast", True): e(f"s_lshl_b32 s65, s28, 8\ns_add_u32 s65, s65, {STF}\nv_lshlrev_b32 v6, 4, v2\nv_add_u32 v6, s65, v6")
        else: e("v_mov_b32 v6, v9")
        if o.get("st2sleep", 2): e(f"s_sleep {o.get('st2sleep', 2)}")
        e("s_mov_b32 s66, 0")
        e("L_stloop:")
        e("global_load_dwordx4 v[72:75], v6, s[26:27] sc1\ns_waitcnt vmcnt(0)")
        self.validate([72], "v100", "v101")
        self.spin_fast("L_stok", "st", 2, switch="v_mov_b32 v6, v9")
        e("s_branch L_stloop")
        e("L_stok:")
        e("v_and_b32 v12, 1, v3\nv_cmp_eq_u32 vcc, 1, v12\nv_cndmask_b32 v72, v72, v74, vcc\nv_cndmask_b32 v73, v73, v75, vcc")
        e("v_and_b32 v72, 0xffffff00, v72\nv_and_b32 v73, 0xffffff00, v73")
        e("v_mov_b32 v76, v72")
        self.row_allreduce("v_max_f32", ["v76"])
        e("v_sub_f32 v72, v72, v76\nv_mul_f32 v72, 0x3fb8aa3b, v72\nv_exp_f32 v72, v72")
        e("v_mul_f32 v73, v72, v73")
        self.row_allreduce("v_add_f32", ["v73"])
        e("v_rcp_f32 v73, v73")
        e("v_mul_f32 v72, v72, v73")
        e("v_lshlrev_b32 v6, 2, v1")
        e("s_mov_b32 exec_lo, -1\ns_mov_b32 exec_hi, 0")
        e(f"ds_write_b32 v6, v72 offset:{SC}")
        e("s_mov_b64 exec, -1")
        e("s_setprio 0")
        e("s_waitcnt lgkmcnt(0)")
        self.stamp(13)
        e("s_barrier")
        e("s_branch L_b1w8")
        e("L_b1w:")
        e("v_mul_u32_u24 v15, 1152, v2\nv_add_u32 v15, s64, v15")
        e("v_lshlrev_b32 v12, 5, v3\ns_lshl_b32 s65, s30, 7\nv_add_u32 v12, s65, v12\nv_add_u32 v15, v15, v12")
        if o.get("fast", True):
            e(f"s_lshl_b32 s64, s28, 14\ns_lshl_b32 s65, s30, 11\ns_add_u32 s64, s64, s65\ns_add_u32 s64, s64, {H2F}\nv_add_u32 v6, s64, v8\nv_add_u32 v14, 1024, v6")
        else: e("v_mov_b32 v6, v15\nv_add_u32 v14, 16, v15")
        def h2loads():
            e("global_load_dwordx4 v[64:67], v6, s[26:27] sc1\nglobal_load_dwordx4 v[68:71], v14, s[26:27] sc1")
        e("v_lshlrev_b32 v10, 3, v3\nv_bfe_u32 v12, v1, 2, 2\nv_add_u32 v10, v10, v12\nv_mul_u32_u24 v10, 192, v10\nv_and_b32 v12, 3, v1\nv_lshlrev_b32 v12, 3, v12\nv_add_u32 v10, v10, v12")
        e(f"s_mul_i32 s65, s30, 6144\ns_add_u32 s65, s65, {WB}\nv_add_u32 v10, s65, v10")
        e("v_and_b32 v12, 1, v3\nv_lshlrev_b32 v12, 5, v12\nv_add_u32 v11, v10, v12\nv_sub_u32 v10, v10, v12")
        e("s_lshr_b32 s65, s30, 2\ns_lshl_b32 s65, s65, 6\nv_lshlrev_b32 v9, 2, v2\nv_add_u32 v9, s65, v9")
        e(f"v_lshlrev_b32 v13, 4, v3\ns_mul_i32 s65, s30, 384\nv_add_u32 v13, s65, v13")
        self.stamp(5)
        e("s_waitcnt vmcnt(0)")
        e("s_barrier")
        self.stamp(8)
        e(f"ds_read_b32 v72, v9 offset:{SC}")
        for tau in range(6):
            a = "v11" if tau % 2 == 0 else "v10"
            e(f"ds_read_b64_tr_b16 v[{32+4*tau}:{33+4*tau}], {a} offset:{32*tau}")
            e(f"ds_read_b64_tr_b16 v[{34+4*tau}:{35+4*tau}], {a} offset:{32*tau + 768}")
        if o.get("h2sleep", 0): e(f"s_sleep {o.get('h2sleep', 0)}")
        e("s_mov_b32 s66, 0")
        h2loads()
        e("L_h2loop:")
        e("s_waitcnt vmcnt(0)")
        self.validate([64, 68], "v100", "v101")
        self.spin_fast("L_h2ok", "h2", o.get("h2retry", 0), switch="v_mov_b32 v6, v15\nv_add_u32 v14, 16, v15")
        h2loads()
        e("s_branch L_h2loop")
        e("L_h2ok:")
        self.note(13, "s66")
        self.stamp(9)
        e("s_waitcnt lgkmcnt(0)")
        for k in range(8): e(f"v_mul_f32 v{64+k}, v72, v{64+k}")
        self.row_allreduce("v_add_f32", [f"v{64+k}" for k in range(8)])
        for k in range(4): e(f"v_cvt_pk_bf16_f32 v{76+k}, v{64+2*k}, v{65+2*k}")
        e("s_waitcnt lgkmcnt(0)")
        for tau in range(6):
            e(f"v_mfma_f32_16x16x32_bf16 v[{80+4*tau}:{83+4*tau}], v[{32+4*tau}:{35+4*tau}], v[76:79], 0")
        e("s_mov_b32 s64, 0x00010001\ns_mov_b32 s65, 0x00010001\ns_mov_b64 exec, s[64:65]")
        for tau in range(6):
            e(f"ds_write_b128 v13, v[{80+4*tau}:{83+4*tau}] offset:{WR + 64*tau}")
        e("s_mov_b64 exec, -1")
        e("L_b1w8:")
        e("s_waitcnt lgkmcnt(0)\ns_barrier")
        e("s_cmp_lt_u32 s30, 3\ns_cbranch_scc0 L_b1pubdone")
        e("v_and_b32 v6, 7, v1\nv_lshlrev_b32 v6, 4, v6\nv_lshrrev_b32 v12, 3, v1\nv_mul_u32_u24 v12, 384, v12\nv_add_u32 v6, v6, v12\ns_lshl_b32 s64, s30, 7\nv_add_u32 v6, s64, v6")
        e(f"ds_read_b128 v[16:19], v6 offset:{WR}")
        e(f"s_mul_i32 s64, s28, 2304\ns_sub_u32 s65, s29, 9\ns_mul_i32 s65, s65, 384\ns_add_u32 s64, s64, s65\ns_lshl_b32 s65, s30, 7\ns_add_u32 s64, s64, s65\ns_add_u32 s64, s64, {H3}")
        e("v_and_b32 v6, 7, v1\nv_lshlrev_b32 v6, 4, v6\nv_add_u32 v6, s64, v6")
        e("s_waitcnt lgkmcnt(0)")
        self.reduce_stride8(16, 20)
        self.tagins(16)
        e("s_mov_b64 exec, 0xff")
        e("global_store_dwordx4 v6, v[16:19], s[26:27] sc1")
        e("s_mov_b64 exec, -1")
        e("L_b1pubdone:")
        self.mile("b1pub", 0)
        self.stamp(10)
        e("s_sub_u32 s32, s29, 9\ns_cmp_lt_u32 s32, 2\ns_cbranch_scc0 L_rho2\ns_lshl_b32 s64, s28, 1\ns_add_u32 s32, s32, s64\ns_branch L_reducer")
        e("L_rho2:\ns_cmp_eq_u32 s32, 2\ns_cbranch_scc0 L_fin\ns_cmp_lt_u32 s28, 4\ns_cbranch_scc0 L_fin\ns_add_u32 s32, s28, 32")
        e("L_reducer:")
        e("s_cmp_eq_u32 s30, 0\ns_cbranch_scc0 L_redh4")
        e(f"v_lshrrev_b32 v6, 2, v1\nv_mul_u32_u24 v6, 2304, v6\nv_and_b32 v12, 3, v1\nv_lshlrev_b32 v12, 4, v12\nv_add_u32 v6, v6, v12\ns_lshl_b32 s64, s32, 6\ns_add_u32 s64, s64, {H3}\nv_add_u32 v6, s64, v6")
        e("v_and_b32 v12, 3, v1\nv_lshlrev_b32 v12, 3, v12\ns_lshl_b32 s64, s32, 5\nv_add_u32 v12, s64, v12")
        e("buffer_load_dwordx2 v[40:41], v12, s[36:39], 0 offen")
        if o.get("rh3sleep", 8): e(f"s_sleep {o.get('rh3sleep', 8)}")
        e("s_mov_b32 s66, 0")
        e("L_rh3loop:")
        e("global_load_dwordx4 v[32:35], v6, s[26:27] sc1\ns_waitcnt vmcnt(0)")
        self.validate([32], "v100", "v101")
        self.spin_tail("L_rh3ok", "L_rh3loop", 4)
        e("s_branch L_rh3loop")
        e("L_rh3ok:")
        for r in range(4): e(f"v_and_b32 v{32+r}, 0xffffff00, v{32+r}")
        self.reduce_stride4(32, 36)
        e("v_lshlrev_b32 v44, 16, v40\nv_and_b32 v45, 0xffff0000, v40\nv_lshlrev_b32 v46, 16, v41\nv_and_b32 v47, 0xffff0000, v41")
        for r in range(4):
            self.Rnd(f"v{32+r}", f"v{32+r}")
            e(f"v_add_f32 v{44+r}, v{44+r}, v{32+r}")
            self.Rnd(f"v{44+r}", f"v{44+r}")
        e("L_redh4:")
        e("s_barrier")
        self.stamp(12)
        e(f"v_lshrrev_b32 v6, 2, v0\nv_mul_u32_u24 v6, 2304, v6\nv_and_b32 v12, 3, v0\nv_lshlrev_b32 v12, 4, v12\nv_add_u32 v6, v6, v12\ns_lshl_b32 s64, s32, 6\ns_add_u32 s64, s64, {H4}\nv_add_u32 v6, s64, v6")
        for k in range(o.get("h4sleepN", 1)): e(f"s_sleep {o.get('h4sleep', 40)}")
        e("s_mov_b32 s66, 0")
        e("L_h4loop:")
        e("global_load_dwordx4 v[32:35], v6, s[26:27] sc1\ns_waitcnt vmcnt(0)")
        self.validate([32], "v100", "v101")
        self.spin_tail("L_h4ok", "L_h4loop", o.get("h4retry", 4))
        e("s_branch L_h4loop")
        e("L_h4ok:")
        self.mile("h4ok", 0)
        self.note(14, "s66")
        self.stamp(11)
        for r in range(4): e(f"v_and_b32 v{32+r}, 0xffffff00, v{32+r}")
        self.reduce_stride4(32, 36)
        e(f"v_and_b32 v6, 3, v1\nv_lshlrev_b32 v6, 4, v6\ns_lshl_b32 s64, s30, 6\nv_add_u32 v6, s64, v6")
        e("s_mov_b64 exec, 0xf")
        e(f"ds_write_b128 v6, v[32:35] offset:{FR}")
        e("s_mov_b64 exec, -1")
        e("s_waitcnt lgkmcnt(0)\ns_barrier")
        e("s_cmp_eq_u32 s30, 0\ns_cbranch_scc0 L_fin")
        e("v_and_b32 v6, 3, v1\nv_lshlrev_b32 v6, 4, v6\nv_lshrrev_b32 v12, 2, v1\nv_lshlrev_b32 v12, 6, v12\nv_add_u32 v6, v6, v12")
        for r in range(4): e(f"v_mov_b32 v{32+r}, 0")
        e("s_mov_b32 exec_lo, -1\ns_mov_b32 exec_hi, 0xf")
        e(f"ds_read_b128 v[32:35], v6 offset:{FR}")
        e("s_mov_b64 exec, -1")
        e("s_mov_b32 s52, s22\ns_mov_b32 s53, s23\ns_movk_i32 s54, 1152\ns_mov_b32 s55, 0x20000")
        e("v_and_b32 v6, 3, v1\nv_lshlrev_b32 v6, 3, v6\ns_lshl_b32 s64, s32, 5\nv_add_u32 v6, s64, v6")
        e("s_waitcnt lgkmcnt(0)")
        self.reduce_stride4(32, 36)
        for r in range(4):
            self.Rnd(f"v{32+r}", f"v{32+r}")
            e(f"v_add_f32 v{32+r}, v{44+r}, v{32+r}")
        e("v_cvt_pk_bf16_f32 v32, v32, v33\nv_cvt_pk_bf16_f32 v33, v34, v35")
        e("s_mov_b64 exec, 0xf")
        e("buffer_store_dwordx2 v[32:33], v6, s[52:55], 0 offen")
        e("s_mov_b64 exec, -1")
        e("s_cmp_eq_u32 s32, 0\ns_cbranch_scc0 L_fin")
        e("v_mov_b32 v6, 0\ns_mov_b64 exec, 1\nglobal_store_dword v6, v7, s[26:27] sc1\ns_mov_b64 exec, -1")
        if o.get("amp"):
            e("s_memrealtime s[92:93]\nv_mov_b32 v6, 0\nglobal_load_dwordx2 v[32:33], v6, s[24:25] sc1\ns_waitcnt vmcnt(0) lgkmcnt(0)")
            e("v_readfirstlane_b32 s64, v32\nv_readfirstlane_b32 s65, v33\ns_not_b32 s64, s64")
            if o["amp"] != "tot": e("s_sub_u32 s65, s65, s64")
            else: e("s_sub_u32 s65, s92, s64")
            e(f"s_min_u32 s65, s65, 5000\ns_mul_i32 s65, s65, {o.get('ampk', 2)}\ns_add_u32 s65, s65, s92")
            e("L_ampspin:\ns_memrealtime s[66:67]\ns_waitcnt lgkmcnt(0)\ns_sub_u32 s66, s66, s65\ns_cmp_lt_i32 s66, 0\ns_cbranch_scc1 L_ampspin")
        e("s_branch L_fin")

    def roleA(self):
        e = self.e; o = self.o
        e("s_setprio 0")
        e("s_mul_i32 s32, s28, 9\ns_add_u32 s32, s32, s29")
        e(f"s_lshl_b32 s69, s30, 12\ns_add_u32 s69, s69, {WB}")
        e("v_lshlrev_b32 v4, 2, v2\nv_add_u32 v4, v4, v3")
        e("s_lshl_b32 s34, s30, 6\nv_add_u32 v10, s34, v4\nv_lshlrev_b32 v10, 1, v10")
        e("buffer_load_ushort v126, v10, s[36:39], 0 offen")
        e(f"v_mov_b32 v12, 0x3f803f80\nv_lshlrev_b32 v10, 2, v1\ns_mov_b32 exec_lo, -1\ns_mov_b32 exec_hi, 0\nds_write_b32 v10, v12 offset:{ONES}\ns_mov_b64 exec, -1")
        e(f"v_mul_u32_u24 v128, 2304, v3\nv_lshlrev_b32 v12, 4, v2\nv_add_u32 v128, v128, v12\ns_lshl_b32 s64, s30, 8\ns_add_u32 s64, s64, {H3}\nv_add_u32 v128, s64, v128")
        e("v_add_u32 v129, 9216, v128\nv_add_u32 v130, 18432, v128\nv_add_u32 v131, 27648, v128")
        e(f"s_lshl_b32 s64, s30, 7\ns_add_u32 s64, s64, {HNL}\nv_lshlrev_b32 v132, 1, v4\nv_add_u32 v132, s64, v132")
        e(f"v_lshlrev_b32 v133, 4, v3\nv_add_u32 v12, s64, v133\nv_add_u32 v133, {ONES}, v133\nv_cmp_eq_u32 vcc, 1, v2\nv_cndmask_b32 v133, v12, v133, vcc")
        e(f"s_lshl_b32 s64, s30, 9\ns_add_u32 s64, s64, {MR}\nv_lshlrev_b32 v134, 4, v3\nv_lshlrev_b32 v12, 8, v2\nv_add_u32 v134, v134, v12\nv_add_u32 v134, s64, v134")
        e(f"v_lshlrev_b32 v135, 4, v2\nv_lshlrev_b32 v12, 9, v3\nv_add_u32 v135, v135, v12\nv_add_u32 v135, {MR}, v135")
        e(f"s_lshl_b32 s64, s30, 6\ns_add_u32 s64, s64, {HHL}\nv_lshlrev_b32 v136, 1, v4\nv_add_u32 v136, s64, v136\nv_lshlrev_b32 v137, 4, v3\nv_add_u32 v137, s64, v137")
        e(f"s_mul_i32 s64, s32, 2304\ns_lshl_b32 s65, s30, 8\ns_add_u32 s64, s64, s65\ns_add_u32 s64, s64, {H4}")
        e("v_bfe_u32 v138, v1, 2, 2\nv_lshlrev_b32 v138, 6, v138\nv_lshlrev_b32 v12, 4, v3\nv_add_u32 v138, v138, v12\nv_add_u32 v138, s64, v138")
        e(f"v_lshlrev_b32 v140, 2, v1\nv_add_u32 v140, {ST2}, v140\ns_lshl_b32 s64, s30, 2\nv_add_u32 v139, s64, v140")
        e("v_lshlrev_b32 v10, 3, v3\nv_bfe_u32 v12, v1, 2, 2\nv_add_u32 v5, v10, v12\nv_lshlrev_b32 v10, 6, v5\nv_and_b32 v12, 3, v1\nv_lshlrev_b32 v12, 3, v12\nv_add_u32 v10, v10, v12\nv_add_u32 v10, s69, v10")
        e("v_lshlrev_b32 v13, 7, v5\nv_add_u32 v13, v13, v12")
        e("v_and_b32 v12, 1, v3\nv_lshlrev_b32 v12, 5, v12\nv_add_u32 v11, v10, v12\nv_xor_b32 v12, 32, v12\nv_add_u32 v10, v10, v12")
        e("v_bfe_u32 v12, v1, 3, 1\nv_and_b32 v5, 1, v3\nv_lshlrev_b32 v5, 1, v5\nv_or_b32 v12, v12, v5\nv_lshlrev_b32 v12, 5, v12\nv_add_u32 v13, v13, v12")
        e(f"s_add_u32 s65, s69, {2*36864}\nv_add_u32 v13, s65, v13")
        for r in range(8): e(f"v_mov_b32 v{144+r}, 0")
        e("v_mov_b32 v152, 0\nv_mov_b32 v153, 0x3ae38e39")
        e("s_mov_b32 s52, 0x00030003\ns_mov_b32 s53, 0x00030003\ns_mov_b32 s54, 0x00ff00ff\ns_mov_b32 s55, 0x00ff00ff\ns_mov_b32 s70, 0x11111111\ns_mov_b32 s71, 0x11111111")
        self.stamp(8)
        e("s_cmp_ge_u32 s30, 4\ns_cbranch_scc0 L_aw0\ns_cmp_lt_u32 s30, 8\ns_cbranch_scc0 L_aw0\ns_waitcnt vmcnt(%d)\ns_branch L_aw1\nL_aw0:\ns_waitcnt vmcnt(0)\nL_aw1:" % (1 if (o.get("wdfirst", False) and "u" in o.get("pfw", "og")) else 9))
        e("s_waitcnt lgkmcnt(0)\ns_barrier")
        def trw(m):
            lo = 36864*m
            for s in range(2):
                for tau in range(2):
                    fr = 32 + 16*m + 8*s + 4*tau
                    a = "v11" if tau == 0 else "v10"
                    off = lo + 2048*s
                    e(f"ds_read_b64_tr_b16 v[{fr}:{fr+1}], {a} offset:{off}")
                    e(f"ds_read_b64_tr_b16 v[{fr+2}:{fr+3}], {a} offset:{off+256}")
        trw(0)
        if o.get("h3sleep", 0): e(f"s_sleep {o['h3sleep']}")
        for i in range(4): e(f"global_load_dwordx4 v[{80+4*i}:{83+4*i}], v{128+i}, s[26:27] sc1")
        e("s_waitcnt lgkmcnt(0)")
        trw(1)
        e("s_mov_b32 s66, 0")
        e("L_h3loop:")
        e("s_waitcnt vmcnt(0)")
        for i in range(4):
            gb = 80 + 4*i
            e(f"v_perm_b32 v100, v{gb+1}, v{gb}, s62\nv_perm_b32 v101, v{gb+3}, v{gb+2}, s63\nv_or_b32 v100, v100, v101")
            e(f"v_cmp_ne_u32 s[{40+2*i}:{41+2*i}], v100, v7")
        e("s_or_b64 s[48:49], s[40:41], s[42:43]\ns_or_b64 s[50:51], s[44:45], s[46:47]\ns_or_b64 s[48:49], s[48:49], s[50:51]")
        e("s_cbranch_scc0 L_h3ok")
        e("s_add_u32 s66, s66, 1\ns_cmp_gt_u32 s66, %d\ns_cbranch_scc1 L_h3ok" % o.get("maxspin", 20000))
        if o.get("h3retry", 1): e(f"s_sleep {o.get('h3retry', 1)}")
        for i in range(4):
            e(f"s_mov_b64 exec, s[{40+2*i}:{41+2*i}]\ns_cbranch_execz L_h3s{i}")
            e(f"global_load_dwordx4 v[{80+4*i}:{83+4*i}], v{128+i}, s[26:27] sc1")
            e(f"L_h3s{i}:")
        e("s_mov_b64 exec, -1\ns_branch L_h3loop")
        e("L_h3ok:")
        self.mile("h3ok", 0)
        self.note(13, "s66")
        self.stamp(9)
        e("v_lshlrev_b32 v126, 16, v126")
        for r in range(4):
            e(f"v_add_f32 v{80+r}, v{80+r}, v{84+r}\nv_add_f32 v{88+r}, v{88+r}, v{92+r}")
        for r in range(4): e(f"v_add_f32 v{80+r}, v{80+r}, v{88+r}")
        self.xrow_transpose_reduce(80)
        self.Rnd("v80", "v80")
        e("v_fma_f32 v80, v126, 1.0, v80") if False else e("v_add_f32 v80, v126, v80")
        e("v_cvt_pk_bf16_f32 v81, v80, v80")
        e("ds_write_b16 v132, v81")
        e("v_and_b32 v82, 0xffff0000, v81")
        e("v_mul_f32 v83, v82, v82")
        e("v_add_f32_dpp v82, v82, v82 row_ror:8 row_mask:0xf bank_mask:0xf")
        e("v_add_f32_dpp v83, v83, v83 row_ror:8 row_mask:0xf bank_mask:0xf")
        e("s_waitcnt lgkmcnt(0)")
        e("ds_read_b128 v[84:87], v133\nds_read_b128 v[88:91], v133 offset:64")
        self.row_allreduce("v_add_f32", ["v82", "v83"], steps=(4, 2, 1))
        e("v_permlane16_swap_b32 v82, v83\nv_add_f32 v82, v82, v83\nv_mov_b32 v83, v82\nv_permlane32_swap_b32 v82, v83\nv_add_f32 v82, v82, v83")
        e("s_waitcnt lgkmcnt(0)")
        for s in range(2):
            for m in range(2):
                for tau in range(2):
                    fr = 32 + 16*m + 8*s + 4*tau; d = 96 + 8*m + 4*tau
                    e(f"v_mfma_f32_16x16x32_bf16 v[{d}:{d+3}], v[{fr}:{fr+3}], v[{84+4*s}:{87+4*s}], {'0' if s==0 else f'v[{d}:{d+3}]'}")
        e("s_mov_b64 exec, 0x10001")
        e("ds_write_b32 v139, v82")
        e("s_mov_b64 exec, s[52:53]")
        for k in range(4):
            e(f"ds_write_b128 v134, v[{96+4*k}:{99+4*k}] offset:{64*k}")
        e("s_mov_b64 exec, 0x01ff01ff")
        self.stamp(10)
        e("s_waitcnt vmcnt(0) lgkmcnt(0)\ns_barrier")
        e("ds_read_b32 v152, v140")
        e("s_mov_b64 exec, -1")
        e("ds_read_b128 v[84:87], v135\nds_read_b128 v[88:91], v135 offset:2048")
        e("ds_read_b128 v[100:103], v135 offset:256\nds_read_b128 v[104:107], v135 offset:2304")
        e("s_mov_b64 exec, 0xffff")
        e("ds_read_b128 v[144:147], v135 offset:4096\nds_read_b128 v[148:151], v135 offset:4352")
        e("s_mov_b64 exec, -1")
        for tau in range(4):
            e(f"v_xor_b32 v12, {32*tau}, v13")
            e(f"ds_read_b64_tr_b16 v[{64+4*tau}:{65+4*tau}], v12\nds_read_b64_tr_b16 v[{66+4*tau}:{67+4*tau}], v12 offset:512")
        e("s_waitcnt lgkmcnt(8)")
        def dpp(st): e(f"v_add_f32_dpp v152, v152, v152 row_ror:{st} row_mask:0xf bank_mask:0xf")
        dpp(8)
        e("v_add_f32 v84, v84, v88\nv_add_f32 v100, v100, v104")
        dpp(4)
        e("v_add_f32 v85, v85, v89\nv_add_f32 v101, v101, v105")
        dpp(2)
        e("v_add_f32 v86, v86, v90\nv_add_f32 v102, v102, v106")
        dpp(1)
        e("v_add_f32 v87, v87, v91\nv_add_f32 v103, v103, v107")
        e("v_readlane_b32 s64, v152, 0\nv_readlane_b32 s65, v152, 16")
        e("v_add_f32 v84, v84, v144\nv_add_f32 v100, v100, v148")
        e("v_mul_f32 v112, s64, v153\nv_mul_f32 v113, s65, v153")
        e("v_add_f32 v85, v85, v145\nv_add_f32 v101, v101, v149")
        e("v_fma_f32 v113, -v112, v112, v113")
        e("v_add_f32 v86, v86, v146\nv_add_f32 v102, v102, v150")
        e("v_max_f32 v113, 0, v113")
        e("v_add_f32 v87, v87, v147\nv_add_f32 v103, v103, v151")
        e("v_cvt_pk_bf16_f32 v113, v113, v113\nv_cvt_pk_bf16_f32 v112, v112, v112")
        e("v_permlane16_swap_b32 v84, v85")
        e("v_and_b32 v113, 0xffff0000, v113\nv_and_b32 v112, 0xffff0000, v112")
        e("v_permlane16_swap_b32 v86, v87")
        e("v_add_f32 v113, 0x3727c5ac, v113")
        e("v_permlane16_swap_b32 v100, v101")
        e("v_cvt_pk_bf16_f32 v113, v113, v113")
        e("v_permlane16_swap_b32 v102, v103")
        e("v_and_b32 v113, 0xffff0000, v113")
        e("v_add_f32 v84, v84, v85\nv_add_f32 v86, v86, v87")
        e("v_sqrt_f32 v113, v113")
        e("v_add_f32 v100, v100, v101\nv_add_f32 v102, v102, v103")
        e("v_cvt_pk_bf16_f32 v113, v113, v113")
        e("v_permlane32_swap_b32 v84, v86")
        e("v_and_b32 v113, 0xffff0000, v113")
        e("v_permlane32_swap_b32 v100, v102")
        e("v_rcp_f32 v114, v113")
        e("v_add_f32 v84, v84, v86\nv_add_f32 v100, v100, v102")
        e("v_fma_f32 v84, -v112, v100, v84")
        e("v_mul_f32 v85, v84, v114\nv_fma_f32 v86, -v85, v113, v84\nv_fma_f32 v85, v86, v114, v85")
        self.Rnd("v84", "v85")
        e("v_mov_b32_dpp v85, v84 row_ror:8 row_mask:0xf bank_mask:0xf")
        e("v_max_f32 v86, 0, v84\nv_mul_f32 v86, v86, v85\nv_cvt_pk_bf16_f32 v86, v86, v86")
        e("s_mov_b64 exec, s[54:55]")
        e("ds_write_b16 v136, v86")
        e("s_mov_b64 exec, -1")
        e("s_waitcnt lgkmcnt(0)")
        e("ds_read_b128 v[84:87], v137")
        e("s_waitcnt lgkmcnt(0)")
        for tau in range(4):
            e(f"v_mfma_f32_16x16x32_bf16 v[{96+4*tau}:{99+4*tau}], v[{64+4*tau}:{67+4*tau}], v[84:87], 0")
        for tau in range(1, 4):
            for r in range(4):
                e(f"v_mov_b32_dpp v{96+r}, v{96+4*tau+r} quad_perm:[0,1,2,3] row_mask:0xf bank_mask:{1<<tau:#x}")
        self.tagins(96)
        e("s_mov_b64 exec, s[70:71]")
        e("global_store_dwordx4 v138, v[96:99], s[26:27] sc1")
        e("s_mov_b64 exec, -1")
        self.mile("apub", 0)
        self.stamp(11)

def build(opt=None):
    opt = opt or {}
    g = G(opt)
    body = g.gen()
    name = NAME + "_kernel"
    txt = HEADER + "; Override launch geometry by editing the next line (default: block=256,\n; grid=ceil(out_elems/256), lds=0). Harness parses it; keep it on one line.\n"
    txt += f"; @launch grid=(256,1,1) block=(576,1,1) lds={LDS_BYTES}\n"
    txt += f""".amdgcn_target "amdgcn-amd-amdhsa--gfx950"
.text
.globl {name}
.p2align 8
.type {name},@function
{name}:
{body}.section .rodata,"a"
.p2align 6
.amdhsa_kernel {name}
  .amdhsa_next_free_vgpr 168
  .amdhsa_next_free_sgpr 96
  .amdhsa_accum_offset 168
  .amdhsa_group_segment_fixed_size 0
  .amdhsa_kernarg_size 96
  .amdhsa_user_sgpr_count 2
  .amdhsa_user_sgpr_kernarg_segment_ptr 1
  .amdhsa_system_sgpr_workgroup_id_x 1
.end_amdhsa_kernel
"""
    return txt, g
if __name__ == "__main__":
    import json
    opt = json.loads(sys.argv[2]) if len(sys.argv) > 2 else {}
    txt, g = build(opt)
    open(sys.argv[1], "w").write(txt)
    print("instrs", g.e.count, "nops", g.e.nops)
```

```python
import sys
sys.path.insert(0, "work")
from emit import E
NAME = "sequential_preLN__sliding_block_cached__glu_gated_reglu__decode"
HEADER = open("cdna_kernels/" + NAME + ".s.ref").read().split("; Override launch geometry")[0]

H1 = 0x10000; H2 = 0x40000; H3 = 0x90000; H4 = 0xA0000; TS = 0x400000
FAST = 0x100000
H2F = 0x180000
STF = 0x1C0000
XT = 0
FL = 256
QB = 512
MX = 1024
LS = 1056
PL = 1280
OP = 2560
ST2 = 6656
HNL = 6784
MR = 7936
HHL = 12544
ONES = 13120
WR = 6656
SC = 10816
FR = 9728
WB = 13312
LDS_BYTES = WB + 3 * 36864

class G:
    def __init__(self, opt):
        self.o = opt; self.e = E(); self.uid = 0
    def stamp(self, k):
        if not self.o.get("stamps"): return
        if self.o.get("stamps") == "min" and k != 15: return
        e = self.e
        e(f"s_memrealtime s[90:91]\ns_waitcnt lgkmcnt(0)\nv_writelane_b32 v127, s90, {k}")
    def mile(self, name, wave=None):
        if self.o.get("amp") != name: return
        e = self.e; self.uid += 1
        if wave is not None: e(f"s_cmp_eq_u32 s30, {wave}\ns_cbranch_scc0 L_ml{self.uid}")
        e(f"s_memrealtime s[92:93]\ns_lshl_b32 s94, s2, 2\ns_add_u32 s94, s94, {0x300400}\ns_waitcnt lgkmcnt(0)\nv_mov_b32 v124, s92\nv_mov_b32 v125, s94")
        e("s_mov_b64 s[94:95], exec\ns_mov_b64 exec, 1\nglobal_store_dword v125, v124, s[26:27] sc1\ns_mov_b64 exec, s[94:95]")
        e(f"L_ml{self.uid}:")
    def note(self, k, sreg):
        if self.o.get("stamps") and self.o.get("stamps") != "min": self.e(f"v_writelane_b32 v127, {sreg}, {k}")
    def Rnd(self, d, s):
        self.e(f"v_cvt_pk_bf16_f32 {d}, {s}, {s}")
        self.e(f"v_and_b32 {d}, 0xffff0000, {d}")
    def row_allreduce(self, op, vs, steps=(8, 4, 2, 1)):
        for st in steps:
            for v in vs:
                self.e(f"{op}_dpp {v}, {v}, {v} row_ror:{st} row_mask:0xf bank_mask:0xf")
    def tagins(self, v4):
        for k in range(4):
            self.e(f"v_perm_b32 v{v4+k}, v{v4+k}, v7, s{56+k}")
    def dual_store(self, vaddr, data, vfast=None):
        e = self.e
        if self.o.get("fast", True):
            if vfast is None:
                e(f"v_add_u32 v125, {FAST}, {vaddr}"); vfast = "v125"
            e(f"global_store_dwordx4 {vfast}, {data}, s[26:27]")
        e(f"global_store_dwordx4 {vaddr}, {data}, s[26:27] sc1")
    def spin_fast(self, okl, tag, sleep, addrs=None, switch=None):
        e = self.e; o = self.o
        e(f"s_cbranch_vccz {okl}")
        e("s_add_u32 s66, s66, 1\ns_cmp_gt_u32 s66, %d\ns_cbranch_scc1 %s" % (o.get("maxspin", 20000), okl))
        if o.get("fast", True):
            e(f"s_cmp_eq_u32 s66, {o.get('nfast', 24)}\ns_cbranch_scc0 L_{tag}keep")
            if addrs:
                for a in addrs: e(f"v_subrev_u32 {a}, {FAST}, {a}")
            if switch: e(switch)
            e(f"L_{tag}keep:")
        if sleep: e(f"s_sleep {sleep}")
    def validate(self, grans, t0, t1):
        e = self.e
        for i, gb in enumerate(grans):
            e(f"v_perm_b32 {t0}, v{gb+1}, v{gb}, s62")
            e(f"v_perm_b32 {t1}, v{gb+3}, v{gb+2}, s63")
            e(f"v_or_b32 {t0}, {t0}, {t1}")
            e(f"v_cmp_ne_u32 vcc, {t0}, v7")
            if len(grans) > 1:
                if i == 0: e("s_mov_b64 s[60:61], vcc")
                else: e("s_or_b64 s[60:61], s[60:61], vcc")
        if len(grans) > 1: e("s_mov_b64 vcc, s[60:61]")
    def spin_tail(self, okl, loopl, sleep):
        e = self.e
        e(f"s_cbranch_vccz {okl}")
        e("s_add_u32 s66, s66, 1\ns_cmp_gt_u32 s66, %d\ns_cbranch_scc1 %s" % (self.o.get("maxspin", 20000), okl))
        if sleep: e(f"s_sleep {sleep}")
    def masks(self):
        e = self.e
        e("v_and_b32 v6, 1, v1\nv_lshlrev_b32 v6, 4, v6\nv_mov_b32 v12, 0xffff\nv_lshlrev_b32 v12, v6, v12")
        e("v_bfe_u32 v6, v1, 1, 2")
        for r in range(4):
            e(f"v_cmp_eq_u32 vcc, {r}, v6\nv_cndmask_b32 v{120+r}, 0, v12, vcc")
    def consts(self):
        e = self.e
        e("s_mov_b32 s56, 0x07060500\ns_mov_b32 s57, 0x07060501\ns_mov_b32 s58, 0x07060502\ns_mov_b32 s59, 0x07060503")
        e("s_mov_b32 s62, 0x0c0c0400\ns_mov_b32 s63, 0x04000c0c")
    def epoch(self):
        e = self.e
        e("s_waitcnt lgkmcnt(0)")
        e("s_mul_i32 s31, s31, 0x19660d\ns_add_u32 s31, s31, 0x3c6ef35f\nv_mov_b32 v7, s31")
    def ln_scalars(self, s1, s2, vm, vs, vr):
        e = self.e
        e(f"s_mov_b32 s68, 0x3ae38e39")
        e(f"v_mov_b32 {vm}, {s1}\nv_mov_b32 {vs}, {s2}\nv_mul_f32 {vm}, s68, {vm}\nv_mul_f32 {vs}, s68, {vs}")
        e(f"v_fma_f32 {vs}, -{vm}, {vm}, {vs}")
        e(f"v_max_f32 {vs}, 0, {vs}")
        self.Rnd(vs, vs); self.Rnd(vm, vm)
        e(f"v_add_f32 {vs}, 0x3727c5ac, {vs}")
        self.Rnd(vs, vs)
        e(f"v_sqrt_f32 {vs}, {vs}")
        self.Rnd(vs, vs)
        e(f"v_rcp_f32 {vr}, {vs}")
    def ln_apply(self, x, vm, vs, vr, t0, t1):
        e = self.e
        e(f"v_sub_f32 {x}, {x}, {vm}")
        self.Rnd(x, x)
        e(f"v_mul_f32 {t0}, {x}, {vr}")
        e(f"v_fma_f32 {t1}, -{t0}, {vs}, {x}")
        e(f"v_fma_f32 {t0}, {t1}, {vr}, {t0}")
        e(f"v_cvt_pk_bf16_f32 {x}, {t0}, {t0}")
    def reduce_stride8(self, v, t):
        e = self.e
        for r in range(4): e(f"v_add_f32_dpp v{v+r}, v{v+r}, v{v+r} row_ror:8 row_mask:0xf bank_mask:0xf")
        self.xrow_allreduce(v, t)
    def xrow_allreduce(self, v, t):
        e = self.e
        for r in range(4): e(f"v_mov_b32 v{t+r}, v{v+r}")
        for r in range(4): e(f"v_permlane16_swap_b32 v{v+r}, v{t+r}")
        for r in range(4): e(f"v_add_f32 v{v+r}, v{v+r}, v{t+r}")
        for r in range(4): e(f"v_mov_b32 v{t+r}, v{v+r}")
        for r in range(4): e(f"v_permlane32_swap_b32 v{v+r}, v{t+r}")
        for r in range(4): e(f"v_add_f32 v{v+r}, v{v+r}, v{t+r}")
    def reduce_stride4(self, v, t):
        e = self.e
        for st in (8, 4):
            for r in range(4): e(f"v_add_f32_dpp v{v+r}, v{v+r}, v{v+r} row_ror:{st} row_mask:0xf bank_mask:0xf")
        self.xrow_allreduce(v, t)
    def xrow_transpose_reduce(self, v):
        e = self.e
        e(f"v_permlane16_swap_b32 v{v}, v{v+1}\nv_permlane16_swap_b32 v{v+2}, v{v+3}")
        e(f"v_add_f32 v{v}, v{v}, v{v+1}\nv_add_f32 v{v+2}, v{v+2}, v{v+3}")
        e(f"v_permlane32_swap_b32 v{v}, v{v+2}")
        e(f"v_add_f32 v{v}, v{v}, v{v+2}")

    def gen(self):
        e = self.e; o = self.o
        nt = o.get("kvflag", "nt")
        e("L_start:")
        if o.get("amp") and o.get("ampentry"): e("s_memrealtime s[94:95]")
        e("s_cmp_ge_u32 s2, 256\ns_cbranch_scc1 L_end")
        e("s_load_dwordx16 s[4:19], s[0:1], 0\ns_load_dwordx8 s[20:27], s[0:1], 64")
        if o.get("codepf", True):
            e("s_getpc_b64 s[64:65]")
            e("L_pfbase:")
            e("s_lshr_b32 s66, s2, 3\ns_lshl_b32 s66, s66, 9\nv_lshlrev_b32 v6, 7, v0\nv_add_u32 v6, s66, v6\nv_min_u32 v6, L_end-L_pfbase, v6")
            e("v_cmp_gt_u32 vcc, 4, v0\ns_and_saveexec_b64 s[66:67], vcc\ns_cbranch_execz L_pfskip")
            e("global_load_dword v124, v6, s[64:65]")
            e("L_pfskip:\ns_mov_b64 exec, s[66:67]")
        if o.get("stamps"): e("v_mov_b32 v127, 0\ns_memrealtime s[90:91]")
        e("v_and_b32 v1, 63, v0\nv_lshrrev_b32 v6, 6, v0\nv_readfirstlane_b32 s30, v6")
        e("s_and_b32 s28, s2, 7\ns_lshl_b32 s28, s28, 1\ns_lshr_b32 s33, s2, 7\ns_or_b32 s28, s28, s33")
        e("s_lshr_b32 s29, s2, 3\ns_and_b32 s29, s29, 15")
        e("v_and_b32 v2, 15, v1\nv_lshrrev_b32 v3, 4, v1\nv_lshlrev_b32 v8, 4, v1")
        e(f"s_lshl_b32 s33, s28, 24\ns_lshl_b32 s64, s29, 16\ns_add_u32 s33, s33, s64\ns_add_u32 s33, s33, {61440*256}\ns_and_b32 s64, s30, 3\ns_lshl_b32 s64, s64, 14\ns_add_u32 s33, s33, s64")
        e("s_movk_i32 s70, 0x1000\ns_movk_i32 s71, 0x2000\ns_movk_i32 s72, 0x3000")
        e("v_bfe_u32 v13, v1, 2, 2\nv_lshlrev_b32 v13, 8, v13\nv_lshlrev_b32 v12, 6, v3\nv_add_u32 v13, v13, v12\nv_and_b32 v12, 3, v1\nv_lshlrev_b32 v12, 4, v12\nv_add_u32 v13, v13, v12")
        e("v_lshlrev_b32 v11, 13, v3\nv_lshlrev_b32 v12, 4, v2\nv_add_u32 v11, v11, v12")
        e("s_and_b32 s34, s29, 1\ns_lshl_b32 s35, s28, 1\ns_add_u32 s35, s35, s34\ns_lshl_b32 s35, s35, 8\ns_lshr_b32 s34, s29, 1\ns_mul_i32 s34, s34, 72")
        e("v_add_u32 v9, s34, v1\nv_lshlrev_b32 v9, 1, v9")
        e("s_lshl_b32 s34, s34, 13\ns_add_u32 s35, s35, s34")
        e("s_movk_i32 s38, 1152\ns_mov_b32 s39, 0x20000\ns_mov_b32 s50, %d\ns_mov_b32 s51, 0x20000" % (576*8192))
        e("s_movk_i32 s42, 0x4000\ns_mov_b32 s43, 0x20000\ns_movk_i32 s46, 0x4000\ns_mov_b32 s47, 0x20000")
        e("s_waitcnt lgkmcnt(0)")
        if o.get("stamps"): e("v_writelane_b32 v127, s90, 0")
        e("s_mov_b32 s36, s4\ns_mov_b32 s37, s5\ns_mov_b32 s48, s10\ns_mov_b32 s49, s11")
        e("s_add_u32 s40, s6, s33\ns_addc_u32 s41, s7, 0")
        e("s_add_u32 s44, s8, s33\ns_addc_u32 s45, s9, 0")
        so = lambda t: ['0', 's70', 's71', 's72'][t // 4]
        n1 = o.get("kn1", 16)
        def Kld(t): e(f"buffer_load_dwordx4 v[{32+4*t}:{35+4*t}], v13, s[40:43], {so(t)} offen offset:{(t%4)*1024} {nt}")
        e("s_cmp_eq_u32 s30, 8\ns_cbranch_scc1 L_qfirst")
        e("s_cmp_lt_u32 s30, 4\ns_cbranch_scc1 L_vfirst")
        e("s_setprio 2")
        e("s_barrier")
        for t in range(n1): Kld(t)
        self.common_setup()
        self.stamp(6)
        e("s_barrier")
        for t in range(n1, 16): Kld(t)
        e("s_branch L_kmain")
        e("L_vfirst:")
        e("s_barrier")
        self.common_setup()
        e("s_branch L_vwave")
        e("L_qfirst:")
        e("s_setprio 3")
        e("buffer_load_dwordx4 v[24:27], v8, s[36:39], 0 offen")
        e("buffer_load_dwordx4 v[28:31], v8, s[36:39], 0 offen offset:1024")
        e("buffer_load_ushort v14, v9, s[36:39], 0 offen")
        e("buffer_load_ushort v15, v9, s[36:39], 0 offen offset:128")
        for i in range(18):
            e(f"buffer_load_dwordx4 v[{32+4*i}:{35+4*i}], v11, s[48:51], s35 offen {nt}")
            if i < 17: e("s_add_u32 s35, s35, 0x8000")
        e("v_mov_b32 v6, 0\nv_mov_b32 v16, 0\nv_mov_b32 v17, 0\nv_mov_b32 v18, 0\nv_mov_b32 v19, 0")
        e(f"ds_write_b128 v6, v[16:19] offset:{FL}")
        e("s_waitcnt lgkmcnt(0)")
        e("s_barrier")
        self.common_setup()
        self.qwave()
        e("s_branch L_roles")
        e("L_kmain:")
        self.consts()
        self.epoch()
        self.stamp(1)
        if o.get("diagK"):
            e("s_waitcnt vmcnt(12)"); self.stamp(8)
            e("s_waitcnt vmcnt(8)"); self.stamp(9)
            e("s_waitcnt vmcnt(4)"); self.stamp(10)
            e("s_waitcnt vmcnt(0)"); self.stamp(5)
        e(f"v_mov_b32 v6, 0\ns_mov_b32 s66, 0")
        e("L_qfloop:")
        e(f"ds_read_b32 v12, v6 offset:{FL}\ns_waitcnt lgkmcnt(0)\nv_cmp_ne_u32 vcc, 1, v12")
        self.spin_tail("L_qfok", "L_qfloop", 1)
        e("s_branch L_qfloop")
        e("L_qfok:")
        e("v_bfe_u32 v6, v1, 2, 1\nv_lshlrev_b32 v6, 8, v6\nv_lshlrev_b32 v12, 6, v3\nv_add_u32 v6, v6, v12\nv_and_b32 v12, 3, v1\nv_lshlrev_b32 v12, 4, v12\nv_add_u32 v6, v6, v12")
        e(f"ds_read_b128 v[12:15], v6 offset:{QB}")
        self.stamp(2)
        e("s_waitcnt vmcnt(0) lgkmcnt(0)")
        self.stamp(3)
        D0 = [96+4*t if t < 6 else 24+4*(t-6) for t in range(8)]
        D1 = [32+4*t for t in range(8)]
        D = D0 + D1
        S = [16+t for t in range(8)] + [96+t for t in range(8)]
        for t in range(16):
            e(f"v_mfma_f32_16x16x32_bf16 v[{D[t]}:{D[t]+3}], v[12:15], v[{32+4*t}:{35+4*t}], 0")
        for half in range(2):
            for k in range(4):
                for t in range(8*half, 8*half+8):
                    if k == 0: e(f"v_mov_b32_dpp v{S[t]}, v{D[t]} quad_perm:[0,0,0,0] row_mask:0xf bank_mask:0xf")
                    else: e(f"v_add_f32_dpp v{S[t]}, v{D[t]+k}, v{S[t]} quad_perm:[{k},{k},{k},{k}] row_mask:0xf bank_mask:0xf")
        e("s_mov_b32 s64, 0x3db504f3")
        def rnd_pairs():
            for k in range(8): e(f"v_cvt_pk_bf16_f32 v{64+k}, v{S[2*k]}, v{S[2*k+1]}")
            for k in range(8): e(f"v_lshlrev_b32 v{S[2*k]}, 16, v{64+k}\nv_and_b32 v{S[2*k+1]}, 0xffff0000, v{64+k}")
        rnd_pairs()
        for t in range(16): e(f"v_mul_f32 v{S[t]}, s64, v{S[t]}")
        rnd_pairs()
        for k in range(5): e(f"v_max3_f32 v{64+k}, v{S[3*k]}, v{S[3*k+1]}, v{S[3*k+2]}")
        e(f"v_max3_f32 v64, v64, v65, v{S[15]}\nv_max3_f32 v66, v66, v67, v68\nv_max_f32 v64, v64, v66")
        self.row_allreduce("v_max_f32", ["v64"], steps=(8, 4))
        e("s_mov_b32 s64, 0x3fb8aa3b")
        for t in range(16): e(f"v_sub_f32 v{S[t]}, v{S[t]}, v64")
        for t in range(16): e(f"v_mul_f32 v{S[t]}, s64, v{S[t]}")
        for t in range(16): e(f"v_exp_f32 v{S[t]}, v{S[t]}")
        for k in range(8): e(f"v_cvt_pk_bf16_f32 v{72+k}, v{S[2*k]}, v{S[2*k+1]}")
        for k in range(8): e(f"v_add_f32 v{S[2*k]}, v{S[2*k]}, v{S[2*k+1]}")
        for k in range(4): e(f"v_add_f32 v{S[4*k]}, v{S[4*k]}, v{S[4*k+2]}")
        e(f"v_add_f32 v{S[0]}, v{S[0]}, v{S[4]}\nv_add_f32 v{S[8]}, v{S[8]}, v{S[12]}\nv_add_f32 v65, v{S[0]}, v{S[8]}")
        self.row_allreduce("v_add_f32", ["v65"], steps=(8, 4))
        e("s_and_b32 s64, s30, 3\nv_lshlrev_b32 v6, 7, v3\nv_bfe_u32 v12, v1, 2, 2\nv_lshlrev_b32 v12, 5, v12\nv_add_u32 v6, v6, v12\ns_lshl_b32 s65, s64, 8\nv_add_u32 v6, s65, v6")
        e("s_mov_b32 exec_lo, 0x11111111\ns_mov_b32 exec_hi, 0")
        e(f"ds_write_b128 v6, v[72:75] offset:{PL}\nds_write_b128 v6, v[76:79] offset:{PL+16}")
        e("s_mov_b64 exec, -1")
        e("s_lshl_b32 s65, s64, 2\nv_add_u32 v6, s65, v1")
        e("s_mov_b64 exec, 0x10001")
        e(f"ds_write_b32 v6, v64 offset:{MX}\nds_write_b32 v6, v65 offset:{LS}")
        e("s_mov_b64 exec, -1")
        e("s_waitcnt lgkmcnt(0)")
        self.stamp(4)
        e("s_barrier")
        e("s_setprio 0")
        self.wait_pub("sf", 12)
        e("s_cmp_lt_u32 s29, 9\ns_cbranch_scc1 L_kdA\ns_cmp_lt_u32 s29, 15\ns_cbranch_scc0 L_roles")
        self.wo_dma(o.get("woearly", 12))
        e("s_branch L_roles")
        e("L_kdA:")
        self.stamp(5)
        self.wgu_dma(o.get("wgearly", 9))
        e("s_branch L_roles")
        e("L_vwave:")
        if o.get("tlbtouch"):
            st = o["tlbtouch"]
            e("s_cmp_eq_u32 s30, 1\ns_cbranch_scc0 L_notouch")
            e(f"v_lshlrev_b32 v12, {st}, v1")
            for srd in ("s[52:55]", "s[76:79]", "s[80:83]", "s[84:87]"):
                e(f"buffer_load_dword v124, v12, {srd}, 0 offen")
            e("L_notouch:")
        if o.get("fast", True) and o.get("warmF", True):
            e("s_cmp_eq_u32 s30, 1\ns_cbranch_scc0 L_nowarm")
            e(f"s_lshl_b32 s64, s28, 13\ns_lshl_b32 s65, s29, 9\ns_add_u32 s64, s64, s65\ns_add_u32 s64, s64, {H1+FAST}")
            e(f"s_lshl_b32 s65, s28, 14\ns_lshl_b32 s66, s29, 10\ns_add_u32 s65, s65, s66\ns_add_u32 s65, s65, {H2F-512}")
            e(f"s_lshl_b32 s66, s28, 8\ns_add_u32 s66, s66, {STF-12*128}")
            e("v_lshlrev_b32 v12, 7, v1\nv_mov_b32 v6, s65\nv_mov_b32 v16, s64\nv_cmp_gt_u32 vcc, 4, v1\nv_cndmask_b32 v6, v6, v16, vcc")
            e("v_mov_b32 v16, s66\nv_cmp_lt_u32 vcc, 11, v1\nv_cndmask_b32 v6, v6, v16, vcc\nv_add_u32 v6, v6, v12")
            e("s_mov_b64 exec, 0x3fff\nglobal_load_dword v124, v6, s[26:27]\ns_mov_b64 exec, -1")
            e("L_nowarm:")
        self.masks(); self.consts(); self.epoch()
        e("s_barrier")
        def Vld(t): e(f"buffer_load_dwordx4 v[{32+4*t}:{35+4*t}], v8, s[44:47], {so(t)} offen offset:{(t%4)*1024} {nt}")
        self.weights_prefetch()
        for t in range(16): Vld(t)
        self.stamp(1)
        e("s_barrier")
        self.stamp(2)
        self.mile("bp", 0)
        e("v_bfe_u32 v6, v1, 3, 1\nv_lshlrev_b32 v6, 7, v6\nv_lshlrev_b32 v12, 5, v3\nv_add_u32 v6, v6, v12\ns_lshl_b32 s64, s30, 8\nv_add_u32 v6, s64, v6")
        e(f"ds_read_b128 v[16:19], v6 offset:{PL}\nds_read_b128 v[20:23], v6 offset:{PL+16}")
        e("v_lshrrev_b32 v6, 1, v3\nv_lshlrev_b32 v6, 4, v6")
        e(f"ds_read_b128 v[24:27], v6 offset:{MX}")
        e("s_lshl_b32 s64, s30, 2\nv_add_u32 v6, s64, v6")
        e(f"ds_read_b32 v28, v6 offset:{MX}")
        e("s_waitcnt lgkmcnt(0)")
        e("v_max3_f32 v24, v24, v25, v26\nv_max_f32 v24, v24, v27\nv_sub_f32 v28, v28, v24\nv_mul_f32 v28, 0x3fb8aa3b, v28\nv_exp_f32 v28, v28")
        e("s_mov_b32 s64, 0x01000100\ns_mov_b32 s65, 0x03020302")
        for t in range(16):
            ab = 96 + 4*(t % 4)
            e(f"v_perm_b32 v29, v{16+t//2}, v{16+t//2}, {'s64' if t%2==0 else 's65'}")
            for r in range(4): e(f"v_and_b32 v{ab+r}, v29, v{120+r}")
            e(f"s_waitcnt vmcnt({15-t})")
            e(f"v_mfma_f32_16x16x32_bf16 v[12:15], v[{ab}:{ab+3}], v[{32+4*t}:{35+4*t}], {'0' if t==0 else 'v[12:15]'}")
        self.stamp(3)
        e("s_setprio 3")
        e("v_lshrrev_b32 v6, 1, v3\nv_lshlrev_b32 v6, 9, v6\nv_lshlrev_b32 v30, 5, v2\nv_add_u32 v6, v6, v30\nv_and_b32 v30, 1, v3\nv_lshlrev_b32 v30, 4, v30\nv_add_u32 v6, v6, v30")
        e("s_lshl_b32 s64, s30, 10\nv_add_u32 v6, s64, v6")
        for r in range(4): e(f"v_mul_f32 v{12+r}, v28, v{12+r}")
        e(f"ds_write_b128 v6, v[12:15] offset:{OP}")
        e("v_mov_b32 v6, 0\nv_mov_b32 v30, 1")
        e("s_mov_b64 exec, 1")
        e(f"ds_add_rtn_u32 v31, v6, v30 offset:{FL+4}")
        e("s_mov_b64 exec, -1")
        e("s_waitcnt lgkmcnt(0)")
        e("v_readfirstlane_b32 s64, v31")
        e("s_cmp_eq_u32 s64, 3\ns_cbranch_scc0 L_vdone")
        for w in range(4): e(f"ds_read_b128 v[{16+4*w}:{19+4*w}], v8 offset:{OP + 1024*w}")
        e(f"s_mul_i32 s67, s28, 18432\ns_mul_i32 s64, s29, 1152\ns_add_u32 s67, s67, s64\ns_add_u32 s67, s67, {H2}")
        e("v_add_u32 v6, s67, v8")
        e(f"s_lshl_b32 s64, s28, 14\ns_lshl_b32 s65, s29, 4\ns_add_u32 s64, s64, s65\ns_add_u32 s64, s64, {H2F}")
        e("v_lshrrev_b32 v12, 3, v1\nv_lshlrev_b32 v12, 11, v12\nv_and_b32 v13, 1, v1\nv_lshlrev_b32 v13, 10, v13\nv_add_u32 v12, v12, v13\nv_bfe_u32 v13, v1, 1, 2\nv_lshlrev_b32 v13, 8, v13\nv_add_u32 v12, v12, v13\nv_add_u32 v12, s64, v12")
        e("s_waitcnt lgkmcnt(0)")
        for r in range(4): e(f"v_add_f32 v{16+r}, v{16+r}, v{20+r}\nv_add_f32 v{24+r}, v{24+r}, v{28+r}")
        for r in range(4): e(f"v_add_f32 v{16+r}, v{16+r}, v{24+r}")
        self.tagins(16)
        self.dual_store("v6", "v[16:19]", "v12")
        e(f"v_mov_b32 v6, 0\nv_mov_b32 v30, 1\nds_write_b32 v6, v30 offset:{FL+8}")
        self.mile("attn")
        e("L_vdone:")
        e("s_setprio 0")
        self.stamp(4)
        e("s_branch L_roles")
        e("L_roles:")
        self.stamp(7)
        e("s_cmp_lt_u32 s29, 9\ns_cbranch_scc1 L_roleA")
        e("s_cmp_lt_u32 s29, 15\ns_cbranch_scc0 L_fin")
        self.roleB1()
        e("L_roleA:")
        self.roleA()
        e("L_fin:")
        if o.get("stamps"):
            self.stamp(15)
            e(f"s_mul_i32 s64, s2, 9\ns_add_u32 s64, s64, s30\ns_lshl_b32 s64, s64, 6\ns_add_u32 s64, s64, {TS}")
            e("v_lshlrev_b32 v6, 2, v1\nv_add_u32 v6, s64, v6")
            e("s_mov_b64 exec, 0xffff")
            e("global_store_dword v6, v127, s[26:27]")
        e("L_end:")
        e("s_endpgm")
        return e.text()

    def qwave(self):
        e = self.e; o = self.o; nt = o.get("kvflag", "nt")
        npf = 0
        self.masks(); self.consts()
        e(f"s_waitcnt vmcnt({18+npf})")
        self.stamp(1)
        e("v_mov_b32 v104, 0\nv_mov_b32 v105, 0\ns_mov_b32 s64, 0x3f803f80")
        for k in range(8):
            e(f"v_dot2_f32_bf16 v104, v{24+k}, s64, v104")
            e(f"v_dot2_f32_bf16 v105, v{24+k}, v{24+k}, v105")
        self.row_allreduce("v_add_f32", ["v104", "v105"])
        e("v_permlane16_swap_b32 v104, v105\nv_add_f32 v104, v104, v105\nv_mov_b32 v105, v104\nv_permlane32_swap_b32 v104, v105\nv_add_f32 v104, v104, v105")
        e("v_readlane_b32 s64, v104, 0\nv_readlane_b32 s65, v104, 16")
        self.ln_scalars("s64", "s65", "v104", "v105", "v106")
        e("v_and_b32 v6, 3, v1\nv_mul_u32_u24 v6, 48, v6\nv_lshrrev_b32 v12, 2, v1\nv_lshlrev_b32 v12, 1, v12\nv_add_u32 v6, v6, v12")
        for i, xv in enumerate(("v14", "v15")):
            e(f"v_lshlrev_b32 {xv}, 16, {xv}")
            self.ln_apply(xv, "v104", "v105", "v106", "v107", "v108")
        e(f"ds_write_b16 v6, v14 offset:{XT}")
        e("s_mov_b64 exec, 0xff")
        e(f"ds_write_b16 v6, v15 offset:{XT+32}")
        e("s_mov_b64 exec, -1")
        e("v_mul_u32_u24 v6, 48, v3")
        e("s_waitcnt lgkmcnt(0)")
        e(f"ds_read_b128 v[24:27], v6 offset:{XT}\nds_read_b128 v[28:31], v6 offset:{XT+16}\nds_read_b32 v11, v6 offset:{XT+32}")
        self.epoch()
        if o.get("diagQ"): self.stamp(9)
        e("s_mov_b32 s64, 0x01000100\ns_mov_b32 s65, 0x03020302")
        slots = [104, 108, 112, 116] + [128 + 4*k for k in range(9)] + [16, 20, 12]
        def prep(i, ab):
            src = f"v{24+i//2}" if i < 16 else "v11"
            e(f"v_perm_b32 v10, {src}, {src}, {'s64' if i%2==0 else 's65'}")
            for r in range(4): e(f"v_and_b32 v{ab+r}, v10, v{120+r}")
        def mm(i, ab):
            e(f"s_waitcnt vmcnt({17-i})")
            e(f"v_mfma_f32_16x16x32_bf16 v[164:167], v[{ab}:{ab+3}], v[{32+4*i}:{35+4*i}], {'0' if i==0 else 'v[164:167]'}")
        for i in range(16): prep(i, slots[i])
        if o.get("diagQ"):
            self.stamp(10)
            e("s_waitcnt vmcnt(0)"); self.stamp(11)
        mm(0, slots[0]); mm(1, slots[1])
        prep(16, slots[0]); prep(17, slots[1])
        for i in range(2, 16): mm(i, slots[i])
        mm(16, slots[0]); mm(17, slots[1])
        e(f"s_lshl_b32 s64, s28, 13\ns_lshl_b32 s65, s29, 9\ns_add_u32 s65, s65, s64\ns_add_u32 s65, s65, {H1}")
        e("v_lshlrev_b32 v6, 5, v2\nv_lshlrev_b32 v12, 4, v3\nv_add_u32 v6, v6, v12\nv_add_u32 v6, s65, v6")
        self.tagins(164)
        e("s_mov_b32 exec_lo, -1\ns_mov_b32 exec_hi, 0")
        self.dual_store("v6", "v[164:167]")
        e("s_mov_b64 exec, -1")
        self.stamp(2)
        self.mile("qpub")
        e("s_barrier")
        e(f"s_add_u32 s64, s64, {H1 + (FAST if o.get('fast', True) else 0)}\nv_add_u32 v6, s64, v8\nv_add_u32 v9, 4096, v6")
        if o.get("smemchk", False):
            regs = [64, 65] + list(range(67, 76)) + [88, 89, 92, 93, 94]
            e(f"s_lshl_b32 s33, s28, 13\ns_add_u32 s33, s33, {H1 + 508}\ns_add_u32 s34, s26, s33\ns_addc_u32 s35, s27, 0")
            e("s_lshr_b32 s33, s31, 24\ns_mov_b32 s66, 0")
            if o.get("h1sleep", 4): e(f"s_sleep {o.get('h1sleep', 4)}")
            e("L_smloop:")
            for k, r in enumerate(regs): e(f"s_load_dword s{r}, s[34:35], {512*k} glc")
            e("s_waitcnt lgkmcnt(0)")
            for k, r in enumerate(regs):
                e(f"s_xor_b32 s{r}, s{r}, s33")
                if k: e(f"s_or_b32 s64, s64, s{r}")
            e("s_and_b32 s64, s64, 0xff\ns_cbranch_scc0 L_smok")
            e("s_add_u32 s66, s66, 1\ns_cmp_gt_u32 s66, %d\ns_cbranch_scc1 L_smok" % o.get("maxspin", 20000))
            e("s_branch L_smloop")
            e("L_smok:")
            self.note(11, "s66")
        elif o.get("h1sleep", 30): e(f"s_sleep {o.get('h1sleep', 30)}")
        e("s_mov_b32 s66, 0")
        def h1loads(base):
            for i in range(8):
                e(f"global_load_dwordx4 v[{base+4*i}:{base+4*i+3}], {'v6' if i<4 else 'v9'}, s[26:27] offset:{(i%4)*1024} sc1")
        self.stamp(5)
        h1loads(32)
        self.stamp(6)
        gap = o.get("h1gap", 36)
        if gap:
            e(f"s_sleep {gap}")
            h1loads(64)
            e("s_waitcnt vmcnt(8)")
            self.validate([32+4*i for i in range(8)], "v100", "v101")
            e("s_cbranch_vccz L_h1ok")
            h1loads(128)
            e("s_waitcnt vmcnt(8)")
            self.validate([64+4*i for i in range(8)], "v100", "v101")
            e("s_cbranch_vccnz L_h1c")
            for k in range(32): e(f"v_mov_b32 v{32+k}, v{64+k}")
            e("s_branch L_h1ok")
            e("L_h1c:")
            e("s_waitcnt vmcnt(0)")
            for k in range(32): e(f"v_mov_b32 v{32+k}, v{128+k}")
        e("L_h1loop:")
        e("s_waitcnt vmcnt(0)")
        self.validate([32+4*i for i in range(8)], "v100", "v101")
        self.spin_fast("L_h1ok", "h1", 2, ["v6", "v9"])
        h1loads(32)
        e("s_branch L_h1loop")
        e("L_h1ok:")
        self.note(12, "s66")
        for k in range(32): e(f"v_and_b32 v{32+k}, 0xffffff00, v{32+k}")
        for i in range(0, 8, 2):
            for r in range(4): e(f"v_add_f32 v{32+4*i+r}, v{32+4*i+r}, v{36+4*i+r}")
        for i in (0, 4):
            for r in range(4): e(f"v_add_f32 v{32+4*i+r}, v{32+4*i+r}, v{40+4*i+r}")
        for r in range(4): e(f"v_add_f32 v{32+r}, v{32+r}, v{48+r}")
        e("v_cvt_pk_bf16_f32 v32, v32, v33\nv_cvt_pk_bf16_f32 v33, v34, v35")
        e("v_lshlrev_b32 v6, 3, v1")
        e(f"ds_write_b64 v6, v[32:33] offset:{QB}")
        e("v_mov_b32 v6, 0\nv_mov_b32 v12, 1")
        e("s_waitcnt lgkmcnt(0)")
        e(f"ds_write_b32 v6, v12 offset:{FL}")
        e("s_waitcnt lgkmcnt(0)")
        self.stamp(3)
        self.mile("qf")
        e("s_waitcnt vmcnt(0)")
        e("s_barrier")
        e("v_mov_b32 v6, 0")
        e(f"ds_read_b128 v[32:35], v6 offset:{MX}\nds_read_b128 v[36:39], v6 offset:{MX+16}\nds_read_b128 v[40:43], v6 offset:{LS}\nds_read_b128 v[44:47], v6 offset:{LS+16}")
        e("s_waitcnt lgkmcnt(0)")
        for h in range(2):
            m = 32 + 4*h; l = 40 + 4*h; M = 16 + 2*h; L = 17 + 2*h
            e(f"v_max3_f32 v{M}, v{m}, v{m+1}, v{m+2}\nv_max_f32 v{M}, v{M}, v{m+3}")
            for k in range(4): e(f"v_sub_f32 v{m+k}, v{m+k}, v{M}")
            for k in range(4): e(f"v_mul_f32 v{m+k}, 0x3fb8aa3b, v{m+k}")
            for k in range(4): e(f"v_exp_f32 v{m+k}, v{m+k}")
            e(f"v_mul_f32 v{L}, v{m}, v{l}")
            for k in range(1, 4): e(f"v_fma_f32 v{L}, v{m+k}, v{l+k}, v{L}")
        self.tagins(16)
        e(f"s_mul_i32 s67, s28, 18432\ns_mul_i32 s64, s29, 1152\ns_add_u32 s67, s67, s64\ns_add_u32 s67, s67, {H2+1024}\nv_mov_b32 v6, s67")
        e(f"s_lshl_b32 s64, s28, 8\ns_lshl_b32 s65, s29, 4\ns_add_u32 s64, s64, s65\ns_add_u32 s64, s64, {STF}\nv_mov_b32 v12, s64")
        e("s_mov_b64 exec, 1")
        self.dual_store("v6", "v[16:19]", "v12")
        e("s_mov_b64 exec, -1")
        e(f"v_mov_b32 v6, 0\nv_mov_b32 v12, 1\nds_write_b32 v6, v12 offset:{FL+12}")
        self.stamp(4)
    def common_setup(self):
        e = self.e; o = self.o
        e("s_load_dword s31, s[26:27], 0")
        self.dma_srds()
        if o.get("amp"):
            self.uid += 1
            e(f"s_cmp_eq_u32 s30, 0\ns_cbranch_scc0 L_amp{self.uid}")
            e(f"s_lshl_b32 s92, s2, 2\ns_add_u32 s92, s92, {0x300000}\nv_mov_b32 v124, s94\nv_mov_b32 v125, s92")
            e("s_mov_b64 exec, 1\nglobal_store_dword v125, v124, s[26:27] sc1\nglobal_store_dword v125, v124, s[26:27] offset:1024 sc1\ns_mov_b64 exec, -1")
            e(f"L_amp{self.uid}:")
    def dma_srds(self):
        e = self.e
        e("s_mov_b32 s52, s12\ns_mov_b32 s53, s13\ns_mov_b32 s54, %d\ns_mov_b32 s55, 0x20000" % (4096*1152))
        e(f"s_mov_b32 s76, s16\ns_mov_b32 s77, s17\ns_mov_b32 s78, {576*9216}\ns_mov_b32 s79, 0x20000")
        e(f"s_mov_b32 s80, s18\ns_mov_b32 s81, s19\ns_mov_b32 s82, {576*9216}\ns_mov_b32 s83, 0x20000")
        e(f"s_mov_b32 s84, s20\ns_mov_b32 s85, s21\ns_mov_b32 s86, {4608*1152}\ns_mov_b32 s87, 0x20000")
    def weights_prefetch(self):
        e = self.e; fl = self.o.get("pfflag", ""); which = self.o.get("pfw", "og")
        d = "v[112:115]"
        def contig(srd, xbytes, jbytes, vbytes):
            e(f"s_and_b32 s64, s2, 7\ns_mul_i32 s64, s64, {xbytes}\ns_lshr_b32 s65, s2, 3\ns_mul_i32 s65, s65, {jbytes}\ns_add_u32 s64, s64, s65")
            e(f"s_and_b32 s65, s30, 3\ns_mul_i32 s65, s65, {vbytes}\ns_add_u32 s64, s64, s65")
            off = 0
            while off < vbytes:
                rem = vbytes - off
                if off and off % 4096 == 0: e("s_add_u32 s64, s64, 4096")
                if rem < 1024:
                    lanes = rem // 16
                    e(f"s_mov_b64 exec, {hex((1 << lanes) - 1)}") if lanes <= 31 else e(f"s_mov_b32 exec_lo, -1\ns_mov_b32 exec_hi, {hex((1 << (lanes-32)) - 1)}")
                e(f"buffer_load_dwordx4 {d}, v8, {srd}, s64 offen offset:{off % 4096} {fl}")
                if rem < 1024: e("s_mov_b64 exec, -1")
                off += 1024
        if "o" in which: contig("s[52:55]", 589824, 18432, 4608)
        if "g" in which or "u" in which:
            e("s_lshr_b32 s64, s2, 3\ns_mul_i32 s64, s64, 18\ns_and_b32 s65, s30, 3\ns_add_u32 s73, s64, s65\ns_add_u32 s74, s64, 17")
            e("s_and_b32 s65, s2, 7\ns_mul_i32 s75, s65, 1152")
            e("v_lshrrev_b32 v100, 3, v1\nv_lshlrev_b32 v100, 2, v100\nv_add_u32 v100, s73, v100\nv_min_u32 v100, s74, v100\nv_mul_u32_u24 v100, 9216, v100")
            e("v_and_b32 v101, 7, v1\nv_lshlrev_b32 v101, 4, v101\nv_add_u32 v100, v100, v101\nv_add_u32 v100, 1024, v100")
            for key, srd in (("g", "s[76:79]"), ("u", "s[80:83]")):
                if key not in which: continue
                for k in range(5):
                    if k == 4: e("s_and_b32 s65, s30, 3\ns_cmp_lt_u32 s65, 2\ns_cbranch_scc0 L_pfk" + key)
                    e(f"s_add_u32 s64, s73, {4*k}\ns_mul_i32 s64, s64, 9216\ns_add_u32 s64, s64, s75")
                    e(f"buffer_load_dwordx4 {d}, v8, {srd}, s64 offen {fl}")
                e(f"L_pfk{key}:")
                e("s_mov_b32 exec_lo, -1\ns_mov_b32 exec_hi, 0xff")
                e(f"buffer_load_dwordx4 {d}, v100, {srd}, s75 offen {fl}")
                e("s_mov_b64 exec, -1")
        if "d" in which: contig("s[84:87]", 663552, 20736, 5184)
    def wait_pub(self, tag, off=8):
        e = self.e
        e(f"v_mov_b32 v6, 0\ns_mov_b32 s66, 0")
        e(f"L_{tag}loop:")
        e(f"ds_read_b32 v12, v6 offset:{FL+off}\ns_waitcnt lgkmcnt(0)\nv_cmp_ne_u32 vcc, 1, v12")
        self.spin_tail(f"L_{tag}ok", f"L_{tag}loop", 2)
        e(f"s_branch L_{tag}loop")
        e(f"L_{tag}ok:")
    def wo_dma(self, early):
        e = self.e
        e("s_and_b32 s64, s30, 3\ns_lshl_b32 s64, s64, 1")
        e("s_lshl_b32 s72, s28, 8\ns_lshl_b32 s65, s64, 5\ns_add_u32 s72, s72, s65\ns_mul_i32 s72, s72, 1152")
        e("s_sub_u32 s65, s29, 9\ns_mul_i32 s65, s65, 192\ns_add_u32 s72, s72, s65")
        e(f"s_mul_i32 s71, s64, 6144\ns_add_u32 s71, s71, {WB}")
        for i in range(3):
            e(f"v_add_u32 v100, {64*i}, v1\nv_mul_u32_u24 v101, 5462, v100\nv_lshrrev_b32 v101, 16, v101")
            e("v_mul_u32_u24 v102, 12, v101\nv_sub_u32 v102, v100, v102")
            e("v_bfe_u32 v103, v101, 3, 1\nv_lshlrev_b32 v103, 1, v103\nv_xor_b32 v102, v102, v103\nv_lshlrev_b32 v102, 4, v102")
            e(f"v_mul_u32_u24 v101, 1152, v101\nv_add_u32 v{104+i}, v101, v102")
        n = 0
        for blk in range(4):
            for i in range(3):
                if n == early: self.wait_pub("wo")
                e("s_mov_b32 m0, s71\ns_add_u32 s71, s71, 1024")
                e(f"buffer_load_dwordx4 v{104+i}, s[52:55], s72 offen {self.o.get('wodmaflag', 'nt')} lds")
                n += 1
            if blk < 3: e(f"s_add_u32 s72, s72, {16*1152}")
    def wgu_dma(self, early):
        e = self.e; o = self.o
        lateU = "u" not in o.get("pfw", "og")
        e("s_mul_i32 s32, s28, 9\ns_add_u32 s32, s32, s29")
        e("v_lshrrev_b32 v10, 2, v1\nv_mul_u32_u24 v10, 9216, v10\nv_and_b32 v12, 3, v1\nv_lshrrev_b32 v11, 5, v1\nv_lshlrev_b32 v11, 1, v11\nv_xor_b32 v12, v12, v11\nv_lshlrev_b32 v12, 4, v12\nv_add_u32 v10, v10, v12")
        e(f"s_and_b32 s64, s30, 3\ns_mul_i32 s65, s64, {16*9216}\ns_lshl_b32 s68, s32, 6\ns_add_u32 s68, s68, s65")
        e(f"s_lshl_b32 s69, s64, 10\ns_add_u32 s69, s69, {WB}")
        e("v_lshrrev_b32 v14, 3, v1\nv_mul_u32_u24 v14, 1152, v14\nv_and_b32 v12, 7, v1\nv_bfe_u32 v11, v1, 4, 1\nv_lshlrev_b32 v11, 1, v11\nv_xor_b32 v12, v12, v11")
        e("s_and_b32 s65, s64, 1\ns_lshl_b32 s65, s65, 2\nv_xor_b32 v12, s65, v12\nv_lshlrev_b32 v12, 4, v12\nv_add_u32 v14, v14, v12")
        e(f"s_mul_i32 s75, s32, 36864\ns_mul_i32 s65, s64, {8*1152}\ns_add_u32 s75, s75, s65")
        ops = []
        def narrow(m, srd):
            ops.append(("pre", f"s_mov_b32 s64, s68\ns_add_u32 s65, s69, {36864*m}"))
            for w in range(9):
                ops.append(("ld", "s_mov_b32 m0, s65\ns_add_u32 s65, s65, 4096\n" + f"buffer_load_dwordx4 v10, {srd}, s64 offen nt lds" + (f"\ns_add_u32 s64, s64, {64*9216}" if w < 8 else "")))
        def wd():
            ops.append(("pre", f"s_add_u32 s65, s69, {2*36864}\ns_mov_b32 s64, s75"))
            for w in range(9):
                ops.append(("ld", "s_mov_b32 m0, s65\ns_add_u32 s65, s65, 4096\n" + "buffer_load_dwordx4 v14, s[84:87], s64 offen nt lds" + ("\ns_add_u32 s64, s64, 128" if w < 8 else "")))
        def pfM(srd, first):
            if first:
                ops.append(("pre", "s_and_b32 s64, s28, 1\ns_mul_i32 s64, s64, 9\ns_add_u32 s64, s64, s29\ns_lshl_b32 s64, s64, 5\ns_and_b32 s65, s30, 3\ns_lshl_b32 s65, s65, 3\ns_add_u32 s64, s64, s65\n"
                            "s_mul_i32 s64, s64, 9216\ns_lshr_b32 s65, s28, 1\ns_mul_i32 s65, s65, 1152\ns_add_u32 s33, s64, s65\n"
                            "v_lshrrev_b32 v100, 3, v1\nv_mul_u32_u24 v100, 9216, v100\nv_and_b32 v101, 7, v1\nv_lshlrev_b32 v101, 4, v101\nv_add_u32 v100, v100, v101\nv_add_u32 v100, 1024, v100"))
            ops.append(("pre", "s_mov_b32 s64, s33"))
            for k in range(8):
                ops.append(("ld", f"buffer_load_dwordx4 v[112:115], v8, {srd}, s64 offen" + ("\ns_add_u32 s64, s64, 9216" if k < 7 else "")))
            ops.append(("ld", f"buffer_load_dwordx4 v[112:115], v100, {srd}, s33 offen"))
        wdfirst = o.get("wdfirst", False)
        lateG = "g" not in o.get("pfw", "og")
        if lateG:
            pfM("s[76:79]", True); pfM("s[80:83]", False)
            ops.append(("pre", "s_waitcnt vmcnt(9)")); narrow(0, "s[76:79]")
            ops.append(("pre", "s_waitcnt vmcnt(9)")); narrow(1, "s[80:83]"); wd()
        elif lateU:
            pfM("s[80:83]", True); narrow(0, "s[76:79]"); ops.append(("pre", "s_waitcnt vmcnt(9)")); narrow(1, "s[80:83]"); wd()
        elif wdfirst:
            wd(); narrow(0, "s[76:79]"); narrow(1, "s[80:83]")
        else:
            narrow(0, "s[76:79]"); narrow(1, "s[80:83]"); wd()
        n = 0
        for kind, txt in ops:
            if kind == "ld":
                if n == early:
                    e("s_mov_b32 s73, s64\ns_mov_b32 s74, s65")
                    self.wait_pub("wg")
                    e("s_mov_b32 s64, s73\ns_mov_b32 s65, s74")
                n += 1
            e(txt)

    def roleB1(self):
        e = self.e; o = self.o
        e(f"s_mul_i32 s64, s28, 18432\ns_add_u32 s64, s64, {H2}")
        e("s_cmp_eq_u32 s30, 8\ns_cbranch_scc0 L_b1w")
        e("v_mul_u32_u24 v9, 1152, v2\nv_add_u32 v9, s64, v9\nv_add_u32 v9, 1024, v9")
        if o.get("fast", True): e(f"s_lshl_b32 s65, s28, 8\ns_add_u32 s65, s65, {STF}\nv_lshlrev_b32 v6, 4, v2\nv_add_u32 v6, s65, v6")
        else: e("v_mov_b32 v6, v9")
        if o.get("st2sleep", 2): e(f"s_sleep {o.get('st2sleep', 2)}")
        e("s_mov_b32 s66, 0")
        e("L_stloop:")
        e("global_load_dwordx4 v[72:75], v6, s[26:27] sc1\ns_waitcnt vmcnt(0)")
        self.validate([72], "v100", "v101")
        self.spin_fast("L_stok", "st", 2, switch="v_mov_b32 v6, v9")
        e("s_branch L_stloop")
        e("L_stok:")
        e("v_and_b32 v12, 1, v3\nv_cmp_eq_u32 vcc, 1, v12\nv_cndmask_b32 v72, v72, v74, vcc\nv_cndmask_b32 v73, v73, v75, vcc")
        e("v_and_b32 v72, 0xffffff00, v72\nv_and_b32 v73, 0xffffff00, v73")
        e("v_mov_b32 v76, v72")
        self.row_allreduce("v_max_f32", ["v76"])
        e("v_sub_f32 v72, v72, v76\nv_mul_f32 v72, 0x3fb8aa3b, v72\nv_exp_f32 v72, v72")
        e("v_mul_f32 v73, v72, v73")
        self.row_allreduce("v_add_f32", ["v73"])
        e("v_rcp_f32 v73, v73")
        e("v_mul_f32 v72, v72, v73")
        e("v_lshlrev_b32 v6, 2, v1")
        e("s_mov_b32 exec_lo, -1\ns_mov_b32 exec_hi, 0")
        e(f"ds_write_b32 v6, v72 offset:{SC}")
        e("s_mov_b64 exec, -1")
        e("s_setprio 0")
        e("s_waitcnt lgkmcnt(0)")
        self.stamp(13)
        e("s_barrier")
        e("s_branch L_b1w8")
        e("L_b1w:")
        e("v_mul_u32_u24 v15, 1152, v2\nv_add_u32 v15, s64, v15")
        e("v_lshlrev_b32 v12, 5, v3\ns_lshl_b32 s65, s30, 7\nv_add_u32 v12, s65, v12\nv_add_u32 v15, v15, v12")
        if o.get("fast", True):
            e(f"s_lshl_b32 s64, s28, 14\ns_lshl_b32 s65, s30, 11\ns_add_u32 s64, s64, s65\ns_add_u32 s64, s64, {H2F}\nv_add_u32 v6, s64, v8\nv_add_u32 v14, 1024, v6")
        else: e("v_mov_b32 v6, v15\nv_add_u32 v14, 16, v15")
        def h2loads():
            e("global_load_dwordx4 v[64:67], v6, s[26:27] sc1\nglobal_load_dwordx4 v[68:71], v14, s[26:27] sc1")
        e("v_lshlrev_b32 v10, 3, v3\nv_bfe_u32 v12, v1, 2, 2\nv_add_u32 v10, v10, v12\nv_mul_u32_u24 v10, 192, v10\nv_and_b32 v12, 3, v1\nv_lshlrev_b32 v12, 3, v12\nv_add_u32 v10, v10, v12")
        e(f"s_mul_i32 s65, s30, 6144\ns_add_u32 s65, s65, {WB}\nv_add_u32 v10, s65, v10")
        e("v_and_b32 v12, 1, v3\nv_lshlrev_b32 v12, 5, v12\nv_add_u32 v11, v10, v12\nv_sub_u32 v10, v10, v12")
        e("s_lshr_b32 s65, s30, 2\ns_lshl_b32 s65, s65, 6\nv_lshlrev_b32 v9, 2, v2\nv_add_u32 v9, s65, v9")
        e(f"v_lshlrev_b32 v13, 4, v3\ns_mul_i32 s65, s30, 384\nv_add_u32 v13, s65, v13")
        self.stamp(5)
        e("s_waitcnt vmcnt(0)")
        e("s_barrier")
        self.stamp(8)
        e(f"ds_read_b32 v72, v9 offset:{SC}")
        for tau in range(6):
            a = "v11" if tau % 2 == 0 else "v10"
            e(f"ds_read_b64_tr_b16 v[{32+4*tau}:{33+4*tau}], {a} offset:{32*tau}")
            e(f"ds_read_b64_tr_b16 v[{34+4*tau}:{35+4*tau}], {a} offset:{32*tau + 768}")
        if o.get("h2sleep", 0): e(f"s_sleep {o.get('h2sleep', 0)}")
        e("s_mov_b32 s66, 0")
        h2loads()
        e("L_h2loop:")
        e("s_waitcnt vmcnt(0)")
        self.validate([64, 68], "v100", "v101")
        self.spin_fast("L_h2ok", "h2", o.get("h2retry", 0), switch="v_mov_b32 v6, v15\nv_add_u32 v14, 16, v15")
        h2loads()
        e("s_branch L_h2loop")
        e("L_h2ok:")
        self.note(13, "s66")
        self.stamp(9)
        e("s_waitcnt lgkmcnt(0)")
        for k in range(8): e(f"v_mul_f32 v{64+k}, v72, v{64+k}")
        self.row_allreduce("v_add_f32", [f"v{64+k}" for k in range(8)])
        for k in range(4): e(f"v_cvt_pk_bf16_f32 v{76+k}, v{64+2*k}, v{65+2*k}")
        e("s_waitcnt lgkmcnt(0)")
        for tau in range(6):
            e(f"v_mfma_f32_16x16x32_bf16 v[{80+4*tau}:{83+4*tau}], v[{32+4*tau}:{35+4*tau}], v[76:79], 0")
        e("s_mov_b32 s64, 0x00010001\ns_mov_b32 s65, 0x00010001\ns_mov_b64 exec, s[64:65]")
        for tau in range(6):
            e(f"ds_write_b128 v13, v[{80+4*tau}:{83+4*tau}] offset:{WR + 64*tau}")
        e("s_mov_b64 exec, -1")
        e("L_b1w8:")
        e("s_waitcnt lgkmcnt(0)\ns_barrier")
        e("s_cmp_lt_u32 s30, 3\ns_cbranch_scc0 L_b1pubdone")
        e("v_and_b32 v6, 7, v1\nv_lshlrev_b32 v6, 4, v6\nv_lshrrev_b32 v12, 3, v1\nv_mul_u32_u24 v12, 384, v12\nv_add_u32 v6, v6, v12\ns_lshl_b32 s64, s30, 7\nv_add_u32 v6, s64, v6")
        e(f"ds_read_b128 v[16:19], v6 offset:{WR}")
        e(f"s_mul_i32 s64, s28, 2304\ns_sub_u32 s65, s29, 9\ns_mul_i32 s65, s65, 384\ns_add_u32 s64, s64, s65\ns_lshl_b32 s65, s30, 7\ns_add_u32 s64, s64, s65\ns_add_u32 s64, s64, {H3}")
        e("v_and_b32 v6, 7, v1\nv_lshlrev_b32 v6, 4, v6\nv_add_u32 v6, s64, v6")
        e("s_waitcnt lgkmcnt(0)")
        self.reduce_stride8(16, 20)
        self.tagins(16)
        e("s_mov_b64 exec, 0xff")
        e("global_store_dwordx4 v6, v[16:19], s[26:27] sc1")
        e("s_mov_b64 exec, -1")
        e("L_b1pubdone:")
        self.mile("b1pub", 0)
        self.stamp(10)
        e("s_sub_u32 s32, s29, 9\ns_cmp_lt_u32 s32, 2\ns_cbranch_scc0 L_rho2\ns_lshl_b32 s64, s28, 1\ns_add_u32 s32, s32, s64\ns_branch L_reducer")
        e("L_rho2:\ns_cmp_eq_u32 s32, 2\ns_cbranch_scc0 L_fin\ns_cmp_lt_u32 s28, 4\ns_cbranch_scc0 L_fin\ns_add_u32 s32, s28, 32")
        e("L_reducer:")
        e("s_cmp_eq_u32 s30, 0\ns_cbranch_scc0 L_redh4")
        e(f"v_lshrrev_b32 v6, 2, v1\nv_mul_u32_u24 v6, 2304, v6\nv_and_b32 v12, 3, v1\nv_lshlrev_b32 v12, 4, v12\nv_add_u32 v6, v6, v12\ns_lshl_b32 s64, s32, 6\ns_add_u32 s64, s64, {H3}\nv_add_u32 v6, s64, v6")
        e("v_and_b32 v12, 3, v1\nv_lshlrev_b32 v12, 3, v12\ns_lshl_b32 s64, s32, 5\nv_add_u32 v12, s64, v12")
        e("buffer_load_dwordx2 v[40:41], v12, s[36:39], 0 offen")
        if o.get("rh3sleep", 8): e(f"s_sleep {o.get('rh3sleep', 8)}")
        e("s_mov_b32 s66, 0")
        e("L_rh3loop:")
        e("global_load_dwordx4 v[32:35], v6, s[26:27] sc1\ns_waitcnt vmcnt(0)")
        self.validate([32], "v100", "v101")
        self.spin_tail("L_rh3ok", "L_rh3loop", 4)
        e("s_branch L_rh3loop")
        e("L_rh3ok:")
        for r in range(4): e(f"v_and_b32 v{32+r}, 0xffffff00, v{32+r}")
        self.reduce_stride4(32, 36)
        e("v_lshlrev_b32 v44, 16, v40\nv_and_b32 v45, 0xffff0000, v40\nv_lshlrev_b32 v46, 16, v41\nv_and_b32 v47, 0xffff0000, v41")
        for r in range(4):
            self.Rnd(f"v{32+r}", f"v{32+r}")
            e(f"v_add_f32 v{44+r}, v{44+r}, v{32+r}")
            self.Rnd(f"v{44+r}", f"v{44+r}")
        e("L_redh4:")
        e("s_barrier")
        self.stamp(12)
        e(f"v_lshrrev_b32 v6, 2, v0\nv_mul_u32_u24 v6, 2304, v6\nv_and_b32 v12, 3, v0\nv_lshlrev_b32 v12, 4, v12\nv_add_u32 v6, v6, v12\ns_lshl_b32 s64, s32, 6\ns_add_u32 s64, s64, {H4}\nv_add_u32 v6, s64, v6")
        for k in range(o.get("h4sleepN", 1)): e(f"s_sleep {o.get('h4sleep', 40)}")
        e("s_mov_b32 s66, 0")
        e("L_h4loop:")
        e("global_load_dwordx4 v[32:35], v6, s[26:27] sc1\ns_waitcnt vmcnt(0)")
        self.validate([32], "v100", "v101")
        self.spin_tail("L_h4ok", "L_h4loop", o.get("h4retry", 4))
        e("s_branch L_h4loop")
        e("L_h4ok:")
        self.mile("h4ok", 0)
        self.note(14, "s66")
        self.stamp(11)
        for r in range(4): e(f"v_and_b32 v{32+r}, 0xffffff00, v{32+r}")
        self.reduce_stride4(32, 36)
        e(f"v_and_b32 v6, 3, v1\nv_lshlrev_b32 v6, 4, v6\ns_lshl_b32 s64, s30, 6\nv_add_u32 v6, s64, v6")
        e("s_mov_b64 exec, 0xf")
        e(f"ds_write_b128 v6, v[32:35] offset:{FR}")
        e("s_mov_b64 exec, -1")
        e("s_waitcnt lgkmcnt(0)\ns_barrier")
        e("s_cmp_eq_u32 s30, 0\ns_cbranch_scc0 L_fin")
        e("v_and_b32 v6, 3, v1\nv_lshlrev_b32 v6, 4, v6\nv_lshrrev_b32 v12, 2, v1\nv_lshlrev_b32 v12, 6, v12\nv_add_u32 v6, v6, v12")
        for r in range(4): e(f"v_mov_b32 v{32+r}, 0")
        e("s_mov_b32 exec_lo, -1\ns_mov_b32 exec_hi, 0xf")
        e(f"ds_read_b128 v[32:35], v6 offset:{FR}")
        e("s_mov_b64 exec, -1")
        e("s_mov_b32 s52, s22\ns_mov_b32 s53, s23\ns_movk_i32 s54, 1152\ns_mov_b32 s55, 0x20000")
        e("v_and_b32 v6, 3, v1\nv_lshlrev_b32 v6, 3, v6\ns_lshl_b32 s64, s32, 5\nv_add_u32 v6, s64, v6")
        e("s_waitcnt lgkmcnt(0)")
        self.reduce_stride4(32, 36)
        for r in range(4):
            self.Rnd(f"v{32+r}", f"v{32+r}")
            e(f"v_add_f32 v{32+r}, v{44+r}, v{32+r}")
        e("v_cvt_pk_bf16_f32 v32, v32, v33\nv_cvt_pk_bf16_f32 v33, v34, v35")
        e("s_mov_b64 exec, 0xf")
        e("buffer_store_dwordx2 v[32:33], v6, s[52:55], 0 offen")
        e("s_mov_b64 exec, -1")
        e("s_cmp_eq_u32 s32, 0\ns_cbranch_scc0 L_fin")
        e("v_mov_b32 v6, 0\ns_mov_b64 exec, 1\nglobal_store_dword v6, v7, s[26:27] sc1\ns_mov_b64 exec, -1")
        if o.get("amp"):
            e(f"s_memrealtime s[92:93]\nv_lshlrev_b32 v6, 4, v1\nv_add_u32 v6, {0x300000}, v6")
            e("global_load_dwordx4 v[32:35], v6, s[26:27] sc1\nglobal_load_dwordx4 v[36:39], v6, s[26:27] offset:1024 sc1\ns_waitcnt vmcnt(0) lgkmcnt(0)")
            for k in range(8): e(f"v_subrev_u32 v{32+k}, s92, v{32+k}")
            e("v_min_i32 v32, v32, v33\nv_min_i32 v34, v34, v35\nv_min_i32 v32, v32, v34\nv_max_i32 v36, v36, v37\nv_max_i32 v38, v38, v39\nv_max_i32 v36, v36, v38")
            for st in (8, 4, 2, 1):
                e(f"v_min_i32_dpp v32, v32, v32 row_ror:{st} row_mask:0xf bank_mask:0xf\nv_max_i32_dpp v36, v36, v36 row_ror:{st} row_mask:0xf bank_mask:0xf")
            e("s_nop 4")
            for q in range(4): e(f"v_readlane_b32 s{40+q}, v32, {16*q}\nv_readlane_b32 s{44+q}, v36, {16*q}")
            e("s_nop 4\ns_min_i32 s40, s40, s41\ns_min_i32 s42, s42, s43\ns_min_i32 s40, s40, s42\ns_max_i32 s44, s44, s45\ns_max_i32 s46, s46, s47\ns_max_i32 s44, s44, s46")
            if o["amp"] == "tot": e("s_sub_u32 s65, 0, s40")
            else: e("s_sub_u32 s65, s44, s40")
            e(f"s_min_u32 s65, s65, 5000\ns_mul_i32 s65, s65, {o.get('ampk', 2)}\ns_add_u32 s65, s65, s92")
            e("L_ampspin:\ns_memrealtime s[66:67]\ns_waitcnt lgkmcnt(0)\ns_sub_u32 s66, s66, s65\ns_cmp_lt_i32 s66, 0\ns_cbranch_scc1 L_ampspin")
        e("s_branch L_fin")

    def roleA(self):
        e = self.e; o = self.o
        e("s_setprio 0")
        e("s_mul_i32 s32, s28, 9\ns_add_u32 s32, s32, s29")
        e(f"s_lshl_b32 s69, s30, 12\ns_add_u32 s69, s69, {WB}")
        e("v_lshlrev_b32 v4, 2, v2\nv_add_u32 v4, v4, v3")
        e("s_lshl_b32 s34, s30, 6\nv_add_u32 v10, s34, v4\nv_lshlrev_b32 v10, 1, v10")
        e("buffer_load_ushort v126, v10, s[36:39], 0 offen")
        e(f"v_mov_b32 v12, 0x3f803f80\nv_lshlrev_b32 v10, 2, v1\ns_mov_b32 exec_lo, -1\ns_mov_b32 exec_hi, 0\nds_write_b32 v10, v12 offset:{ONES}\ns_mov_b64 exec, -1")
        e(f"v_mul_u32_u24 v128, 2304, v3\nv_lshlrev_b32 v12, 4, v2\nv_add_u32 v128, v128, v12\ns_lshl_b32 s64, s30, 8\ns_add_u32 s64, s64, {H3}\nv_add_u32 v128, s64, v128")
        e("v_add_u32 v129, 9216, v128\nv_add_u32 v130, 18432, v128\nv_add_u32 v131, 27648, v128")
        e(f"s_lshl_b32 s64, s30, 7\ns_add_u32 s64, s64, {HNL}\nv_lshlrev_b32 v132, 1, v4\nv_add_u32 v132, s64, v132")
        e(f"v_lshlrev_b32 v133, 4, v3\nv_add_u32 v12, s64, v133\nv_add_u32 v133, {ONES}, v133\nv_cmp_eq_u32 vcc, 1, v2\nv_cndmask_b32 v133, v12, v133, vcc")
        e(f"s_lshl_b32 s64, s30, 9\ns_add_u32 s64, s64, {MR}\nv_lshlrev_b32 v134, 4, v3\nv_lshlrev_b32 v12, 8, v2\nv_add_u32 v134, v134, v12\nv_add_u32 v134, s64, v134")
        e(f"v_lshlrev_b32 v135, 4, v2\nv_lshlrev_b32 v12, 9, v3\nv_add_u32 v135, v135, v12\nv_add_u32 v135, {MR}, v135")
        e(f"s_lshl_b32 s64, s30, 6\ns_add_u32 s64, s64, {HHL}\nv_lshlrev_b32 v136, 1, v4\nv_add_u32 v136, s64, v136\nv_lshlrev_b32 v137, 4, v3\nv_add_u32 v137, s64, v137")
        e(f"s_mul_i32 s64, s32, 2304\ns_lshl_b32 s65, s30, 8\ns_add_u32 s64, s64, s65\ns_add_u32 s64, s64, {H4}")
        e("v_bfe_u32 v138, v1, 2, 2\nv_lshlrev_b32 v138, 6, v138\nv_lshlrev_b32 v12, 4, v3\nv_add_u32 v138, v138, v12\nv_add_u32 v138, s64, v138")
        e(f"v_lshlrev_b32 v140, 2, v1\nv_add_u32 v140, {ST2}, v140\ns_lshl_b32 s64, s30, 2\nv_add_u32 v139, s64, v140")
        e("v_lshlrev_b32 v10, 3, v3\nv_bfe_u32 v12, v1, 2, 2\nv_add_u32 v5, v10, v12\nv_lshlrev_b32 v10, 6, v5\nv_and_b32 v12, 3, v1\nv_lshlrev_b32 v12, 3, v12\nv_add_u32 v10, v10, v12\nv_add_u32 v10, s69, v10")
        e("v_lshlrev_b32 v13, 7, v5\nv_add_u32 v13, v13, v12")
        e("v_and_b32 v12, 1, v3\nv_lshlrev_b32 v12, 5, v12\nv_add_u32 v11, v10, v12\nv_xor_b32 v12, 32, v12\nv_add_u32 v10, v10, v12")
        e("v_bfe_u32 v12, v1, 3, 1\nv_and_b32 v5, 1, v3\nv_lshlrev_b32 v5, 1, v5\nv_or_b32 v12, v12, v5\nv_lshlrev_b32 v12, 5, v12\nv_add_u32 v13, v13, v12")
        e(f"s_add_u32 s65, s69, {2*36864}\nv_add_u32 v13, s65, v13")
        for r in range(8): e(f"v_mov_b32 v{144+r}, 0")
        e("v_mov_b32 v152, 0\nv_mov_b32 v153, 0x3ae38e39")
        e("s_mov_b32 s52, 0x00030003\ns_mov_b32 s53, 0x00030003\ns_mov_b32 s54, 0x00ff00ff\ns_mov_b32 s55, 0x00ff00ff\ns_mov_b32 s70, 0x11111111\ns_mov_b32 s71, 0x11111111")
        self.stamp(8)
        e("s_cmp_ge_u32 s30, 4\ns_cbranch_scc0 L_aw0\ns_cmp_lt_u32 s30, 8\ns_cbranch_scc0 L_aw0\ns_waitcnt vmcnt(%d)\ns_branch L_aw1\nL_aw0:\ns_waitcnt vmcnt(0)\nL_aw1:" % (1 if (o.get("wdfirst", False) and "u" in o.get("pfw", "og")) else 9))
        e("s_waitcnt lgkmcnt(0)\ns_barrier")
        def trw(m):
            lo = 36864*m
            for s in range(2):
                for tau in range(2):
                    fr = 32 + 16*m + 8*s + 4*tau
                    a = "v11" if tau == 0 else "v10"
                    off = lo + 2048*s
                    e(f"ds_read_b64_tr_b16 v[{fr}:{fr+1}], {a} offset:{off}")
                    e(f"ds_read_b64_tr_b16 v[{fr+2}:{fr+3}], {a} offset:{off+256}")
        trw(0)
        if o.get("h3sleep", 0): e(f"s_sleep {o['h3sleep']}")
        for i in range(4): e(f"global_load_dwordx4 v[{80+4*i}:{83+4*i}], v{128+i}, s[26:27] sc1")
        e("s_waitcnt lgkmcnt(0)")
        trw(1)
        e("s_mov_b32 s66, 0")
        e("L_h3loop:")
        e("s_waitcnt vmcnt(0)")
        for i in range(4):
            gb = 80 + 4*i
            e(f"v_perm_b32 v100, v{gb+1}, v{gb}, s62\nv_perm_b32 v101, v{gb+3}, v{gb+2}, s63\nv_or_b32 v100, v100, v101")
            e(f"v_cmp_ne_u32 s[{40+2*i}:{41+2*i}], v100, v7")
        e("s_or_b64 s[48:49], s[40:41], s[42:43]\ns_or_b64 s[50:51], s[44:45], s[46:47]\ns_or_b64 s[48:49], s[48:49], s[50:51]")
        e("s_cbranch_scc0 L_h3ok")
        e("s_add_u32 s66, s66, 1\ns_cmp_gt_u32 s66, %d\ns_cbranch_scc1 L_h3ok" % o.get("maxspin", 20000))
        if o.get("h3retry", 1): e(f"s_sleep {o.get('h3retry', 1)}")
        for i in range(4):
            e(f"s_mov_b64 exec, s[{40+2*i}:{41+2*i}]\ns_cbranch_execz L_h3s{i}")
            e(f"global_load_dwordx4 v[{80+4*i}:{83+4*i}], v{128+i}, s[26:27] sc1")
            e(f"L_h3s{i}:")
        e("s_mov_b64 exec, -1\ns_branch L_h3loop")
        e("L_h3ok:")
        self.mile("h3ok", 0)
        self.note(13, "s66")
        self.stamp(9)
        e("v_lshlrev_b32 v126, 16, v126")
        for r in range(4):
            e(f"v_add_f32 v{80+r}, v{80+r}, v{84+r}\nv_add_f32 v{88+r}, v{88+r}, v{92+r}")
        for r in range(4): e(f"v_add_f32 v{80+r}, v{80+r}, v{88+r}")
        self.xrow_transpose_reduce(80)
        self.Rnd("v80", "v80")
        e("v_fma_f32 v80, v126, 1.0, v80") if False else e("v_add_f32 v80, v126, v80")
        e("v_cvt_pk_bf16_f32 v81, v80, v80")
        e("ds_write_b16 v132, v81")
        e("v_and_b32 v82, 0xffff0000, v81")
        e("v_mul_f32 v83, v82, v82")
        e("v_add_f32_dpp v82, v82, v82 row_ror:8 row_mask:0xf bank_mask:0xf")
        e("v_add_f32_dpp v83, v83, v83 row_ror:8 row_mask:0xf bank_mask:0xf")
        e("s_waitcnt lgkmcnt(0)")
        e("ds_read_b128 v[84:87], v133\nds_read_b128 v[88:91], v133 offset:64")
        self.row_allreduce("v_add_f32", ["v82", "v83"], steps=(4, 2, 1))
        e("v_permlane16_swap_b32 v82, v83\nv_add_f32 v82, v82, v83\nv_mov_b32 v83, v82\nv_permlane32_swap_b32 v82, v83\nv_add_f32 v82, v82, v83")
        e("s_waitcnt lgkmcnt(0)")
        for s in range(2):
            for m in range(2):
                for tau in range(2):
                    fr = 32 + 16*m + 8*s + 4*tau; d = 96 + 8*m + 4*tau
                    e(f"v_mfma_f32_16x16x32_bf16 v[{d}:{d+3}], v[{fr}:{fr+3}], v[{84+4*s}:{87+4*s}], {'0' if s==0 else f'v[{d}:{d+3}]'}")
        e("s_mov_b64 exec, 0x10001")
        e("ds_write_b32 v139, v82")
        e("s_mov_b64 exec, s[52:53]")
        for k in range(4):
            e(f"ds_write_b128 v134, v[{96+4*k}:{99+4*k}] offset:{64*k}")
        e("s_mov_b64 exec, 0x01ff01ff")
        self.stamp(10)
        e("s_waitcnt vmcnt(0) lgkmcnt(0)\ns_barrier")
        e("ds_read_b32 v152, v140")
        e("s_mov_b64 exec, -1")
        e("ds_read_b128 v[84:87], v135\nds_read_b128 v[88:91], v135 offset:2048")
        e("ds_read_b128 v[100:103], v135 offset:256\nds_read_b128 v[104:107], v135 offset:2304")
        e("s_mov_b64 exec, 0xffff")
        e("ds_read_b128 v[144:147], v135 offset:4096\nds_read_b128 v[148:151], v135 offset:4352")
        e("s_mov_b64 exec, -1")
        for tau in range(4):
            e(f"v_xor_b32 v12, {32*tau}, v13")
            e(f"ds_read_b64_tr_b16 v[{64+4*tau}:{65+4*tau}], v12\nds_read_b64_tr_b16 v[{66+4*tau}:{67+4*tau}], v12 offset:512")
        e("s_waitcnt lgkmcnt(8)")
        def dpp(st): e(f"v_add_f32_dpp v152, v152, v152 row_ror:{st} row_mask:0xf bank_mask:0xf")
        dpp(8)
        e("v_add_f32 v84, v84, v88\nv_add_f32 v100, v100, v104")
        dpp(4)
        e("v_add_f32 v85, v85, v89\nv_add_f32 v101, v101, v105")
        dpp(2)
        e("v_add_f32 v86, v86, v90\nv_add_f32 v102, v102, v106")
        dpp(1)
        e("v_add_f32 v87, v87, v91\nv_add_f32 v103, v103, v107")
        e("v_readlane_b32 s64, v152, 0\nv_readlane_b32 s65, v152, 16")
        e("v_add_f32 v84, v84, v144\nv_add_f32 v100, v100, v148")
        e("v_mul_f32 v112, s64, v153\nv_mul_f32 v113, s65, v153")
        e("v_add_f32 v85, v85, v145\nv_add_f32 v101, v101, v149")
        e("v_fma_f32 v113, -v112, v112, v113")
        e("v_add_f32 v86, v86, v146\nv_add_f32 v102, v102, v150")
        e("v_max_f32 v113, 0, v113")
        e("v_add_f32 v87, v87, v147\nv_add_f32 v103, v103, v151")
        e("v_cvt_pk_bf16_f32 v113, v113, v113\nv_cvt_pk_bf16_f32 v112, v112, v112")
        e("v_permlane16_swap_b32 v84, v85")
        e("v_and_b32 v113, 0xffff0000, v113\nv_and_b32 v112, 0xffff0000, v112")
        e("v_permlane16_swap_b32 v86, v87")
        e("v_add_f32 v113, 0x3727c5ac, v113")
        e("v_permlane16_swap_b32 v100, v101")
        e("v_cvt_pk_bf16_f32 v113, v113, v113")
        e("v_permlane16_swap_b32 v102, v103")
        e("v_and_b32 v113, 0xffff0000, v113")
        e("v_add_f32 v84, v84, v85\nv_add_f32 v86, v86, v87")
        e("v_sqrt_f32 v113, v113")
        e("v_add_f32 v100, v100, v101\nv_add_f32 v102, v102, v103")
        e("v_cvt_pk_bf16_f32 v113, v113, v113")
        e("v_permlane32_swap_b32 v84, v86")
        e("v_and_b32 v113, 0xffff0000, v113")
        e("v_permlane32_swap_b32 v100, v102")
        e("v_rcp_f32 v114, v113")
        e("v_add_f32 v84, v84, v86\nv_add_f32 v100, v100, v102")
        e("v_fma_f32 v84, -v112, v100, v84")
        e("v_mul_f32 v85, v84, v114\nv_fma_f32 v86, -v85, v113, v84\nv_fma_f32 v85, v86, v114, v85")
        self.Rnd("v84", "v85")
        e("v_mov_b32_dpp v85, v84 row_ror:8 row_mask:0xf bank_mask:0xf")
        e("v_max_f32 v86, 0, v84\nv_mul_f32 v86, v86, v85\nv_cvt_pk_bf16_f32 v86, v86, v86")
        e("s_mov_b64 exec, s[54:55]")
        e("ds_write_b16 v136, v86")
        e("s_mov_b64 exec, -1")
        e("s_waitcnt lgkmcnt(0)")
        e("ds_read_b128 v[84:87], v137")
        e("s_waitcnt lgkmcnt(0)")
        for tau in range(4):
            e(f"v_mfma_f32_16x16x32_bf16 v[{96+4*tau}:{99+4*tau}], v[{64+4*tau}:{67+4*tau}], v[84:87], 0")
        for tau in range(1, 4):
            for r in range(4):
                e(f"v_mov_b32_dpp v{96+r}, v{96+4*tau+r} quad_perm:[0,1,2,3] row_mask:0xf bank_mask:{1<<tau:#x}")
        self.tagins(96)
        e("s_mov_b64 exec, s[70:71]")
        e("global_store_dwordx4 v138, v[96:99], s[26:27] sc1")
        e("s_mov_b64 exec, -1")
        self.mile("apub", 0)
        self.stamp(11)

def build(opt=None):
    opt = opt or {}
    g = G(opt)
    body = g.gen()
    name = NAME + "_kernel"
    txt = HEADER + "; Override launch geometry by editing the next line (default: block=256,\n; grid=ceil(out_elems/256), lds=0). Harness parses it; keep it on one line.\n"
    txt += f"; @launch grid=(256,1,1) block=(576,1,1) lds={LDS_BYTES}\n"
    txt += f""".amdgcn_target "amdgcn-amd-amdhsa--gfx950"
.text
.globl {name}
.p2align 8
.type {name},@function
{name}:
{body}.section .rodata,"a"
.p2align 6
.amdhsa_kernel {name}
  .amdhsa_next_free_vgpr 168
  .amdhsa_next_free_sgpr 96
  .amdhsa_accum_offset 168
  .amdhsa_group_segment_fixed_size 0
  .amdhsa_kernarg_size 96
  .amdhsa_user_sgpr_count 2
  .amdhsa_user_sgpr_kernarg_segment_ptr 1
  .amdhsa_system_sgpr_workgroup_id_x 1
.end_amdhsa_kernel
"""
    return txt, g
if __name__ == "__main__":
    import json
    opt = json.loads(sys.argv[2]) if len(sys.argv) > 2 else {}
    txt, g = build(opt)
    open(sys.argv[1], "w").write(txt)
    print("instrs", g.e.count, "nops", g.e.nops)
```

```python
import sys
sys.path.insert(0, "work")
from emit import E
NAME = "sequential_preLN__sliding_block_cached__glu_gated_reglu__decode"
HEADER = open("cdna_kernels/" + NAME + ".s.ref").read().split("; Override launch geometry")[0]

H1 = 0x10000; H2 = 0x40000; H3 = 0x90000; H4 = 0xA0000; TS = 0x400000; H3CHK = 0x200000
FAST = 0x100000
H2F = 0x180000
STF = 0x1C0000
H3R = 0x200000
H3S = 0x9000
XT = 0
FL = 256
QB = 512
MX = 1024
LS = 1056
PL = 1280
OP = 2560
ST2 = 6656
HNL = 6784
MR = 7936
HHL = 12544
ONES = 13120
WR = 6656
SC = 10816
FR = 9728
WB = 13312
LDS_BYTES = WB + 3 * 36864

class G:
    def __init__(self, opt):
        self.o = opt; self.e = E(); self.uid = 0
    def stamp(self, k):
        if not self.o.get("stamps"): return
        if self.o.get("stamps") == "min" and k != 15: return
        e = self.e
        e(f"s_memrealtime s[90:91]\ns_waitcnt lgkmcnt(0)\nv_writelane_b32 v127, s90, {k}")
    def mile(self, name, wave=None):
        if self.o.get("amp") != name: return
        e = self.e; self.uid += 1
        if wave is not None: e(f"s_cmp_eq_u32 s30, {wave}\ns_cbranch_scc0 L_ml{self.uid}")
        e(f"s_memrealtime s[92:93]\ns_lshl_b32 s94, s2, 2\ns_add_u32 s94, s94, {0x300400}\ns_waitcnt lgkmcnt(0)\nv_mov_b32 v124, s92\nv_mov_b32 v125, s94")
        e("s_mov_b64 s[94:95], exec\ns_mov_b64 exec, 1\nglobal_store_dword v125, v124, s[26:27] sc1\ns_mov_b64 exec, s[94:95]")
        e(f"L_ml{self.uid}:")
    def note(self, k, sreg):
        if self.o.get("stamps") and self.o.get("stamps") != "min": self.e(f"v_writelane_b32 v127, {sreg}, {k}")
    def Rnd(self, d, s):
        self.e(f"v_cvt_pk_bf16_f32 {d}, {s}, {s}")
        self.e(f"v_and_b32 {d}, 0xffff0000, {d}")
    def row_allreduce(self, op, vs, steps=(8, 4, 2, 1)):
        for st in steps:
            for v in vs:
                self.e(f"{op}_dpp {v}, {v}, {v} row_ror:{st} row_mask:0xf bank_mask:0xf")
    def tagins(self, v4):
        for k in range(4):
            self.e(f"v_perm_b32 v{v4+k}, v{v4+k}, v7, s{56+k}")
    def dual_store(self, vaddr, data, vfast=None):
        e = self.e
        if self.o.get("fast", True):
            if vfast is None:
                e(f"v_add_u32 v125, {FAST}, {vaddr}"); vfast = "v125"
            e(f"global_store_dwordx4 {vfast}, {data}, s[26:27]")
        e(f"global_store_dwordx4 {vaddr}, {data}, s[26:27] sc1")
    def spin_fast(self, okl, tag, sleep, addrs=None, switch=None):
        e = self.e; o = self.o
        e(f"s_cbranch_vccz {okl}")
        e("s_add_u32 s66, s66, 1\ns_cmp_gt_u32 s66, %d\ns_cbranch_scc1 %s" % (o.get("maxspin", 20000), okl))
        if o.get("fast", True):
            e(f"s_cmp_eq_u32 s66, {o.get('nfast', 24)}\ns_cbranch_scc0 L_{tag}keep")
            if addrs:
                for a in addrs: e(f"v_subrev_u32 {a}, {FAST}, {a}")
            if switch: e(switch)
            e(f"L_{tag}keep:")
        if sleep: e(f"s_sleep {sleep}")
    def validate(self, grans, t0, t1):
        e = self.e
        for i, gb in enumerate(grans):
            e(f"v_perm_b32 {t0}, v{gb+1}, v{gb}, s62")
            e(f"v_perm_b32 {t1}, v{gb+3}, v{gb+2}, s63")
            e(f"v_or_b32 {t0}, {t0}, {t1}")
            e(f"v_cmp_ne_u32 vcc, {t0}, v7")
            if len(grans) > 1:
                if i == 0: e("s_mov_b64 s[60:61], vcc")
                else: e("s_or_b64 s[60:61], s[60:61], vcc")
        if len(grans) > 1: e("s_mov_b64 vcc, s[60:61]")
    def spin_tail(self, okl, loopl, sleep):
        e = self.e
        e(f"s_cbranch_vccz {okl}")
        e("s_add_u32 s66, s66, 1\ns_cmp_gt_u32 s66, %d\ns_cbranch_scc1 %s" % (self.o.get("maxspin", 20000), okl))
        if sleep: e(f"s_sleep {sleep}")
    def masks(self):
        e = self.e
        e("v_and_b32 v6, 1, v1\nv_lshlrev_b32 v6, 4, v6\nv_mov_b32 v12, 0xffff\nv_lshlrev_b32 v12, v6, v12")
        e("v_bfe_u32 v6, v1, 1, 2")
        for r in range(4):
            e(f"v_cmp_eq_u32 vcc, {r}, v6\nv_cndmask_b32 v{120+r}, 0, v12, vcc")
    def consts(self):
        e = self.e
        e("s_mov_b32 s56, 0x07060500\ns_mov_b32 s57, 0x07060501\ns_mov_b32 s58, 0x07060502\ns_mov_b32 s59, 0x07060503")
        e("s_mov_b32 s62, 0x0c0c0400\ns_mov_b32 s63, 0x04000c0c")
    def epoch(self):
        e = self.e
        e("s_waitcnt lgkmcnt(0)")
        e("s_mul_i32 s31, s31, 0x19660d\ns_add_u32 s31, s31, 0x3c6ef35f\nv_mov_b32 v7, s31")
    def ln_scalars(self, s1, s2, vm, vs, vr):
        e = self.e
        e(f"s_mov_b32 s68, 0x3ae38e39")
        e(f"v_mov_b32 {vm}, {s1}\nv_mov_b32 {vs}, {s2}\nv_mul_f32 {vm}, s68, {vm}\nv_mul_f32 {vs}, s68, {vs}")
        e(f"v_fma_f32 {vs}, -{vm}, {vm}, {vs}")
        e(f"v_max_f32 {vs}, 0, {vs}")
        self.Rnd(vs, vs); self.Rnd(vm, vm)
        e(f"v_add_f32 {vs}, 0x3727c5ac, {vs}")
        self.Rnd(vs, vs)
        e(f"v_sqrt_f32 {vs}, {vs}")
        self.Rnd(vs, vs)
        e(f"v_rcp_f32 {vr}, {vs}")
    def ln_apply(self, x, vm, vs, vr, t0, t1):
        e = self.e
        e(f"v_sub_f32 {x}, {x}, {vm}")
        self.Rnd(x, x)
        e(f"v_mul_f32 {t0}, {x}, {vr}")
        e(f"v_fma_f32 {t1}, -{t0}, {vs}, {x}")
        e(f"v_fma_f32 {t0}, {t1}, {vr}, {t0}")
        e(f"v_cvt_pk_bf16_f32 {x}, {t0}, {t0}")
    def reduce_stride8(self, v, t):
        e = self.e
        for r in range(4): e(f"v_add_f32_dpp v{v+r}, v{v+r}, v{v+r} row_ror:8 row_mask:0xf bank_mask:0xf")
        self.xrow_allreduce(v, t)
    def xrow_allreduce(self, v, t):
        e = self.e
        for r in range(4): e(f"v_mov_b32 v{t+r}, v{v+r}")
        for r in range(4): e(f"v_permlane16_swap_b32 v{v+r}, v{t+r}")
        for r in range(4): e(f"v_add_f32 v{v+r}, v{v+r}, v{t+r}")
        for r in range(4): e(f"v_mov_b32 v{t+r}, v{v+r}")
        for r in range(4): e(f"v_permlane32_swap_b32 v{v+r}, v{t+r}")
        for r in range(4): e(f"v_add_f32 v{v+r}, v{v+r}, v{t+r}")
    def reduce_stride4(self, v, t):
        e = self.e
        for st in (8, 4):
            for r in range(4): e(f"v_add_f32_dpp v{v+r}, v{v+r}, v{v+r} row_ror:{st} row_mask:0xf bank_mask:0xf")
        self.xrow_allreduce(v, t)
    def xrow_transpose_reduce(self, v):
        e = self.e
        e(f"v_permlane16_swap_b32 v{v}, v{v+1}\nv_permlane16_swap_b32 v{v+2}, v{v+3}")
        e(f"v_add_f32 v{v}, v{v}, v{v+1}\nv_add_f32 v{v+2}, v{v+2}, v{v+3}")
        e(f"v_permlane32_swap_b32 v{v}, v{v+2}")
        e(f"v_add_f32 v{v}, v{v}, v{v+2}")

    def gen(self):
        e = self.e; o = self.o
        nt = o.get("kvflag", "nt")
        e("L_start:")
        if o.get("amp") and o.get("ampentry"): e("s_memrealtime s[94:95]")
        e("s_cmp_ge_u32 s2, 256\ns_cbranch_scc1 L_end")
        e("s_load_dwordx16 s[4:19], s[0:1], 0\ns_load_dwordx8 s[20:27], s[0:1], 64")
        if o.get("codepf", True):
            e("s_getpc_b64 s[64:65]")
            e("L_pfbase:")
            e("s_lshr_b32 s66, s2, 3\ns_lshl_b32 s66, s66, 9\nv_lshlrev_b32 v6, 7, v0\nv_add_u32 v6, s66, v6\nv_min_u32 v6, L_end-L_pfbase, v6")
            e("v_cmp_gt_u32 vcc, 4, v0\ns_and_saveexec_b64 s[66:67], vcc\ns_cbranch_execz L_pfskip")
            e("global_load_dword v124, v6, s[64:65]")
            e("L_pfskip:\ns_mov_b64 exec, s[66:67]")
        if o.get("stamps"): e("v_mov_b32 v127, 0\ns_memrealtime s[90:91]")
        e("v_and_b32 v1, 63, v0\nv_lshrrev_b32 v6, 6, v0\nv_readfirstlane_b32 s30, v6")
        e("s_and_b32 s28, s2, 7\ns_lshl_b32 s28, s28, 1\ns_lshr_b32 s33, s2, 7\ns_or_b32 s28, s28, s33")
        e("s_lshr_b32 s29, s2, 3\ns_and_b32 s29, s29, 15")
        e("v_and_b32 v2, 15, v1\nv_lshrrev_b32 v3, 4, v1\nv_lshlrev_b32 v8, 4, v1")
        e(f"s_lshl_b32 s33, s28, 24\ns_lshl_b32 s64, s29, 16\ns_add_u32 s33, s33, s64\ns_add_u32 s33, s33, {61440*256}\ns_and_b32 s64, s30, 3\ns_lshl_b32 s64, s64, 14\ns_add_u32 s33, s33, s64")
        e("s_movk_i32 s70, 0x1000\ns_movk_i32 s71, 0x2000\ns_movk_i32 s72, 0x3000")
        e("v_bfe_u32 v13, v1, 2, 2\nv_lshlrev_b32 v13, 8, v13\nv_lshlrev_b32 v12, 6, v3\nv_add_u32 v13, v13, v12\nv_and_b32 v12, 3, v1\nv_lshlrev_b32 v12, 4, v12\nv_add_u32 v13, v13, v12")
        e("v_lshlrev_b32 v11, 13, v3\nv_lshlrev_b32 v12, 4, v2\nv_add_u32 v11, v11, v12")
        e("s_and_b32 s34, s29, 1\ns_lshl_b32 s35, s28, 1\ns_add_u32 s35, s35, s34\ns_lshl_b32 s35, s35, 8\ns_lshr_b32 s34, s29, 1\ns_mul_i32 s34, s34, 72")
        e("v_add_u32 v9, s34, v1\nv_lshlrev_b32 v9, 1, v9")
        e("s_lshl_b32 s34, s34, 13\ns_add_u32 s35, s35, s34")
        e("s_movk_i32 s38, 1152\ns_mov_b32 s39, 0x20000\ns_mov_b32 s50, %d\ns_mov_b32 s51, 0x20000" % (576*8192))
        e("s_movk_i32 s42, 0x4000\ns_mov_b32 s43, 0x20000\ns_movk_i32 s46, 0x4000\ns_mov_b32 s47, 0x20000")
        e("s_waitcnt lgkmcnt(0)")
        if o.get("stamps"): e("v_writelane_b32 v127, s90, 0")
        e("s_mov_b32 s36, s4\ns_mov_b32 s37, s5\ns_mov_b32 s48, s10\ns_mov_b32 s49, s11")
        e("s_add_u32 s40, s6, s33\ns_addc_u32 s41, s7, 0")
        e("s_add_u32 s44, s8, s33\ns_addc_u32 s45, s9, 0")
        so = lambda t: ['0', 's70', 's71', 's72'][t // 4]
        n1 = o.get("kn1", 16)
        def Kld(t): e(f"buffer_load_dwordx4 v[{32+4*t}:{35+4*t}], v13, s[40:43], {so(t)} offen offset:{(t%4)*1024} {nt}")
        e("s_cmp_eq_u32 s30, 8\ns_cbranch_scc1 L_qfirst")
        e("s_cmp_lt_u32 s30, 4\ns_cbranch_scc1 L_vfirst")
        e("s_setprio 2")
        if o.get("diag0"): self.stamp(11)
        e("s_barrier")
        if o.get("diag0"): self.stamp(12)
        for t in range(n1): Kld(t)
        self.common_setup()
        self.stamp(6)
        e("s_barrier")
        for t in range(n1, 16): Kld(t)
        e("s_branch L_kmain")
        e("L_vfirst:")
        e("s_barrier")
        self.common_setup()
        e("s_branch L_vwave")
        e("L_qfirst:")
        e("s_setprio 3")
        e("buffer_load_dwordx4 v[24:27], v8, s[36:39], 0 offen")
        e("buffer_load_dwordx4 v[28:31], v8, s[36:39], 0 offen offset:1024")
        e("buffer_load_ushort v14, v9, s[36:39], 0 offen")
        e("buffer_load_ushort v15, v9, s[36:39], 0 offen offset:128")
        for i in range(18):
            e(f"buffer_load_dwordx4 v[{32+4*i}:{35+4*i}], v11, s[48:51], s35 offen {nt}")
            if i < 17: e("s_add_u32 s35, s35, 0x8000")
        e("v_mov_b32 v6, 0\nv_mov_b32 v16, 0\nv_mov_b32 v17, 0\nv_mov_b32 v18, 0\nv_mov_b32 v19, 0")
        e(f"ds_write_b128 v6, v[16:19] offset:{FL}")
        e("s_waitcnt lgkmcnt(0)")
        e("s_barrier")
        self.common_setup()
        self.qwave()
        e("s_branch L_roles")
        e("L_kmain:")
        self.consts()
        self.epoch()
        self.stamp(1)
        if o.get("diagK"):
            e("s_waitcnt vmcnt(12)"); self.stamp(8)
            e("s_waitcnt vmcnt(8)"); self.stamp(9)
            e("s_waitcnt vmcnt(4)"); self.stamp(10)
            e("s_waitcnt vmcnt(0)"); self.stamp(5)
        e(f"v_mov_b32 v6, 0\ns_mov_b32 s66, 0")
        e("L_qfloop:")
        e(f"ds_read_b32 v12, v6 offset:{FL}\ns_waitcnt lgkmcnt(0)\nv_cmp_ne_u32 vcc, 1, v12")
        self.spin_tail("L_qfok", "L_qfloop", 1)
        e("s_branch L_qfloop")
        e("L_qfok:")
        e("v_bfe_u32 v6, v1, 2, 1\nv_lshlrev_b32 v6, 8, v6\nv_lshlrev_b32 v12, 6, v3\nv_add_u32 v6, v6, v12\nv_and_b32 v12, 3, v1\nv_lshlrev_b32 v12, 4, v12\nv_add_u32 v6, v6, v12")
        e(f"ds_read_b128 v[12:15], v6 offset:{QB}")
        self.stamp(2)
        e("s_waitcnt vmcnt(0) lgkmcnt(0)")
        self.stamp(3)
        D0 = [96+4*t if t < 6 else 24+4*(t-6) for t in range(8)]
        D1 = [32+4*t for t in range(8)]
        D = D0 + D1
        S = [16+t for t in range(8)] + [96+t for t in range(8)]
        for t in range(16):
            e(f"v_mfma_f32_16x16x32_bf16 v[{D[t]}:{D[t]+3}], v[12:15], v[{32+4*t}:{35+4*t}], 0")
        for half in range(2):
            for k in range(4):
                for t in range(8*half, 8*half+8):
                    if k == 0: e(f"v_mov_b32_dpp v{S[t]}, v{D[t]} quad_perm:[0,0,0,0] row_mask:0xf bank_mask:0xf")
                    else: e(f"v_add_f32_dpp v{S[t]}, v{D[t]+k}, v{S[t]} quad_perm:[{k},{k},{k},{k}] row_mask:0xf bank_mask:0xf")
        e("s_mov_b32 s64, 0x3db504f3")
        def rnd_pairs():
            for k in range(8): e(f"v_cvt_pk_bf16_f32 v{64+k}, v{S[2*k]}, v{S[2*k+1]}")
            for k in range(8): e(f"v_lshlrev_b32 v{S[2*k]}, 16, v{64+k}\nv_and_b32 v{S[2*k+1]}, 0xffff0000, v{64+k}")
        rnd_pairs()
        for t in range(16): e(f"v_mul_f32 v{S[t]}, s64, v{S[t]}")
        rnd_pairs()
        for k in range(5): e(f"v_max3_f32 v{64+k}, v{S[3*k]}, v{S[3*k+1]}, v{S[3*k+2]}")
        e(f"v_max3_f32 v64, v64, v65, v{S[15]}\nv_max3_f32 v66, v66, v67, v68\nv_max_f32 v64, v64, v66")
        self.row_allreduce("v_max_f32", ["v64"], steps=(8, 4))
        e("s_mov_b32 s64, 0x3fb8aa3b")
        for t in range(16): e(f"v_sub_f32 v{S[t]}, v{S[t]}, v64")
        for t in range(16): e(f"v_mul_f32 v{S[t]}, s64, v{S[t]}")
        for t in range(16): e(f"v_exp_f32 v{S[t]}, v{S[t]}")
        for k in range(8): e(f"v_cvt_pk_bf16_f32 v{72+k}, v{S[2*k]}, v{S[2*k+1]}")
        for k in range(8): e(f"v_add_f32 v{S[2*k]}, v{S[2*k]}, v{S[2*k+1]}")
        for k in range(4): e(f"v_add_f32 v{S[4*k]}, v{S[4*k]}, v{S[4*k+2]}")
        e(f"v_add_f32 v{S[0]}, v{S[0]}, v{S[4]}\nv_add_f32 v{S[8]}, v{S[8]}, v{S[12]}\nv_add_f32 v65, v{S[0]}, v{S[8]}")
        self.row_allreduce("v_add_f32", ["v65"], steps=(8, 4))
        e("s_and_b32 s64, s30, 3\nv_lshlrev_b32 v6, 7, v3\nv_bfe_u32 v12, v1, 2, 2\nv_lshlrev_b32 v12, 5, v12\nv_add_u32 v6, v6, v12\ns_lshl_b32 s65, s64, 8\nv_add_u32 v6, s65, v6")
        e("s_mov_b32 exec_lo, 0x11111111\ns_mov_b32 exec_hi, 0")
        e(f"ds_write_b128 v6, v[72:75] offset:{PL}\nds_write_b128 v6, v[76:79] offset:{PL+16}")
        e("s_mov_b64 exec, -1")
        e("s_lshl_b32 s65, s64, 2\nv_add_u32 v6, s65, v1")
        e("s_mov_b64 exec, 0x10001")
        e(f"ds_write_b32 v6, v64 offset:{MX}\nds_write_b32 v6, v65 offset:{LS}")
        e("s_mov_b64 exec, -1")
        e("s_waitcnt lgkmcnt(0)")
        self.stamp(4)
        e("s_barrier")
        e("s_setprio 0")
        self.wait_pub("sf", 12)
        e("s_cmp_lt_u32 s29, 9\ns_cbranch_scc1 L_kdA\ns_cmp_lt_u32 s29, 15\ns_cbranch_scc0 L_roles")
        self.wo_dma(o.get("woearly", 12))
        e("s_branch L_roles")
        e("L_kdA:")
        self.stamp(5)
        self.wgu_dma(o.get("wgearly", 9))
        e("s_branch L_roles")
        e("L_vwave:")
        if o.get("tlbtouch"):
            st = o["tlbtouch"]
            e("s_cmp_eq_u32 s30, 1\ns_cbranch_scc0 L_notouch")
            e(f"v_lshlrev_b32 v12, {st}, v1")
            for srd in ("s[52:55]", "s[76:79]", "s[80:83]", "s[84:87]"):
                e(f"buffer_load_dword v124, v12, {srd}, 0 offen")
            e("L_notouch:")
        if o.get("fast", True) and o.get("warmF", True):
            e("s_cmp_eq_u32 s30, 1\ns_cbranch_scc0 L_nowarm")
            e(f"s_lshl_b32 s64, s28, 13\ns_lshl_b32 s65, s29, 9\ns_add_u32 s64, s64, s65\ns_add_u32 s64, s64, {H1+FAST}")
            e(f"s_lshl_b32 s65, s28, 14\ns_lshl_b32 s66, s29, 10\ns_add_u32 s65, s65, s66\ns_add_u32 s65, s65, {H2F-512}")
            e(f"s_lshl_b32 s66, s28, 8\ns_add_u32 s66, s66, {STF-12*128}")
            e("v_lshlrev_b32 v12, 7, v1\nv_mov_b32 v6, s65\nv_mov_b32 v16, s64\nv_cmp_gt_u32 vcc, 4, v1\nv_cndmask_b32 v6, v6, v16, vcc")
            e("v_mov_b32 v16, s66\nv_cmp_lt_u32 vcc, 11, v1\nv_cndmask_b32 v6, v6, v16, vcc\nv_add_u32 v6, v6, v12")
            e("s_mov_b64 exec, 0x3fff\nglobal_load_dword v124, v6, s[26:27]\ns_mov_b64 exec, -1")
            e("L_nowarm:")
        self.masks(); self.consts(); self.epoch()
        e("s_barrier")
        def Vld(t): e(f"buffer_load_dwordx4 v[{32+4*t}:{35+4*t}], v8, s[44:47], {so(t)} offen offset:{(t%4)*1024} {nt}")
        self.weights_prefetch()
        for t in range(16): Vld(t)
        self.stamp(1)
        e("s_barrier")
        self.stamp(2)
        self.mile("bp", 0)
        e("v_bfe_u32 v6, v1, 3, 1\nv_lshlrev_b32 v6, 7, v6\nv_lshlrev_b32 v12, 5, v3\nv_add_u32 v6, v6, v12\ns_lshl_b32 s64, s30, 8\nv_add_u32 v6, s64, v6")
        e(f"ds_read_b128 v[16:19], v6 offset:{PL}\nds_read_b128 v[20:23], v6 offset:{PL+16}")
        e("v_lshrrev_b32 v6, 1, v3\nv_lshlrev_b32 v6, 4, v6")
        e(f"ds_read_b128 v[24:27], v6 offset:{MX}")
        e("s_lshl_b32 s64, s30, 2\nv_add_u32 v6, s64, v6")
        e(f"ds_read_b32 v28, v6 offset:{MX}")
        e("s_waitcnt lgkmcnt(0)")
        e("v_max3_f32 v24, v24, v25, v26\nv_max_f32 v24, v24, v27\nv_sub_f32 v28, v28, v24\nv_mul_f32 v28, 0x3fb8aa3b, v28\nv_exp_f32 v28, v28")
        e("s_mov_b32 s64, 0x01000100\ns_mov_b32 s65, 0x03020302")
        for t in range(16):
            ab = 96 + 4*(t % 4)
            e(f"v_perm_b32 v29, v{16+t//2}, v{16+t//2}, {'s64' if t%2==0 else 's65'}")
            for r in range(4): e(f"v_and_b32 v{ab+r}, v29, v{120+r}")
            e(f"s_waitcnt vmcnt({15-t})")
            e(f"v_mfma_f32_16x16x32_bf16 v[12:15], v[{ab}:{ab+3}], v[{32+4*t}:{35+4*t}], {'0' if t==0 else 'v[12:15]'}")
        self.stamp(3)
        e("s_setprio 3")
        e("v_lshrrev_b32 v6, 1, v3\nv_lshlrev_b32 v6, 9, v6\nv_lshlrev_b32 v30, 5, v2\nv_add_u32 v6, v6, v30\nv_and_b32 v30, 1, v3\nv_lshlrev_b32 v30, 4, v30\nv_add_u32 v6, v6, v30")
        e("s_lshl_b32 s64, s30, 10\nv_add_u32 v6, s64, v6")
        for r in range(4): e(f"v_mul_f32 v{12+r}, v28, v{12+r}")
        e(f"ds_write_b128 v6, v[12:15] offset:{OP}")
        e("v_mov_b32 v6, 0\nv_mov_b32 v30, 1")
        e("s_mov_b64 exec, 1")
        e(f"ds_add_rtn_u32 v31, v6, v30 offset:{FL+4}")
        e("s_mov_b64 exec, -1")
        e("s_waitcnt lgkmcnt(0)")
        e("v_readfirstlane_b32 s64, v31")
        e("s_cmp_eq_u32 s64, 3\ns_cbranch_scc0 L_vdone")
        for w in range(4): e(f"ds_read_b128 v[{16+4*w}:{19+4*w}], v8 offset:{OP + 1024*w}")
        e(f"s_mul_i32 s67, s28, 18432\ns_mul_i32 s64, s29, 1152\ns_add_u32 s67, s67, s64\ns_add_u32 s67, s67, {H2}")
        e("v_add_u32 v6, s67, v8")
        e(f"s_lshl_b32 s64, s28, 14\ns_lshl_b32 s65, s29, 4\ns_add_u32 s64, s64, s65\ns_add_u32 s64, s64, {H2F}")
        e("v_lshrrev_b32 v12, 3, v1\nv_lshlrev_b32 v12, 11, v12\nv_and_b32 v13, 1, v1\nv_lshlrev_b32 v13, 10, v13\nv_add_u32 v12, v12, v13\nv_bfe_u32 v13, v1, 1, 2\nv_lshlrev_b32 v13, 8, v13\nv_add_u32 v12, v12, v13\nv_add_u32 v12, s64, v12")
        e("s_waitcnt lgkmcnt(0)")
        for r in range(4): e(f"v_add_f32 v{16+r}, v{16+r}, v{20+r}\nv_add_f32 v{24+r}, v{24+r}, v{28+r}")
        for r in range(4): e(f"v_add_f32 v{16+r}, v{16+r}, v{24+r}")
        self.tagins(16)
        self.dual_store("v6", "v[16:19]", "v12")
        e(f"v_mov_b32 v6, 0\nv_mov_b32 v30, 1\nds_write_b32 v6, v30 offset:{FL+8}")
        self.mile("attn")
        e("L_vdone:")
        e("s_setprio 0")
        self.stamp(4)
        e("s_branch L_roles")
        e("L_roles:")
        self.stamp(7)
        e("s_cmp_lt_u32 s29, 9\ns_cbranch_scc1 L_roleA")
        e("s_cmp_lt_u32 s29, 15\ns_cbranch_scc0 L_fin")
        self.roleB1()
        e("L_roleA:")
        self.roleA()
        e("L_fin:")
        if o.get("stamps"):
            self.stamp(15)
            e(f"s_mul_i32 s64, s2, 9\ns_add_u32 s64, s64, s30\ns_lshl_b32 s64, s64, 6\ns_add_u32 s64, s64, {TS}")
            e("v_lshlrev_b32 v6, 2, v1\nv_add_u32 v6, s64, v6")
            e("s_mov_b64 exec, 0xffff")
            e("global_store_dword v6, v127, s[26:27]")
        e("L_end:")
        e("s_endpgm")
        return e.text()

    def qwave(self):
        e = self.e; o = self.o; nt = o.get("kvflag", "nt")
        npf = 0
        self.masks(); self.consts()
        e(f"s_waitcnt vmcnt({18+npf})")
        self.stamp(1)
        e("v_mov_b32 v104, 0\nv_mov_b32 v105, 0\ns_mov_b32 s64, 0x3f803f80")
        for k in range(8):
            e(f"v_dot2_f32_bf16 v104, v{24+k}, s64, v104")
            e(f"v_dot2_f32_bf16 v105, v{24+k}, v{24+k}, v105")
        self.row_allreduce("v_add_f32", ["v104", "v105"])
        e("v_permlane16_swap_b32 v104, v105\nv_add_f32 v104, v104, v105\nv_mov_b32 v105, v104\nv_permlane32_swap_b32 v104, v105\nv_add_f32 v104, v104, v105")
        e("v_readlane_b32 s64, v104, 0\nv_readlane_b32 s65, v104, 16")
        self.ln_scalars("s64", "s65", "v104", "v105", "v106")
        e("v_and_b32 v6, 3, v1\nv_mul_u32_u24 v6, 48, v6\nv_lshrrev_b32 v12, 2, v1\nv_lshlrev_b32 v12, 1, v12\nv_add_u32 v6, v6, v12")
        for i, xv in enumerate(("v14", "v15")):
            e(f"v_lshlrev_b32 {xv}, 16, {xv}")
            self.ln_apply(xv, "v104", "v105", "v106", "v107", "v108")
        e(f"ds_write_b16 v6, v14 offset:{XT}")
        e("s_mov_b64 exec, 0xff")
        e(f"ds_write_b16 v6, v15 offset:{XT+32}")
        e("s_mov_b64 exec, -1")
        e("v_mul_u32_u24 v6, 48, v3")
        e("s_waitcnt lgkmcnt(0)")
        e(f"ds_read_b128 v[24:27], v6 offset:{XT}\nds_read_b128 v[28:31], v6 offset:{XT+16}\nds_read_b32 v11, v6 offset:{XT+32}")
        self.epoch()
        if o.get("diagQ"): self.stamp(9)
        e("s_mov_b32 s64, 0x01000100\ns_mov_b32 s65, 0x03020302")
        slots = [104, 108, 112, 116] + [128 + 4*k for k in range(9)] + [16, 20, 12]
        def prep(i, ab):
            src = f"v{24+i//2}" if i < 16 else "v11"
            e(f"v_perm_b32 v10, {src}, {src}, {'s64' if i%2==0 else 's65'}")
            for r in range(4): e(f"v_and_b32 v{ab+r}, v10, v{120+r}")
        def mm(i, ab):
            e(f"s_waitcnt vmcnt({17-i})")
            e(f"v_mfma_f32_16x16x32_bf16 v[164:167], v[{ab}:{ab+3}], v[{32+4*i}:{35+4*i}], {'0' if i==0 else 'v[164:167]'}")
        for i in range(16): prep(i, slots[i])
        if o.get("diagQ"):
            self.stamp(10)
            e("s_waitcnt vmcnt(0)"); self.stamp(11)
        mm(0, slots[0]); mm(1, slots[1])
        prep(16, slots[0]); prep(17, slots[1])
        for i in range(2, 16): mm(i, slots[i])
        mm(16, slots[0]); mm(17, slots[1])
        e(f"s_lshl_b32 s64, s28, 13\ns_lshl_b32 s65, s29, 9\ns_add_u32 s65, s65, s64\ns_add_u32 s65, s65, {H1}")
        e("v_lshlrev_b32 v6, 5, v2\nv_lshlrev_b32 v12, 4, v3\nv_add_u32 v6, v6, v12\nv_add_u32 v6, s65, v6")
        self.tagins(164)
        e("s_mov_b32 exec_lo, -1\ns_mov_b32 exec_hi, 0")
        self.dual_store("v6", "v[164:167]")
        e("s_mov_b64 exec, -1")
        self.stamp(2)
        self.mile("qpub")
        e("s_barrier")
        e(f"s_add_u32 s64, s64, {H1 + (FAST if o.get('fast', True) else 0)}\nv_add_u32 v6, s64, v8\nv_add_u32 v9, 4096, v6")
        if o.get("smemchk", False):
            regs = [64, 65] + list(range(67, 76)) + [88, 89, 92, 93, 94]
            e(f"s_lshl_b32 s33, s28, 13\ns_add_u32 s33, s33, {H1 + 508}\ns_add_u32 s34, s26, s33\ns_addc_u32 s35, s27, 0")
            e("s_lshr_b32 s33, s31, 24\ns_mov_b32 s66, 0")
            if o.get("h1sleep", 4): e(f"s_sleep {o.get('h1sleep', 4)}")
            e("L_smloop:")
            for k, r in enumerate(regs): e(f"s_load_dword s{r}, s[34:35], {512*k} glc")
            e("s_waitcnt lgkmcnt(0)")
            for k, r in enumerate(regs):
                e(f"s_xor_b32 s{r}, s{r}, s33")
                if k: e(f"s_or_b32 s64, s64, s{r}")
            e("s_and_b32 s64, s64, 0xff\ns_cbranch_scc0 L_smok")
            e("s_add_u32 s66, s66, 1\ns_cmp_gt_u32 s66, %d\ns_cbranch_scc1 L_smok" % o.get("maxspin", 20000))
            e("s_branch L_smloop")
            e("L_smok:")
            self.note(11, "s66")
        elif o.get("h1sleep", 30): e(f"s_sleep {o.get('h1sleep', 30)}")
        e("s_mov_b32 s66, 0")
        def h1loads(base):
            for i in range(8):
                e(f"global_load_dwordx4 v[{base+4*i}:{base+4*i+3}], {'v6' if i<4 else 'v9'}, s[26:27] offset:{(i%4)*1024} sc1")
        self.stamp(5)
        h1loads(32)
        self.stamp(6)
        gap = o.get("h1gap", 36)
        if gap:
            e(f"s_sleep {gap}")
            h1loads(64)
            e("s_waitcnt vmcnt(8)")
            self.validate([32+4*i for i in range(8)], "v100", "v101")
            e("s_cbranch_vccz L_h1ok")
            h1loads(128)
            e("s_waitcnt vmcnt(8)")
            self.validate([64+4*i for i in range(8)], "v100", "v101")
            e("s_cbranch_vccnz L_h1c")
            for k in range(32): e(f"v_mov_b32 v{32+k}, v{64+k}")
            e("s_branch L_h1ok")
            e("L_h1c:")
            e("s_waitcnt vmcnt(0)")
            for k in range(32): e(f"v_mov_b32 v{32+k}, v{128+k}")
        e("L_h1loop:")
        e("s_waitcnt vmcnt(0)")
        self.validate([32+4*i for i in range(8)], "v100", "v101")
        self.spin_fast("L_h1ok", "h1", 2, ["v6", "v9"])
        h1loads(32)
        e("s_branch L_h1loop")
        e("L_h1ok:")
        self.note(12, "s66")
        for k in range(32): e(f"v_and_b32 v{32+k}, 0xffffff00, v{32+k}")
        for i in range(0, 8, 2):
            for r in range(4): e(f"v_add_f32 v{32+4*i+r}, v{32+4*i+r}, v{36+4*i+r}")
        for i in (0, 4):
            for r in range(4): e(f"v_add_f32 v{32+4*i+r}, v{32+4*i+r}, v{40+4*i+r}")
        for r in range(4): e(f"v_add_f32 v{32+r}, v{32+r}, v{48+r}")
        e("v_cvt_pk_bf16_f32 v32, v32, v33\nv_cvt_pk_bf16_f32 v33, v34, v35")
        e("v_lshlrev_b32 v6, 3, v1")
        e(f"ds_write_b64 v6, v[32:33] offset:{QB}")
        e("v_mov_b32 v6, 0\nv_mov_b32 v12, 1")
        e("s_waitcnt lgkmcnt(0)")
        e(f"ds_write_b32 v6, v12 offset:{FL}")
        e("s_waitcnt lgkmcnt(0)")
        self.stamp(3)
        self.mile("qf")
        e("s_waitcnt vmcnt(0)")
        e("s_barrier")
        e("v_mov_b32 v6, 0")
        e(f"ds_read_b128 v[32:35], v6 offset:{MX}\nds_read_b128 v[36:39], v6 offset:{MX+16}\nds_read_b128 v[40:43], v6 offset:{LS}\nds_read_b128 v[44:47], v6 offset:{LS+16}")
        e("s_waitcnt lgkmcnt(0)")
        for h in range(2):
            m = 32 + 4*h; l = 40 + 4*h; M = 16 + 2*h; L = 17 + 2*h
            e(f"v_max3_f32 v{M}, v{m}, v{m+1}, v{m+2}\nv_max_f32 v{M}, v{M}, v{m+3}")
            for k in range(4): e(f"v_sub_f32 v{m+k}, v{m+k}, v{M}")
            for k in range(4): e(f"v_mul_f32 v{m+k}, 0x3fb8aa3b, v{m+k}")
            for k in range(4): e(f"v_exp_f32 v{m+k}, v{m+k}")
            e(f"v_mul_f32 v{L}, v{m}, v{l}")
            for k in range(1, 4): e(f"v_fma_f32 v{L}, v{m+k}, v{l+k}, v{L}")
        self.tagins(16)
        e(f"s_mul_i32 s67, s28, 18432\ns_mul_i32 s64, s29, 1152\ns_add_u32 s67, s67, s64\ns_add_u32 s67, s67, {H2+1024}\nv_mov_b32 v6, s67")
        e(f"s_lshl_b32 s64, s28, 8\ns_lshl_b32 s65, s29, 4\ns_add_u32 s64, s64, s65\ns_add_u32 s64, s64, {STF}\nv_mov_b32 v12, s64")
        e("s_mov_b64 exec, 1")
        self.dual_store("v6", "v[16:19]", "v12")
        e("s_mov_b64 exec, -1")
        e(f"v_mov_b32 v6, 0\nv_mov_b32 v12, 1\nds_write_b32 v6, v12 offset:{FL+12}")
        self.stamp(4)
    def common_setup(self):
        e = self.e; o = self.o
        e("s_load_dword s31, s[26:27], 0")
        self.dma_srds()
        if o.get("amp"):
            self.uid += 1
            e(f"s_cmp_eq_u32 s30, 0\ns_cbranch_scc0 L_amp{self.uid}")
            e(f"s_lshl_b32 s92, s2, 2\ns_add_u32 s92, s92, {0x300000}\nv_mov_b32 v124, s94\nv_mov_b32 v125, s92")
            e("s_mov_b64 exec, 1\nglobal_store_dword v125, v124, s[26:27] sc1\nglobal_store_dword v125, v124, s[26:27] offset:1024 sc1\ns_mov_b64 exec, -1")
            e(f"L_amp{self.uid}:")
    def dma_srds(self):
        e = self.e
        e("s_mov_b32 s52, s12\ns_mov_b32 s53, s13\ns_mov_b32 s54, %d\ns_mov_b32 s55, 0x20000" % (4096*1152))
        e(f"s_mov_b32 s76, s16\ns_mov_b32 s77, s17\ns_mov_b32 s78, {576*9216}\ns_mov_b32 s79, 0x20000")
        e(f"s_mov_b32 s80, s18\ns_mov_b32 s81, s19\ns_mov_b32 s82, {576*9216}\ns_mov_b32 s83, 0x20000")
        e(f"s_mov_b32 s84, s20\ns_mov_b32 s85, s21\ns_mov_b32 s86, {4608*1152}\ns_mov_b32 s87, 0x20000")
    def weights_prefetch(self):
        e = self.e; fl = self.o.get("pfflag", ""); which = self.o.get("pfw", "og")
        d = "v[112:115]"
        def contig(srd, xbytes, jbytes, vbytes):
            e(f"s_and_b32 s64, s2, 7\ns_mul_i32 s64, s64, {xbytes}\ns_lshr_b32 s65, s2, 3\ns_mul_i32 s65, s65, {jbytes}\ns_add_u32 s64, s64, s65")
            e(f"s_and_b32 s65, s30, 3\ns_mul_i32 s65, s65, {vbytes}\ns_add_u32 s64, s64, s65")
            off = 0
            while off < vbytes:
                rem = vbytes - off
                if off and off % 4096 == 0: e("s_add_u32 s64, s64, 4096")
                if rem < 1024:
                    lanes = rem // 16
                    e(f"s_mov_b64 exec, {hex((1 << lanes) - 1)}") if lanes <= 31 else e(f"s_mov_b32 exec_lo, -1\ns_mov_b32 exec_hi, {hex((1 << (lanes-32)) - 1)}")
                e(f"buffer_load_dwordx4 {d}, v8, {srd}, s64 offen offset:{off % 4096} {fl}")
                if rem < 1024: e("s_mov_b64 exec, -1")
                off += 1024
        if "o" in which: contig("s[52:55]", 589824, 18432, 4608)
        if "g" in which or "u" in which:
            e("s_lshr_b32 s64, s2, 3\ns_mul_i32 s64, s64, 18\ns_and_b32 s65, s30, 3\ns_add_u32 s73, s64, s65\ns_add_u32 s74, s64, 17")
            e("s_and_b32 s65, s2, 7\ns_mul_i32 s75, s65, 1152")
            e("v_lshrrev_b32 v100, 3, v1\nv_lshlrev_b32 v100, 2, v100\nv_add_u32 v100, s73, v100\nv_min_u32 v100, s74, v100\nv_mul_u32_u24 v100, 9216, v100")
            e("v_and_b32 v101, 7, v1\nv_lshlrev_b32 v101, 4, v101\nv_add_u32 v100, v100, v101\nv_add_u32 v100, 1024, v100")
            for key, srd in (("g", "s[76:79]"), ("u", "s[80:83]")):
                if key not in which: continue
                for k in range(5):
                    if k == 4: e("s_and_b32 s65, s30, 3\ns_cmp_lt_u32 s65, 2\ns_cbranch_scc0 L_pfk" + key)
                    e(f"s_add_u32 s64, s73, {4*k}\ns_mul_i32 s64, s64, 9216\ns_add_u32 s64, s64, s75")
                    e(f"buffer_load_dwordx4 {d}, v8, {srd}, s64 offen {fl}")
                e(f"L_pfk{key}:")
                e("s_mov_b32 exec_lo, -1\ns_mov_b32 exec_hi, 0xff")
                e(f"buffer_load_dwordx4 {d}, v100, {srd}, s75 offen {fl}")
                e("s_mov_b64 exec, -1")
        if "d" in which: contig("s[84:87]", 663552, 20736, 5184)
    def wait_pub(self, tag, off=8):
        e = self.e
        e(f"v_mov_b32 v6, 0\ns_mov_b32 s66, 0")
        e(f"L_{tag}loop:")
        e(f"ds_read_b32 v12, v6 offset:{FL+off}\ns_waitcnt lgkmcnt(0)\nv_cmp_ne_u32 vcc, 1, v12")
        self.spin_tail(f"L_{tag}ok", f"L_{tag}loop", 2)
        e(f"s_branch L_{tag}loop")
        e(f"L_{tag}ok:")
    def wo_dma(self, early):
        e = self.e
        e("s_and_b32 s64, s30, 3\ns_lshl_b32 s64, s64, 1")
        e("s_lshl_b32 s72, s28, 8\ns_lshl_b32 s65, s64, 5\ns_add_u32 s72, s72, s65\ns_mul_i32 s72, s72, 1152")
        e("s_sub_u32 s65, s29, 9\ns_mul_i32 s65, s65, 192\ns_add_u32 s72, s72, s65")
        e(f"s_mul_i32 s71, s64, 6144\ns_add_u32 s71, s71, {WB}")
        for i in range(3):
            e(f"v_add_u32 v100, {64*i}, v1\nv_mul_u32_u24 v101, 5462, v100\nv_lshrrev_b32 v101, 16, v101")
            e("v_mul_u32_u24 v102, 12, v101\nv_sub_u32 v102, v100, v102")
            e("v_bfe_u32 v103, v101, 3, 1\nv_lshlrev_b32 v103, 1, v103\nv_xor_b32 v102, v102, v103\nv_lshlrev_b32 v102, 4, v102")
            e(f"v_mul_u32_u24 v101, 1152, v101\nv_add_u32 v{104+i}, v101, v102")
        n = 0
        for blk in range(4):
            for i in range(3):
                if n == early: self.wait_pub("wo")
                e("s_mov_b32 m0, s71\ns_add_u32 s71, s71, 1024")
                e(f"buffer_load_dwordx4 v{104+i}, s[52:55], s72 offen {self.o.get('wodmaflag', 'nt')} lds")
                n += 1
            if blk < 3: e(f"s_add_u32 s72, s72, {16*1152}")
    def wgu_dma(self, early):
        e = self.e; o = self.o
        lateU = "u" not in o.get("pfw", "og")
        e("s_mul_i32 s32, s28, 9\ns_add_u32 s32, s32, s29")
        e("v_lshrrev_b32 v10, 2, v1\nv_mul_u32_u24 v10, 9216, v10\nv_and_b32 v12, 3, v1\nv_lshrrev_b32 v11, 5, v1\nv_lshlrev_b32 v11, 1, v11\nv_xor_b32 v12, v12, v11\nv_lshlrev_b32 v12, 4, v12\nv_add_u32 v10, v10, v12")
        e(f"s_and_b32 s64, s30, 3\ns_mul_i32 s65, s64, {16*9216}\ns_lshl_b32 s68, s32, 6\ns_add_u32 s68, s68, s65")
        e(f"s_lshl_b32 s69, s64, 10\ns_add_u32 s69, s69, {WB}")
        e("v_lshrrev_b32 v14, 3, v1\nv_mul_u32_u24 v14, 1152, v14\nv_and_b32 v12, 7, v1\nv_bfe_u32 v11, v1, 4, 1\nv_lshlrev_b32 v11, 1, v11\nv_xor_b32 v12, v12, v11")
        e("s_and_b32 s65, s64, 1\ns_lshl_b32 s65, s65, 2\nv_xor_b32 v12, s65, v12\nv_lshlrev_b32 v12, 4, v12\nv_add_u32 v14, v14, v12")
        e(f"s_mul_i32 s75, s32, 36864\ns_mul_i32 s65, s64, {8*1152}\ns_add_u32 s75, s75, s65")
        ops = []
        def narrow(m, srd):
            ops.append(("pre", f"s_mov_b32 s64, s68\ns_add_u32 s65, s69, {36864*m}"))
            for w in range(9):
                ops.append(("ld", "s_mov_b32 m0, s65\ns_add_u32 s65, s65, 4096\n" + f"buffer_load_dwordx4 v10, {srd}, s64 offen nt lds" + (f"\ns_add_u32 s64, s64, {64*9216}" if w < 8 else "")))
        def wd():
            ops.append(("pre", f"s_add_u32 s65, s69, {2*36864}\ns_mov_b32 s64, s75"))
            for w in range(9):
                ops.append(("ld", "s_mov_b32 m0, s65\ns_add_u32 s65, s65, 4096\n" + "buffer_load_dwordx4 v14, s[84:87], s64 offen nt lds" + ("\ns_add_u32 s64, s64, 128" if w < 8 else "")))
        def pfM(srd, first):
            if first:
                ops.append(("pre", "s_and_b32 s64, s28, 1\ns_mul_i32 s64, s64, 9\ns_add_u32 s64, s64, s29\ns_lshl_b32 s64, s64, 5\ns_and_b32 s65, s30, 3\ns_lshl_b32 s65, s65, 3\ns_add_u32 s64, s64, s65\n"
                            "s_mul_i32 s64, s64, 9216\ns_lshr_b32 s65, s28, 1\ns_mul_i32 s65, s65, 1152\ns_add_u32 s33, s64, s65\n"
                            "v_lshrrev_b32 v100, 3, v1\nv_mul_u32_u24 v100, 9216, v100\nv_and_b32 v101, 7, v1\nv_lshlrev_b32 v101, 4, v101\nv_add_u32 v100, v100, v101\nv_add_u32 v100, 1024, v100"))
            ops.append(("pre", "s_mov_b32 s64, s33"))
            for k in range(8):
                ops.append(("ld", f"buffer_load_dwordx4 v[112:115], v8, {srd}, s64 offen" + ("\ns_add_u32 s64, s64, 9216" if k < 7 else "")))
            ops.append(("ld", f"buffer_load_dwordx4 v[112:115], v100, {srd}, s33 offen"))
        wdfirst = o.get("wdfirst", False)
        lateG = "g" not in o.get("pfw", "og")
        if lateG:
            pfM("s[76:79]", True); pfM("s[80:83]", False)
            ops.append(("pre", "s_waitcnt vmcnt(9)")); narrow(0, "s[76:79]")
            ops.append(("pre", "s_waitcnt vmcnt(9)")); narrow(1, "s[80:83]"); wd()
        elif lateU and o.get("udirect"):
            narrow(1, "s[80:83]"); narrow(0, "s[76:79]"); wd()
        elif lateU:
            pfM("s[80:83]", True); narrow(0, "s[76:79]"); ops.append(("pre", "s_waitcnt vmcnt(9)")); narrow(1, "s[80:83]"); wd()
        elif wdfirst:
            wd(); narrow(0, "s[76:79]"); narrow(1, "s[80:83]")
        else:
            narrow(0, "s[76:79]"); narrow(1, "s[80:83]"); wd()
        n = 0
        for kind, txt in ops:
            if kind == "ld":
                if n == early:
                    e("s_mov_b32 s73, s64\ns_mov_b32 s74, s65")
                    self.wait_pub("wg")
                    e("s_mov_b32 s64, s73\ns_mov_b32 s65, s74")
                n += 1
            e(txt)

    def roleB1(self):
        e = self.e; o = self.o
        e(f"s_mul_i32 s64, s28, 18432\ns_add_u32 s64, s64, {H2}")
        e("s_cmp_eq_u32 s30, 8\ns_cbranch_scc0 L_b1w")
        e("v_mul_u32_u24 v9, 1152, v2\nv_add_u32 v9, s64, v9\nv_add_u32 v9, 1024, v9")
        if o.get("fast", True): e(f"s_lshl_b32 s65, s28, 8\ns_add_u32 s65, s65, {STF}\nv_lshlrev_b32 v6, 4, v2\nv_add_u32 v6, s65, v6")
        else: e("v_mov_b32 v6, v9")
        if o.get("st2sleep", 2): e(f"s_sleep {o.get('st2sleep', 2)}")
        e("s_mov_b32 s66, 0")
        e("L_stloop:")
        e("global_load_dwordx4 v[72:75], v6, s[26:27] sc1\ns_waitcnt vmcnt(0)")
        self.validate([72], "v100", "v101")
        self.spin_fast("L_stok", "st", 2, switch="v_mov_b32 v6, v9")
        e("s_branch L_stloop")
        e("L_stok:")
        e("v_and_b32 v12, 1, v3\nv_cmp_eq_u32 vcc, 1, v12\nv_cndmask_b32 v72, v72, v74, vcc\nv_cndmask_b32 v73, v73, v75, vcc")
        e("v_and_b32 v72, 0xffffff00, v72\nv_and_b32 v73, 0xffffff00, v73")
        e("v_mov_b32 v76, v72")
        self.row_allreduce("v_max_f32", ["v76"])
        e("v_sub_f32 v72, v72, v76\nv_mul_f32 v72, 0x3fb8aa3b, v72\nv_exp_f32 v72, v72")
        e("v_mul_f32 v73, v72, v73")
        self.row_allreduce("v_add_f32", ["v73"])
        e("v_rcp_f32 v73, v73")
        e("v_mul_f32 v72, v72, v73")
        e("v_lshlrev_b32 v6, 2, v1")
        e("s_mov_b32 exec_lo, -1\ns_mov_b32 exec_hi, 0")
        e(f"ds_write_b32 v6, v72 offset:{SC}")
        e("s_mov_b64 exec, -1")
        e("s_setprio 0")
        e("s_waitcnt lgkmcnt(0)")
        self.stamp(13)
        e("s_barrier")
        e("s_branch L_b1w8")
        e("L_b1w:")
        e("v_mul_u32_u24 v15, 1152, v2\nv_add_u32 v15, s64, v15")
        e("v_lshlrev_b32 v12, 5, v3\ns_lshl_b32 s65, s30, 7\nv_add_u32 v12, s65, v12\nv_add_u32 v15, v15, v12")
        if o.get("fast", True):
            e(f"s_lshl_b32 s64, s28, 14\ns_lshl_b32 s65, s30, 11\ns_add_u32 s64, s64, s65\ns_add_u32 s64, s64, {H2F}\nv_add_u32 v6, s64, v8\nv_add_u32 v14, 1024, v6")
        else: e("v_mov_b32 v6, v15\nv_add_u32 v14, 16, v15")
        def h2loads():
            e("global_load_dwordx4 v[64:67], v6, s[26:27] sc1\nglobal_load_dwordx4 v[68:71], v14, s[26:27] sc1")
        e("v_lshlrev_b32 v10, 3, v3\nv_bfe_u32 v12, v1, 2, 2\nv_add_u32 v10, v10, v12\nv_mul_u32_u24 v10, 192, v10\nv_and_b32 v12, 3, v1\nv_lshlrev_b32 v12, 3, v12\nv_add_u32 v10, v10, v12")
        e(f"s_mul_i32 s65, s30, 6144\ns_add_u32 s65, s65, {WB}\nv_add_u32 v10, s65, v10")
        e("v_and_b32 v12, 1, v3\nv_lshlrev_b32 v12, 5, v12\nv_add_u32 v11, v10, v12\nv_sub_u32 v10, v10, v12")
        e("s_lshr_b32 s65, s30, 2\ns_lshl_b32 s65, s65, 6\nv_lshlrev_b32 v9, 2, v2\nv_add_u32 v9, s65, v9")
        e(f"v_lshlrev_b32 v13, 4, v3\ns_mul_i32 s65, s30, 384\nv_add_u32 v13, s65, v13")
        self.stamp(5)
        e("s_waitcnt vmcnt(0)")
        e("s_barrier")
        self.stamp(8)
        e(f"ds_read_b32 v72, v9 offset:{SC}")
        for tau in range(6):
            a = "v11" if tau % 2 == 0 else "v10"
            e(f"ds_read_b64_tr_b16 v[{32+4*tau}:{33+4*tau}], {a} offset:{32*tau}")
            e(f"ds_read_b64_tr_b16 v[{34+4*tau}:{35+4*tau}], {a} offset:{32*tau + 768}")
        if o.get("h2sleep", 0): e(f"s_sleep {o.get('h2sleep', 0)}")
        e("s_mov_b32 s66, 0")
        h2loads()
        e("L_h2loop:")
        e("s_waitcnt vmcnt(0)")
        self.validate([64, 68], "v100", "v101")
        self.spin_fast("L_h2ok", "h2", o.get("h2retry", 0), switch="v_mov_b32 v6, v15\nv_add_u32 v14, 16, v15")
        h2loads()
        e("s_branch L_h2loop")
        e("L_h2ok:")
        self.note(13, "s66")
        self.stamp(9)
        e("s_waitcnt lgkmcnt(0)")
        for k in range(8): e(f"v_mul_f32 v{64+k}, v72, v{64+k}")
        self.row_allreduce("v_add_f32", [f"v{64+k}" for k in range(8)])
        for k in range(4): e(f"v_cvt_pk_bf16_f32 v{76+k}, v{64+2*k}, v{65+2*k}")
        e("s_waitcnt lgkmcnt(0)")
        for tau in range(6):
            e(f"v_mfma_f32_16x16x32_bf16 v[{80+4*tau}:{83+4*tau}], v[{32+4*tau}:{35+4*tau}], v[76:79], 0")
        e("s_mov_b32 s64, 0x00010001\ns_mov_b32 s65, 0x00010001\ns_mov_b64 exec, s[64:65]")
        for tau in range(6):
            e(f"ds_write_b128 v13, v[{80+4*tau}:{83+4*tau}] offset:{WR + 64*tau}")
        e("s_mov_b64 exec, -1")
        e("L_b1w8:")
        e("s_waitcnt lgkmcnt(0)\ns_barrier")
        e("s_cmp_lt_u32 s30, 3\ns_cbranch_scc0 L_b1pubdone")
        e("v_and_b32 v6, 7, v1\nv_lshlrev_b32 v6, 4, v6\nv_lshrrev_b32 v12, 3, v1\nv_mul_u32_u24 v12, 384, v12\nv_add_u32 v6, v6, v12\ns_lshl_b32 s64, s30, 7\nv_add_u32 v6, s64, v6")
        e(f"ds_read_b128 v[16:19], v6 offset:{WR}")
        rep = o.get("h3rep", True)
        e(f"s_mul_i32 s64, s28, 2304\ns_sub_u32 s65, s29, 9\ns_mul_i32 s65, s65, 384\ns_add_u32 s64, s64, s65\ns_lshl_b32 s65, s30, 7\ns_add_u32 s64, s64, s65\ns_add_u32 s64, s64, {H3R if rep else H3}")
        e("v_and_b32 v6, 7, v1\nv_lshlrev_b32 v6, 4, v6\nv_add_u32 v6, s64, v6")
        if rep: e(f"v_lshrrev_b32 v12, 3, v1\nv_mul_u32_u24 v12, {0x9000}, v12\nv_add_u32 v6, v6, v12")
        e("s_waitcnt lgkmcnt(0)")
        self.reduce_stride8(16, 20)
        self.tagins(16)
        if not rep: e("s_mov_b64 exec, 0xff")
        e("global_store_dwordx4 v6, v[16:19], s[26:27] sc1")
        e("s_mov_b64 exec, -1")
        e("L_b1pubdone:")
        self.mile("b1pub", 0)
        self.stamp(10)
        e("s_sub_u32 s32, s29, 9\ns_cmp_lt_u32 s32, 2\ns_cbranch_scc0 L_rho2\ns_lshl_b32 s64, s28, 1\ns_add_u32 s32, s32, s64\ns_branch L_reducer")
        e("L_rho2:\ns_cmp_eq_u32 s32, 2\ns_cbranch_scc0 L_fin\ns_cmp_lt_u32 s28, 4\ns_cbranch_scc0 L_fin\ns_add_u32 s32, s28, 32")
        e("L_reducer:")
        e("s_cmp_eq_u32 s30, 0\ns_cbranch_scc0 L_redh4")
        e(f"v_lshrrev_b32 v6, 2, v1\nv_mul_u32_u24 v6, 2304, v6\nv_and_b32 v12, 3, v1\nv_lshlrev_b32 v12, 4, v12\nv_add_u32 v6, v6, v12\ns_lshl_b32 s64, s32, 6\ns_add_u32 s64, s64, {H3R if rep else H3}\nv_add_u32 v6, s64, v6")
        if rep: e(f"s_and_b32 s64, s2, 7\ns_mul_i32 s64, s64, {0x9000}\nv_add_u32 v6, s64, v6")
        e("v_and_b32 v12, 3, v1\nv_lshlrev_b32 v12, 3, v12\ns_lshl_b32 s64, s32, 5\nv_add_u32 v12, s64, v12")
        e("buffer_load_dwordx2 v[40:41], v12, s[36:39], 0 offen")
        if o.get("rh3sleep", 8): e(f"s_sleep {o.get('rh3sleep', 8)}")
        e("s_mov_b32 s66, 0")
        e("L_rh3loop:")
        e("global_load_dwordx4 v[32:35], v6, s[26:27] sc1\ns_waitcnt vmcnt(0)")
        self.validate([32], "v100", "v101")
        self.spin_tail("L_rh3ok", "L_rh3loop", 4)
        e("s_branch L_rh3loop")
        e("L_rh3ok:")
        for r in range(4): e(f"v_and_b32 v{32+r}, 0xffffff00, v{32+r}")
        self.reduce_stride4(32, 36)
        e("v_lshlrev_b32 v44, 16, v40\nv_and_b32 v45, 0xffff0000, v40\nv_lshlrev_b32 v46, 16, v41\nv_and_b32 v47, 0xffff0000, v41")
        for r in range(4):
            self.Rnd(f"v{32+r}", f"v{32+r}")
            e(f"v_add_f32 v{44+r}, v{44+r}, v{32+r}")
            self.Rnd(f"v{44+r}", f"v{44+r}")
        e("L_redh4:")
        e("s_barrier")
        self.stamp(12)
        e(f"v_lshrrev_b32 v6, 2, v0\nv_mul_u32_u24 v6, 2304, v6\nv_and_b32 v12, 3, v0\nv_lshlrev_b32 v12, 4, v12\nv_add_u32 v6, v6, v12\ns_lshl_b32 s64, s32, 6\ns_add_u32 s64, s64, {H4}\nv_add_u32 v6, s64, v6")
        for k in range(o.get("h4sleepN", 1)): e(f"s_sleep {o.get('h4sleep', 40)}")
        e("s_mov_b32 s66, 0")
        e("L_h4loop:")
        e("global_load_dwordx4 v[32:35], v6, s[26:27] sc1\ns_waitcnt vmcnt(0)")
        self.validate([32], "v100", "v101")
        self.spin_tail("L_h4ok", "L_h4loop", o.get("h4retry", 4))
        e("s_branch L_h4loop")
        e("L_h4ok:")
        self.mile("h4ok", 0)
        self.note(14, "s66")
        self.stamp(11)
        for r in range(4): e(f"v_and_b32 v{32+r}, 0xffffff00, v{32+r}")
        self.reduce_stride4(32, 36)
        e(f"v_and_b32 v6, 3, v1\nv_lshlrev_b32 v6, 4, v6\ns_lshl_b32 s64, s30, 6\nv_add_u32 v6, s64, v6")
        e("s_mov_b64 exec, 0xf")
        e(f"ds_write_b128 v6, v[32:35] offset:{FR}")
        e("s_mov_b64 exec, -1")
        e("s_waitcnt lgkmcnt(0)\ns_barrier")
        e("s_cmp_eq_u32 s30, 0\ns_cbranch_scc0 L_fin")
        e("v_and_b32 v6, 3, v1\nv_lshlrev_b32 v6, 4, v6\nv_lshrrev_b32 v12, 2, v1\nv_lshlrev_b32 v12, 6, v12\nv_add_u32 v6, v6, v12")
        for r in range(4): e(f"v_mov_b32 v{32+r}, 0")
        e("s_mov_b32 exec_lo, -1\ns_mov_b32 exec_hi, 0xf")
        e(f"ds_read_b128 v[32:35], v6 offset:{FR}")
        e("s_mov_b64 exec, -1")
        e("s_mov_b32 s52, s22\ns_mov_b32 s53, s23\ns_movk_i32 s54, 1152\ns_mov_b32 s55, 0x20000")
        e("v_and_b32 v6, 3, v1\nv_lshlrev_b32 v6, 3, v6\ns_lshl_b32 s64, s32, 5\nv_add_u32 v6, s64, v6")
        e("s_waitcnt lgkmcnt(0)")
        self.reduce_stride4(32, 36)
        for r in range(4):
            self.Rnd(f"v{32+r}", f"v{32+r}")
            e(f"v_add_f32 v{32+r}, v{44+r}, v{32+r}")
        e("v_cvt_pk_bf16_f32 v32, v32, v33\nv_cvt_pk_bf16_f32 v33, v34, v35")
        e("s_mov_b64 exec, 0xf")
        e("buffer_store_dwordx2 v[32:33], v6, s[52:55], 0 offen")
        e("s_mov_b64 exec, -1")
        e("s_cmp_eq_u32 s32, 0\ns_cbranch_scc0 L_fin")
        e("v_mov_b32 v6, 0\ns_mov_b64 exec, 1\nglobal_store_dword v6, v7, s[26:27] sc1\ns_mov_b64 exec, -1")
        if o.get("amp"):
            e(f"s_memrealtime s[92:93]\nv_lshlrev_b32 v6, 4, v1\nv_add_u32 v6, {0x300000}, v6")
            e("global_load_dwordx4 v[32:35], v6, s[26:27] sc1\nglobal_load_dwordx4 v[36:39], v6, s[26:27] offset:1024 sc1\ns_waitcnt vmcnt(0) lgkmcnt(0)")
            for k in range(8): e(f"v_subrev_u32 v{32+k}, s92, v{32+k}")
            e("v_min_i32 v32, v32, v33\nv_min_i32 v34, v34, v35\nv_min_i32 v32, v32, v34\nv_max_i32 v36, v36, v37\nv_max_i32 v38, v38, v39\nv_max_i32 v36, v36, v38")
            for st in (8, 4, 2, 1):
                e(f"v_min_i32_dpp v32, v32, v32 row_ror:{st} row_mask:0xf bank_mask:0xf\nv_max_i32_dpp v36, v36, v36 row_ror:{st} row_mask:0xf bank_mask:0xf")
            e("s_nop 4")
            for q in range(4): e(f"v_readlane_b32 s{40+q}, v32, {16*q}\nv_readlane_b32 s{44+q}, v36, {16*q}")
            e("s_nop 4\ns_min_i32 s40, s40, s41\ns_min_i32 s42, s42, s43\ns_min_i32 s40, s40, s42\ns_max_i32 s44, s44, s45\ns_max_i32 s46, s46, s47\ns_max_i32 s44, s44, s46")
            if o["amp"] == "tot": e("s_sub_u32 s65, 0, s40")
            else: e("s_sub_u32 s65, s44, s40")
            e(f"s_min_u32 s65, s65, 5000\ns_mul_i32 s65, s65, {o.get('ampk', 2)}\ns_add_u32 s65, s65, s92")
            e("L_ampspin:\ns_memrealtime s[66:67]\ns_waitcnt lgkmcnt(0)\ns_sub_u32 s66, s66, s65\ns_cmp_lt_i32 s66, 0\ns_cbranch_scc1 L_ampspin")
        e("s_branch L_fin")

    def roleA(self):
        e = self.e; o = self.o
        e("s_setprio 0")
        e("s_mul_i32 s32, s28, 9\ns_add_u32 s32, s32, s29")
        e(f"s_lshl_b32 s69, s30, 12\ns_add_u32 s69, s69, {WB}")
        e("v_lshlrev_b32 v4, 2, v2\nv_add_u32 v4, v4, v3")
        e("s_lshl_b32 s34, s30, 6\nv_add_u32 v10, s34, v4\nv_lshlrev_b32 v10, 1, v10")
        e("buffer_load_ushort v126, v10, s[36:39], 0 offen")
        e(f"v_mov_b32 v12, 0x3f803f80\nv_lshlrev_b32 v10, 2, v1\ns_mov_b32 exec_lo, -1\ns_mov_b32 exec_hi, 0\nds_write_b32 v10, v12 offset:{ONES}\ns_mov_b64 exec, -1")
        e(f"v_mul_u32_u24 v128, 2304, v3\nv_lshlrev_b32 v12, 4, v2\nv_add_u32 v128, v128, v12\ns_lshl_b32 s64, s30, 8\ns_add_u32 s64, s64, {H3R if o.get('h3rep', True) else H3}\nv_add_u32 v128, s64, v128")
        if o.get("h3rep", True): e(f"s_and_b32 s64, s2, 7\ns_mul_i32 s64, s64, {0x9000}\nv_add_u32 v128, s64, v128")
        e("v_add_u32 v129, 9216, v128\nv_add_u32 v130, 18432, v128\nv_add_u32 v131, 27648, v128")
        e(f"s_lshl_b32 s64, s30, 7\ns_add_u32 s64, s64, {HNL}\nv_lshlrev_b32 v132, 1, v4\nv_add_u32 v132, s64, v132")
        e(f"v_lshlrev_b32 v133, 4, v3\nv_add_u32 v12, s64, v133\nv_add_u32 v133, {ONES}, v133\nv_cmp_eq_u32 vcc, 1, v2\nv_cndmask_b32 v133, v12, v133, vcc")
        e(f"s_lshl_b32 s64, s30, 9\ns_add_u32 s64, s64, {MR}\nv_lshlrev_b32 v134, 4, v3\nv_lshlrev_b32 v12, 8, v2\nv_add_u32 v134, v134, v12\nv_add_u32 v134, s64, v134")
        e(f"v_lshlrev_b32 v135, 4, v2\nv_lshlrev_b32 v12, 9, v3\nv_add_u32 v135, v135, v12\nv_add_u32 v135, {MR}, v135")
        e(f"s_lshl_b32 s64, s30, 6\ns_add_u32 s64, s64, {HHL}\nv_lshlrev_b32 v136, 1, v4\nv_add_u32 v136, s64, v136\nv_lshlrev_b32 v137, 4, v3\nv_add_u32 v137, s64, v137")
        e(f"s_mul_i32 s64, s32, 2304\ns_lshl_b32 s65, s30, 8\ns_add_u32 s64, s64, s65\ns_add_u32 s64, s64, {H4}")
        e("v_bfe_u32 v138, v1, 2, 2\nv_lshlrev_b32 v138, 6, v138\nv_lshlrev_b32 v12, 4, v3\nv_add_u32 v138, v138, v12\nv_add_u32 v138, s64, v138")
        e(f"v_lshlrev_b32 v140, 2, v1\nv_add_u32 v140, {ST2}, v140\ns_lshl_b32 s64, s30, 2\nv_add_u32 v139, s64, v140")
        e("v_lshlrev_b32 v10, 3, v3\nv_bfe_u32 v12, v1, 2, 2\nv_add_u32 v5, v10, v12\nv_lshlrev_b32 v10, 6, v5\nv_and_b32 v12, 3, v1\nv_lshlrev_b32 v12, 3, v12\nv_add_u32 v10, v10, v12\nv_add_u32 v10, s69, v10")
        e("v_lshlrev_b32 v13, 7, v5\nv_add_u32 v13, v13, v12")
        e("v_and_b32 v12, 1, v3\nv_lshlrev_b32 v12, 5, v12\nv_add_u32 v11, v10, v12\nv_xor_b32 v12, 32, v12\nv_add_u32 v10, v10, v12")
        e("v_bfe_u32 v12, v1, 3, 1\nv_and_b32 v5, 1, v3\nv_lshlrev_b32 v5, 1, v5\nv_or_b32 v12, v12, v5\nv_lshlrev_b32 v12, 5, v12\nv_add_u32 v13, v13, v12")
        e(f"s_add_u32 s65, s69, {2*36864}\nv_add_u32 v13, s65, v13")
        for r in range(8): e(f"v_mov_b32 v{144+r}, 0")
        e("v_mov_b32 v152, 0\nv_mov_b32 v153, 0x3ae38e39")
        e("s_mov_b32 s52, 0x00030003\ns_mov_b32 s53, 0x00030003\ns_mov_b32 s54, 0x00ff00ff\ns_mov_b32 s55, 0x00ff00ff\ns_mov_b32 s70, 0x11111111\ns_mov_b32 s71, 0x11111111")
        self.stamp(8)
        e("s_cmp_ge_u32 s30, 4\ns_cbranch_scc0 L_aw0\ns_cmp_lt_u32 s30, 8\ns_cbranch_scc0 L_aw0\ns_waitcnt vmcnt(%d)\ns_branch L_aw1\nL_aw0:\ns_waitcnt vmcnt(0)\nL_aw1:" % (1 if (o.get("wdfirst", False) and "u" in o.get("pfw", "og")) else 9))
        e("s_waitcnt lgkmcnt(0)\ns_barrier")
        def trw(m):
            lo = 36864*m
            for s in range(2):
                for tau in range(2):
                    fr = 32 + 16*m + 8*s + 4*tau
                    a = "v11" if tau == 0 else "v10"
                    off = lo + 2048*s
                    e(f"ds_read_b64_tr_b16 v[{fr}:{fr+1}], {a} offset:{off}")
                    e(f"ds_read_b64_tr_b16 v[{fr+2}:{fr+3}], {a} offset:{off+256}")
        trw(0)
        if o.get("h3sleep", 0): e(f"s_sleep {o['h3sleep']}")
        for i in range(4): e(f"global_load_dwordx4 v[{80+4*i}:{83+4*i}], v{128+i}, s[26:27] sc1")
        e("s_waitcnt lgkmcnt(0)")
        trw(1)
        e("s_mov_b32 s66, 0")
        e("L_h3loop:")
        e("s_waitcnt vmcnt(0)")
        for i in range(4):
            gb = 80 + 4*i
            e(f"v_perm_b32 v100, v{gb+1}, v{gb}, s62\nv_perm_b32 v101, v{gb+3}, v{gb+2}, s63\nv_or_b32 v100, v100, v101")
            e(f"v_cmp_ne_u32 s[{40+2*i}:{41+2*i}], v100, v7")
        e("s_or_b64 s[48:49], s[40:41], s[42:43]\ns_or_b64 s[50:51], s[44:45], s[46:47]\ns_or_b64 s[48:49], s[48:49], s[50:51]")
        e("s_cbranch_scc0 L_h3ok")
        e("s_add_u32 s66, s66, 1\ns_cmp_gt_u32 s66, %d\ns_cbranch_scc1 L_h3ok" % o.get("maxspin", 20000))
        if o.get("h3retry", 1): e(f"s_sleep {o.get('h3retry', 1)}")
        for i in range(4):
            e(f"s_mov_b64 exec, s[{40+2*i}:{41+2*i}]\ns_cbranch_execz L_h3s{i}")
            e(f"global_load_dwordx4 v[{80+4*i}:{83+4*i}], v{128+i}, s[26:27] sc1")
            e(f"L_h3s{i}:")
        e("s_mov_b64 exec, -1\ns_branch L_h3loop")
        e("L_h3ok:")
        self.mile("h3ok", 0)
        self.note(13, "s66")
        self.stamp(9)
        e("v_lshlrev_b32 v126, 16, v126")
        for r in range(4):
            e(f"v_add_f32 v{80+r}, v{80+r}, v{84+r}\nv_add_f32 v{88+r}, v{88+r}, v{92+r}")
        for r in range(4): e(f"v_add_f32 v{80+r}, v{80+r}, v{88+r}")
        self.xrow_transpose_reduce(80)
        self.Rnd("v80", "v80")
        e("v_fma_f32 v80, v126, 1.0, v80") if False else e("v_add_f32 v80, v126, v80")
        e("v_cvt_pk_bf16_f32 v81, v80, v80")
        e("ds_write_b16 v132, v81")
        e("v_and_b32 v82, 0xffff0000, v81")
        e("v_mul_f32 v83, v82, v82")
        e("v_add_f32_dpp v82, v82, v82 row_ror:8 row_mask:0xf bank_mask:0xf")
        e("v_add_f32_dpp v83, v83, v83 row_ror:8 row_mask:0xf bank_mask:0xf")
        e("s_waitcnt lgkmcnt(0)")
        e("ds_read_b128 v[84:87], v133\nds_read_b128 v[88:91], v133 offset:64")
        self.row_allreduce("v_add_f32", ["v82", "v83"], steps=(4, 2, 1))
        e("v_permlane16_swap_b32 v82, v83\nv_add_f32 v82, v82, v83\nv_mov_b32 v83, v82\nv_permlane32_swap_b32 v82, v83\nv_add_f32 v82, v82, v83")
        e("s_waitcnt lgkmcnt(0)")
        for s in range(2):
            for m in range(2):
                for tau in range(2):
                    fr = 32 + 16*m + 8*s + 4*tau; d = 96 + 8*m + 4*tau
                    e(f"v_mfma_f32_16x16x32_bf16 v[{d}:{d+3}], v[{fr}:{fr+3}], v[{84+4*s}:{87+4*s}], {'0' if s==0 else f'v[{d}:{d+3}]'}")
        e("s_mov_b64 exec, 0x10001")
        e("ds_write_b32 v139, v82")
        e("s_mov_b64 exec, s[52:53]")
        for k in range(4):
            e(f"ds_write_b128 v134, v[{96+4*k}:{99+4*k}] offset:{64*k}")
        e("s_mov_b64 exec, 0x01ff01ff")
        self.stamp(10)
        e("s_waitcnt vmcnt(0) lgkmcnt(0)\ns_barrier")
        e("ds_read_b32 v152, v140")
        e("s_mov_b64 exec, -1")
        e("ds_read_b128 v[84:87], v135\nds_read_b128 v[88:91], v135 offset:2048")
        e("ds_read_b128 v[100:103], v135 offset:256\nds_read_b128 v[104:107], v135 offset:2304")
        e("s_mov_b64 exec, 0xffff")
        e("ds_read_b128 v[144:147], v135 offset:4096\nds_read_b128 v[148:151], v135 offset:4352")
        e("s_mov_b64 exec, -1")
        for tau in range(4):
            e(f"v_xor_b32 v12, {32*tau}, v13")
            e(f"ds_read_b64_tr_b16 v[{64+4*tau}:{65+4*tau}], v12\nds_read_b64_tr_b16 v[{66+4*tau}:{67+4*tau}], v12 offset:512")
        e("s_waitcnt lgkmcnt(8)")
        def dpp(st): e(f"v_add_f32_dpp v152, v152, v152 row_ror:{st} row_mask:0xf bank_mask:0xf")
        dpp(8)
        e("v_add_f32 v84, v84, v88\nv_add_f32 v100, v100, v104")
        dpp(4)
        e("v_add_f32 v85, v85, v89\nv_add_f32 v101, v101, v105")
        dpp(2)
        e("v_add_f32 v86, v86, v90\nv_add_f32 v102, v102, v106")
        dpp(1)
        e("v_add_f32 v87, v87, v91\nv_add_f32 v103, v103, v107")
        e("v_readlane_b32 s64, v152, 0\nv_readlane_b32 s65, v152, 16")
        e("v_add_f32 v84, v84, v144\nv_add_f32 v100, v100, v148")
        e("v_mul_f32 v112, s64, v153\nv_mul_f32 v113, s65, v153")
        e("v_add_f32 v85, v85, v145\nv_add_f32 v101, v101, v149")
        e("v_fma_f32 v113, -v112, v112, v113")
        e("v_add_f32 v86, v86, v146\nv_add_f32 v102, v102, v150")
        e("v_max_f32 v113, 0, v113")
        e("v_add_f32 v87, v87, v147\nv_add_f32 v103, v103, v151")
        e("v_cvt_pk_bf16_f32 v113, v113, v113\nv_cvt_pk_bf16_f32 v112, v112, v112")
        e("v_permlane16_swap_b32 v84, v85")
        e("v_and_b32 v113, 0xffff0000, v113\nv_and_b32 v112, 0xffff0000, v112")
        e("v_permlane16_swap_b32 v86, v87")
        e("v_add_f32 v113, 0x3727c5ac, v113")
        e("v_permlane16_swap_b32 v100, v101")
        e("v_cvt_pk_bf16_f32 v113, v113, v113")
        e("v_permlane16_swap_b32 v102, v103")
        e("v_and_b32 v113, 0xffff0000, v113")
        e("v_add_f32 v84, v84, v85\nv_add_f32 v86, v86, v87")
        e("v_sqrt_f32 v113, v113")
        e("v_add_f32 v100, v100, v101\nv_add_f32 v102, v102, v103")
        e("v_cvt_pk_bf16_f32 v113, v113, v113")
        e("v_permlane32_swap_b32 v84, v86")
        e("v_and_b32 v113, 0xffff0000, v113")
        e("v_permlane32_swap_b32 v100, v102")
        e("v_rcp_f32 v114, v113")
        e("v_add_f32 v84, v84, v86\nv_add_f32 v100, v100, v102")
        e("v_fma_f32 v84, -v112, v100, v84")
        e("v_mul_f32 v85, v84, v114\nv_fma_f32 v86, -v85, v113, v84\nv_fma_f32 v85, v86, v114, v85")
        self.Rnd("v84", "v85")
        e("v_mov_b32_dpp v85, v84 row_ror:8 row_mask:0xf bank_mask:0xf")
        e("v_max_f32 v86, 0, v84\nv_mul_f32 v86, v86, v85\nv_cvt_pk_bf16_f32 v86, v86, v86")
        e("s_mov_b64 exec, s[54:55]")
        e("ds_write_b16 v136, v86")
        e("s_mov_b64 exec, -1")
        e("s_waitcnt lgkmcnt(0)")
        e("ds_read_b128 v[84:87], v137")
        e("s_waitcnt lgkmcnt(0)")
        for tau in range(4):
            e(f"v_mfma_f32_16x16x32_bf16 v[{96+4*tau}:{99+4*tau}], v[{64+4*tau}:{67+4*tau}], v[84:87], 0")
        for tau in range(1, 4):
            for r in range(4):
                e(f"v_mov_b32_dpp v{96+r}, v{96+4*tau+r} quad_perm:[0,1,2,3] row_mask:0xf bank_mask:{1<<tau:#x}")
        self.tagins(96)
        e("s_mov_b64 exec, s[70:71]")
        e("global_store_dwordx4 v138, v[96:99], s[26:27] sc1")
        e("s_mov_b64 exec, -1")
        self.mile("apub", 0)
        self.stamp(11)

def build(opt=None):
    opt = opt or {}
    g = G(opt)
    body = g.gen()
    name = NAME + "_kernel"
    txt = HEADER + "; Override launch geometry by editing the next line (default: block=256,\n; grid=ceil(out_elems/256), lds=0). Harness parses it; keep it on one line.\n"
    txt += f"; @launch grid=(256,1,1) block=(576,1,1) lds={LDS_BYTES}\n"
    txt += f""".amdgcn_target "amdgcn-amd-amdhsa--gfx950"
.text
.globl {name}
.p2align 8
.type {name},@function
{name}:
{body}.section .rodata,"a"
.p2align 6
.amdhsa_kernel {name}
  .amdhsa_next_free_vgpr 168
  .amdhsa_next_free_sgpr 96
  .amdhsa_accum_offset 168
  .amdhsa_group_segment_fixed_size 0
  .amdhsa_kernarg_size 96
  .amdhsa_user_sgpr_count 2
  .amdhsa_user_sgpr_kernarg_segment_ptr 1
  .amdhsa_system_sgpr_workgroup_id_x 1
.end_amdhsa_kernel
"""
    return txt, g
if __name__ == "__main__":
    import json
    opt = json.loads(sys.argv[2]) if len(sys.argv) > 2 else {}
    txt, g = build(opt)
    open(sys.argv[1], "w").write(txt)
    print("instrs", g.e.count, "nops", g.e.nops)
```

```python
import sys
sys.path.insert(0, "work")
from emit import E
NAME = "sequential_preLN__sliding_block_cached__glu_gated_reglu__decode"
HEADER = open("cdna_kernels/" + NAME + ".s.ref").read().split("; Override launch geometry")[0]

H1 = 0x10000; H2 = 0x40000; H3 = 0x90000; H4 = 0xA0000; TS = 0x400000; H3CHK = 0x200000
FAST = 0x100000
H2F = 0x180000
STF = 0x1C0000
H3R = 0x200000
H3S = 0x9000
XT = 0
FL = 256
QB = 512
MX = 1024
LS = 1056
PL = 1280
OP = 2560
ST2 = 6656
HNL = 6784
MR = 7936
HHL = 12544
ONES = 13120
WR = 6656
SC = 10816
FR = 9728
WB = 13312
LDS_BYTES = WB + 3 * 36864

class G:
    def __init__(self, opt):
        self.o = opt; self.e = E(); self.uid = 0
    def stamp(self, k):
        if not self.o.get("stamps"): return
        if self.o.get("stamps") == "min" and k != 15: return
        e = self.e
        e(f"s_memrealtime s[90:91]\ns_waitcnt lgkmcnt(0)\nv_writelane_b32 v127, s90, {k}")
    def mile(self, name, wave=None):
        if self.o.get("amp") != name: return
        e = self.e; self.uid += 1
        if wave is not None: e(f"s_cmp_eq_u32 s30, {wave}\ns_cbranch_scc0 L_ml{self.uid}")
        e(f"s_memrealtime s[92:93]\ns_lshl_b32 s94, s2, 2\ns_add_u32 s94, s94, {0x300400}\ns_waitcnt lgkmcnt(0)\nv_mov_b32 v124, s92\nv_mov_b32 v125, s94")
        e("s_mov_b64 s[94:95], exec\ns_mov_b64 exec, 1\nglobal_store_dword v125, v124, s[26:27] sc1\ns_mov_b64 exec, s[94:95]")
        e(f"L_ml{self.uid}:")
    def note(self, k, sreg):
        if self.o.get("stamps") and self.o.get("stamps") != "min": self.e(f"v_writelane_b32 v127, {sreg}, {k}")
    def Rnd(self, d, s):
        self.e(f"v_cvt_pk_bf16_f32 {d}, {s}, {s}")
        self.e(f"v_and_b32 {d}, 0xffff0000, {d}")
    def row_allreduce(self, op, vs, steps=(8, 4, 2, 1)):
        for st in steps:
            for v in vs:
                self.e(f"{op}_dpp {v}, {v}, {v} row_ror:{st} row_mask:0xf bank_mask:0xf")
    def tagins(self, v4):
        for k in range(4):
            self.e(f"v_perm_b32 v{v4+k}, v{v4+k}, v7, s{56+k}")
    def dual_store(self, vaddr, data, vfast=None):
        e = self.e
        if self.o.get("fast", True):
            if vfast is None:
                e(f"v_add_u32 v125, {FAST}, {vaddr}"); vfast = "v125"
            e(f"global_store_dwordx4 {vfast}, {data}, s[26:27]")
        e(f"global_store_dwordx4 {vaddr}, {data}, s[26:27] sc1")
    def spin_fast(self, okl, tag, sleep, addrs=None, switch=None):
        e = self.e; o = self.o
        e(f"s_cbranch_vccz {okl}")
        e("s_add_u32 s66, s66, 1\ns_cmp_gt_u32 s66, %d\ns_cbranch_scc1 %s" % (o.get("maxspin", 20000), okl))
        if o.get("fast", True):
            e(f"s_cmp_eq_u32 s66, {o.get('nfast', 24)}\ns_cbranch_scc0 L_{tag}keep")
            if addrs:
                for a in addrs: e(f"v_subrev_u32 {a}, {FAST}, {a}")
            if switch: e(switch)
            e(f"L_{tag}keep:")
        if sleep: e(f"s_sleep {sleep}")
    def validate(self, grans, t0, t1):
        e = self.e
        for i, gb in enumerate(grans):
            e(f"v_perm_b32 {t0}, v{gb+1}, v{gb}, s62")
            e(f"v_perm_b32 {t1}, v{gb+3}, v{gb+2}, s63")
            e(f"v_or_b32 {t0}, {t0}, {t1}")
            e(f"v_cmp_ne_u32 vcc, {t0}, v7")
            if len(grans) > 1:
                if i == 0: e("s_mov_b64 s[60:61], vcc")
                else: e("s_or_b64 s[60:61], s[60:61], vcc")
        if len(grans) > 1: e("s_mov_b64 vcc, s[60:61]")
    def spin_tail(self, okl, loopl, sleep):
        e = self.e
        e(f"s_cbranch_vccz {okl}")
        e("s_add_u32 s66, s66, 1\ns_cmp_gt_u32 s66, %d\ns_cbranch_scc1 %s" % (self.o.get("maxspin", 20000), okl))
        if sleep: e(f"s_sleep {sleep}")
    def masks(self):
        e = self.e
        e("v_and_b32 v6, 1, v1\nv_lshlrev_b32 v6, 4, v6\nv_mov_b32 v12, 0xffff\nv_lshlrev_b32 v12, v6, v12")
        e("v_bfe_u32 v6, v1, 1, 2")
        for r in range(4):
            e(f"v_cmp_eq_u32 vcc, {r}, v6\nv_cndmask_b32 v{120+r}, 0, v12, vcc")
    def consts(self):
        e = self.e
        e("s_mov_b32 s56, 0x07060500\ns_mov_b32 s57, 0x07060501\ns_mov_b32 s58, 0x07060502\ns_mov_b32 s59, 0x07060503")
        e("s_mov_b32 s62, 0x0c0c0400\ns_mov_b32 s63, 0x04000c0c")
    def epoch(self):
        e = self.e
        e("s_waitcnt lgkmcnt(0)")
        e("s_mul_i32 s31, s31, 0x19660d\ns_add_u32 s31, s31, 0x3c6ef35f\nv_mov_b32 v7, s31")
    def ln_scalars(self, s1, s2, vm, vs, vr):
        e = self.e
        e(f"s_mov_b32 s68, 0x3ae38e39")
        e(f"v_mov_b32 {vm}, {s1}\nv_mov_b32 {vs}, {s2}\nv_mul_f32 {vm}, s68, {vm}\nv_mul_f32 {vs}, s68, {vs}")
        e(f"v_fma_f32 {vs}, -{vm}, {vm}, {vs}")
        e(f"v_max_f32 {vs}, 0, {vs}")
        self.Rnd(vs, vs); self.Rnd(vm, vm)
        e(f"v_add_f32 {vs}, 0x3727c5ac, {vs}")
        self.Rnd(vs, vs)
        e(f"v_sqrt_f32 {vs}, {vs}")
        self.Rnd(vs, vs)
        e(f"v_rcp_f32 {vr}, {vs}")
    def ln_apply(self, x, vm, vs, vr, t0, t1):
        e = self.e
        e(f"v_sub_f32 {x}, {x}, {vm}")
        self.Rnd(x, x)
        e(f"v_mul_f32 {t0}, {x}, {vr}")
        e(f"v_fma_f32 {t1}, -{t0}, {vs}, {x}")
        e(f"v_fma_f32 {t0}, {t1}, {vr}, {t0}")
        e(f"v_cvt_pk_bf16_f32 {x}, {t0}, {t0}")
    def reduce_stride8(self, v, t):
        e = self.e
        for r in range(4): e(f"v_add_f32_dpp v{v+r}, v{v+r}, v{v+r} row_ror:8 row_mask:0xf bank_mask:0xf")
        self.xrow_allreduce(v, t)
    def xrow_allreduce(self, v, t):
        e = self.e
        for r in range(4): e(f"v_mov_b32 v{t+r}, v{v+r}")
        for r in range(4): e(f"v_permlane16_swap_b32 v{v+r}, v{t+r}")
        for r in range(4): e(f"v_add_f32 v{v+r}, v{v+r}, v{t+r}")
        for r in range(4): e(f"v_mov_b32 v{t+r}, v{v+r}")
        for r in range(4): e(f"v_permlane32_swap_b32 v{v+r}, v{t+r}")
        for r in range(4): e(f"v_add_f32 v{v+r}, v{v+r}, v{t+r}")
    def reduce_stride4(self, v, t):
        e = self.e
        for st in (8, 4):
            for r in range(4): e(f"v_add_f32_dpp v{v+r}, v{v+r}, v{v+r} row_ror:{st} row_mask:0xf bank_mask:0xf")
        self.xrow_allreduce(v, t)
    def xrow_transpose_reduce(self, v):
        e = self.e
        e(f"v_permlane16_swap_b32 v{v}, v{v+1}\nv_permlane16_swap_b32 v{v+2}, v{v+3}")
        e(f"v_add_f32 v{v}, v{v}, v{v+1}\nv_add_f32 v{v+2}, v{v+2}, v{v+3}")
        e(f"v_permlane32_swap_b32 v{v}, v{v+2}")
        e(f"v_add_f32 v{v}, v{v}, v{v+2}")

    def gen(self):
        e = self.e; o = self.o
        nt = o.get("kvflag", "nt")
        e("L_start:")
        if o.get("amp") and o.get("ampentry"): e("s_memrealtime s[94:95]")
        e("s_cmp_ge_u32 s2, 256\ns_cbranch_scc1 L_end")
        e("s_load_dwordx16 s[4:19], s[0:1], 0\ns_load_dwordx8 s[20:27], s[0:1], 64")
        if o.get("stamps"): e("v_mov_b32 v127, 0\ns_memrealtime s[90:91]")
        e("v_lshrrev_b32 v6, 6, v0\nv_and_b32 v1, 63, v0\nv_readfirstlane_b32 s30, v6")
        e("s_and_b32 s28, s2, 7\ns_lshl_b32 s28, s28, 1\ns_lshr_b32 s33, s2, 7\ns_or_b32 s28, s28, s33")
        e("s_bfe_u32 s29, s2, 0x40003")
        e("v_and_b32 v2, 15, v1\nv_lshrrev_b32 v3, 4, v1\nv_lshlrev_b32 v8, 4, v1")
        e("s_cmp_eq_u32 s30, 8\ns_cbranch_scc0 L_notq")
        e("s_setprio 3")
        e("v_lshlrev_b32 v11, 13, v3\nv_lshl_add_u32 v11, v2, 4, v11")
        e("s_and_b32 s34, s29, 1\ns_lshl_b32 s35, s28, 1\ns_add_u32 s35, s35, s34\ns_lshl_b32 s35, s35, 8\ns_lshr_b32 s34, s29, 1\ns_mul_i32 s34, s34, 72")
        e("v_add_lshl_u32 v9, s34, v1, 1")
        e("s_lshl_b32 s34, s34, 13\ns_add_u32 s35, s35, s34")
        e("s_movk_i32 s38, 1152\ns_mov_b32 s39, 0x20000\ns_mov_b32 s50, %d\ns_mov_b32 s51, 0x20000" % (576*8192))
        e("s_waitcnt lgkmcnt(0)")
        if o.get("stamps"): e("v_writelane_b32 v127, s90, 0")
        e("s_mov_b32 s36, s4\ns_mov_b32 s37, s5\ns_mov_b32 s48, s10\ns_mov_b32 s49, s11")
        e("buffer_load_dwordx4 v[24:27], v8, s[36:39], 0 offen")
        e("buffer_load_dwordx4 v[28:31], v8, s[36:39], 0 offen offset:1024")
        e("buffer_load_ushort v14, v9, s[36:39], 0 offen")
        e("buffer_load_ushort v15, v9, s[36:39], 0 offen offset:128")
        for i in range(18):
            e(f"buffer_load_dwordx4 v[{32+4*i}:{35+4*i}], v11, s[48:51], s35 offen {nt}")
            if i < 17: e("s_add_u32 s35, s35, 0x8000")
        e("s_barrier")
        e("s_branch L_qrest")
        e("L_notq:")
        if o.get("codepf", True):
            e("s_cmp_eq_u32 s30, 0\ns_cbranch_scc0 L_pfskip")
            e("s_getpc_b64 s[64:65]")
            e("L_pfbase:")
            e("s_sub_u32 s64, s64, L_pfbase-L_start\ns_subb_u32 s65, s65, 0")
            e("s_lshr_b32 s66, s2, 3\ns_lshl_b32 s66, s66, 9\nv_lshlrev_b32 v6, 7, v1\nv_add_u32 v6, s66, v6\nv_min_u32 v6, L_end-L_start, v6")
            e("s_mov_b64 exec, 0xf\nglobal_load_dword v124, v6, s[64:65]\ns_mov_b64 exec, -1")
            e("L_pfskip:")
        e(f"s_lshl_b32 s33, s28, 24\ns_lshl_b32 s64, s29, 16\ns_add_u32 s33, s33, s64\ns_add_u32 s33, s33, {61440*256}\ns_and_b32 s64, s30, 3\ns_lshl_b32 s64, s64, 14\ns_add_u32 s33, s33, s64")
        e("s_movk_i32 s70, 0x1000\ns_movk_i32 s71, 0x2000\ns_movk_i32 s72, 0x3000")
        e("v_bfe_u32 v13, v1, 2, 2\nv_lshlrev_b32 v13, 8, v13\nv_lshl_add_u32 v13, v3, 6, v13\nv_and_b32 v12, 3, v1\nv_lshl_add_u32 v13, v12, 4, v13")
        e("s_movk_i32 s42, 0x4000\ns_mov_b32 s43, 0x20000\ns_movk_i32 s46, 0x4000\ns_mov_b32 s47, 0x20000\ns_movk_i32 s38, 1152\ns_mov_b32 s39, 0x20000")
        e("s_waitcnt lgkmcnt(0)")
        if o.get("stamps"): e("v_writelane_b32 v127, s90, 0")
        e("s_mov_b32 s36, s4\ns_mov_b32 s37, s5")
        e("s_add_u32 s40, s6, s33\ns_addc_u32 s41, s7, 0")
        e("s_add_u32 s44, s8, s33\ns_addc_u32 s45, s9, 0")
        so = lambda t: ['0', 's70', 's71', 's72'][t // 4]
        n1 = o.get("kn1", 16)
        def Kld(t): e(f"buffer_load_dwordx4 v[{32+4*t}:{35+4*t}], v13, s[40:43], {so(t)} offen offset:{(t%4)*1024} {nt}")
        e("s_cmp_lt_u32 s30, 4\ns_cbranch_scc1 L_vfirst")
        e("s_setprio 2")
        if o.get("diag0"): self.stamp(11)
        e("s_barrier")
        if o.get("diag0"): self.stamp(12)
        for t in range(n1): Kld(t)
        self.common_setup()
        self.stamp(6)
        e("s_barrier")
        for t in range(n1, 16): Kld(t)
        e("s_branch L_kmain")
        e("L_vfirst:")
        e("s_barrier")
        self.common_setup()
        e("s_branch L_vwave")
        e("L_qrest:")
        e("v_mov_b32 v6, 0\nv_mov_b32 v16, 0\nv_mov_b32 v17, 0\nv_mov_b32 v18, 0\nv_mov_b32 v19, 0")
        e(f"ds_write_b128 v6, v[16:19] offset:{FL}")
        self.common_setup()
        self.qwave()
        e("s_branch L_roles")
        e("L_kmain:")
        self.consts()
        self.epoch()
        self.stamp(1)
        if o.get("diagK"):
            e("s_waitcnt vmcnt(12)"); self.stamp(8)
            e("s_waitcnt vmcnt(8)"); self.stamp(9)
            e("s_waitcnt vmcnt(4)"); self.stamp(10)
            e("s_waitcnt vmcnt(0)"); self.stamp(5)
        e(f"v_mov_b32 v6, 0\ns_mov_b32 s66, 0")
        e("L_qfloop:")
        e(f"ds_read_b32 v12, v6 offset:{FL}\ns_waitcnt lgkmcnt(0)\nv_cmp_ne_u32 vcc, 1, v12")
        self.spin_tail("L_qfok", "L_qfloop", 1)
        e("s_branch L_qfloop")
        e("L_qfok:")
        e("v_bfe_u32 v6, v1, 2, 1\nv_lshlrev_b32 v6, 8, v6\nv_lshlrev_b32 v12, 6, v3\nv_add_u32 v6, v6, v12\nv_and_b32 v12, 3, v1\nv_lshlrev_b32 v12, 4, v12\nv_add_u32 v6, v6, v12")
        e(f"ds_read_b128 v[12:15], v6 offset:{QB}")
        self.stamp(2)
        e("s_waitcnt vmcnt(0) lgkmcnt(0)")
        self.stamp(3)
        D0 = [96+4*t if t < 6 else 24+4*(t-6) for t in range(8)]
        D1 = [32+4*t for t in range(8)]
        D = D0 + D1
        S = [16+t for t in range(8)] + [96+t for t in range(8)]
        for t in range(16):
            e(f"v_mfma_f32_16x16x32_bf16 v[{D[t]}:{D[t]+3}], v[12:15], v[{32+4*t}:{35+4*t}], 0")
        for half in range(2):
            for k in range(4):
                for t in range(8*half, 8*half+8):
                    if k == 0: e(f"v_mov_b32_dpp v{S[t]}, v{D[t]} quad_perm:[0,0,0,0] row_mask:0xf bank_mask:0xf")
                    else: e(f"v_add_f32_dpp v{S[t]}, v{D[t]+k}, v{S[t]} quad_perm:[{k},{k},{k},{k}] row_mask:0xf bank_mask:0xf")
        e("s_mov_b32 s64, 0x3db504f3")
        def rnd_pairs():
            for k in range(8): e(f"v_cvt_pk_bf16_f32 v{64+k}, v{S[2*k]}, v{S[2*k+1]}")
            for k in range(8): e(f"v_lshlrev_b32 v{S[2*k]}, 16, v{64+k}\nv_and_b32 v{S[2*k+1]}, 0xffff0000, v{64+k}")
        rnd_pairs()
        for t in range(16): e(f"v_mul_f32 v{S[t]}, s64, v{S[t]}")
        rnd_pairs()
        for k in range(5): e(f"v_max3_f32 v{64+k}, v{S[3*k]}, v{S[3*k+1]}, v{S[3*k+2]}")
        e(f"v_max3_f32 v64, v64, v65, v{S[15]}\nv_max3_f32 v66, v66, v67, v68\nv_max_f32 v64, v64, v66")
        self.row_allreduce("v_max_f32", ["v64"], steps=(8, 4))
        e("s_mov_b32 s64, 0x3fb8aa3b")
        for t in range(16): e(f"v_sub_f32 v{S[t]}, v{S[t]}, v64")
        for t in range(16): e(f"v_mul_f32 v{S[t]}, s64, v{S[t]}")
        for t in range(16): e(f"v_exp_f32 v{S[t]}, v{S[t]}")
        for k in range(8): e(f"v_cvt_pk_bf16_f32 v{72+k}, v{S[2*k]}, v{S[2*k+1]}")
        for k in range(8): e(f"v_add_f32 v{S[2*k]}, v{S[2*k]}, v{S[2*k+1]}")
        for k in range(4): e(f"v_add_f32 v{S[4*k]}, v{S[4*k]}, v{S[4*k+2]}")
        e(f"v_add_f32 v{S[0]}, v{S[0]}, v{S[4]}\nv_add_f32 v{S[8]}, v{S[8]}, v{S[12]}\nv_add_f32 v65, v{S[0]}, v{S[8]}")
        self.row_allreduce("v_add_f32", ["v65"], steps=(8, 4))
        e("s_and_b32 s64, s30, 3\nv_lshlrev_b32 v6, 7, v3\nv_bfe_u32 v12, v1, 2, 2\nv_lshlrev_b32 v12, 5, v12\nv_add_u32 v6, v6, v12\ns_lshl_b32 s65, s64, 8\nv_add_u32 v6, s65, v6")
        e("s_mov_b32 exec_lo, 0x11111111\ns_mov_b32 exec_hi, 0")
        e(f"ds_write_b128 v6, v[72:75] offset:{PL}\nds_write_b128 v6, v[76:79] offset:{PL+16}")
        e("s_mov_b64 exec, -1")
        e("s_lshl_b32 s65, s64, 2\nv_add_u32 v6, s65, v1")
        e("s_mov_b64 exec, 0x10001")
        e(f"ds_write_b32 v6, v64 offset:{MX}\nds_write_b32 v6, v65 offset:{LS}")
        e("s_mov_b64 exec, -1")
        e("s_waitcnt lgkmcnt(0)")
        self.stamp(4)
        e("s_barrier")
        e("s_setprio 0")
        self.wait_pub("sf", 12)
        e("s_cmp_lt_u32 s29, 9\ns_cbranch_scc1 L_kdA\ns_cmp_lt_u32 s29, 15\ns_cbranch_scc0 L_roles")
        self.wo_dma(o.get("woearly", 12))
        e("s_branch L_roles")
        e("L_kdA:")
        self.stamp(5)
        self.wgu_dma(o.get("wgearly", 9))
        e("s_branch L_roles")
        e("L_vwave:")
        if o.get("tlbtouch"):
            st = o["tlbtouch"]
            e("s_cmp_eq_u32 s30, 1\ns_cbranch_scc0 L_notouch")
            e(f"v_lshlrev_b32 v12, {st}, v1")
            for srd in ("s[52:55]", "s[76:79]", "s[80:83]", "s[84:87]"):
                e(f"buffer_load_dword v124, v12, {srd}, 0 offen")
            e("L_notouch:")
        if o.get("fast", True) and o.get("warmF", True):
            e("s_cmp_eq_u32 s30, 1\ns_cbranch_scc0 L_nowarm")
            e(f"s_lshl_b32 s64, s28, 13\ns_lshl_b32 s65, s29, 9\ns_add_u32 s64, s64, s65\ns_add_u32 s64, s64, {H1+FAST}")
            e(f"s_lshl_b32 s65, s28, 14\ns_lshl_b32 s66, s29, 10\ns_add_u32 s65, s65, s66\ns_add_u32 s65, s65, {H2F-512}")
            e(f"s_lshl_b32 s66, s28, 8\ns_add_u32 s66, s66, {STF-12*128}")
            e("v_lshlrev_b32 v12, 7, v1\nv_mov_b32 v6, s65\nv_mov_b32 v16, s64\nv_cmp_gt_u32 vcc, 4, v1\nv_cndmask_b32 v6, v6, v16, vcc")
            e("v_mov_b32 v16, s66\nv_cmp_lt_u32 vcc, 11, v1\nv_cndmask_b32 v6, v6, v16, vcc\nv_add_u32 v6, v6, v12")
            e("s_mov_b64 exec, 0x3fff\nglobal_load_dword v124, v6, s[26:27]\ns_mov_b64 exec, -1")
            e("L_nowarm:")
        self.masks(); self.consts(); self.epoch()
        e("s_barrier")
        def Vld(t): e(f"buffer_load_dwordx4 v[{32+4*t}:{35+4*t}], v8, s[44:47], {so(t)} offen offset:{(t%4)*1024} {nt}")
        self.weights_prefetch()
        for t in range(16): Vld(t)
        self.stamp(1)
        e("s_barrier")
        self.stamp(2)
        self.mile("bp", 0)
        e("v_bfe_u32 v6, v1, 3, 1\nv_lshlrev_b32 v6, 7, v6\nv_lshlrev_b32 v12, 5, v3\nv_add_u32 v6, v6, v12\ns_lshl_b32 s64, s30, 8\nv_add_u32 v6, s64, v6")
        e(f"ds_read_b128 v[16:19], v6 offset:{PL}\nds_read_b128 v[20:23], v6 offset:{PL+16}")
        e("v_lshrrev_b32 v6, 1, v3\nv_lshlrev_b32 v6, 4, v6")
        e(f"ds_read_b128 v[24:27], v6 offset:{MX}")
        e("s_lshl_b32 s64, s30, 2\nv_add_u32 v6, s64, v6")
        e(f"ds_read_b32 v28, v6 offset:{MX}")
        e("s_waitcnt lgkmcnt(0)")
        e("v_max3_f32 v24, v24, v25, v26\nv_max_f32 v24, v24, v27\nv_sub_f32 v28, v28, v24\nv_mul_f32 v28, 0x3fb8aa3b, v28\nv_exp_f32 v28, v28")
        e("v_lshrrev_b32 v6, 1, v3\nv_lshlrev_b32 v6, 9, v6\nv_lshl_add_u32 v6, v2, 5, v6\nv_and_b32 v30, 1, v3\nv_lshl_add_u32 v6, v30, 4, v6\ns_lshl_b32 s64, s30, 10\nv_add_u32 v116, s64, v6")
        e(f"s_mul_i32 s67, s28, 18432\ns_mul_i32 s64, s29, 1152\ns_add_u32 s67, s67, s64\ns_add_u32 s67, s67, {H2}\nv_add_u32 v117, s67, v8")
        e(f"s_lshl_b32 s64, s28, 14\ns_lshl_b32 s65, s29, 4\ns_add_u32 s64, s64, s65\ns_add_u32 s64, s64, {H2F}")
        e("v_lshrrev_b32 v126, 3, v1\nv_lshlrev_b32 v126, 11, v126\nv_and_b32 v30, 1, v1\nv_lshl_add_u32 v126, v30, 10, v126\nv_bfe_u32 v30, v1, 1, 2\nv_lshl_add_u32 v126, v30, 8, v126\nv_add_u32 v126, s64, v126")
        e("v_mov_b32 v118, 0\nv_mov_b32 v119, 1")
        e("s_mov_b32 s64, 0x01000100\ns_mov_b32 s65, 0x03020302")
        for t in range(16):
            ab = 96 + 4*(t % 4)
            e(f"v_perm_b32 v29, v{16+t//2}, v{16+t//2}, {'s64' if t%2==0 else 's65'}")
            for r in range(4): e(f"v_and_b32 v{ab+r}, v29, v{120+r}")
            e(f"s_waitcnt vmcnt({15-t})")
            e(f"v_mfma_f32_16x16x32_bf16 v[12:15], v[{ab}:{ab+3}], v[{32+4*t}:{35+4*t}], {'0' if t==0 else 'v[12:15]'}")
        self.stamp(3)
        e("s_setprio 3")
        for r in range(4): e(f"v_mul_f32 v{12+r}, v28, v{12+r}")
        e(f"ds_write_b128 v116, v[12:15] offset:{OP}")
        e("s_mov_b64 exec, 1")
        e(f"ds_add_rtn_u32 v31, v118, v119 offset:{FL+4}")
        e("s_mov_b64 exec, -1")
        e("s_waitcnt lgkmcnt(0)")
        e("v_readfirstlane_b32 s64, v31")
        e("s_cmp_eq_u32 s64, 3\ns_cbranch_scc0 L_vdone")
        for w in range(4): e(f"ds_read_b128 v[{16+4*w}:{19+4*w}], v8 offset:{OP + 1024*w}")
        e("v_mov_b32 v6, v117\nv_mov_b32 v12, v126")
        e("s_waitcnt lgkmcnt(0)")
        for r in range(4): e(f"v_add_f32 v{16+r}, v{16+r}, v{20+r}\nv_add_f32 v{24+r}, v{24+r}, v{28+r}")
        for r in range(4): e(f"v_add_f32 v{16+r}, v{16+r}, v{24+r}")
        self.tagins(16)
        self.dual_store("v6", "v[16:19]", "v12")
        e(f"v_mov_b32 v6, 0\nv_mov_b32 v30, 1\nds_write_b32 v6, v30 offset:{FL+8}")
        self.mile("attn")
        e("L_vdone:")
        e("s_setprio 0")
        self.stamp(4)
        e("s_branch L_roles")
        e("L_roles:")
        self.stamp(7)
        e("s_cmp_lt_u32 s29, 9\ns_cbranch_scc1 L_roleA")
        e("s_cmp_lt_u32 s29, 15\ns_cbranch_scc0 L_fin")
        self.roleB1()
        e("L_roleA:")
        self.roleA()
        e("L_fin:")
        if o.get("stamps"):
            self.stamp(15)
            e(f"s_mul_i32 s64, s2, 9\ns_add_u32 s64, s64, s30\ns_lshl_b32 s64, s64, 6\ns_add_u32 s64, s64, {TS}")
            e("v_lshlrev_b32 v6, 2, v1\nv_add_u32 v6, s64, v6")
            e("s_mov_b64 exec, 0xffff")
            e("global_store_dword v6, v127, s[26:27]")
        e("L_end:")
        e("s_endpgm")
        return e.text()

    def qwave(self):
        e = self.e; o = self.o; nt = o.get("kvflag", "nt")
        npf = 0
        self.masks(); self.consts()
        e(f"s_waitcnt vmcnt({18+npf})")
        self.stamp(1)
        e("v_mov_b32 v104, 0\nv_mov_b32 v105, 0\ns_mov_b32 s64, 0x3f803f80")
        for k in range(8):
            e(f"v_dot2_f32_bf16 v104, v{24+k}, s64, v104")
            e(f"v_dot2_f32_bf16 v105, v{24+k}, v{24+k}, v105")
        self.row_allreduce("v_add_f32", ["v104", "v105"])
        e("v_permlane16_swap_b32 v104, v105\nv_add_f32 v104, v104, v105\nv_mov_b32 v105, v104\nv_permlane32_swap_b32 v104, v105\nv_add_f32 v104, v104, v105")
        e("v_readlane_b32 s64, v104, 0\nv_readlane_b32 s65, v104, 16")
        self.ln_scalars("s64", "s65", "v104", "v105", "v106")
        e("v_and_b32 v6, 3, v1\nv_mul_u32_u24 v6, 48, v6\nv_lshrrev_b32 v12, 2, v1\nv_lshlrev_b32 v12, 1, v12\nv_add_u32 v6, v6, v12")
        for i, xv in enumerate(("v14", "v15")):
            e(f"v_lshlrev_b32 {xv}, 16, {xv}")
            self.ln_apply(xv, "v104", "v105", "v106", "v107", "v108")
        e(f"ds_write_b16 v6, v14 offset:{XT}")
        e("s_mov_b64 exec, 0xff")
        e(f"ds_write_b16 v6, v15 offset:{XT+32}")
        e("s_mov_b64 exec, -1")
        e("v_mul_u32_u24 v6, 48, v3")
        e("s_waitcnt lgkmcnt(0)")
        e(f"ds_read_b128 v[24:27], v6 offset:{XT}\nds_read_b128 v[28:31], v6 offset:{XT+16}\nds_read_b32 v11, v6 offset:{XT+32}")
        self.epoch()
        if o.get("diagQ"): self.stamp(9)
        e("s_mov_b32 s64, 0x01000100\ns_mov_b32 s65, 0x03020302")
        slots = [104, 108, 112, 116] + [128 + 4*k for k in range(9)] + [16, 20, 12]
        def prep(i, ab):
            src = f"v{24+i//2}" if i < 16 else "v11"
            e(f"v_perm_b32 v10, {src}, {src}, {'s64' if i%2==0 else 's65'}")
            for r in range(4): e(f"v_and_b32 v{ab+r}, v10, v{120+r}")
        def mm(i, ab):
            e(f"s_waitcnt vmcnt({17-i})")
            e(f"v_mfma_f32_16x16x32_bf16 v[164:167], v[{ab}:{ab+3}], v[{32+4*i}:{35+4*i}], {'0' if i==0 else 'v[164:167]'}")
        for i in range(16): prep(i, slots[i])
        if o.get("diagQ"):
            self.stamp(10)
            e("s_waitcnt vmcnt(0)"); self.stamp(11)
        mm(0, slots[0]); mm(1, slots[1])
        prep(16, slots[0]); prep(17, slots[1])
        for i in range(2, 16): mm(i, slots[i])
        mm(16, slots[0]); mm(17, slots[1])
        e(f"s_lshl_b32 s64, s28, 13\ns_lshl_b32 s65, s29, 9\ns_add_u32 s65, s65, s64\ns_add_u32 s65, s65, {H1}")
        e("v_lshlrev_b32 v6, 5, v2\nv_lshlrev_b32 v12, 4, v3\nv_add_u32 v6, v6, v12\nv_add_u32 v6, s65, v6")
        self.tagins(164)
        e("s_mov_b32 exec_lo, -1\ns_mov_b32 exec_hi, 0")
        self.dual_store("v6", "v[164:167]")
        e("s_mov_b64 exec, -1")
        self.stamp(2)
        self.mile("qpub")
        e("s_barrier")
        e(f"s_add_u32 s64, s64, {H1 + (FAST if o.get('fast', True) else 0)}\nv_add_u32 v6, s64, v8\nv_add_u32 v9, 4096, v6")
        if o.get("smemchk", False):
            regs = [64, 65] + list(range(67, 76)) + [88, 89, 92, 93, 94]
            e(f"s_lshl_b32 s33, s28, 13\ns_add_u32 s33, s33, {H1 + 508}\ns_add_u32 s34, s26, s33\ns_addc_u32 s35, s27, 0")
            e("s_lshr_b32 s33, s31, 24\ns_mov_b32 s66, 0")
            if o.get("h1sleep", 4): e(f"s_sleep {o.get('h1sleep', 4)}")
            e("L_smloop:")
            for k, r in enumerate(regs): e(f"s_load_dword s{r}, s[34:35], {512*k} glc")
            e("s_waitcnt lgkmcnt(0)")
            for k, r in enumerate(regs):
                e(f"s_xor_b32 s{r}, s{r}, s33")
                if k: e(f"s_or_b32 s64, s64, s{r}")
            e("s_and_b32 s64, s64, 0xff\ns_cbranch_scc0 L_smok")
            e("s_add_u32 s66, s66, 1\ns_cmp_gt_u32 s66, %d\ns_cbranch_scc1 L_smok" % o.get("maxspin", 20000))
            e("s_branch L_smloop")
            e("L_smok:")
            self.note(11, "s66")
        elif o.get("h1sleep", 30): e(f"s_sleep {o.get('h1sleep', 30)}")
        e("s_mov_b32 s66, 0")
        def h1loads(base):
            for i in range(8):
                e(f"global_load_dwordx4 v[{base+4*i}:{base+4*i+3}], {'v6' if i<4 else 'v9'}, s[26:27] offset:{(i%4)*1024} sc1")
        self.stamp(5)
        h1loads(32)
        self.stamp(6)
        gap = o.get("h1gap", 36)
        if gap:
            e(f"s_sleep {gap}")
            h1loads(64)
            e("s_waitcnt vmcnt(8)")
            self.validate([32+4*i for i in range(8)], "v100", "v101")
            e("s_cbranch_vccz L_h1ok")
            h1loads(128)
            e("s_waitcnt vmcnt(8)")
            self.validate([64+4*i for i in range(8)], "v100", "v101")
            e("s_cbranch_vccnz L_h1c")
            for k in range(32): e(f"v_mov_b32 v{32+k}, v{64+k}")
            e("s_branch L_h1ok")
            e("L_h1c:")
            e("s_waitcnt vmcnt(0)")
            for k in range(32): e(f"v_mov_b32 v{32+k}, v{128+k}")
        e("L_h1loop:")
        e("s_waitcnt vmcnt(0)")
        self.validate([32+4*i for i in range(8)], "v100", "v101")
        self.spin_fast("L_h1ok", "h1", 2, ["v6", "v9"])
        h1loads(32)
        e("s_branch L_h1loop")
        e("L_h1ok:")
        self.note(12, "s66")
        for k in range(32): e(f"v_and_b32 v{32+k}, 0xffffff00, v{32+k}")
        for i in range(0, 8, 2):
            for r in range(4): e(f"v_add_f32 v{32+4*i+r}, v{32+4*i+r}, v{36+4*i+r}")
        for i in (0, 4):
            for r in range(4): e(f"v_add_f32 v{32+4*i+r}, v{32+4*i+r}, v{40+4*i+r}")
        for r in range(4): e(f"v_add_f32 v{32+r}, v{32+r}, v{48+r}")
        e("v_cvt_pk_bf16_f32 v32, v32, v33\nv_cvt_pk_bf16_f32 v33, v34, v35")
        e("v_lshlrev_b32 v6, 3, v1")
        e(f"ds_write_b64 v6, v[32:33] offset:{QB}")
        e("v_mov_b32 v6, 0\nv_mov_b32 v12, 1")
        e("s_waitcnt lgkmcnt(0)")
        e(f"ds_write_b32 v6, v12 offset:{FL}")
        e("s_waitcnt lgkmcnt(0)")
        self.stamp(3)
        self.mile("qf")
        e("s_waitcnt vmcnt(0)")
        e("s_barrier")
        e("v_mov_b32 v6, 0")
        e(f"ds_read_b128 v[32:35], v6 offset:{MX}\nds_read_b128 v[36:39], v6 offset:{MX+16}\nds_read_b128 v[40:43], v6 offset:{LS}\nds_read_b128 v[44:47], v6 offset:{LS+16}")
        e("s_waitcnt lgkmcnt(0)")
        for h in range(2):
            m = 32 + 4*h; l = 40 + 4*h; M = 16 + 2*h; L = 17 + 2*h
            e(f"v_max3_f32 v{M}, v{m}, v{m+1}, v{m+2}\nv_max_f32 v{M}, v{M}, v{m+3}")
            for k in range(4): e(f"v_sub_f32 v{m+k}, v{m+k}, v{M}")
            for k in range(4): e(f"v_mul_f32 v{m+k}, 0x3fb8aa3b, v{m+k}")
            for k in range(4): e(f"v_exp_f32 v{m+k}, v{m+k}")
            e(f"v_mul_f32 v{L}, v{m}, v{l}")
            for k in range(1, 4): e(f"v_fma_f32 v{L}, v{m+k}, v{l+k}, v{L}")
        self.tagins(16)
        e(f"s_mul_i32 s67, s28, 18432\ns_mul_i32 s64, s29, 1152\ns_add_u32 s67, s67, s64\ns_add_u32 s67, s67, {H2+1024}\nv_mov_b32 v6, s67")
        e(f"s_lshl_b32 s64, s28, 8\ns_lshl_b32 s65, s29, 4\ns_add_u32 s64, s64, s65\ns_add_u32 s64, s64, {STF}\nv_mov_b32 v12, s64")
        e("s_mov_b64 exec, 1")
        self.dual_store("v6", "v[16:19]", "v12")
        e("s_mov_b64 exec, -1")
        e(f"v_mov_b32 v6, 0\nv_mov_b32 v12, 1\nds_write_b32 v6, v12 offset:{FL+12}")
        self.stamp(4)
    def common_setup(self):
        e = self.e; o = self.o
        e("s_load_dword s31, s[26:27], 0")
        self.dma_srds()
        if o.get("amp"):
            self.uid += 1
            e(f"s_cmp_eq_u32 s30, 0\ns_cbranch_scc0 L_amp{self.uid}")
            e(f"s_lshl_b32 s92, s2, 2\ns_add_u32 s92, s92, {0x300000}\nv_mov_b32 v124, s94\nv_mov_b32 v125, s92")
            e("s_mov_b64 exec, 1\nglobal_store_dword v125, v124, s[26:27] sc1\nglobal_store_dword v125, v124, s[26:27] offset:1024 sc1\ns_mov_b64 exec, -1")
            e(f"L_amp{self.uid}:")
    def dma_srds(self):
        e = self.e
        e("s_mov_b32 s52, s12\ns_mov_b32 s53, s13\ns_mov_b32 s54, %d\ns_mov_b32 s55, 0x20000" % (4096*1152))
        e(f"s_mov_b32 s76, s16\ns_mov_b32 s77, s17\ns_mov_b32 s78, {576*9216}\ns_mov_b32 s79, 0x20000")
        e(f"s_mov_b32 s80, s18\ns_mov_b32 s81, s19\ns_mov_b32 s82, {576*9216}\ns_mov_b32 s83, 0x20000")
        e(f"s_mov_b32 s84, s20\ns_mov_b32 s85, s21\ns_mov_b32 s86, {4608*1152}\ns_mov_b32 s87, 0x20000")
    def weights_prefetch(self):
        e = self.e; fl = self.o.get("pfflag", ""); which = self.o.get("pfw", "og")
        d = "v[112:115]"
        def contig(srd, xbytes, jbytes, vbytes):
            e(f"s_and_b32 s64, s2, 7\ns_mul_i32 s64, s64, {xbytes}\ns_lshr_b32 s65, s2, 3\ns_mul_i32 s65, s65, {jbytes}\ns_add_u32 s64, s64, s65")
            e(f"s_and_b32 s65, s30, 3\ns_mul_i32 s65, s65, {vbytes}\ns_add_u32 s64, s64, s65")
            off = 0
            while off < vbytes:
                rem = vbytes - off
                if off and off % 4096 == 0: e("s_add_u32 s64, s64, 4096")
                if rem < 1024:
                    lanes = rem // 16
                    e(f"s_mov_b64 exec, {hex((1 << lanes) - 1)}") if lanes <= 31 else e(f"s_mov_b32 exec_lo, -1\ns_mov_b32 exec_hi, {hex((1 << (lanes-32)) - 1)}")
                e(f"buffer_load_dwordx4 {d}, v8, {srd}, s64 offen offset:{off % 4096} {fl}")
                if rem < 1024: e("s_mov_b64 exec, -1")
                off += 1024
        if "o" in which: contig("s[52:55]", 589824, 18432, 4608)
        if "g" in which or "u" in which:
            e("s_lshr_b32 s64, s2, 3\ns_mul_i32 s64, s64, 18\ns_and_b32 s65, s30, 3\ns_add_u32 s73, s64, s65\ns_add_u32 s74, s64, 17")
            e("s_and_b32 s65, s2, 7\ns_mul_i32 s75, s65, 1152")
            e("v_lshrrev_b32 v100, 3, v1\nv_lshlrev_b32 v100, 2, v100\nv_add_u32 v100, s73, v100\nv_min_u32 v100, s74, v100\nv_mul_u32_u24 v100, 9216, v100")
            e("v_and_b32 v101, 7, v1\nv_lshlrev_b32 v101, 4, v101\nv_add_u32 v100, v100, v101\nv_add_u32 v100, 1024, v100")
            for key, srd in (("g", "s[76:79]"), ("u", "s[80:83]")):
                if key not in which: continue
                for k in range(5):
                    if k == 4: e("s_and_b32 s65, s30, 3\ns_cmp_lt_u32 s65, 2\ns_cbranch_scc0 L_pfk" + key)
                    e(f"s_add_u32 s64, s73, {4*k}\ns_mul_i32 s64, s64, 9216\ns_add_u32 s64, s64, s75")
                    e(f"buffer_load_dwordx4 {d}, v8, {srd}, s64 offen {fl}")
                e(f"L_pfk{key}:")
                e("s_mov_b32 exec_lo, -1\ns_mov_b32 exec_hi, 0xff")
                e(f"buffer_load_dwordx4 {d}, v100, {srd}, s75 offen {fl}")
                e("s_mov_b64 exec, -1")
        if "d" in which: contig("s[84:87]", 663552, 20736, 5184)
    def wait_pub(self, tag, off=8):
        e = self.e
        e(f"v_mov_b32 v6, 0\ns_mov_b32 s66, 0")
        e(f"L_{tag}loop:")
        e(f"ds_read_b32 v12, v6 offset:{FL+off}\ns_waitcnt lgkmcnt(0)\nv_cmp_ne_u32 vcc, 1, v12")
        self.spin_tail(f"L_{tag}ok", f"L_{tag}loop", 2)
        e(f"s_branch L_{tag}loop")
        e(f"L_{tag}ok:")
    def wo_dma(self, early):
        e = self.e
        e("s_and_b32 s64, s30, 3\ns_lshl_b32 s64, s64, 1")
        e("s_lshl_b32 s72, s28, 8\ns_lshl_b32 s65, s64, 5\ns_add_u32 s72, s72, s65\ns_mul_i32 s72, s72, 1152")
        e("s_sub_u32 s65, s29, 9\ns_mul_i32 s65, s65, 192\ns_add_u32 s72, s72, s65")
        e(f"s_mul_i32 s71, s64, 6144\ns_add_u32 s71, s71, {WB}")
        for i in range(3):
            e(f"v_add_u32 v100, {64*i}, v1\nv_mul_u32_u24 v101, 5462, v100\nv_lshrrev_b32 v101, 16, v101")
            e("v_mul_u32_u24 v102, 12, v101\nv_sub_u32 v102, v100, v102")
            e("v_bfe_u32 v103, v101, 3, 1\nv_lshlrev_b32 v103, 1, v103\nv_xor_b32 v102, v102, v103\nv_lshlrev_b32 v102, 4, v102")
            e(f"v_mul_u32_u24 v101, 1152, v101\nv_add_u32 v{104+i}, v101, v102")
        n = 0
        for blk in range(4):
            for i in range(3):
                if n == early: self.wait_pub("wo")
                e("s_mov_b32 m0, s71\ns_add_u32 s71, s71, 1024")
                e(f"buffer_load_dwordx4 v{104+i}, s[52:55], s72 offen {self.o.get('wodmaflag', 'nt')} lds")
                n += 1
            if blk < 3: e(f"s_add_u32 s72, s72, {16*1152}")
    def wgu_dma(self, early):
        e = self.e; o = self.o
        lateU = "u" not in o.get("pfw", "og")
        e("s_mul_i32 s32, s28, 9\ns_add_u32 s32, s32, s29")
        e("v_lshrrev_b32 v10, 2, v1\nv_mul_u32_u24 v10, 9216, v10\nv_and_b32 v12, 3, v1\nv_lshrrev_b32 v11, 5, v1\nv_lshlrev_b32 v11, 1, v11\nv_xor_b32 v12, v12, v11\nv_lshlrev_b32 v12, 4, v12\nv_add_u32 v10, v10, v12")
        e(f"s_and_b32 s64, s30, 3\ns_mul_i32 s65, s64, {16*9216}\ns_lshl_b32 s68, s32, 6\ns_add_u32 s68, s68, s65")
        e(f"s_lshl_b32 s69, s64, 10\ns_add_u32 s69, s69, {WB}")
        e("v_lshrrev_b32 v14, 3, v1\nv_mul_u32_u24 v14, 1152, v14\nv_and_b32 v12, 7, v1\nv_bfe_u32 v11, v1, 4, 1\nv_lshlrev_b32 v11, 1, v11\nv_xor_b32 v12, v12, v11")
        e("s_and_b32 s65, s64, 1\ns_lshl_b32 s65, s65, 2\nv_xor_b32 v12, s65, v12\nv_lshlrev_b32 v12, 4, v12\nv_add_u32 v14, v14, v12")
        e(f"s_mul_i32 s75, s32, 36864\ns_mul_i32 s65, s64, {8*1152}\ns_add_u32 s75, s75, s65")
        ops = []
        def narrow(m, srd):
            ops.append(("pre", f"s_mov_b32 s64, s68\ns_add_u32 s65, s69, {36864*m}"))
            for w in range(9):
                ops.append(("ld", "s_mov_b32 m0, s65\ns_add_u32 s65, s65, 4096\n" + f"buffer_load_dwordx4 v10, {srd}, s64 offen nt lds" + (f"\ns_add_u32 s64, s64, {64*9216}" if w < 8 else "")))
        def wd():
            ops.append(("pre", f"s_add_u32 s65, s69, {2*36864}\ns_mov_b32 s64, s75"))
            for w in range(9):
                ops.append(("ld", "s_mov_b32 m0, s65\ns_add_u32 s65, s65, 4096\n" + "buffer_load_dwordx4 v14, s[84:87], s64 offen nt lds" + ("\ns_add_u32 s64, s64, 128" if w < 8 else "")))
        def pfM(srd, first):
            if first:
                ops.append(("pre", "s_and_b32 s64, s28, 1\ns_mul_i32 s64, s64, 9\ns_add_u32 s64, s64, s29\ns_lshl_b32 s64, s64, 5\ns_and_b32 s65, s30, 3\ns_lshl_b32 s65, s65, 3\ns_add_u32 s64, s64, s65\n"
                            "s_mul_i32 s64, s64, 9216\ns_lshr_b32 s65, s28, 1\ns_mul_i32 s65, s65, 1152\ns_add_u32 s33, s64, s65\n"
                            "v_lshrrev_b32 v100, 3, v1\nv_mul_u32_u24 v100, 9216, v100\nv_and_b32 v101, 7, v1\nv_lshlrev_b32 v101, 4, v101\nv_add_u32 v100, v100, v101\nv_add_u32 v100, 1024, v100"))
            ops.append(("pre", "s_mov_b32 s64, s33"))
            for k in range(8):
                ops.append(("ld", f"buffer_load_dwordx4 v[112:115], v8, {srd}, s64 offen" + ("\ns_add_u32 s64, s64, 9216" if k < 7 else "")))
            ops.append(("ld", f"buffer_load_dwordx4 v[112:115], v100, {srd}, s33 offen"))
        wdfirst = o.get("wdfirst", False)
        lateG = "g" not in o.get("pfw", "og")
        if lateG:
            pfM("s[76:79]", True); pfM("s[80:83]", False)
            ops.append(("pre", "s_waitcnt vmcnt(9)")); narrow(0, "s[76:79]")
            ops.append(("pre", "s_waitcnt vmcnt(9)")); narrow(1, "s[80:83]"); wd()
        elif lateU and o.get("udirect"):
            narrow(1, "s[80:83]"); narrow(0, "s[76:79]"); wd()
        elif lateU:
            pfM("s[80:83]", True); narrow(0, "s[76:79]"); ops.append(("pre", "s_waitcnt vmcnt(9)")); narrow(1, "s[80:83]"); wd()
        elif wdfirst:
            wd(); narrow(0, "s[76:79]"); narrow(1, "s[80:83]")
        else:
            narrow(0, "s[76:79]"); narrow(1, "s[80:83]"); wd()
        n = 0
        for kind, txt in ops:
            if kind == "ld":
                if n == early:
                    e("s_mov_b32 s73, s64\ns_mov_b32 s74, s65")
                    self.wait_pub("wg")
                    e("s_mov_b32 s64, s73\ns_mov_b32 s65, s74")
                n += 1
            e(txt)

    def roleB1(self):
        e = self.e; o = self.o
        e(f"s_mul_i32 s64, s28, 18432\ns_add_u32 s64, s64, {H2}")
        e("s_cmp_eq_u32 s30, 8\ns_cbranch_scc0 L_b1w")
        e("v_mul_u32_u24 v9, 1152, v2\nv_add_u32 v9, s64, v9\nv_add_u32 v9, 1024, v9")
        if o.get("fast", True): e(f"s_lshl_b32 s65, s28, 8\ns_add_u32 s65, s65, {STF}\nv_lshlrev_b32 v6, 4, v2\nv_add_u32 v6, s65, v6")
        else: e("v_mov_b32 v6, v9")
        if o.get("st2sleep", 2): e(f"s_sleep {o.get('st2sleep', 2)}")
        e("s_mov_b32 s66, 0")
        e("L_stloop:")
        e("global_load_dwordx4 v[72:75], v6, s[26:27] sc1\ns_waitcnt vmcnt(0)")
        self.validate([72], "v100", "v101")
        self.spin_fast("L_stok", "st", 2, switch="v_mov_b32 v6, v9")
        e("s_branch L_stloop")
        e("L_stok:")
        e("v_and_b32 v12, 1, v3\nv_cmp_eq_u32 vcc, 1, v12\nv_cndmask_b32 v72, v72, v74, vcc\nv_cndmask_b32 v73, v73, v75, vcc")
        e("v_and_b32 v72, 0xffffff00, v72\nv_and_b32 v73, 0xffffff00, v73")
        e("v_mov_b32 v76, v72")
        self.row_allreduce("v_max_f32", ["v76"])
        e("v_sub_f32 v72, v72, v76\nv_mul_f32 v72, 0x3fb8aa3b, v72\nv_exp_f32 v72, v72")
        e("v_mul_f32 v73, v72, v73")
        self.row_allreduce("v_add_f32", ["v73"])
        e("v_rcp_f32 v73, v73")
        e("v_mul_f32 v72, v72, v73")
        e("v_lshlrev_b32 v6, 2, v1")
        e("s_mov_b32 exec_lo, -1\ns_mov_b32 exec_hi, 0")
        e(f"ds_write_b32 v6, v72 offset:{SC}")
        e("s_mov_b64 exec, -1")
        e("s_setprio 0")
        e("s_waitcnt lgkmcnt(0)")
        self.stamp(13)
        e("s_barrier")
        e("s_branch L_b1w8")
        e("L_b1w:")
        e("v_mul_u32_u24 v15, 1152, v2\nv_add_u32 v15, s64, v15")
        e("v_lshlrev_b32 v12, 5, v3\ns_lshl_b32 s65, s30, 7\nv_add_u32 v12, s65, v12\nv_add_u32 v15, v15, v12")
        if o.get("fast", True):
            e(f"s_lshl_b32 s64, s28, 14\ns_lshl_b32 s65, s30, 11\ns_add_u32 s64, s64, s65\ns_add_u32 s64, s64, {H2F}\nv_add_u32 v6, s64, v8\nv_add_u32 v14, 1024, v6")
        else: e("v_mov_b32 v6, v15\nv_add_u32 v14, 16, v15")
        def h2loads():
            e("global_load_dwordx4 v[64:67], v6, s[26:27] sc1\nglobal_load_dwordx4 v[68:71], v14, s[26:27] sc1")
        e("v_lshlrev_b32 v10, 3, v3\nv_bfe_u32 v12, v1, 2, 2\nv_add_u32 v10, v10, v12\nv_mul_u32_u24 v10, 192, v10\nv_and_b32 v12, 3, v1\nv_lshlrev_b32 v12, 3, v12\nv_add_u32 v10, v10, v12")
        e(f"s_mul_i32 s65, s30, 6144\ns_add_u32 s65, s65, {WB}\nv_add_u32 v10, s65, v10")
        e("v_and_b32 v12, 1, v3\nv_lshlrev_b32 v12, 5, v12\nv_add_u32 v11, v10, v12\nv_sub_u32 v10, v10, v12")
        e("s_lshr_b32 s65, s30, 2\ns_lshl_b32 s65, s65, 6\nv_lshlrev_b32 v9, 2, v2\nv_add_u32 v9, s65, v9")
        e(f"v_lshlrev_b32 v13, 4, v3\ns_mul_i32 s65, s30, 384\nv_add_u32 v13, s65, v13")
        self.stamp(5)
        e("s_waitcnt vmcnt(0)")
        e("s_barrier")
        self.stamp(8)
        e(f"ds_read_b32 v72, v9 offset:{SC}")
        for tau in range(6):
            a = "v11" if tau % 2 == 0 else "v10"
            e(f"ds_read_b64_tr_b16 v[{32+4*tau}:{33+4*tau}], {a} offset:{32*tau}")
            e(f"ds_read_b64_tr_b16 v[{34+4*tau}:{35+4*tau}], {a} offset:{32*tau + 768}")
        if o.get("h2sleep", 0): e(f"s_sleep {o.get('h2sleep', 0)}")
        e("s_mov_b32 s66, 0")
        h2loads()
        e("L_h2loop:")
        e("s_waitcnt vmcnt(0)")
        self.validate([64, 68], "v100", "v101")
        self.spin_fast("L_h2ok", "h2", o.get("h2retry", 0), switch="v_mov_b32 v6, v15\nv_add_u32 v14, 16, v15")
        h2loads()
        e("s_branch L_h2loop")
        e("L_h2ok:")
        self.note(13, "s66")
        self.stamp(9)
        e("s_waitcnt lgkmcnt(0)")
        for k in range(8): e(f"v_mul_f32 v{64+k}, v72, v{64+k}")
        self.row_allreduce("v_add_f32", [f"v{64+k}" for k in range(8)])
        for k in range(4): e(f"v_cvt_pk_bf16_f32 v{76+k}, v{64+2*k}, v{65+2*k}")
        e("s_waitcnt lgkmcnt(0)")
        for tau in range(6):
            e(f"v_mfma_f32_16x16x32_bf16 v[{80+4*tau}:{83+4*tau}], v[{32+4*tau}:{35+4*tau}], v[76:79], 0")
        e("s_mov_b32 s64, 0x00010001\ns_mov_b32 s65, 0x00010001\ns_mov_b64 exec, s[64:65]")
        for tau in range(6):
            e(f"ds_write_b128 v13, v[{80+4*tau}:{83+4*tau}] offset:{WR + 64*tau}")
        e("s_mov_b64 exec, -1")
        e("L_b1w8:")
        e("s_waitcnt lgkmcnt(0)\ns_barrier")
        e("s_cmp_lt_u32 s30, 3\ns_cbranch_scc0 L_b1pubdone")
        e("v_and_b32 v6, 7, v1\nv_lshlrev_b32 v6, 4, v6\nv_lshrrev_b32 v12, 3, v1\nv_mul_u32_u24 v12, 384, v12\nv_add_u32 v6, v6, v12\ns_lshl_b32 s64, s30, 7\nv_add_u32 v6, s64, v6")
        e(f"ds_read_b128 v[16:19], v6 offset:{WR}")
        rep = o.get("h3rep", True)
        e(f"s_mul_i32 s64, s28, 2304\ns_sub_u32 s65, s29, 9\ns_mul_i32 s65, s65, 384\ns_add_u32 s64, s64, s65\ns_lshl_b32 s65, s30, 7\ns_add_u32 s64, s64, s65\ns_add_u32 s64, s64, {H3R if rep else H3}")
        e("v_and_b32 v6, 7, v1\nv_lshlrev_b32 v6, 4, v6\nv_add_u32 v6, s64, v6")
        if rep: e(f"v_lshrrev_b32 v12, 3, v1\nv_mul_u32_u24 v12, {0x9000}, v12\nv_add_u32 v6, v6, v12")
        e("s_waitcnt lgkmcnt(0)")
        self.reduce_stride8(16, 20)
        self.tagins(16)
        if not rep: e("s_mov_b64 exec, 0xff")
        e("global_store_dwordx4 v6, v[16:19], s[26:27] sc1")
        e("s_mov_b64 exec, -1")
        e("L_b1pubdone:")
        self.mile("b1pub", 0)
        self.stamp(10)
        e("s_sub_u32 s32, s29, 9\ns_cmp_lt_u32 s32, 2\ns_cbranch_scc0 L_rho2\ns_lshl_b32 s64, s28, 1\ns_add_u32 s32, s32, s64\ns_branch L_reducer")
        e("L_rho2:\ns_cmp_eq_u32 s32, 2\ns_cbranch_scc0 L_fin\ns_cmp_lt_u32 s28, 4\ns_cbranch_scc0 L_fin\ns_add_u32 s32, s28, 32")
        e("L_reducer:")
        e("s_cmp_eq_u32 s30, 0\ns_cbranch_scc0 L_redh4")
        e(f"v_lshrrev_b32 v6, 2, v1\nv_mul_u32_u24 v6, 2304, v6\nv_and_b32 v12, 3, v1\nv_lshlrev_b32 v12, 4, v12\nv_add_u32 v6, v6, v12\ns_lshl_b32 s64, s32, 6\ns_add_u32 s64, s64, {H3R if rep else H3}\nv_add_u32 v6, s64, v6")
        if rep: e(f"s_and_b32 s64, s2, 7\ns_mul_i32 s64, s64, {0x9000}\nv_add_u32 v6, s64, v6")
        e("v_and_b32 v12, 3, v1\nv_lshl_add_u32 v12, v12, 2, v3\ns_lshl_b32 s64, s32, 4\nv_add_lshl_u32 v13, s64, v12, 1")
        e("buffer_load_ushort v40, v13, s[36:39], 0 offen")
        if o.get("rh3sleep", 8): e(f"s_sleep {o.get('rh3sleep', 8)}")
        e("s_mov_b32 s66, 0")
        e("L_rh3loop:")
        e("global_load_dwordx4 v[32:35], v6, s[26:27] sc1\ns_waitcnt vmcnt(0)")
        self.validate([32], "v100", "v101")
        self.spin_tail("L_rh3ok", "L_rh3loop", 4)
        e("s_branch L_rh3loop")
        e("L_rh3ok:")
        for st in (8, 4):
            for r in range(4): e(f"v_add_f32_dpp v{32+r}, v{32+r}, v{32+r} row_ror:{st} row_mask:0xf bank_mask:0xf")
        self.xrow_transpose_reduce(32)
        self.Rnd("v32", "v32")
        e("v_lshlrev_b32 v40, 16, v40\nv_add_f32 v32, v40, v32")
        self.Rnd("v32", "v32")
        e("v_lshlrev_b32 v12, 2, v12\ns_mov_b32 s64, 0x000f000f\ns_mov_b32 s65, 0x000f000f\ns_mov_b64 exec, s[64:65]")
        e(f"ds_write_b32 v12, v32 offset:{FR+640}")
        e("s_mov_b64 exec, -1\ns_waitcnt lgkmcnt(0)")
        e("L_redh4:")
        e("s_barrier")
        self.stamp(12)
        e(f"v_lshrrev_b32 v6, 2, v0\nv_mul_u32_u24 v6, 2304, v6\nv_and_b32 v12, 3, v0\nv_lshlrev_b32 v12, 4, v12\nv_add_u32 v6, v6, v12\ns_lshl_b32 s64, s32, 6\ns_add_u32 s64, s64, {H4}\nv_add_u32 v6, s64, v6")
        e("v_and_b32 v12, 3, v1\nv_lshl_add_u32 v12, v12, 2, v3\nv_lshlrev_b32 v13, 2, v12\ns_lshl_b32 s64, s30, 6\nv_add_u32 v13, s64, v13")
        e("v_lshlrev_b32 v14, 2, v2\nv_lshl_add_u32 v14, v3, 6, v14")
        e("s_lshl_b32 s64, s32, 4\nv_add_lshl_u32 v15, s64, v2, 1")
        e("s_mov_b32 s52, s22\ns_mov_b32 s53, s23\ns_movk_i32 s54, 1152\ns_mov_b32 s55, 0x20000")
        e("s_mov_b32 s70, 0x000f000f\ns_mov_b32 s71, 0x000f000f\nv_mov_b32 v42, 0")
        for k in range(o.get("h4sleepN", 1)): e(f"s_sleep {o.get('h4sleep', 40)}")
        e("s_mov_b32 s66, 0")
        e("L_h4loop:")
        e("global_load_dwordx4 v[32:35], v6, s[26:27] sc1\ns_waitcnt vmcnt(0)")
        self.validate([32], "v100", "v101")
        self.spin_tail("L_h4ok", "L_h4loop", o.get("h4retry", 4))
        e("s_branch L_h4loop")
        e("L_h4ok:")
        self.mile("h4ok", 0)
        self.note(14, "s66")
        self.stamp(11)
        for st in (8, 4):
            for r in range(4): e(f"v_add_f32_dpp v{32+r}, v{32+r}, v{32+r} row_ror:{st} row_mask:0xf bank_mask:0xf")
        self.xrow_transpose_reduce(32)
        e("s_mov_b64 exec, s[70:71]")
        e(f"ds_write_b32 v13, v32 offset:{FR}")
        e("s_mov_b64 exec, -1")
        e("s_waitcnt lgkmcnt(0)\ns_barrier")
        e("s_cmp_eq_u32 s30, 0\ns_cbranch_scc0 L_fin")
        e(f"ds_read_b32 v40, v14 offset:{FR}\nds_read_b32 v41, v14 offset:{FR+256}")
        e("s_mov_b64 exec, 0xffff")
        e(f"ds_read_b32 v42, v14 offset:{FR+512}\nds_read_b32 v43, v14 offset:{FR+640}")
        e("s_mov_b64 exec, -1")
        e("s_waitcnt lgkmcnt(0)")
        e("v_add_f32 v40, v40, v41\nv_add_f32 v40, v40, v42\nv_mov_b32 v41, v40")
        e("v_permlane16_swap_b32 v40, v41\nv_add_f32 v40, v40, v41\nv_mov_b32 v41, v40\nv_permlane32_swap_b32 v40, v41\nv_add_f32 v40, v40, v41")
        self.Rnd("v40", "v40")
        e("v_add_f32 v40, v43, v40\nv_cvt_pk_bf16_f32 v40, v40, v40")
        e("s_mov_b64 exec, 0xffff")
        e("buffer_store_short v40, v15, s[52:55], 0 offen")
        e("s_mov_b64 exec, -1")
        e("s_cmp_eq_u32 s32, 0\ns_cbranch_scc0 L_fin")
        e("v_mov_b32 v6, 0\ns_mov_b64 exec, 1\nglobal_store_dword v6, v7, s[26:27] sc1\ns_mov_b64 exec, -1")
        if o.get("amp"):
            e(f"s_memrealtime s[92:93]\nv_lshlrev_b32 v6, 4, v1\nv_add_u32 v6, {0x300000}, v6")
            e("global_load_dwordx4 v[32:35], v6, s[26:27] sc1\nglobal_load_dwordx4 v[36:39], v6, s[26:27] offset:1024 sc1\ns_waitcnt vmcnt(0) lgkmcnt(0)")
            for k in range(8): e(f"v_subrev_u32 v{32+k}, s92, v{32+k}")
            e("v_min_i32 v32, v32, v33\nv_min_i32 v34, v34, v35\nv_min_i32 v32, v32, v34\nv_max_i32 v36, v36, v37\nv_max_i32 v38, v38, v39\nv_max_i32 v36, v36, v38")
            for st in (8, 4, 2, 1):
                e(f"v_min_i32_dpp v32, v32, v32 row_ror:{st} row_mask:0xf bank_mask:0xf\nv_max_i32_dpp v36, v36, v36 row_ror:{st} row_mask:0xf bank_mask:0xf")
            e("s_nop 4")
            for q in range(4): e(f"v_readlane_b32 s{40+q}, v32, {16*q}\nv_readlane_b32 s{44+q}, v36, {16*q}")
            e("s_nop 4\ns_min_i32 s40, s40, s41\ns_min_i32 s42, s42, s43\ns_min_i32 s40, s40, s42\ns_max_i32 s44, s44, s45\ns_max_i32 s46, s46, s47\ns_max_i32 s44, s44, s46")
            if o["amp"] == "tot": e("s_sub_u32 s65, 0, s40")
            else: e("s_sub_u32 s65, s44, s40")
            e(f"s_min_u32 s65, s65, 5000\ns_mul_i32 s65, s65, {o.get('ampk', 2)}\ns_add_u32 s65, s65, s92")
            e("L_ampspin:\ns_memrealtime s[66:67]\ns_waitcnt lgkmcnt(0)\ns_sub_u32 s66, s66, s65\ns_cmp_lt_i32 s66, 0\ns_cbranch_scc1 L_ampspin")
        e("s_branch L_fin")

    def roleA(self):
        e = self.e; o = self.o
        e("s_setprio 0")
        e("s_mul_i32 s32, s28, 9\ns_add_u32 s32, s32, s29")
        e(f"s_lshl_b32 s69, s30, 12\ns_add_u32 s69, s69, {WB}")
        e("v_lshlrev_b32 v4, 2, v2\nv_add_u32 v4, v4, v3")
        e("s_lshl_b32 s34, s30, 6\nv_add_u32 v10, s34, v4\nv_lshlrev_b32 v10, 1, v10")
        e("buffer_load_ushort v126, v10, s[36:39], 0 offen")
        e(f"v_mov_b32 v12, 0x3f803f80\nv_lshlrev_b32 v10, 2, v1\ns_mov_b32 exec_lo, -1\ns_mov_b32 exec_hi, 0\nds_write_b32 v10, v12 offset:{ONES}\ns_mov_b64 exec, -1")
        e(f"v_mul_u32_u24 v128, 2304, v3\nv_lshlrev_b32 v12, 4, v2\nv_add_u32 v128, v128, v12\ns_lshl_b32 s64, s30, 8\ns_add_u32 s64, s64, {H3R if o.get('h3rep', True) else H3}\nv_add_u32 v128, s64, v128")
        if o.get("h3rep", True): e(f"s_and_b32 s64, s2, 7\ns_mul_i32 s64, s64, {0x9000}\nv_add_u32 v128, s64, v128")
        e("v_add_u32 v129, 9216, v128\nv_add_u32 v130, 18432, v128\nv_add_u32 v131, 27648, v128")
        e(f"s_lshl_b32 s64, s30, 7\ns_add_u32 s64, s64, {HNL}\nv_lshlrev_b32 v132, 1, v4\nv_add_u32 v132, s64, v132")
        e(f"v_lshlrev_b32 v133, 4, v3\nv_add_u32 v12, s64, v133\nv_add_u32 v133, {ONES}, v133\nv_cmp_eq_u32 vcc, 1, v2\nv_cndmask_b32 v133, v12, v133, vcc")
        e(f"s_lshl_b32 s64, s30, 9\ns_add_u32 s64, s64, {MR}\nv_lshlrev_b32 v134, 4, v3\nv_lshlrev_b32 v12, 8, v2\nv_add_u32 v134, v134, v12\nv_add_u32 v134, s64, v134")
        e(f"v_lshlrev_b32 v135, 4, v2\nv_lshlrev_b32 v12, 9, v3\nv_add_u32 v135, v135, v12\nv_add_u32 v135, {MR}, v135")
        e(f"s_lshl_b32 s64, s30, 6\ns_add_u32 s64, s64, {HHL}\nv_lshlrev_b32 v136, 1, v4\nv_add_u32 v136, s64, v136\nv_lshlrev_b32 v137, 4, v3\nv_add_u32 v137, s64, v137")
        e(f"s_mul_i32 s64, s32, 2304\ns_lshl_b32 s65, s30, 8\ns_add_u32 s64, s64, s65\ns_add_u32 s64, s64, {H4}")
        e("v_bfe_u32 v138, v1, 2, 2\nv_lshlrev_b32 v138, 6, v138\nv_lshlrev_b32 v12, 4, v3\nv_add_u32 v138, v138, v12\nv_add_u32 v138, s64, v138")
        e(f"v_lshlrev_b32 v140, 2, v1\nv_add_u32 v140, {ST2}, v140\ns_lshl_b32 s64, s30, 2\nv_add_u32 v139, s64, v140")
        e("v_lshlrev_b32 v10, 3, v3\nv_bfe_u32 v12, v1, 2, 2\nv_add_u32 v5, v10, v12\nv_lshlrev_b32 v10, 6, v5\nv_and_b32 v12, 3, v1\nv_lshlrev_b32 v12, 3, v12\nv_add_u32 v10, v10, v12\nv_add_u32 v10, s69, v10")
        e("v_lshlrev_b32 v13, 7, v5\nv_add_u32 v13, v13, v12")
        e("v_and_b32 v12, 1, v3\nv_lshlrev_b32 v12, 5, v12\nv_add_u32 v11, v10, v12\nv_xor_b32 v12, 32, v12\nv_add_u32 v10, v10, v12")
        e("v_bfe_u32 v12, v1, 3, 1\nv_and_b32 v5, 1, v3\nv_lshlrev_b32 v5, 1, v5\nv_or_b32 v12, v12, v5\nv_lshlrev_b32 v12, 5, v12\nv_add_u32 v13, v13, v12")
        e(f"s_add_u32 s65, s69, {2*36864}\nv_add_u32 v13, s65, v13")
        for r in range(8): e(f"v_mov_b32 v{144+r}, 0")
        e("v_mov_b32 v152, 0\nv_mov_b32 v153, 0x3ae38e39")
        e("s_mov_b32 s52, 0x00030003\ns_mov_b32 s53, 0x00030003\ns_mov_b32 s54, 0x00ff00ff\ns_mov_b32 s55, 0x00ff00ff\ns_mov_b32 s70, 0x11111111\ns_mov_b32 s71, 0x11111111")
        self.stamp(8)
        e("s_cmp_ge_u32 s30, 4\ns_cbranch_scc0 L_aw0\ns_cmp_lt_u32 s30, 8\ns_cbranch_scc0 L_aw0\ns_waitcnt vmcnt(%d)\ns_branch L_aw1\nL_aw0:\ns_waitcnt vmcnt(0)\nL_aw1:" % (1 if (o.get("wdfirst", False) and "u" in o.get("pfw", "og")) else 9))
        e("s_waitcnt lgkmcnt(0)\ns_barrier")
        def trw(m):
            lo = 36864*m
            for s in range(2):
                for tau in range(2):
                    fr = 32 + 16*m + 8*s + 4*tau
                    a = "v11" if tau == 0 else "v10"
                    off = lo + 2048*s
                    e(f"ds_read_b64_tr_b16 v[{fr}:{fr+1}], {a} offset:{off}")
                    e(f"ds_read_b64_tr_b16 v[{fr+2}:{fr+3}], {a} offset:{off+256}")
        trw(0)
        if o.get("h3sleep", 0): e(f"s_sleep {o['h3sleep']}")
        for i in range(4): e(f"global_load_dwordx4 v[{80+4*i}:{83+4*i}], v{128+i}, s[26:27] sc1")
        e("s_waitcnt lgkmcnt(0)")
        trw(1)
        e("s_mov_b32 s66, 0")
        e("L_h3loop:")
        e("s_waitcnt vmcnt(0)")
        for i in range(4):
            gb = 80 + 4*i
            e(f"v_perm_b32 v100, v{gb+1}, v{gb}, s62\nv_perm_b32 v101, v{gb+3}, v{gb+2}, s63\nv_or_b32 v100, v100, v101")
            e(f"v_cmp_ne_u32 s[{40+2*i}:{41+2*i}], v100, v7")
        e("s_or_b64 s[48:49], s[40:41], s[42:43]\ns_or_b64 s[50:51], s[44:45], s[46:47]\ns_or_b64 s[48:49], s[48:49], s[50:51]")
        e("s_cbranch_scc0 L_h3ok")
        e("s_add_u32 s66, s66, 1\ns_cmp_gt_u32 s66, %d\ns_cbranch_scc1 L_h3ok" % o.get("maxspin", 20000))
        if o.get("h3retry", 1): e(f"s_sleep {o.get('h3retry', 1)}")
        for i in range(4):
            e(f"s_mov_b64 exec, s[{40+2*i}:{41+2*i}]\ns_cbranch_execz L_h3s{i}")
            e(f"global_load_dwordx4 v[{80+4*i}:{83+4*i}], v{128+i}, s[26:27] sc1")
            e(f"L_h3s{i}:")
        e("s_mov_b64 exec, -1\ns_branch L_h3loop")
        e("L_h3ok:")
        self.mile("h3ok", 0)
        self.note(13, "s66")
        self.stamp(9)
        e("v_lshlrev_b32 v126, 16, v126")
        for r in range(4):
            e(f"v_add_f32 v{80+r}, v{80+r}, v{84+r}\nv_add_f32 v{88+r}, v{88+r}, v{92+r}")
        for r in range(4): e(f"v_add_f32 v{80+r}, v{80+r}, v{88+r}")
        self.xrow_transpose_reduce(80)
        self.Rnd("v80", "v80")
        e("v_fma_f32 v80, v126, 1.0, v80") if False else e("v_add_f32 v80, v126, v80")
        e("v_cvt_pk_bf16_f32 v81, v80, v80")
        e("ds_write_b16 v132, v81")
        e("v_and_b32 v82, 0xffff0000, v81")
        e("v_mul_f32 v83, v82, v82")
        e("v_add_f32_dpp v82, v82, v82 row_ror:8 row_mask:0xf bank_mask:0xf")
        e("v_add_f32_dpp v83, v83, v83 row_ror:8 row_mask:0xf bank_mask:0xf")
        e("s_waitcnt lgkmcnt(0)")
        e("ds_read_b128 v[84:87], v133\nds_read_b128 v[88:91], v133 offset:64")
        self.row_allreduce("v_add_f32", ["v82", "v83"], steps=(4, 2, 1))
        e("v_permlane16_swap_b32 v82, v83\nv_add_f32 v82, v82, v83\nv_mov_b32 v83, v82\nv_permlane32_swap_b32 v82, v83\nv_add_f32 v82, v82, v83")
        e("s_waitcnt lgkmcnt(0)")
        for s in range(2):
            for m in range(2):
                for tau in range(2):
                    fr = 32 + 16*m + 8*s + 4*tau; d = 96 + 8*m + 4*tau
                    e(f"v_mfma_f32_16x16x32_bf16 v[{d}:{d+3}], v[{fr}:{fr+3}], v[{84+4*s}:{87+4*s}], {'0' if s==0 else f'v[{d}:{d+3}]'}")
        e("s_mov_b64 exec, 0x10001")
        e("ds_write_b32 v139, v82")
        e("s_mov_b64 exec, s[52:53]")
        for k in range(4):
            e(f"ds_write_b128 v134, v[{96+4*k}:{99+4*k}] offset:{64*k}")
        e("s_mov_b64 exec, 0x01ff01ff")
        self.stamp(10)
        e("s_waitcnt vmcnt(0) lgkmcnt(0)\ns_barrier")
        e("ds_read_b32 v152, v140")
        e("s_mov_b64 exec, -1")
        e("ds_read_b128 v[84:87], v135\nds_read_b128 v[88:91], v135 offset:2048")
        e("ds_read_b128 v[100:103], v135 offset:256\nds_read_b128 v[104:107], v135 offset:2304")
        e("s_mov_b64 exec, 0xffff")
        e("ds_read_b128 v[144:147], v135 offset:4096\nds_read_b128 v[148:151], v135 offset:4352")
        e("s_mov_b64 exec, -1")
        for tau in range(4):
            e(f"v_xor_b32 v12, {32*tau}, v13")
            e(f"ds_read_b64_tr_b16 v[{64+4*tau}:{65+4*tau}], v12\nds_read_b64_tr_b16 v[{66+4*tau}:{67+4*tau}], v12 offset:512")
        e("s_waitcnt lgkmcnt(8)")
        def dpp(st): e(f"v_add_f32_dpp v152, v152, v152 row_ror:{st} row_mask:0xf bank_mask:0xf")
        dpp(8)
        e("v_add_f32 v84, v84, v88\nv_add_f32 v100, v100, v104")
        dpp(4)
        e("v_add_f32 v85, v85, v89\nv_add_f32 v101, v101, v105")
        dpp(2)
        e("v_add_f32 v86, v86, v90\nv_add_f32 v102, v102, v106")
        dpp(1)
        e("v_add_f32 v87, v87, v91\nv_add_f32 v103, v103, v107")
        e("v_readlane_b32 s64, v152, 0\nv_readlane_b32 s65, v152, 16")
        e("v_add_f32 v84, v84, v144\nv_add_f32 v100, v100, v148")
        e("v_mul_f32 v112, s64, v153\nv_mul_f32 v113, s65, v153")
        e("v_add_f32 v85, v85, v145\nv_add_f32 v101, v101, v149")
        e("v_fma_f32 v113, -v112, v112, v113")
        e("v_add_f32 v86, v86, v146\nv_add_f32 v102, v102, v150")
        e("v_max_f32 v113, 0, v113")
        e("v_add_f32 v87, v87, v147\nv_add_f32 v103, v103, v151")
        e("v_cvt_pk_bf16_f32 v113, v113, v113\nv_cvt_pk_bf16_f32 v112, v112, v112")
        e("v_permlane16_swap_b32 v84, v85")
        e("v_and_b32 v113, 0xffff0000, v113\nv_and_b32 v112, 0xffff0000, v112")
        e("v_permlane16_swap_b32 v86, v87")
        e("v_add_f32 v113, 0x3727c5ac, v113")
        e("v_permlane16_swap_b32 v100, v101")
        e("v_cvt_pk_bf16_f32 v113, v113, v113")
        e("v_permlane16_swap_b32 v102, v103")
        e("v_and_b32 v113, 0xffff0000, v113")
        e("v_add_f32 v84, v84, v85\nv_add_f32 v86, v86, v87")
        e("v_sqrt_f32 v113, v113")
        e("v_add_f32 v100, v100, v101\nv_add_f32 v102, v102, v103")
        e("v_cvt_pk_bf16_f32 v113, v113, v113")
        e("v_permlane32_swap_b32 v84, v86")
        e("v_and_b32 v113, 0xffff0000, v113")
        e("v_permlane32_swap_b32 v100, v102")
        e("v_rcp_f32 v114, v113")
        e("v_add_f32 v84, v84, v86\nv_add_f32 v100, v100, v102")
        e("v_fma_f32 v84, -v112, v100, v84")
        e("v_mul_f32 v85, v84, v114\nv_fma_f32 v86, -v85, v113, v84\nv_fma_f32 v85, v86, v114, v85")
        self.Rnd("v84", "v85")
        e("v_mov_b32_dpp v85, v84 row_ror:8 row_mask:0xf bank_mask:0xf")
        e("v_max_f32 v86, 0, v84\nv_mul_f32 v86, v86, v85\nv_cvt_pk_bf16_f32 v86, v86, v86")
        e("s_mov_b64 exec, s[54:55]")
        e("ds_write_b16 v136, v86")
        e("s_mov_b64 exec, -1")
        e("s_waitcnt lgkmcnt(0)")
        e("ds_read_b128 v[84:87], v137")
        e("s_waitcnt lgkmcnt(0)")
        for tau in range(4):
            e(f"v_mfma_f32_16x16x32_bf16 v[{96+4*tau}:{99+4*tau}], v[{64+4*tau}:{67+4*tau}], v[84:87], 0")
        for tau in range(1, 4):
            for r in range(4):
                e(f"v_mov_b32_dpp v{96+r}, v{96+4*tau+r} quad_perm:[0,1,2,3] row_mask:0xf bank_mask:{1<<tau:#x}")
        self.tagins(96)
        e("s_mov_b64 exec, s[70:71]")
        e("global_store_dwordx4 v138, v[96:99], s[26:27] sc1")
        e("s_mov_b64 exec, -1")
        self.mile("apub", 0)
        self.stamp(11)

def build(opt=None):
    opt = opt or {}
    g = G(opt)
    body = g.gen()
    name = NAME + "_kernel"
    txt = HEADER + "; Override launch geometry by editing the next line (default: block=256,\n; grid=ceil(out_elems/256), lds=0). Harness parses it; keep it on one line.\n"
    txt += f"; @launch grid=(256,1,1) block=(576,1,1) lds={LDS_BYTES}\n"
    txt += f""".amdgcn_target "amdgcn-amd-amdhsa--gfx950"
.text
.globl {name}
.p2align 8
.type {name},@function
{name}:
{body}.section .rodata,"a"
.p2align 6
.amdhsa_kernel {name}
  .amdhsa_next_free_vgpr 168
  .amdhsa_next_free_sgpr 102
  .amdhsa_accum_offset 168
  .amdhsa_group_segment_fixed_size 0
  .amdhsa_kernarg_size 96
  .amdhsa_user_sgpr_count 2
  .amdhsa_user_sgpr_kernarg_segment_ptr 1
  .amdhsa_system_sgpr_workgroup_id_x 1
.end_amdhsa_kernel
"""
    return txt, g
if __name__ == "__main__":
    import json
    opt = json.loads(sys.argv[2]) if len(sys.argv) > 2 else {}
    txt, g = build(opt)
    open(sys.argv[1], "w").write(txt)
    print("instrs", g.e.count, "nops", g.e.nops)
```

```python
import sys
sys.path.insert(0, "work")
from emit import E
NAME = "sequential_preLN__sliding_block_cached__glu_gated_reglu__decode"
HEADER = open("cdna_kernels/" + NAME + ".s.ref").read().split("; Override launch geometry")[0]

H1 = 0x10000; H2 = 0x40000; H3 = 0x90000; H4 = 0xA0000; TS = 0x400000; H3CHK = 0x200000
FAST = 0x100000
H2F = 0x180000
STF = 0x1C0000
H3R = 0x200000
H3S = 0x9000
XT = 0
FL = 256
QB = 512
MX = 1024
LS = 1056
PL = 1280
OP = 2560
ST2 = 6656
HNL = 6784
MR = 7936
HHL = 12544
ONES = 13120
WR = 6656
SC = 10816
FR = 9728
WB = 13312
LDS_BYTES = WB + 3 * 36864

class G:
    def __init__(self, opt):
        self.o = opt; self.e = E(); self.uid = 0
    def stamp(self, k):
        if not self.o.get("stamps"): return
        if self.o.get("stamps") == "min" and k != 15: return
        e = self.e
        e(f"s_memrealtime s[90:91]\ns_waitcnt lgkmcnt(0)\nv_writelane_b32 v127, s90, {k}")
    def mile(self, name, wave=None):
        if self.o.get("amp") != name: return
        e = self.e; self.uid += 1
        if wave is not None: e(f"s_cmp_eq_u32 s30, {wave}\ns_cbranch_scc0 L_ml{self.uid}")
        e(f"s_memrealtime s[92:93]\ns_lshl_b32 s94, s2, 2\ns_add_u32 s94, s94, {0x300400}\ns_waitcnt lgkmcnt(0)\nv_mov_b32 v124, s92\nv_mov_b32 v125, s94")
        e("s_mov_b64 s[94:95], exec\ns_mov_b64 exec, 1\nglobal_store_dword v125, v124, s[26:27] sc1\ns_mov_b64 exec, s[94:95]")
        e(f"L_ml{self.uid}:")
    def note(self, k, sreg):
        if self.o.get("stamps") and self.o.get("stamps") != "min": self.e(f"v_writelane_b32 v127, {sreg}, {k}")
    def Rnd(self, d, s):
        self.e(f"v_cvt_pk_bf16_f32 {d}, {s}, {s}")
        self.e(f"v_and_b32 {d}, 0xffff0000, {d}")
    def row_allreduce(self, op, vs, steps=(8, 4, 2, 1)):
        for st in steps:
            for v in vs:
                self.e(f"{op}_dpp {v}, {v}, {v} row_ror:{st} row_mask:0xf bank_mask:0xf")
    def tagins(self, v4):
        for k in range(4):
            self.e(f"v_perm_b32 v{v4+k}, v{v4+k}, v7, s{56+k}")
    def dual_store(self, vaddr, data, vfast=None):
        e = self.e
        if self.o.get("fast", True):
            if vfast is None:
                e(f"v_add_u32 v125, {FAST}, {vaddr}"); vfast = "v125"
            e(f"global_store_dwordx4 {vfast}, {data}, s[26:27]")
        e(f"global_store_dwordx4 {vaddr}, {data}, s[26:27] sc1")
    def spin_fast(self, okl, tag, sleep, addrs=None, switch=None):
        e = self.e; o = self.o
        e(f"s_cbranch_vccz {okl}")
        e("s_add_u32 s66, s66, 1\ns_cmp_gt_u32 s66, %d\ns_cbranch_scc1 %s" % (o.get("maxspin", 20000), okl))
        if o.get("fast", True):
            nf = o.get('nfast1', o.get('nfast', 24)) if tag == "h1" else o.get('nfast', 24)
            e(f"s_cmp_eq_u32 s66, {nf}\ns_cbranch_scc0 L_{tag}keep")
            if addrs:
                for a in addrs: e(f"v_subrev_u32 {a}, {FAST}, {a}")
            if switch: e(switch)
            e(f"L_{tag}keep:")
        if sleep: e(f"s_sleep {sleep}")
    def validate(self, grans, t0, t1):
        e = self.e
        for i, gb in enumerate(grans):
            e(f"v_perm_b32 {t0}, v{gb+1}, v{gb}, s62")
            e(f"v_perm_b32 {t1}, v{gb+3}, v{gb+2}, s63")
            e(f"v_or_b32 {t0}, {t0}, {t1}")
            e(f"v_cmp_ne_u32 vcc, {t0}, v7")
            if len(grans) > 1:
                if i == 0: e("s_mov_b64 s[60:61], vcc")
                else: e("s_or_b64 s[60:61], s[60:61], vcc")
        if len(grans) > 1: e("s_mov_b64 vcc, s[60:61]")
    def spin_tail(self, okl, loopl, sleep):
        e = self.e
        e(f"s_cbranch_vccz {okl}")
        e("s_add_u32 s66, s66, 1\ns_cmp_gt_u32 s66, %d\ns_cbranch_scc1 %s" % (self.o.get("maxspin", 20000), okl))
        if sleep: e(f"s_sleep {sleep}")
    def masks(self):
        e = self.e
        e("v_and_b32 v6, 1, v1\nv_lshlrev_b32 v6, 4, v6\nv_mov_b32 v12, 0xffff\nv_lshlrev_b32 v12, v6, v12")
        e("v_bfe_u32 v6, v1, 1, 2")
        for r in range(4):
            e(f"v_cmp_eq_u32 vcc, {r}, v6\nv_cndmask_b32 v{120+r}, 0, v12, vcc")
    def consts(self):
        e = self.e
        e("s_mov_b32 s56, 0x07060500\ns_mov_b32 s57, 0x07060501\ns_mov_b32 s58, 0x07060502\ns_mov_b32 s59, 0x07060503")
        e("s_mov_b32 s62, 0x0c0c0400\ns_mov_b32 s63, 0x04000c0c")
    def epoch(self):
        e = self.e
        e("s_waitcnt lgkmcnt(0)")
        e("s_mul_i32 s31, s31, 0x19660d\ns_add_u32 s31, s31, 0x3c6ef35f\nv_mov_b32 v7, s31")
    def ln_scalars(self, s1, s2, vm, vs, vr):
        e = self.e
        e(f"s_mov_b32 s68, 0x3ae38e39")
        e(f"v_mov_b32 {vm}, {s1}\nv_mov_b32 {vs}, {s2}\nv_mul_f32 {vm}, s68, {vm}\nv_mul_f32 {vs}, s68, {vs}")
        e(f"v_fma_f32 {vs}, -{vm}, {vm}, {vs}")
        e(f"v_max_f32 {vs}, 0, {vs}")
        self.Rnd(vs, vs); self.Rnd(vm, vm)
        e(f"v_add_f32 {vs}, 0x3727c5ac, {vs}")
        self.Rnd(vs, vs)
        e(f"v_sqrt_f32 {vs}, {vs}")
        self.Rnd(vs, vs)
        e(f"v_rcp_f32 {vr}, {vs}")
    def ln_apply(self, x, vm, vs, vr, t0, t1):
        e = self.e
        e(f"v_sub_f32 {x}, {x}, {vm}")
        self.Rnd(x, x)
        e(f"v_mul_f32 {t0}, {x}, {vr}")
        e(f"v_fma_f32 {t1}, -{t0}, {vs}, {x}")
        e(f"v_fma_f32 {t0}, {t1}, {vr}, {t0}")
        e(f"v_cvt_pk_bf16_f32 {x}, {t0}, {t0}")
    def reduce_stride8(self, v, t):
        e = self.e
        for r in range(4): e(f"v_add_f32_dpp v{v+r}, v{v+r}, v{v+r} row_ror:8 row_mask:0xf bank_mask:0xf")
        self.xrow_allreduce(v, t)
    def xrow_allreduce(self, v, t):
        e = self.e
        for r in range(4): e(f"v_mov_b32 v{t+r}, v{v+r}")
        for r in range(4): e(f"v_permlane16_swap_b32 v{v+r}, v{t+r}")
        for r in range(4): e(f"v_add_f32 v{v+r}, v{v+r}, v{t+r}")
        for r in range(4): e(f"v_mov_b32 v{t+r}, v{v+r}")
        for r in range(4): e(f"v_permlane32_swap_b32 v{v+r}, v{t+r}")
        for r in range(4): e(f"v_add_f32 v{v+r}, v{v+r}, v{t+r}")
    def reduce_stride4(self, v, t):
        e = self.e
        for st in (8, 4):
            for r in range(4): e(f"v_add_f32_dpp v{v+r}, v{v+r}, v{v+r} row_ror:{st} row_mask:0xf bank_mask:0xf")
        self.xrow_allreduce(v, t)
    def xrow_transpose_reduce(self, v):
        e = self.e
        e(f"v_permlane16_swap_b32 v{v}, v{v+1}\nv_permlane16_swap_b32 v{v+2}, v{v+3}")
        e(f"v_add_f32 v{v}, v{v}, v{v+1}\nv_add_f32 v{v+2}, v{v+2}, v{v+3}")
        e(f"v_permlane32_swap_b32 v{v}, v{v+2}")
        e(f"v_add_f32 v{v}, v{v}, v{v+2}")

    def gen(self):
        e = self.e; o = self.o
        nt = o.get("kvflag", "nt")
        e("L_start:")
        if o.get("amp") and o.get("ampentry"): e("s_memrealtime s[94:95]")
        e("s_cmp_ge_u32 s2, 256\ns_cbranch_scc1 L_end")
        e("s_load_dwordx16 s[4:19], s[0:1], 0\ns_load_dwordx8 s[20:27], s[0:1], 64")
        if o.get("codepf", True):
            e("s_getpc_b64 s[64:65]")
            e("L_pfbase:")
            e("s_lshr_b32 s66, s2, 3\ns_lshl_b32 s66, s66, 9\nv_lshlrev_b32 v6, 7, v0\nv_add_u32 v6, s66, v6\nv_min_u32 v6, L_end-L_pfbase, v6")
            e("v_cmp_gt_u32 vcc, 4, v0\ns_and_saveexec_b64 s[66:67], vcc\ns_cbranch_execz L_pfskip")
            e("global_load_dword v124, v6, s[64:65]")
            e("L_pfskip:\ns_mov_b64 exec, s[66:67]")
        if o.get("stamps"): e("v_mov_b32 v127, 0\ns_memrealtime s[90:91]")
        e("v_and_b32 v1, 63, v0\nv_lshrrev_b32 v6, 6, v0\nv_readfirstlane_b32 s30, v6")
        e("s_and_b32 s28, s2, 7\ns_lshl_b32 s28, s28, 1\ns_lshr_b32 s33, s2, 7\ns_or_b32 s28, s28, s33")
        e("s_lshr_b32 s29, s2, 3\ns_and_b32 s29, s29, 15")
        e("v_and_b32 v2, 15, v1\nv_lshrrev_b32 v3, 4, v1\nv_lshlrev_b32 v8, 4, v1")
        e(f"s_lshl_b32 s33, s28, 24\ns_lshl_b32 s64, s29, 16\ns_add_u32 s33, s33, s64\ns_add_u32 s33, s33, {61440*256}\ns_and_b32 s64, s30, 3\ns_lshl_b32 s64, s64, 14\ns_add_u32 s33, s33, s64")
        e("s_movk_i32 s70, 0x1000\ns_movk_i32 s71, 0x2000\ns_movk_i32 s72, 0x3000")
        e("v_bfe_u32 v13, v1, 2, 2\nv_lshlrev_b32 v13, 8, v13\nv_lshlrev_b32 v12, 6, v3\nv_add_u32 v13, v13, v12\nv_and_b32 v12, 3, v1\nv_lshlrev_b32 v12, 4, v12\nv_add_u32 v13, v13, v12")
        e("v_lshlrev_b32 v11, 13, v3\nv_lshlrev_b32 v12, 4, v2\nv_add_u32 v11, v11, v12")
        e("s_and_b32 s34, s29, 1\ns_lshl_b32 s35, s28, 1\ns_add_u32 s35, s35, s34\ns_lshl_b32 s35, s35, 8\ns_lshr_b32 s34, s29, 1\ns_mul_i32 s34, s34, 72")
        e("v_add_u32 v9, s34, v1\nv_lshlrev_b32 v9, 1, v9")
        e("s_lshl_b32 s34, s34, 13\ns_add_u32 s35, s35, s34")
        e("s_movk_i32 s38, 1152\ns_mov_b32 s39, 0x20000\ns_mov_b32 s50, %d\ns_mov_b32 s51, 0x20000" % (576*8192))
        e("s_movk_i32 s42, 0x4000\ns_mov_b32 s43, 0x20000\ns_movk_i32 s46, 0x4000\ns_mov_b32 s47, 0x20000")
        e("s_waitcnt lgkmcnt(0)")
        if o.get("stamps"): e("v_writelane_b32 v127, s90, 0")
        e("s_mov_b32 s36, s4\ns_mov_b32 s37, s5\ns_mov_b32 s48, s10\ns_mov_b32 s49, s11")
        e("s_add_u32 s40, s6, s33\ns_addc_u32 s41, s7, 0")
        e("s_add_u32 s44, s8, s33\ns_addc_u32 s45, s9, 0")
        so = lambda t: ['0', 's70', 's71', 's72'][t // 4]
        n1 = o.get("kn1", 16)
        def Kld(t): e(f"buffer_load_dwordx4 v[{32+4*t}:{35+4*t}], v13, s[40:43], {so(t)} offen offset:{(t%4)*1024} {nt}")
        e("s_cmp_eq_u32 s30, 8\ns_cbranch_scc1 L_qfirst")
        e("s_cmp_lt_u32 s30, 4\ns_cbranch_scc1 L_vfirst")
        e("s_setprio 2")
        if o.get("diag0"): self.stamp(11)
        e("s_barrier")
        if o.get("diag0"): self.stamp(12)
        for t in range(n1): Kld(t)
        self.common_setup()
        self.stamp(6)
        e("s_barrier")
        for t in range(n1, 16): Kld(t)
        e("s_branch L_kmain")
        e("L_vfirst:")
        e("s_barrier")
        self.common_setup()
        e("s_branch L_vwave")
        e("L_qfirst:")
        e("s_setprio 3")
        e("buffer_load_dwordx4 v[24:27], v8, s[36:39], 0 offen")
        e("buffer_load_dwordx4 v[28:31], v8, s[36:39], 0 offen offset:1024")
        e("buffer_load_ushort v14, v9, s[36:39], 0 offen")
        e("buffer_load_ushort v15, v9, s[36:39], 0 offen offset:128")
        for i in range(18):
            e(f"buffer_load_dwordx4 v[{32+4*i}:{35+4*i}], v11, s[48:51], s35 offen {nt}")
            if i < 17: e("s_add_u32 s35, s35, 0x8000")
        e("v_mov_b32 v6, 0\nv_mov_b32 v16, 0\nv_mov_b32 v17, 0\nv_mov_b32 v18, 0\nv_mov_b32 v19, 0")
        e(f"ds_write_b128 v6, v[16:19] offset:{FL}")
        e("s_waitcnt lgkmcnt(0)")
        e("s_barrier")
        self.common_setup()
        self.qwave()
        e("s_branch L_roles")
        e("L_kmain:")
        self.consts()
        self.epoch()
        self.stamp(1)
        if o.get("diagK"):
            e("s_waitcnt vmcnt(12)"); self.stamp(8)
            e("s_waitcnt vmcnt(8)"); self.stamp(9)
            e("s_waitcnt vmcnt(4)"); self.stamp(10)
            e("s_waitcnt vmcnt(0)"); self.stamp(5)
        e(f"v_mov_b32 v6, 0\ns_mov_b32 s66, 0")
        e("L_qfloop:")
        e(f"ds_read_b32 v12, v6 offset:{FL}\ns_waitcnt lgkmcnt(0)\nv_cmp_ne_u32 vcc, 1, v12")
        self.spin_tail("L_qfok", "L_qfloop", 1)
        e("s_branch L_qfloop")
        e("L_qfok:")
        e("v_bfe_u32 v6, v1, 2, 1\nv_lshlrev_b32 v6, 8, v6\nv_lshlrev_b32 v12, 6, v3\nv_add_u32 v6, v6, v12\nv_and_b32 v12, 3, v1\nv_lshlrev_b32 v12, 4, v12\nv_add_u32 v6, v6, v12")
        e(f"ds_read_b128 v[12:15], v6 offset:{QB}")
        self.stamp(2)
        e("s_waitcnt vmcnt(0) lgkmcnt(0)")
        self.stamp(3)
        D0 = [96+4*t if t < 6 else 24+4*(t-6) for t in range(8)]
        D1 = [32+4*t for t in range(8)]
        D = D0 + D1
        S = [16+t for t in range(8)] + [96+t for t in range(8)]
        for t in range(16):
            e(f"v_mfma_f32_16x16x32_bf16 v[{D[t]}:{D[t]+3}], v[12:15], v[{32+4*t}:{35+4*t}], 0")
        for half in range(2):
            for k in range(4):
                for t in range(8*half, 8*half+8):
                    if k == 0: e(f"v_mov_b32_dpp v{S[t]}, v{D[t]} quad_perm:[0,0,0,0] row_mask:0xf bank_mask:0xf")
                    else: e(f"v_add_f32_dpp v{S[t]}, v{D[t]+k}, v{S[t]} quad_perm:[{k},{k},{k},{k}] row_mask:0xf bank_mask:0xf")
        e("s_mov_b32 s64, 0x3db504f3")
        def rnd_pairs():
            for k in range(8): e(f"v_cvt_pk_bf16_f32 v{64+k}, v{S[2*k]}, v{S[2*k+1]}")
            for k in range(8): e(f"v_lshlrev_b32 v{S[2*k]}, 16, v{64+k}\nv_and_b32 v{S[2*k+1]}, 0xffff0000, v{64+k}")
        rnd_pairs()
        for t in range(16): e(f"v_mul_f32 v{S[t]}, s64, v{S[t]}")
        rnd_pairs()
        for k in range(5): e(f"v_max3_f32 v{64+k}, v{S[3*k]}, v{S[3*k+1]}, v{S[3*k+2]}")
        e(f"v_max3_f32 v64, v64, v65, v{S[15]}\nv_max3_f32 v66, v66, v67, v68\nv_max_f32 v64, v64, v66")
        self.row_allreduce("v_max_f32", ["v64"], steps=(8, 4))
        e("s_mov_b32 s64, 0x3fb8aa3b")
        for t in range(16): e(f"v_sub_f32 v{S[t]}, v{S[t]}, v64")
        for t in range(16): e(f"v_mul_f32 v{S[t]}, s64, v{S[t]}")
        for t in range(16): e(f"v_exp_f32 v{S[t]}, v{S[t]}")
        for k in range(8): e(f"v_cvt_pk_bf16_f32 v{72+k}, v{S[2*k]}, v{S[2*k+1]}")
        for k in range(8): e(f"v_add_f32 v{S[2*k]}, v{S[2*k]}, v{S[2*k+1]}")
        for k in range(4): e(f"v_add_f32 v{S[4*k]}, v{S[4*k]}, v{S[4*k+2]}")
        e(f"v_add_f32 v{S[0]}, v{S[0]}, v{S[4]}\nv_add_f32 v{S[8]}, v{S[8]}, v{S[12]}\nv_add_f32 v65, v{S[0]}, v{S[8]}")
        self.row_allreduce("v_add_f32", ["v65"], steps=(8, 4))
        e("s_and_b32 s64, s30, 3\nv_lshlrev_b32 v6, 7, v3\nv_bfe_u32 v12, v1, 2, 2\nv_lshlrev_b32 v12, 5, v12\nv_add_u32 v6, v6, v12\ns_lshl_b32 s65, s64, 8\nv_add_u32 v6, s65, v6")
        e("s_mov_b32 exec_lo, 0x11111111\ns_mov_b32 exec_hi, 0")
        e(f"ds_write_b128 v6, v[72:75] offset:{PL}\nds_write_b128 v6, v[76:79] offset:{PL+16}")
        e("s_mov_b64 exec, -1")
        e("s_lshl_b32 s65, s64, 2\nv_add_u32 v6, s65, v1")
        e("s_mov_b64 exec, 0x10001")
        e(f"ds_write_b32 v6, v64 offset:{MX}\nds_write_b32 v6, v65 offset:{LS}")
        e("s_mov_b64 exec, -1")
        e("s_waitcnt lgkmcnt(0)")
        self.stamp(4)
        e("s_barrier")
        e("s_setprio 0")
        self.wait_pub("sf", 12)
        e("s_cmp_lt_u32 s29, 9\ns_cbranch_scc1 L_kdA\ns_cmp_lt_u32 s29, 15\ns_cbranch_scc0 L_roles")
        self.wo_dma(o.get("woearly", 12))
        e("s_branch L_roles")
        e("L_kdA:")
        self.stamp(5)
        self.wgu_dma(o.get("wgearly", 9))
        e("s_branch L_roles")
        e("L_vwave:")
        if o.get("tlbtouch"):
            st = o["tlbtouch"]
            e("s_cmp_eq_u32 s30, 1\ns_cbranch_scc0 L_notouch")
            e(f"v_lshlrev_b32 v12, {st}, v1")
            for srd in ("s[52:55]", "s[76:79]", "s[80:83]", "s[84:87]"):
                e(f"buffer_load_dword v124, v12, {srd}, 0 offen")
            e("L_notouch:")
        if o.get("fast", True) and o.get("warmF", True):
            e("s_cmp_eq_u32 s30, 1\ns_cbranch_scc0 L_nowarm")
            e(f"s_lshl_b32 s64, s28, 13\ns_lshl_b32 s65, s29, 9\ns_add_u32 s64, s64, s65\ns_add_u32 s64, s64, {H1+FAST}")
            e(f"s_lshl_b32 s65, s28, 14\ns_lshl_b32 s66, s29, 10\ns_add_u32 s65, s65, s66\ns_add_u32 s65, s65, {H2F-512}")
            e(f"s_lshl_b32 s66, s28, 8\ns_add_u32 s66, s66, {STF-12*128}")
            e("v_lshlrev_b32 v12, 7, v1\nv_mov_b32 v6, s65\nv_mov_b32 v16, s64\nv_cmp_gt_u32 vcc, 4, v1\nv_cndmask_b32 v6, v6, v16, vcc")
            e("v_mov_b32 v16, s66\nv_cmp_lt_u32 vcc, 11, v1\nv_cndmask_b32 v6, v6, v16, vcc\nv_add_u32 v6, v6, v12")
            e("s_mov_b64 exec, 0x3fff\nglobal_load_dword v124, v6, s[26:27]\ns_mov_b64 exec, -1")
            e("L_nowarm:")
        self.masks(); self.consts(); self.epoch()
        e("s_barrier")
        def Vld(t): e(f"buffer_load_dwordx4 v[{32+4*t}:{35+4*t}], v8, s[44:47], {so(t)} offen offset:{(t%4)*1024} {nt}")
        self.weights_prefetch()
        for t in range(16): Vld(t)
        self.stamp(1)
        e("s_barrier")
        self.stamp(2)
        self.mile("bp", 0)
        e("v_bfe_u32 v6, v1, 3, 1\nv_lshlrev_b32 v6, 7, v6\nv_lshlrev_b32 v12, 5, v3\nv_add_u32 v6, v6, v12\ns_lshl_b32 s64, s30, 8\nv_add_u32 v6, s64, v6")
        e(f"ds_read_b128 v[16:19], v6 offset:{PL}\nds_read_b128 v[20:23], v6 offset:{PL+16}")
        e("v_lshrrev_b32 v6, 1, v3\nv_lshlrev_b32 v6, 4, v6")
        e(f"ds_read_b128 v[24:27], v6 offset:{MX}")
        e("s_lshl_b32 s64, s30, 2\nv_add_u32 v6, s64, v6")
        e(f"ds_read_b32 v28, v6 offset:{MX}")
        e("s_waitcnt lgkmcnt(0)")
        e("v_max3_f32 v24, v24, v25, v26\nv_max_f32 v24, v24, v27\nv_sub_f32 v28, v28, v24\nv_mul_f32 v28, 0x3fb8aa3b, v28\nv_exp_f32 v28, v28")
        e("s_mov_b32 s64, 0x01000100\ns_mov_b32 s65, 0x03020302")
        for t in range(16):
            ab = 96 + 4*(t % 4)
            e(f"v_perm_b32 v29, v{16+t//2}, v{16+t//2}, {'s64' if t%2==0 else 's65'}")
            for r in range(4): e(f"v_and_b32 v{ab+r}, v29, v{120+r}")
            e(f"s_waitcnt vmcnt({15-t})")
            e(f"v_mfma_f32_16x16x32_bf16 v[12:15], v[{ab}:{ab+3}], v[{32+4*t}:{35+4*t}], {'0' if t==0 else 'v[12:15]'}")
        self.stamp(3)
        e("s_setprio 3")
        e("v_lshrrev_b32 v6, 1, v3\nv_lshlrev_b32 v6, 9, v6\nv_lshlrev_b32 v30, 5, v2\nv_add_u32 v6, v6, v30\nv_and_b32 v30, 1, v3\nv_lshlrev_b32 v30, 4, v30\nv_add_u32 v6, v6, v30")
        e("s_lshl_b32 s64, s30, 10\nv_add_u32 v6, s64, v6")
        for r in range(4): e(f"v_mul_f32 v{12+r}, v28, v{12+r}")
        e(f"ds_write_b128 v6, v[12:15] offset:{OP}")
        e("v_mov_b32 v6, 0\nv_mov_b32 v30, 1")
        e("s_mov_b64 exec, 1")
        e(f"ds_add_rtn_u32 v31, v6, v30 offset:{FL+4}")
        e("s_mov_b64 exec, -1")
        e("s_waitcnt lgkmcnt(0)")
        e("v_readfirstlane_b32 s64, v31")
        e("s_cmp_eq_u32 s64, 3\ns_cbranch_scc0 L_vdone")
        for w in range(4): e(f"ds_read_b128 v[{16+4*w}:{19+4*w}], v8 offset:{OP + 1024*w}")
        e(f"s_mul_i32 s67, s28, 18432\ns_mul_i32 s64, s29, 1152\ns_add_u32 s67, s67, s64\ns_add_u32 s67, s67, {H2}")
        e("v_add_u32 v6, s67, v8")
        e(f"s_lshl_b32 s64, s28, 14\ns_lshl_b32 s65, s29, 4\ns_add_u32 s64, s64, s65\ns_add_u32 s64, s64, {H2F}")
        e("v_lshrrev_b32 v12, 3, v1\nv_lshlrev_b32 v12, 11, v12\nv_and_b32 v13, 1, v1\nv_lshlrev_b32 v13, 10, v13\nv_add_u32 v12, v12, v13\nv_bfe_u32 v13, v1, 1, 2\nv_lshlrev_b32 v13, 8, v13\nv_add_u32 v12, v12, v13\nv_add_u32 v12, s64, v12")
        e("s_waitcnt lgkmcnt(0)")
        for r in range(4): e(f"v_add_f32 v{16+r}, v{16+r}, v{20+r}\nv_add_f32 v{24+r}, v{24+r}, v{28+r}")
        for r in range(4): e(f"v_add_f32 v{16+r}, v{16+r}, v{24+r}")
        self.tagins(16)
        self.dual_store("v6", "v[16:19]", "v12")
        e(f"v_mov_b32 v6, 0\nv_mov_b32 v30, 1\nds_write_b32 v6, v30 offset:{FL+8}")
        self.mile("attn")
        e("L_vdone:")
        e("s_setprio 0")
        self.stamp(4)
        e("s_branch L_roles")
        e("L_roles:")
        self.stamp(7)
        e("s_cmp_lt_u32 s29, 9\ns_cbranch_scc1 L_roleA")
        e("s_cmp_lt_u32 s29, 15\ns_cbranch_scc0 L_fin")
        self.roleB1()
        e("L_roleA:")
        self.roleA()
        e("L_fin:")
        if o.get("stamps"):
            self.stamp(15)
            e(f"s_mul_i32 s64, s2, 9\ns_add_u32 s64, s64, s30\ns_lshl_b32 s64, s64, 6\ns_add_u32 s64, s64, {TS}")
            e("v_lshlrev_b32 v6, 2, v1\nv_add_u32 v6, s64, v6")
            e("s_mov_b64 exec, 0xffff")
            e("global_store_dword v6, v127, s[26:27]")
        e("L_end:")
        e("s_endpgm")
        return e.text()

    def qwave(self):
        e = self.e; o = self.o; nt = o.get("kvflag", "nt")
        npf = 0
        self.masks(); self.consts()
        e(f"s_waitcnt vmcnt({18+npf})")
        self.stamp(1)
        e("v_mov_b32 v104, 0\nv_mov_b32 v105, 0\ns_mov_b32 s64, 0x3f803f80")
        for k in range(8):
            e(f"v_dot2_f32_bf16 v104, v{24+k}, s64, v104")
            e(f"v_dot2_f32_bf16 v105, v{24+k}, v{24+k}, v105")
        self.row_allreduce("v_add_f32", ["v104", "v105"])
        e("v_permlane16_swap_b32 v104, v105\nv_add_f32 v104, v104, v105\nv_mov_b32 v105, v104\nv_permlane32_swap_b32 v104, v105\nv_add_f32 v104, v104, v105")
        e("v_readlane_b32 s64, v104, 0\nv_readlane_b32 s65, v104, 16")
        self.ln_scalars("s64", "s65", "v104", "v105", "v106")
        e("v_and_b32 v6, 3, v1\nv_mul_u32_u24 v6, 48, v6\nv_lshrrev_b32 v12, 2, v1\nv_lshlrev_b32 v12, 1, v12\nv_add_u32 v6, v6, v12")
        for i, xv in enumerate(("v14", "v15")):
            e(f"v_lshlrev_b32 {xv}, 16, {xv}")
            self.ln_apply(xv, "v104", "v105", "v106", "v107", "v108")
        e(f"ds_write_b16 v6, v14 offset:{XT}")
        e("s_mov_b64 exec, 0xff")
        e(f"ds_write_b16 v6, v15 offset:{XT+32}")
        e("s_mov_b64 exec, -1")
        e("v_mul_u32_u24 v6, 48, v3")
        e("s_waitcnt lgkmcnt(0)")
        e(f"ds_read_b128 v[24:27], v6 offset:{XT}\nds_read_b128 v[28:31], v6 offset:{XT+16}\nds_read_b32 v11, v6 offset:{XT+32}")
        self.epoch()
        if o.get("diagQ"): self.stamp(9)
        e("s_mov_b32 s64, 0x01000100\ns_mov_b32 s65, 0x03020302")
        slots = [104, 108, 112, 116] + [128 + 4*k for k in range(9)] + [16, 20, 12]
        def prep(i, ab):
            src = f"v{24+i//2}" if i < 16 else "v11"
            e(f"v_perm_b32 v10, {src}, {src}, {'s64' if i%2==0 else 's65'}")
            for r in range(4): e(f"v_and_b32 v{ab+r}, v10, v{120+r}")
        def mm(i, ab):
            e(f"s_waitcnt vmcnt({17-i})")
            e(f"v_mfma_f32_16x16x32_bf16 v[164:167], v[{ab}:{ab+3}], v[{32+4*i}:{35+4*i}], {'0' if i==0 else 'v[164:167]'}")
        for i in range(16): prep(i, slots[i])
        if o.get("diagQ"):
            self.stamp(10)
            e("s_waitcnt vmcnt(0)"); self.stamp(11)
        mm(0, slots[0]); mm(1, slots[1])
        prep(16, slots[0]); prep(17, slots[1])
        for i in range(2, 16): mm(i, slots[i])
        mm(16, slots[0]); mm(17, slots[1])
        e(f"s_lshl_b32 s64, s28, 13\ns_lshl_b32 s65, s29, 9\ns_add_u32 s65, s65, s64\ns_add_u32 s65, s65, {H1}")
        e("v_lshlrev_b32 v6, 5, v2\nv_lshlrev_b32 v12, 4, v3\nv_add_u32 v6, v6, v12\nv_add_u32 v6, s65, v6")
        self.tagins(164)
        e("s_mov_b32 exec_lo, -1\ns_mov_b32 exec_hi, 0")
        self.dual_store("v6", "v[164:167]")
        e("s_mov_b64 exec, -1")
        self.stamp(2)
        self.mile("qpub")
        e("s_barrier")
        e(f"s_add_u32 s64, s64, {H1 + (FAST if o.get('fast', True) else 0)}\nv_add_u32 v6, s64, v8\nv_add_u32 v9, 4096, v6")
        if o.get("smemchk", False):
            regs = [64, 65] + list(range(67, 76)) + [88, 89, 92, 93, 94]
            e(f"s_lshl_b32 s33, s28, 13\ns_add_u32 s33, s33, {H1 + 508}\ns_add_u32 s34, s26, s33\ns_addc_u32 s35, s27, 0")
            e("s_lshr_b32 s33, s31, 24\ns_mov_b32 s66, 0")
            if o.get("h1sleep", 4): e(f"s_sleep {o.get('h1sleep', 4)}")
            e("L_smloop:")
            for k, r in enumerate(regs): e(f"s_load_dword s{r}, s[34:35], {512*k} glc")
            e("s_waitcnt lgkmcnt(0)")
            for k, r in enumerate(regs):
                e(f"s_xor_b32 s{r}, s{r}, s33")
                if k: e(f"s_or_b32 s64, s64, s{r}")
            e("s_and_b32 s64, s64, 0xff\ns_cbranch_scc0 L_smok")
            e("s_add_u32 s66, s66, 1\ns_cmp_gt_u32 s66, %d\ns_cbranch_scc1 L_smok" % o.get("maxspin", 20000))
            e("s_branch L_smloop")
            e("L_smok:")
            self.note(11, "s66")
        elif o.get("h1sleep", 30): e(f"s_sleep {o.get('h1sleep', 30)}")
        e("s_mov_b32 s66, 0")
        def h1loads(base):
            for i in range(8):
                e(f"global_load_dwordx4 v[{base+4*i}:{base+4*i+3}], {'v6' if i<4 else 'v9'}, s[26:27] offset:{(i%4)*1024} sc1")
        self.stamp(5)
        h1loads(32)
        self.stamp(6)
        gap = o.get("h1gap", 36)
        if gap:
            e(f"s_sleep {gap}")
            h1loads(64)
            e("s_waitcnt vmcnt(8)")
            self.validate([32+4*i for i in range(8)], "v100", "v101")
            e("s_cbranch_vccz L_h1ok")
            h1loads(128)
            e("s_waitcnt vmcnt(8)")
            self.validate([64+4*i for i in range(8)], "v100", "v101")
            e("s_cbranch_vccnz L_h1c")
            for k in range(32): e(f"v_mov_b32 v{32+k}, v{64+k}")
            e("s_branch L_h1ok")
            e("L_h1c:")
            e("s_waitcnt vmcnt(0)")
            for k in range(32): e(f"v_mov_b32 v{32+k}, v{128+k}")
        e("L_h1loop:")
        e("s_waitcnt vmcnt(0)")
        self.validate([32+4*i for i in range(8)], "v100", "v101")
        self.spin_fast("L_h1ok", "h1", 2, ["v6", "v9"])
        h1loads(32)
        e("s_branch L_h1loop")
        e("L_h1ok:")
        self.note(12, "s66")
        for k in range(32): e(f"v_and_b32 v{32+k}, 0xffffff00, v{32+k}")
        for i in range(0, 8, 2):
            for r in range(4): e(f"v_add_f32 v{32+4*i+r}, v{32+4*i+r}, v{36+4*i+r}")
        for i in (0, 4):
            for r in range(4): e(f"v_add_f32 v{32+4*i+r}, v{32+4*i+r}, v{40+4*i+r}")
        for r in range(4): e(f"v_add_f32 v{32+r}, v{32+r}, v{48+r}")
        e("v_cvt_pk_bf16_f32 v32, v32, v33\nv_cvt_pk_bf16_f32 v33, v34, v35")
        e("v_lshlrev_b32 v6, 3, v1")
        e(f"ds_write_b64 v6, v[32:33] offset:{QB}")
        e("v_mov_b32 v6, 0\nv_mov_b32 v12, 1")
        e("s_waitcnt lgkmcnt(0)")
        e(f"ds_write_b32 v6, v12 offset:{FL}")
        e("s_waitcnt lgkmcnt(0)")
        self.stamp(3)
        self.mile("qf")
        e("s_waitcnt vmcnt(0)")
        e("s_barrier")
        e("v_mov_b32 v6, 0")
        e(f"ds_read_b128 v[32:35], v6 offset:{MX}\nds_read_b128 v[36:39], v6 offset:{MX+16}\nds_read_b128 v[40:43], v6 offset:{LS}\nds_read_b128 v[44:47], v6 offset:{LS+16}")
        e("s_waitcnt lgkmcnt(0)")
        for h in range(2):
            m = 32 + 4*h; l = 40 + 4*h; M = 16 + 2*h; L = 17 + 2*h
            e(f"v_max3_f32 v{M}, v{m}, v{m+1}, v{m+2}\nv_max_f32 v{M}, v{M}, v{m+3}")
            for k in range(4): e(f"v_sub_f32 v{m+k}, v{m+k}, v{M}")
            for k in range(4): e(f"v_mul_f32 v{m+k}, 0x3fb8aa3b, v{m+k}")
            for k in range(4): e(f"v_exp_f32 v{m+k}, v{m+k}")
            e(f"v_mul_f32 v{L}, v{m}, v{l}")
            for k in range(1, 4): e(f"v_fma_f32 v{L}, v{m+k}, v{l+k}, v{L}")
        self.tagins(16)
        e(f"s_mul_i32 s67, s28, 18432\ns_mul_i32 s64, s29, 1152\ns_add_u32 s67, s67, s64\ns_add_u32 s67, s67, {H2+1024}\nv_mov_b32 v6, s67")
        e(f"s_lshl_b32 s64, s28, 8\ns_lshl_b32 s65, s29, 4\ns_add_u32 s64, s64, s65\ns_add_u32 s64, s64, {STF}\nv_mov_b32 v12, s64")
        e("s_mov_b64 exec, 1")
        self.dual_store("v6", "v[16:19]", "v12")
        e("s_mov_b64 exec, -1")
        e(f"v_mov_b32 v6, 0\nv_mov_b32 v12, 1\nds_write_b32 v6, v12 offset:{FL+12}")
        self.stamp(4)
    def common_setup(self):
        e = self.e; o = self.o
        e("s_load_dword s31, s[26:27], 0")
        self.dma_srds()
        if o.get("amp"):
            self.uid += 1
            e(f"s_cmp_eq_u32 s30, 0\ns_cbranch_scc0 L_amp{self.uid}")
            e(f"s_lshl_b32 s92, s2, 2\ns_add_u32 s92, s92, {0x300000}\nv_mov_b32 v124, s94\nv_mov_b32 v125, s92")
            e("s_mov_b64 exec, 1\nglobal_store_dword v125, v124, s[26:27] sc1\nglobal_store_dword v125, v124, s[26:27] offset:1024 sc1\ns_mov_b64 exec, -1")
            e(f"L_amp{self.uid}:")
    def dma_srds(self):
        e = self.e
        e("s_mov_b32 s52, s12\ns_mov_b32 s53, s13\ns_mov_b32 s54, %d\ns_mov_b32 s55, 0x20000" % (4096*1152))
        e(f"s_mov_b32 s76, s16\ns_mov_b32 s77, s17\ns_mov_b32 s78, {576*9216}\ns_mov_b32 s79, 0x20000")
        e(f"s_mov_b32 s80, s18\ns_mov_b32 s81, s19\ns_mov_b32 s82, {576*9216}\ns_mov_b32 s83, 0x20000")
        e(f"s_mov_b32 s84, s20\ns_mov_b32 s85, s21\ns_mov_b32 s86, {4608*1152}\ns_mov_b32 s87, 0x20000")
    def weights_prefetch(self):
        e = self.e; fl = self.o.get("pfflag", ""); which = self.o.get("pfw", "og")
        d = "v[112:115]"
        def contig(srd, xbytes, jbytes, vbytes):
            e(f"s_and_b32 s64, s2, 7\ns_mul_i32 s64, s64, {xbytes}\ns_lshr_b32 s65, s2, 3\ns_mul_i32 s65, s65, {jbytes}\ns_add_u32 s64, s64, s65")
            e(f"s_and_b32 s65, s30, 3\ns_mul_i32 s65, s65, {vbytes}\ns_add_u32 s64, s64, s65")
            off = 0
            while off < vbytes:
                rem = vbytes - off
                if off and off % 4096 == 0: e("s_add_u32 s64, s64, 4096")
                if rem < 1024:
                    lanes = rem // 16
                    e(f"s_mov_b64 exec, {hex((1 << lanes) - 1)}") if lanes <= 31 else e(f"s_mov_b32 exec_lo, -1\ns_mov_b32 exec_hi, {hex((1 << (lanes-32)) - 1)}")
                e(f"buffer_load_dwordx4 {d}, v8, {srd}, s64 offen offset:{off % 4096} {fl}")
                if rem < 1024: e("s_mov_b64 exec, -1")
                off += 1024
        if "o" in which: contig("s[52:55]", 589824, 18432, 4608)
        if "g" in which or "u" in which:
            e("s_lshr_b32 s64, s2, 3\ns_mul_i32 s64, s64, 18\ns_and_b32 s65, s30, 3\ns_add_u32 s73, s64, s65\ns_add_u32 s74, s64, 17")
            e("s_and_b32 s65, s2, 7\ns_mul_i32 s75, s65, 1152")
            e("v_lshrrev_b32 v100, 3, v1\nv_lshlrev_b32 v100, 2, v100\nv_add_u32 v100, s73, v100\nv_min_u32 v100, s74, v100\nv_mul_u32_u24 v100, 9216, v100")
            e("v_and_b32 v101, 7, v1\nv_lshlrev_b32 v101, 4, v101\nv_add_u32 v100, v100, v101\nv_add_u32 v100, 1024, v100")
            for key, srd in (("g", "s[76:79]"), ("u", "s[80:83]")):
                if key not in which: continue
                for k in range(5):
                    if k == 4: e("s_and_b32 s65, s30, 3\ns_cmp_lt_u32 s65, 2\ns_cbranch_scc0 L_pfk" + key)
                    e(f"s_add_u32 s64, s73, {4*k}\ns_mul_i32 s64, s64, 9216\ns_add_u32 s64, s64, s75")
                    e(f"buffer_load_dwordx4 {d}, v8, {srd}, s64 offen {fl}")
                e(f"L_pfk{key}:")
                e("s_mov_b32 exec_lo, -1\ns_mov_b32 exec_hi, 0xff")
                e(f"buffer_load_dwordx4 {d}, v100, {srd}, s75 offen {fl}")
                e("s_mov_b64 exec, -1")
        if "d" in which: contig("s[84:87]", 663552, 20736, 5184)
    def wait_pub(self, tag, off=8):
        e = self.e
        e(f"v_mov_b32 v6, 0\ns_mov_b32 s66, 0")
        e(f"L_{tag}loop:")
        e(f"ds_read_b32 v12, v6 offset:{FL+off}\ns_waitcnt lgkmcnt(0)\nv_cmp_ne_u32 vcc, 1, v12")
        self.spin_tail(f"L_{tag}ok", f"L_{tag}loop", 2)
        e(f"s_branch L_{tag}loop")
        e(f"L_{tag}ok:")
    def wo_dma(self, early):
        e = self.e
        e("s_and_b32 s64, s30, 3\ns_lshl_b32 s64, s64, 1")
        e("s_lshl_b32 s72, s28, 8\ns_lshl_b32 s65, s64, 5\ns_add_u32 s72, s72, s65\ns_mul_i32 s72, s72, 1152")
        e("s_sub_u32 s65, s29, 9\ns_mul_i32 s65, s65, 192\ns_add_u32 s72, s72, s65")
        e(f"s_mul_i32 s71, s64, 6144\ns_add_u32 s71, s71, {WB}")
        for i in range(3):
            e(f"v_add_u32 v100, {64*i}, v1\nv_mul_u32_u24 v101, 5462, v100\nv_lshrrev_b32 v101, 16, v101")
            e("v_mul_u32_u24 v102, 12, v101\nv_sub_u32 v102, v100, v102")
            e("v_bfe_u32 v103, v101, 3, 1\nv_lshlrev_b32 v103, 1, v103\nv_xor_b32 v102, v102, v103\nv_lshlrev_b32 v102, 4, v102")
            e(f"v_mul_u32_u24 v101, 1152, v101\nv_add_u32 v{104+i}, v101, v102")
        n = 0
        for blk in range(4):
            for i in range(3):
                if n == early: self.wait_pub("wo")
                e("s_mov_b32 m0, s71\ns_add_u32 s71, s71, 1024")
                e(f"buffer_load_dwordx4 v{104+i}, s[52:55], s72 offen {self.o.get('wodmaflag', 'nt')} lds")
                n += 1
            if blk < 3: e(f"s_add_u32 s72, s72, {16*1152}")
    def wgu_dma(self, early):
        e = self.e; o = self.o
        lateU = "u" not in o.get("pfw", "og")
        e("s_mul_i32 s32, s28, 9\ns_add_u32 s32, s32, s29")
        e("v_lshrrev_b32 v10, 2, v1\nv_mul_u32_u24 v10, 9216, v10\nv_and_b32 v12, 3, v1\nv_lshrrev_b32 v11, 5, v1\nv_lshlrev_b32 v11, 1, v11\nv_xor_b32 v12, v12, v11\nv_lshlrev_b32 v12, 4, v12\nv_add_u32 v10, v10, v12")
        e(f"s_and_b32 s64, s30, 3\ns_mul_i32 s65, s64, {16*9216}\ns_lshl_b32 s68, s32, 6\ns_add_u32 s68, s68, s65")
        e(f"s_lshl_b32 s69, s64, 10\ns_add_u32 s69, s69, {WB}")
        e("v_lshrrev_b32 v14, 3, v1\nv_mul_u32_u24 v14, 1152, v14\nv_and_b32 v12, 7, v1\nv_bfe_u32 v11, v1, 4, 1\nv_lshlrev_b32 v11, 1, v11\nv_xor_b32 v12, v12, v11")
        e("s_and_b32 s65, s64, 1\ns_lshl_b32 s65, s65, 2\nv_xor_b32 v12, s65, v12\nv_lshlrev_b32 v12, 4, v12\nv_add_u32 v14, v14, v12")
        e(f"s_mul_i32 s75, s32, 36864\ns_mul_i32 s65, s64, {8*1152}\ns_add_u32 s75, s75, s65")
        ops = []
        def narrow(m, srd):
            ops.append(("pre", f"s_mov_b32 s64, s68\ns_add_u32 s65, s69, {36864*m}"))
            for w in range(9):
                ops.append(("ld", "s_mov_b32 m0, s65\ns_add_u32 s65, s65, 4096\n" + f"buffer_load_dwordx4 v10, {srd}, s64 offen nt lds" + (f"\ns_add_u32 s64, s64, {64*9216}" if w < 8 else "")))
        def wd():
            ops.append(("pre", f"s_add_u32 s65, s69, {2*36864}\ns_mov_b32 s64, s75"))
            for w in range(9):
                ops.append(("ld", "s_mov_b32 m0, s65\ns_add_u32 s65, s65, 4096\n" + "buffer_load_dwordx4 v14, s[84:87], s64 offen nt lds" + ("\ns_add_u32 s64, s64, 128" if w < 8 else "")))
        def pfM(srd, first):
            if first:
                ops.append(("pre", "s_and_b32 s64, s28, 1\ns_mul_i32 s64, s64, 9\ns_add_u32 s64, s64, s29\ns_lshl_b32 s64, s64, 5\ns_and_b32 s65, s30, 3\ns_lshl_b32 s65, s65, 3\ns_add_u32 s64, s64, s65\n"
                            "s_mul_i32 s64, s64, 9216\ns_lshr_b32 s65, s28, 1\ns_mul_i32 s65, s65, 1152\ns_add_u32 s33, s64, s65\n"
                            "v_lshrrev_b32 v100, 3, v1\nv_mul_u32_u24 v100, 9216, v100\nv_and_b32 v101, 7, v1\nv_lshlrev_b32 v101, 4, v101\nv_add_u32 v100, v100, v101\nv_add_u32 v100, 1024, v100"))
            ops.append(("pre", "s_mov_b32 s64, s33"))
            for k in range(8):
                ops.append(("ld", f"buffer_load_dwordx4 v[112:115], v8, {srd}, s64 offen" + ("\ns_add_u32 s64, s64, 9216" if k < 7 else "")))
            ops.append(("ld", f"buffer_load_dwordx4 v[112:115], v100, {srd}, s33 offen"))
        wdfirst = o.get("wdfirst", False)
        lateG = "g" not in o.get("pfw", "og")
        if lateG:
            pfM("s[76:79]", True); pfM("s[80:83]", False)
            ops.append(("pre", "s_waitcnt vmcnt(9)")); narrow(0, "s[76:79]")
            ops.append(("pre", "s_waitcnt vmcnt(9)")); narrow(1, "s[80:83]"); wd()
        elif lateU and o.get("udirect"):
            narrow(1, "s[80:83]"); narrow(0, "s[76:79]"); wd()
        elif lateU:
            pfM("s[80:83]", True); narrow(0, "s[76:79]"); ops.append(("pre", "s_waitcnt vmcnt(9)")); narrow(1, "s[80:83]"); wd()
        elif wdfirst:
            wd(); narrow(0, "s[76:79]"); narrow(1, "s[80:83]")
        else:
            narrow(0, "s[76:79]"); narrow(1, "s[80:83]"); wd()
        n = 0
        for kind, txt in ops:
            if kind == "ld":
                if n == early:
                    e("s_mov_b32 s73, s64\ns_mov_b32 s74, s65")
                    self.wait_pub("wg")
                    e("s_mov_b32 s64, s73\ns_mov_b32 s65, s74")
                n += 1
            e(txt)

    def roleB1(self):
        e = self.e; o = self.o
        e(f"s_mul_i32 s64, s28, 18432\ns_add_u32 s64, s64, {H2}")
        e("s_cmp_eq_u32 s30, 8\ns_cbranch_scc0 L_b1w")
        e("v_mul_u32_u24 v9, 1152, v2\nv_add_u32 v9, s64, v9\nv_add_u32 v9, 1024, v9")
        if o.get("fast", True): e(f"s_lshl_b32 s65, s28, 8\ns_add_u32 s65, s65, {STF}\nv_lshlrev_b32 v6, 4, v2\nv_add_u32 v6, s65, v6")
        else: e("v_mov_b32 v6, v9")
        if o.get("st2sleep", 2): e(f"s_sleep {o.get('st2sleep', 2)}")
        e("s_mov_b32 s66, 0")
        e("L_stloop:")
        e("global_load_dwordx4 v[72:75], v6, s[26:27] sc1\ns_waitcnt vmcnt(0)")
        self.validate([72], "v100", "v101")
        self.spin_fast("L_stok", "st", 2, switch="v_mov_b32 v6, v9")
        e("s_branch L_stloop")
        e("L_stok:")
        e("v_and_b32 v12, 1, v3\nv_cmp_eq_u32 vcc, 1, v12\nv_cndmask_b32 v72, v72, v74, vcc\nv_cndmask_b32 v73, v73, v75, vcc")
        e("v_and_b32 v72, 0xffffff00, v72\nv_and_b32 v73, 0xffffff00, v73")
        e("v_mov_b32 v76, v72")
        self.row_allreduce("v_max_f32", ["v76"])
        e("v_sub_f32 v72, v72, v76\nv_mul_f32 v72, 0x3fb8aa3b, v72\nv_exp_f32 v72, v72")
        e("v_mul_f32 v73, v72, v73")
        self.row_allreduce("v_add_f32", ["v73"])
        e("v_rcp_f32 v73, v73")
        e("v_mul_f32 v72, v72, v73")
        e("v_lshlrev_b32 v6, 2, v1")
        e("s_mov_b32 exec_lo, -1\ns_mov_b32 exec_hi, 0")
        e(f"ds_write_b32 v6, v72 offset:{SC}")
        e("s_mov_b64 exec, -1")
        e("s_setprio 0")
        e("s_waitcnt lgkmcnt(0)")
        self.stamp(13)
        e("s_barrier")
        e("s_branch L_b1w8")
        e("L_b1w:")
        e("v_mul_u32_u24 v15, 1152, v2\nv_add_u32 v15, s64, v15")
        e("v_lshlrev_b32 v12, 5, v3\ns_lshl_b32 s65, s30, 7\nv_add_u32 v12, s65, v12\nv_add_u32 v15, v15, v12")
        if o.get("fast", True):
            e(f"s_lshl_b32 s64, s28, 14\ns_lshl_b32 s65, s30, 11\ns_add_u32 s64, s64, s65\ns_add_u32 s64, s64, {H2F}\nv_add_u32 v6, s64, v8\nv_add_u32 v14, 1024, v6")
        else: e("v_mov_b32 v6, v15\nv_add_u32 v14, 16, v15")
        def h2loads():
            e("global_load_dwordx4 v[64:67], v6, s[26:27] sc1\nglobal_load_dwordx4 v[68:71], v14, s[26:27] sc1")
        e("v_lshlrev_b32 v10, 3, v3\nv_bfe_u32 v12, v1, 2, 2\nv_add_u32 v10, v10, v12\nv_mul_u32_u24 v10, 192, v10\nv_and_b32 v12, 3, v1\nv_lshlrev_b32 v12, 3, v12\nv_add_u32 v10, v10, v12")
        e(f"s_mul_i32 s65, s30, 6144\ns_add_u32 s65, s65, {WB}\nv_add_u32 v10, s65, v10")
        e("v_and_b32 v12, 1, v3\nv_lshlrev_b32 v12, 5, v12\nv_add_u32 v11, v10, v12\nv_sub_u32 v10, v10, v12")
        e("s_lshr_b32 s65, s30, 2\ns_lshl_b32 s65, s65, 6\nv_lshlrev_b32 v9, 2, v2\nv_add_u32 v9, s65, v9")
        e(f"v_lshlrev_b32 v13, 4, v3\ns_mul_i32 s65, s30, 384\nv_add_u32 v13, s65, v13")
        self.stamp(5)
        e("s_waitcnt vmcnt(0)")
        e("s_barrier")
        self.stamp(8)
        e(f"ds_read_b32 v72, v9 offset:{SC}")
        for tau in range(6):
            a = "v11" if tau % 2 == 0 else "v10"
            e(f"ds_read_b64_tr_b16 v[{32+4*tau}:{33+4*tau}], {a} offset:{32*tau}")
            e(f"ds_read_b64_tr_b16 v[{34+4*tau}:{35+4*tau}], {a} offset:{32*tau + 768}")
        if o.get("h2sleep", 0): e(f"s_sleep {o.get('h2sleep', 0)}")
        e("s_mov_b32 s66, 0")
        h2loads()
        e("L_h2loop:")
        e("s_waitcnt vmcnt(0)")
        self.validate([64, 68], "v100", "v101")
        self.spin_fast("L_h2ok", "h2", o.get("h2retry", 0), switch="v_mov_b32 v6, v15\nv_add_u32 v14, 16, v15")
        h2loads()
        e("s_branch L_h2loop")
        e("L_h2ok:")
        self.note(13, "s66")
        self.stamp(9)
        e("s_waitcnt lgkmcnt(0)")
        for k in range(8): e(f"v_mul_f32 v{64+k}, v72, v{64+k}")
        self.row_allreduce("v_add_f32", [f"v{64+k}" for k in range(8)])
        for k in range(4): e(f"v_cvt_pk_bf16_f32 v{76+k}, v{64+2*k}, v{65+2*k}")
        e("s_waitcnt lgkmcnt(0)")
        for tau in range(6):
            e(f"v_mfma_f32_16x16x32_bf16 v[{80+4*tau}:{83+4*tau}], v[{32+4*tau}:{35+4*tau}], v[76:79], 0")
        e("s_mov_b32 s64, 0x00010001\ns_mov_b32 s65, 0x00010001\ns_mov_b64 exec, s[64:65]")
        for tau in range(6):
            e(f"ds_write_b128 v13, v[{80+4*tau}:{83+4*tau}] offset:{WR + 64*tau}")
        e("s_mov_b64 exec, -1")
        e("L_b1w8:")
        e("s_waitcnt lgkmcnt(0)\ns_barrier")
        e("s_cmp_lt_u32 s30, 3\ns_cbranch_scc0 L_b1pubdone")
        e("v_and_b32 v6, 7, v1\nv_lshlrev_b32 v6, 4, v6\nv_lshrrev_b32 v12, 3, v1\nv_mul_u32_u24 v12, 384, v12\nv_add_u32 v6, v6, v12\ns_lshl_b32 s64, s30, 7\nv_add_u32 v6, s64, v6")
        e(f"ds_read_b128 v[16:19], v6 offset:{WR}")
        rep = o.get("h3rep", True)
        e(f"s_mul_i32 s64, s28, 2304\ns_sub_u32 s65, s29, 9\ns_mul_i32 s65, s65, 384\ns_add_u32 s64, s64, s65\ns_lshl_b32 s65, s30, 7\ns_add_u32 s64, s64, s65\ns_add_u32 s64, s64, {H3R if rep else H3}")
        e("v_and_b32 v6, 7, v1\nv_lshlrev_b32 v6, 4, v6\nv_add_u32 v6, s64, v6")
        if rep: e(f"v_lshrrev_b32 v12, 3, v1\nv_mul_u32_u24 v12, {0x9000}, v12\nv_add_u32 v6, v6, v12")
        e("s_waitcnt lgkmcnt(0)")
        self.reduce_stride8(16, 20)
        self.tagins(16)
        if not rep: e("s_mov_b64 exec, 0xff")
        e("global_store_dwordx4 v6, v[16:19], s[26:27] sc1")
        e("s_mov_b64 exec, -1")
        e("L_b1pubdone:")
        self.mile("b1pub", 0)
        self.stamp(10)
        e("s_sub_u32 s32, s29, 9\ns_cmp_lt_u32 s32, 2\ns_cbranch_scc0 L_rho2\ns_lshl_b32 s64, s28, 1\ns_add_u32 s32, s32, s64\ns_branch L_reducer")
        e("L_rho2:\ns_cmp_eq_u32 s32, 2\ns_cbranch_scc0 L_fin\ns_cmp_lt_u32 s28, 4\ns_cbranch_scc0 L_fin\ns_add_u32 s32, s28, 32")
        e("L_reducer:")
        e("s_cmp_eq_u32 s30, 0\ns_cbranch_scc0 L_redh4")
        e(f"v_lshrrev_b32 v6, 2, v1\nv_mul_u32_u24 v6, 2304, v6\nv_and_b32 v12, 3, v1\nv_lshlrev_b32 v12, 4, v12\nv_add_u32 v6, v6, v12\ns_lshl_b32 s64, s32, 6\ns_add_u32 s64, s64, {H3R if rep else H3}\nv_add_u32 v6, s64, v6")
        if rep: e(f"s_and_b32 s64, s2, 7\ns_mul_i32 s64, s64, {0x9000}\nv_add_u32 v6, s64, v6")
        e("v_and_b32 v12, 3, v1\nv_lshl_add_u32 v12, v12, 2, v3\ns_lshl_b32 s64, s32, 4\nv_add_lshl_u32 v13, s64, v12, 1")
        e("buffer_load_ushort v40, v13, s[36:39], 0 offen")
        if o.get("rh3sleep", 8): e(f"s_sleep {o.get('rh3sleep', 8)}")
        e("s_mov_b32 s66, 0")
        e("L_rh3loop:")
        e("global_load_dwordx4 v[32:35], v6, s[26:27] sc1\ns_waitcnt vmcnt(0)")
        self.validate([32], "v100", "v101")
        self.spin_tail("L_rh3ok", "L_rh3loop", 4)
        e("s_branch L_rh3loop")
        e("L_rh3ok:")
        for st in (8, 4):
            for r in range(4): e(f"v_add_f32_dpp v{32+r}, v{32+r}, v{32+r} row_ror:{st} row_mask:0xf bank_mask:0xf")
        self.xrow_transpose_reduce(32)
        self.Rnd("v32", "v32")
        e("v_lshlrev_b32 v40, 16, v40\nv_add_f32 v32, v40, v32")
        self.Rnd("v32", "v32")
        e("v_lshlrev_b32 v12, 2, v12\ns_mov_b32 s64, 0x000f000f\ns_mov_b32 s65, 0x000f000f\ns_mov_b64 exec, s[64:65]")
        e(f"ds_write_b32 v12, v32 offset:{FR+640}")
        e("s_mov_b64 exec, -1\ns_waitcnt lgkmcnt(0)")
        e("L_redh4:")
        e("s_barrier")
        self.stamp(12)
        e(f"v_lshrrev_b32 v6, 2, v0\nv_mul_u32_u24 v6, 2304, v6\nv_and_b32 v12, 3, v0\nv_lshlrev_b32 v12, 4, v12\nv_add_u32 v6, v6, v12\ns_lshl_b32 s64, s32, 6\ns_add_u32 s64, s64, {H4}\nv_add_u32 v6, s64, v6")
        e("v_and_b32 v12, 3, v1\nv_lshl_add_u32 v12, v12, 2, v3\nv_lshlrev_b32 v13, 2, v12\ns_lshl_b32 s64, s30, 6\nv_add_u32 v13, s64, v13")
        e("v_lshlrev_b32 v14, 2, v2\nv_lshl_add_u32 v14, v3, 6, v14")
        e("s_lshl_b32 s64, s32, 4\nv_add_lshl_u32 v15, s64, v2, 1")
        e("s_mov_b32 s52, s22\ns_mov_b32 s53, s23\ns_movk_i32 s54, 1152\ns_mov_b32 s55, 0x20000")
        e("s_mov_b32 s70, 0x000f000f\ns_mov_b32 s71, 0x000f000f\nv_mov_b32 v42, 0")
        for k in range(o.get("h4sleepN", 1)): e(f"s_sleep {o.get('h4sleep', 40)}")
        e("s_mov_b32 s66, 0")
        e("L_h4loop:")
        e("global_load_dwordx4 v[32:35], v6, s[26:27] sc1\ns_waitcnt vmcnt(0)")
        self.validate([32], "v100", "v101")
        self.spin_tail("L_h4ok", "L_h4loop", o.get("h4retry", 4))
        e("s_branch L_h4loop")
        e("L_h4ok:")
        self.mile("h4ok", 0)
        self.note(14, "s66")
        self.stamp(11)
        for st in (8, 4):
            for r in range(4): e(f"v_add_f32_dpp v{32+r}, v{32+r}, v{32+r} row_ror:{st} row_mask:0xf bank_mask:0xf")
        self.xrow_transpose_reduce(32)
        e("s_mov_b64 exec, s[70:71]")
        e(f"ds_write_b32 v13, v32 offset:{FR}")
        e("s_mov_b64 exec, -1")
        e("s_waitcnt lgkmcnt(0)\ns_barrier")
        e("s_cmp_eq_u32 s30, 0\ns_cbranch_scc0 L_fin")
        e(f"ds_read_b32 v40, v14 offset:{FR}\nds_read_b32 v41, v14 offset:{FR+256}")
        e("s_mov_b64 exec, 0xffff")
        e(f"ds_read_b32 v42, v14 offset:{FR+512}\nds_read_b32 v43, v14 offset:{FR+640}")
        e("s_mov_b64 exec, -1")
        e("s_waitcnt lgkmcnt(0)")
        e("v_add_f32 v40, v40, v41\nv_add_f32 v40, v40, v42\nv_mov_b32 v41, v40")
        e("v_permlane16_swap_b32 v40, v41\nv_add_f32 v40, v40, v41\nv_mov_b32 v41, v40\nv_permlane32_swap_b32 v40, v41\nv_add_f32 v40, v40, v41")
        self.Rnd("v40", "v40")
        e("v_add_f32 v40, v43, v40\nv_cvt_pk_bf16_f32 v40, v40, v40")
        e("s_mov_b64 exec, 0xffff")
        e("buffer_store_short v40, v15, s[52:55], 0 offen")
        e("s_mov_b64 exec, -1")
        e("s_cmp_eq_u32 s32, 0\ns_cbranch_scc0 L_fin")
        e("v_mov_b32 v6, 0\ns_mov_b64 exec, 1\nglobal_store_dword v6, v7, s[26:27] sc1\ns_mov_b64 exec, -1")
        if o.get("amp"):
            e(f"s_memrealtime s[92:93]\nv_lshlrev_b32 v6, 4, v1\nv_add_u32 v6, {0x300000}, v6")
            e("global_load_dwordx4 v[32:35], v6, s[26:27] sc1\nglobal_load_dwordx4 v[36:39], v6, s[26:27] offset:1024 sc1\ns_waitcnt vmcnt(0) lgkmcnt(0)")
            for k in range(8): e(f"v_subrev_u32 v{32+k}, s92, v{32+k}")
            e("v_min_i32 v32, v32, v33\nv_min_i32 v34, v34, v35\nv_min_i32 v32, v32, v34\nv_max_i32 v36, v36, v37\nv_max_i32 v38, v38, v39\nv_max_i32 v36, v36, v38")
            for st in (8, 4, 2, 1):
                e(f"v_min_i32_dpp v32, v32, v32 row_ror:{st} row_mask:0xf bank_mask:0xf\nv_max_i32_dpp v36, v36, v36 row_ror:{st} row_mask:0xf bank_mask:0xf")
            e("s_nop 4")
            for q in range(4): e(f"v_readlane_b32 s{40+q}, v32, {16*q}\nv_readlane_b32 s{44+q}, v36, {16*q}")
            e("s_nop 4\ns_min_i32 s40, s40, s41\ns_min_i32 s42, s42, s43\ns_min_i32 s40, s40, s42\ns_max_i32 s44, s44, s45\ns_max_i32 s46, s46, s47\ns_max_i32 s44, s44, s46")
            if o["amp"] == "tot": e("s_sub_u32 s65, 0, s40")
            else: e("s_sub_u32 s65, s44, s40")
            e(f"s_min_u32 s65, s65, 5000\ns_mul_i32 s65, s65, {o.get('ampk', 2)}\ns_add_u32 s65, s65, s92")
            e("L_ampspin:\ns_memrealtime s[66:67]\ns_waitcnt lgkmcnt(0)\ns_sub_u32 s66, s66, s65\ns_cmp_lt_i32 s66, 0\ns_cbranch_scc1 L_ampspin")
        e("s_branch L_fin")

    def roleA(self):
        e = self.e; o = self.o
        e("s_setprio 0")
        e("s_mul_i32 s32, s28, 9\ns_add_u32 s32, s32, s29")
        e(f"s_lshl_b32 s69, s30, 12\ns_add_u32 s69, s69, {WB}")
        e("v_lshlrev_b32 v4, 2, v2\nv_add_u32 v4, v4, v3")
        e("s_lshl_b32 s34, s30, 6\nv_add_u32 v10, s34, v4\nv_lshlrev_b32 v10, 1, v10")
        e("buffer_load_ushort v126, v10, s[36:39], 0 offen")
        e(f"v_mov_b32 v12, 0x3f803f80\nv_lshlrev_b32 v10, 2, v1\ns_mov_b32 exec_lo, -1\ns_mov_b32 exec_hi, 0\nds_write_b32 v10, v12 offset:{ONES}\ns_mov_b64 exec, -1")
        e(f"v_mul_u32_u24 v128, 2304, v3\nv_lshlrev_b32 v12, 4, v2\nv_add_u32 v128, v128, v12\ns_lshl_b32 s64, s30, 8\ns_add_u32 s64, s64, {H3R if o.get('h3rep', True) else H3}\nv_add_u32 v128, s64, v128")
        if o.get("h3rep", True): e(f"s_and_b32 s64, s2, 7\ns_mul_i32 s64, s64, {0x9000}\nv_add_u32 v128, s64, v128")
        e("v_add_u32 v129, 9216, v128\nv_add_u32 v130, 18432, v128\nv_add_u32 v131, 27648, v128")
        e(f"s_lshl_b32 s64, s30, 7\ns_add_u32 s64, s64, {HNL}\nv_lshlrev_b32 v132, 1, v4\nv_add_u32 v132, s64, v132")
        e(f"v_lshlrev_b32 v133, 4, v3\nv_add_u32 v12, s64, v133\nv_add_u32 v133, {ONES}, v133\nv_cmp_eq_u32 vcc, 1, v2\nv_cndmask_b32 v133, v12, v133, vcc")
        e(f"s_lshl_b32 s64, s30, 9\ns_add_u32 s64, s64, {MR}\nv_lshlrev_b32 v134, 4, v3\nv_lshlrev_b32 v12, 8, v2\nv_add_u32 v134, v134, v12\nv_add_u32 v134, s64, v134")
        e(f"v_lshlrev_b32 v135, 4, v2\nv_lshlrev_b32 v12, 9, v3\nv_add_u32 v135, v135, v12\nv_add_u32 v135, {MR}, v135")
        e(f"s_lshl_b32 s64, s30, 6\ns_add_u32 s64, s64, {HHL}\nv_lshlrev_b32 v136, 1, v4\nv_add_u32 v136, s64, v136\nv_lshlrev_b32 v137, 4, v3\nv_add_u32 v137, s64, v137")
        e(f"s_mul_i32 s64, s32, 2304\ns_lshl_b32 s65, s30, 8\ns_add_u32 s64, s64, s65\ns_add_u32 s64, s64, {H4}")
        e("v_bfe_u32 v138, v1, 2, 2\nv_lshlrev_b32 v138, 6, v138\nv_lshlrev_b32 v12, 4, v3\nv_add_u32 v138, v138, v12\nv_add_u32 v138, s64, v138")
        e(f"v_lshlrev_b32 v140, 2, v1\nv_add_u32 v140, {ST2}, v140\ns_lshl_b32 s64, s30, 2\nv_add_u32 v139, s64, v140")
        e("v_lshlrev_b32 v10, 3, v3\nv_bfe_u32 v12, v1, 2, 2\nv_add_u32 v5, v10, v12\nv_lshlrev_b32 v10, 6, v5\nv_and_b32 v12, 3, v1\nv_lshlrev_b32 v12, 3, v12\nv_add_u32 v10, v10, v12\nv_add_u32 v10, s69, v10")
        e("v_lshlrev_b32 v13, 7, v5\nv_add_u32 v13, v13, v12")
        e("v_and_b32 v12, 1, v3\nv_lshlrev_b32 v12, 5, v12\nv_add_u32 v11, v10, v12\nv_xor_b32 v12, 32, v12\nv_add_u32 v10, v10, v12")
        e("v_bfe_u32 v12, v1, 3, 1\nv_and_b32 v5, 1, v3\nv_lshlrev_b32 v5, 1, v5\nv_or_b32 v12, v12, v5\nv_lshlrev_b32 v12, 5, v12\nv_add_u32 v13, v13, v12")
        e(f"s_add_u32 s65, s69, {2*36864}\nv_add_u32 v13, s65, v13")
        for r in range(8): e(f"v_mov_b32 v{144+r}, 0")
        e("v_mov_b32 v152, 0\nv_mov_b32 v153, 0x3ae38e39")
        e("s_mov_b32 s52, 0x00030003\ns_mov_b32 s53, 0x00030003\ns_mov_b32 s54, 0x00ff00ff\ns_mov_b32 s55, 0x00ff00ff\ns_mov_b32 s70, 0x11111111\ns_mov_b32 s71, 0x11111111")
        self.stamp(8)
        e("s_cmp_ge_u32 s30, 4\ns_cbranch_scc0 L_aw0\ns_cmp_lt_u32 s30, 8\ns_cbranch_scc0 L_aw0\ns_waitcnt vmcnt(%d)\ns_branch L_aw1\nL_aw0:\ns_waitcnt vmcnt(0)\nL_aw1:" % (1 if (o.get("wdfirst", False) and "u" in o.get("pfw", "og")) else 9))
        e("s_waitcnt lgkmcnt(0)\ns_barrier")
        def trw(m):
            lo = 36864*m
            for s in range(2):
                for tau in range(2):
                    fr = 32 + 16*m + 8*s + 4*tau
                    a = "v11" if tau == 0 else "v10"
                    off = lo + 2048*s
                    e(f"ds_read_b64_tr_b16 v[{fr}:{fr+1}], {a} offset:{off}")
                    e(f"ds_read_b64_tr_b16 v[{fr+2}:{fr+3}], {a} offset:{off+256}")
        trw(0)
        if o.get("h3sleep", 0): e(f"s_sleep {o['h3sleep']}")
        for i in range(4): e(f"global_load_dwordx4 v[{80+4*i}:{83+4*i}], v{128+i}, s[26:27] sc1")
        e("s_waitcnt lgkmcnt(0)")
        trw(1)
        e("s_mov_b32 s66, 0")
        e("L_h3loop:")
        e("s_waitcnt vmcnt(0)")
        for i in range(4):
            gb = 80 + 4*i
            e(f"v_perm_b32 v100, v{gb+1}, v{gb}, s62\nv_perm_b32 v101, v{gb+3}, v{gb+2}, s63\nv_or_b32 v100, v100, v101")
            e(f"v_cmp_ne_u32 s[{40+2*i}:{41+2*i}], v100, v7")
        e("s_or_b64 s[48:49], s[40:41], s[42:43]\ns_or_b64 s[50:51], s[44:45], s[46:47]\ns_or_b64 s[48:49], s[48:49], s[50:51]")
        e("s_cbranch_scc0 L_h3ok")
        e("s_add_u32 s66, s66, 1\ns_cmp_gt_u32 s66, %d\ns_cbranch_scc1 L_h3ok" % o.get("maxspin", 20000))
        if o.get("h3retry", 1): e(f"s_sleep {o.get('h3retry', 1)}")
        for i in range(4):
            e(f"s_mov_b64 exec, s[{40+2*i}:{41+2*i}]\ns_cbranch_execz L_h3s{i}")
            e(f"global_load_dwordx4 v[{80+4*i}:{83+4*i}], v{128+i}, s[26:27] sc1")
            e(f"L_h3s{i}:")
        e("s_mov_b64 exec, -1\ns_branch L_h3loop")
        e("L_h3ok:")
        self.mile("h3ok", 0)
        self.note(13, "s66")
        self.stamp(9)
        e("v_lshlrev_b32 v126, 16, v126")
        for r in range(4):
            e(f"v_add_f32 v{80+r}, v{80+r}, v{84+r}\nv_add_f32 v{88+r}, v{88+r}, v{92+r}")
        for r in range(4): e(f"v_add_f32 v{80+r}, v{80+r}, v{88+r}")
        self.xrow_transpose_reduce(80)
        self.Rnd("v80", "v80")
        e("v_fma_f32 v80, v126, 1.0, v80") if False else e("v_add_f32 v80, v126, v80")
        e("v_cvt_pk_bf16_f32 v81, v80, v80")
        e("ds_write_b16 v132, v81")
        e("v_and_b32 v82, 0xffff0000, v81")
        e("v_mul_f32 v83, v82, v82")
        e("v_add_f32_dpp v82, v82, v82 row_ror:8 row_mask:0xf bank_mask:0xf")
        e("v_add_f32_dpp v83, v83, v83 row_ror:8 row_mask:0xf bank_mask:0xf")
        e("s_waitcnt lgkmcnt(0)")
        e("ds_read_b128 v[84:87], v133\nds_read_b128 v[88:91], v133 offset:64")
        self.row_allreduce("v_add_f32", ["v82", "v83"], steps=(4, 2, 1))
        e("v_permlane16_swap_b32 v82, v83\nv_add_f32 v82, v82, v83\nv_mov_b32 v83, v82\nv_permlane32_swap_b32 v82, v83\nv_add_f32 v82, v82, v83")
        e("s_waitcnt lgkmcnt(0)")
        for s in range(2):
            for m in range(2):
                for tau in range(2):
                    fr = 32 + 16*m + 8*s + 4*tau; d = 96 + 8*m + 4*tau
                    e(f"v_mfma_f32_16x16x32_bf16 v[{d}:{d+3}], v[{fr}:{fr+3}], v[{84+4*s}:{87+4*s}], {'0' if s==0 else f'v[{d}:{d+3}]'}")
        e("s_mov_b64 exec, 0x10001")
        e("ds_write_b32 v139, v82")
        e("s_mov_b64 exec, s[52:53]")
        for k in range(4):
            e(f"ds_write_b128 v134, v[{96+4*k}:{99+4*k}] offset:{64*k}")
        e("s_mov_b64 exec, 0x01ff01ff")
        self.stamp(10)
        e("s_waitcnt vmcnt(0) lgkmcnt(0)\ns_barrier")
        e("ds_read_b32 v152, v140")
        e("s_mov_b64 exec, -1")
        e("ds_read_b128 v[84:87], v135\nds_read_b128 v[88:91], v135 offset:2048")
        e("ds_read_b128 v[100:103], v135 offset:256\nds_read_b128 v[104:107], v135 offset:2304")
        e("s_mov_b64 exec, 0xffff")
        e("ds_read_b128 v[144:147], v135 offset:4096\nds_read_b128 v[148:151], v135 offset:4352")
        e("s_mov_b64 exec, -1")
        for tau in range(4):
            e(f"v_xor_b32 v12, {32*tau}, v13")
            e(f"ds_read_b64_tr_b16 v[{64+4*tau}:{65+4*tau}], v12\nds_read_b64_tr_b16 v[{66+4*tau}:{67+4*tau}], v12 offset:512")
        e("s_waitcnt lgkmcnt(8)")
        def dpp(st): e(f"v_add_f32_dpp v152, v152, v152 row_ror:{st} row_mask:0xf bank_mask:0xf")
        dpp(8)
        e("v_add_f32 v84, v84, v88\nv_add_f32 v100, v100, v104")
        dpp(4)
        e("v_add_f32 v85, v85, v89\nv_add_f32 v101, v101, v105")
        dpp(2)
        e("v_add_f32 v86, v86, v90\nv_add_f32 v102, v102, v106")
        dpp(1)
        e("v_add_f32 v87, v87, v91\nv_add_f32 v103, v103, v107")
        e("v_readlane_b32 s64, v152, 0\nv_readlane_b32 s65, v152, 16")
        e("v_add_f32 v84, v84, v144\nv_add_f32 v100, v100, v148")
        e("v_mul_f32 v112, s64, v153\nv_mul_f32 v113, s65, v153")
        e("v_add_f32 v85, v85, v145\nv_add_f32 v101, v101, v149")
        e("v_fma_f32 v113, -v112, v112, v113")
        e("v_add_f32 v86, v86, v146\nv_add_f32 v102, v102, v150")
        e("v_max_f32 v113, 0, v113")
        e("v_add_f32 v87, v87, v147\nv_add_f32 v103, v103, v151")
        e("v_cvt_pk_bf16_f32 v113, v113, v113\nv_cvt_pk_bf16_f32 v112, v112, v112")
        e("v_permlane16_swap_b32 v84, v85")
        e("v_and_b32 v113, 0xffff0000, v113\nv_and_b32 v112, 0xffff0000, v112")
        e("v_permlane16_swap_b32 v86, v87")
        e("v_add_f32 v113, 0x3727c5ac, v113")
        e("v_permlane16_swap_b32 v100, v101")
        e("v_cvt_pk_bf16_f32 v113, v113, v113")
        e("v_permlane16_swap_b32 v102, v103")
        e("v_and_b32 v113, 0xffff0000, v113")
        e("v_add_f32 v84, v84, v85\nv_add_f32 v86, v86, v87")
        e("v_sqrt_f32 v113, v113")
        e("v_add_f32 v100, v100, v101\nv_add_f32 v102, v102, v103")
        e("v_cvt_pk_bf16_f32 v113, v113, v113")
        e("v_permlane32_swap_b32 v84, v86")
        e("v_and_b32 v113, 0xffff0000, v113")
        e("v_permlane32_swap_b32 v100, v102")
        e("v_rcp_f32 v114, v113")
        e("v_add_f32 v84, v84, v86\nv_add_f32 v100, v100, v102")
        e("v_fma_f32 v84, -v112, v100, v84")
        e("v_mul_f32 v85, v84, v114\nv_fma_f32 v86, -v85, v113, v84\nv_fma_f32 v85, v86, v114, v85")
        self.Rnd("v84", "v85")
        e("v_mov_b32_dpp v85, v84 row_ror:8 row_mask:0xf bank_mask:0xf")
        e("v_max_f32 v86, 0, v84\nv_mul_f32 v86, v86, v85\nv_cvt_pk_bf16_f32 v86, v86, v86")
        e("s_mov_b64 exec, s[54:55]")
        e("ds_write_b16 v136, v86")
        e("s_mov_b64 exec, -1")
        e("s_waitcnt lgkmcnt(0)")
        e("ds_read_b128 v[84:87], v137")
        e("s_waitcnt lgkmcnt(0)")
        for tau in range(4):
            e(f"v_mfma_f32_16x16x32_bf16 v[{96+4*tau}:{99+4*tau}], v[{64+4*tau}:{67+4*tau}], v[84:87], 0")
        for tau in range(1, 4):
            for r in range(4):
                e(f"v_mov_b32_dpp v{96+r}, v{96+4*tau+r} quad_perm:[0,1,2,3] row_mask:0xf bank_mask:{1<<tau:#x}")
        self.tagins(96)
        e("s_mov_b64 exec, s[70:71]")
        e("global_store_dwordx4 v138, v[96:99], s[26:27] sc1")
        e("s_mov_b64 exec, -1")
        self.mile("apub", 0)
        self.stamp(11)

def build(opt=None):
    opt = opt or {}
    g = G(opt)
    body = g.gen()
    name = NAME + "_kernel"
    txt = HEADER + "; Override launch geometry by editing the next line (default: block=256,\n; grid=ceil(out_elems/256), lds=0). Harness parses it; keep it on one line.\n"
    txt += f"; @launch grid=(256,1,1) block=(576,1,1) lds={LDS_BYTES}\n"
    txt += f""".amdgcn_target "amdgcn-amd-amdhsa--gfx950"
.text
.globl {name}
.p2align 8
.type {name},@function
{name}:
{body}.section .rodata,"a"
.p2align 6
.amdhsa_kernel {name}
  .amdhsa_next_free_vgpr 168
  .amdhsa_next_free_sgpr 96
  .amdhsa_accum_offset 168
  .amdhsa_group_segment_fixed_size 0
  .amdhsa_kernarg_size 96
  .amdhsa_user_sgpr_count 2
  .amdhsa_user_sgpr_kernarg_segment_ptr 1
  .amdhsa_system_sgpr_workgroup_id_x 1
.end_amdhsa_kernel
"""
    return txt, g
if __name__ == "__main__":
    import json
    opt = json.loads(sys.argv[2]) if len(sys.argv) > 2 else {}
    txt, g = build(opt)
    open(sys.argv[1], "w").write(txt)
    print("instrs", g.e.count, "nops", g.e.nops)
```

```python
import sys
sys.path.insert(0, "work")
from emit import E
NAME = "sequential_preLN__sliding_block_cached__glu_gated_reglu__decode"
HEADER = open("cdna_kernels/" + NAME + ".s.ref").read().split("; Override launch geometry")[0]

H1 = 0x10000; H2 = 0x40000; H3 = 0x90000; H4 = 0xA0000; TS = 0x400000; H3CHK = 0x200000
FAST = 0x100000
H2F = 0x180000
STF = 0x1C0000
H3R = 0x200000
H3S = 0x9000
XT = 0
FL = 256
QB = 512
MX = 1024
LS = 1056
PL = 1280
OP = 2560
ST2 = 6656
HNL = 6784
MR = 7936
HHL = 12544
ONES = 13120
WR = 6656
SC = 10816
FR = 9728
WB = 13312
LDS_BYTES = WB + 3 * 36864


DOC = """;
; ---------------------------------------------------------------------------------------------------------------
; Hand-offs between WGs go through d_ws as 16-byte granules {4 x f32}; the low byte of each dword carries one byte of a
; ---------------------------------------------------------------------------------------------------------------
"""

class G:
    def __init__(self, opt):
        self.o = opt; self.e = E(); self.uid = 0
    def stamp(self, k):
        if not self.o.get("stamps"): return
        if self.o.get("stamps") == "min" and k != 15: return
        e = self.e
        e(f"s_memrealtime s[90:91]\ns_waitcnt lgkmcnt(0)\nv_writelane_b32 v127, s90, {k}")
    def mile(self, name, wave=None):
        if self.o.get("amp") != name: return
        e = self.e; self.uid += 1
        if wave is not None: e(f"s_cmp_eq_u32 s30, {wave}\ns_cbranch_scc0 L_ml{self.uid}")
        e(f"s_memrealtime s[92:93]\ns_lshl_b32 s94, s2, 2\ns_add_u32 s94, s94, {0x300400}\ns_waitcnt lgkmcnt(0)\nv_mov_b32 v124, s92\nv_mov_b32 v125, s94")
        e("s_mov_b64 s[94:95], exec\ns_mov_b64 exec, 1\nglobal_store_dword v125, v124, s[26:27] sc1\ns_mov_b64 exec, s[94:95]")
        e(f"L_ml{self.uid}:")
    def note(self, k, sreg):
        if self.o.get("stamps") and self.o.get("stamps") != "min": self.e(f"v_writelane_b32 v127, {sreg}, {k}")
    def Rnd(self, d, s):
        self.e(f"v_cvt_pk_bf16_f32 {d}, {s}, {s}")
        self.e(f"v_and_b32 {d}, 0xffff0000, {d}")
    def row_allreduce(self, op, vs, steps=(8, 4, 2, 1)):
        for st in steps:
            for v in vs:
                self.e(f"{op}_dpp {v}, {v}, {v} row_ror:{st} row_mask:0xf bank_mask:0xf")
    def tagins(self, v4):
        for k in range(4):
            self.e(f"v_perm_b32 v{v4+k}, v{v4+k}, v7, s{56+k}")
    def dual_store(self, vaddr, data, vfast=None):
        e = self.e
        if self.o.get("fast", True):
            if vfast is None:
                e(f"v_add_u32 v125, {FAST}, {vaddr}"); vfast = "v125"
            e(f"global_store_dwordx4 {vfast}, {data}, s[26:27]")
        e(f"global_store_dwordx4 {vaddr}, {data}, s[26:27] sc1")
    def spin_fast(self, okl, tag, sleep, addrs=None, switch=None):
        e = self.e; o = self.o
        e(f"s_cbranch_vccz {okl}")
        e("s_add_u32 s66, s66, 1\ns_cmp_gt_u32 s66, %d\ns_cbranch_scc1 %s" % (o.get("maxspin", 20000), okl))
        if o.get("fast", True):
            nf = o.get('nfast1', 2) if tag == "h1" else o.get('nfast', 6)
            e(f"s_cmp_eq_u32 s66, {nf}\ns_cbranch_scc0 L_{tag}keep")
            if addrs:
                for a in addrs: e(f"v_subrev_u32 {a}, {FAST}, {a}")
            if switch: e(switch)
            e(f"L_{tag}keep:")
        if sleep: e(f"s_sleep {sleep}")
    def validate(self, grans, t0, t1):
        e = self.e
        for i, gb in enumerate(grans):
            e(f"v_perm_b32 {t0}, v{gb+1}, v{gb}, s62")
            e(f"v_perm_b32 {t1}, v{gb+3}, v{gb+2}, s63")
            e(f"v_or_b32 {t0}, {t0}, {t1}")
            e(f"v_cmp_ne_u32 vcc, {t0}, v7")
            if len(grans) > 1:
                if i == 0: e("s_mov_b64 s[60:61], vcc")
                else: e("s_or_b64 s[60:61], s[60:61], vcc")
        if len(grans) > 1: e("s_mov_b64 vcc, s[60:61]")
    def spin_tail(self, okl, loopl, sleep):
        e = self.e
        e(f"s_cbranch_vccz {okl}")
        e("s_add_u32 s66, s66, 1\ns_cmp_gt_u32 s66, %d\ns_cbranch_scc1 %s" % (self.o.get("maxspin", 20000), okl))
        if sleep: e(f"s_sleep {sleep}")
    def masks(self):
        e = self.e
        e("v_and_b32 v6, 1, v1\nv_lshlrev_b32 v6, 4, v6\nv_mov_b32 v12, 0xffff\nv_lshlrev_b32 v12, v6, v12")
        e("v_bfe_u32 v6, v1, 1, 2")
        for r in range(4):
            e(f"v_cmp_eq_u32 vcc, {r}, v6\nv_cndmask_b32 v{120+r}, 0, v12, vcc")
    def consts(self):
        e = self.e
        e("s_mov_b32 s56, 0x07060500\ns_mov_b32 s57, 0x07060501\ns_mov_b32 s58, 0x07060502\ns_mov_b32 s59, 0x07060503")
        e("s_mov_b32 s62, 0x0c0c0400\ns_mov_b32 s63, 0x04000c0c")
    def epoch(self):
        e = self.e
        e("s_waitcnt lgkmcnt(0)")
        e("s_mul_i32 s31, s31, 0x19660d\ns_add_u32 s31, s31, 0x3c6ef35f\nv_mov_b32 v7, s31")
    def ln_scalars(self, s1, s2, vm, vs, vr):
        e = self.e
        e(f"s_mov_b32 s68, 0x3ae38e39")
        e(f"v_mov_b32 {vm}, {s1}\nv_mov_b32 {vs}, {s2}\nv_mul_f32 {vm}, s68, {vm}\nv_mul_f32 {vs}, s68, {vs}")
        e(f"v_fma_f32 {vs}, -{vm}, {vm}, {vs}")
        e(f"v_max_f32 {vs}, 0, {vs}")
        self.Rnd(vs, vs); self.Rnd(vm, vm)
        e(f"v_add_f32 {vs}, 0x3727c5ac, {vs}")
        self.Rnd(vs, vs)
        e(f"v_sqrt_f32 {vs}, {vs}")
        self.Rnd(vs, vs)
        e(f"v_rcp_f32 {vr}, {vs}")
    def ln_apply(self, x, vm, vs, vr, t0, t1):
        e = self.e
        e(f"v_sub_f32 {x}, {x}, {vm}")
        self.Rnd(x, x)
        e(f"v_mul_f32 {t0}, {x}, {vr}")
        e(f"v_fma_f32 {t1}, -{t0}, {vs}, {x}")
        e(f"v_fma_f32 {t0}, {t1}, {vr}, {t0}")
        e(f"v_cvt_pk_bf16_f32 {x}, {t0}, {t0}")
    def reduce_stride8(self, v, t):
        e = self.e
        for r in range(4): e(f"v_add_f32_dpp v{v+r}, v{v+r}, v{v+r} row_ror:8 row_mask:0xf bank_mask:0xf")
        self.xrow_allreduce(v, t)
    def xrow_allreduce(self, v, t):
        e = self.e
        for r in range(4): e(f"v_mov_b32 v{t+r}, v{v+r}")
        for r in range(4): e(f"v_permlane16_swap_b32 v{v+r}, v{t+r}")
        for r in range(4): e(f"v_add_f32 v{v+r}, v{v+r}, v{t+r}")
        for r in range(4): e(f"v_mov_b32 v{t+r}, v{v+r}")
        for r in range(4): e(f"v_permlane32_swap_b32 v{v+r}, v{t+r}")
        for r in range(4): e(f"v_add_f32 v{v+r}, v{v+r}, v{t+r}")
    def reduce_stride4(self, v, t):
        e = self.e
        for st in (8, 4):
            for r in range(4): e(f"v_add_f32_dpp v{v+r}, v{v+r}, v{v+r} row_ror:{st} row_mask:0xf bank_mask:0xf")
        self.xrow_allreduce(v, t)
    def xrow_transpose_reduce(self, v):
        e = self.e
        e(f"v_permlane16_swap_b32 v{v}, v{v+1}\nv_permlane16_swap_b32 v{v+2}, v{v+3}")
        e(f"v_add_f32 v{v}, v{v}, v{v+1}\nv_add_f32 v{v+2}, v{v+2}, v{v+3}")
        e(f"v_permlane32_swap_b32 v{v}, v{v+2}")
        e(f"v_add_f32 v{v}, v{v}, v{v+2}")

    def gen(self):
        e = self.e; o = self.o
        nt = o.get("kvflag", "nt")
        e("L_start:")
        if o.get("amp") and o.get("ampentry"): e("s_memrealtime s[94:95]")
        e("s_cmp_ge_u32 s2, 256\ns_cbranch_scc1 L_end")
        e("s_load_dwordx16 s[4:19], s[0:1], 0\ns_load_dwordx8 s[20:27], s[0:1], 64")
        if o.get("codepf", True):
            e("s_getpc_b64 s[64:65]")
            e("L_pfbase:")
            e("s_lshr_b32 s66, s2, 3\ns_lshl_b32 s66, s66, 9\nv_lshlrev_b32 v6, 7, v0\nv_add_u32 v6, s66, v6\nv_min_u32 v6, L_end-L_pfbase, v6")
            e("v_cmp_gt_u32 vcc, 4, v0\ns_and_saveexec_b64 s[66:67], vcc\ns_cbranch_execz L_pfskip")
            e("global_load_dword v124, v6, s[64:65]")
            e("L_pfskip:\ns_mov_b64 exec, s[66:67]")
        if o.get("stamps"): e("v_mov_b32 v127, 0\ns_memrealtime s[90:91]")
        e("v_and_b32 v1, 63, v0\nv_lshrrev_b32 v6, 6, v0\nv_readfirstlane_b32 s30, v6")
        e("s_and_b32 s28, s2, 7\ns_lshl_b32 s28, s28, 1\ns_lshr_b32 s33, s2, 7\ns_or_b32 s28, s28, s33")
        e("s_lshr_b32 s29, s2, 3\ns_and_b32 s29, s29, 15")
        e("v_and_b32 v2, 15, v1\nv_lshrrev_b32 v3, 4, v1\nv_lshlrev_b32 v8, 4, v1")
        e(f"s_lshl_b32 s33, s28, 24\ns_lshl_b32 s64, s29, 16\ns_add_u32 s33, s33, s64\ns_add_u32 s33, s33, {61440*256}\ns_and_b32 s64, s30, 3\ns_lshl_b32 s64, s64, 14\ns_add_u32 s33, s33, s64")
        e("s_movk_i32 s70, 0x1000\ns_movk_i32 s71, 0x2000\ns_movk_i32 s72, 0x3000")
        e("v_bfe_u32 v13, v1, 2, 2\nv_lshlrev_b32 v13, 8, v13\nv_lshlrev_b32 v12, 6, v3\nv_add_u32 v13, v13, v12\nv_and_b32 v12, 3, v1\nv_lshlrev_b32 v12, 4, v12\nv_add_u32 v13, v13, v12")
        e("v_lshlrev_b32 v11, 13, v3\nv_lshlrev_b32 v12, 4, v2\nv_add_u32 v11, v11, v12")
        e("s_and_b32 s34, s29, 1\ns_lshl_b32 s35, s28, 1\ns_add_u32 s35, s35, s34\ns_lshl_b32 s35, s35, 8\ns_lshr_b32 s34, s29, 1\ns_mul_i32 s34, s34, 72")
        e("v_add_u32 v9, s34, v1\nv_lshlrev_b32 v9, 1, v9")
        e("s_lshl_b32 s34, s34, 13\ns_add_u32 s35, s35, s34")
        e("s_movk_i32 s38, 1152\ns_mov_b32 s39, 0x20000\ns_mov_b32 s50, %d\ns_mov_b32 s51, 0x20000" % (576*8192))
        e("s_movk_i32 s42, 0x4000\ns_mov_b32 s43, 0x20000\ns_movk_i32 s46, 0x4000\ns_mov_b32 s47, 0x20000")
        e("s_waitcnt lgkmcnt(0)")
        if o.get("stamps"): e("v_writelane_b32 v127, s90, 0")
        e("s_mov_b32 s36, s4\ns_mov_b32 s37, s5\ns_mov_b32 s48, s10\ns_mov_b32 s49, s11")
        e("s_add_u32 s40, s6, s33\ns_addc_u32 s41, s7, 0")
        e("s_add_u32 s44, s8, s33\ns_addc_u32 s45, s9, 0")
        so = lambda t: ['0', 's70', 's71', 's72'][t // 4]
        n1 = o.get("kn1", 16)
        def Kld(t): e(f"buffer_load_dwordx4 v[{32+4*t}:{35+4*t}], v13, s[40:43], {so(t)} offen offset:{(t%4)*1024} {nt}")
        e("s_cmp_eq_u32 s30, 8\ns_cbranch_scc1 L_qfirst")
        e("s_cmp_lt_u32 s30, 4\ns_cbranch_scc1 L_vfirst")
        e("s_setprio 2")
        if o.get("diag0"): self.stamp(11)
        e("s_barrier")
        if o.get("diag0"): self.stamp(12)
        for t in range(n1): Kld(t)
        self.common_setup()
        self.stamp(6)
        e("s_barrier")
        for t in range(n1, 16): Kld(t)
        e("s_branch L_kmain")
        e("L_vfirst:")
        e("s_barrier")
        self.common_setup()
        e("s_branch L_vwave")
        e("L_qfirst:")
        e("s_setprio 3")
        e("buffer_load_dwordx4 v[24:27], v8, s[36:39], 0 offen")
        e("buffer_load_dwordx4 v[28:31], v8, s[36:39], 0 offen offset:1024")
        e("buffer_load_ushort v14, v9, s[36:39], 0 offen")
        e("buffer_load_ushort v15, v9, s[36:39], 0 offen offset:128")
        for i in range(18):
            e(f"buffer_load_dwordx4 v[{32+4*i}:{35+4*i}], v11, s[48:51], s35 offen {nt}")
            if i < 17: e("s_add_u32 s35, s35, 0x8000")
        e("v_mov_b32 v6, 0\nv_mov_b32 v16, 0\nv_mov_b32 v17, 0\nv_mov_b32 v18, 0\nv_mov_b32 v19, 0")
        e(f"ds_write_b128 v6, v[16:19] offset:{FL}")
        e("s_waitcnt lgkmcnt(0)")
        e("s_barrier")
        self.common_setup()
        self.qwave()
        e("s_branch L_roles")
        e("L_kmain:")
        self.consts()
        self.epoch()
        self.stamp(1)
        if o.get("diagK"):
            e("s_waitcnt vmcnt(12)"); self.stamp(8)
            e("s_waitcnt vmcnt(8)"); self.stamp(9)
            e("s_waitcnt vmcnt(4)"); self.stamp(10)
            e("s_waitcnt vmcnt(0)"); self.stamp(5)
        e(f"v_mov_b32 v6, 0\ns_mov_b32 s66, 0")
        e("L_qfloop:")
        e(f"ds_read_b32 v12, v6 offset:{FL}\ns_waitcnt lgkmcnt(0)\nv_cmp_ne_u32 vcc, 1, v12")
        self.spin_tail("L_qfok", "L_qfloop", 1)
        e("s_branch L_qfloop")
        e("L_qfok:")
        e("v_bfe_u32 v6, v1, 2, 1\nv_lshlrev_b32 v6, 8, v6\nv_lshlrev_b32 v12, 6, v3\nv_add_u32 v6, v6, v12\nv_and_b32 v12, 3, v1\nv_lshlrev_b32 v12, 4, v12\nv_add_u32 v6, v6, v12")
        e(f"ds_read_b128 v[12:15], v6 offset:{QB}")
        self.stamp(2)
        e("s_waitcnt vmcnt(0) lgkmcnt(0)")
        self.stamp(3)
        D0 = [96+4*t if t < 6 else 24+4*(t-6) for t in range(8)]
        D1 = [32+4*t for t in range(8)]
        D = D0 + D1
        S = [16+t for t in range(8)] + [96+t for t in range(8)]
        for t in range(16):
            e(f"v_mfma_f32_16x16x32_bf16 v[{D[t]}:{D[t]+3}], v[12:15], v[{32+4*t}:{35+4*t}], 0")
        for half in range(2):
            for k in range(4):
                for t in range(8*half, 8*half+8):
                    if k == 0: e(f"v_mov_b32_dpp v{S[t]}, v{D[t]} quad_perm:[0,0,0,0] row_mask:0xf bank_mask:0xf")
                    else: e(f"v_add_f32_dpp v{S[t]}, v{D[t]+k}, v{S[t]} quad_perm:[{k},{k},{k},{k}] row_mask:0xf bank_mask:0xf")
        e("s_mov_b32 s64, 0x3db504f3")
        def rnd_pairs():
            for k in range(8): e(f"v_cvt_pk_bf16_f32 v{64+k}, v{S[2*k]}, v{S[2*k+1]}")
            for k in range(8): e(f"v_lshlrev_b32 v{S[2*k]}, 16, v{64+k}\nv_and_b32 v{S[2*k+1]}, 0xffff0000, v{64+k}")
        rnd_pairs()
        for t in range(16): e(f"v_mul_f32 v{S[t]}, s64, v{S[t]}")
        rnd_pairs()
        for k in range(5): e(f"v_max3_f32 v{64+k}, v{S[3*k]}, v{S[3*k+1]}, v{S[3*k+2]}")
        e(f"v_max3_f32 v64, v64, v65, v{S[15]}\nv_max3_f32 v66, v66, v67, v68\nv_max_f32 v64, v64, v66")
        self.row_allreduce("v_max_f32", ["v64"], steps=(8, 4))
        e("s_mov_b32 s64, 0x3fb8aa3b")
        for t in range(16): e(f"v_sub_f32 v{S[t]}, v{S[t]}, v64")
        for t in range(16): e(f"v_mul_f32 v{S[t]}, s64, v{S[t]}")
        for t in range(16): e(f"v_exp_f32 v{S[t]}, v{S[t]}")
        for k in range(8): e(f"v_cvt_pk_bf16_f32 v{72+k}, v{S[2*k]}, v{S[2*k+1]}")
        for k in range(8): e(f"v_add_f32 v{S[2*k]}, v{S[2*k]}, v{S[2*k+1]}")
        for k in range(4): e(f"v_add_f32 v{S[4*k]}, v{S[4*k]}, v{S[4*k+2]}")
        e(f"v_add_f32 v{S[0]}, v{S[0]}, v{S[4]}\nv_add_f32 v{S[8]}, v{S[8]}, v{S[12]}\nv_add_f32 v65, v{S[0]}, v{S[8]}")
        self.row_allreduce("v_add_f32", ["v65"], steps=(8, 4))
        e("s_and_b32 s64, s30, 3\nv_lshlrev_b32 v6, 7, v3\nv_bfe_u32 v12, v1, 2, 2\nv_lshlrev_b32 v12, 5, v12\nv_add_u32 v6, v6, v12\ns_lshl_b32 s65, s64, 8\nv_add_u32 v6, s65, v6")
        e("s_mov_b32 exec_lo, 0x11111111\ns_mov_b32 exec_hi, 0")
        e(f"ds_write_b128 v6, v[72:75] offset:{PL}\nds_write_b128 v6, v[76:79] offset:{PL+16}")
        e("s_mov_b64 exec, -1")
        e("s_lshl_b32 s65, s64, 2\nv_add_u32 v6, s65, v1")
        e("s_mov_b64 exec, 0x10001")
        e(f"ds_write_b32 v6, v64 offset:{MX}\nds_write_b32 v6, v65 offset:{LS}")
        e("s_mov_b64 exec, -1")
        e("s_waitcnt lgkmcnt(0)")
        self.stamp(4)
        e("s_barrier")
        e("s_setprio 0")
        self.wait_pub("sf", 12)
        e("s_cmp_lt_u32 s29, 9\ns_cbranch_scc1 L_kdA\ns_cmp_lt_u32 s29, 15\ns_cbranch_scc0 L_roles")
        self.wo_dma(o.get("woearly", 12))
        e("s_branch L_roles")
        e("L_kdA:")
        self.stamp(5)
        self.wgu_dma(o.get("wgearly", 9))
        e("s_branch L_roles")
        e("L_vwave:")
        if o.get("tlbtouch"):
            st = o["tlbtouch"]
            e("s_cmp_eq_u32 s30, 1\ns_cbranch_scc0 L_notouch")
            e(f"v_lshlrev_b32 v12, {st}, v1")
            for srd in ("s[52:55]", "s[76:79]", "s[80:83]", "s[84:87]"):
                e(f"buffer_load_dword v124, v12, {srd}, 0 offen")
            e("L_notouch:")
        if o.get("fast", True) and o.get("warmF", True):
            e("s_cmp_eq_u32 s30, 1\ns_cbranch_scc0 L_nowarm")
            e(f"s_lshl_b32 s64, s28, 13\ns_lshl_b32 s65, s29, 9\ns_add_u32 s64, s64, s65\ns_add_u32 s64, s64, {H1+FAST}")
            e(f"s_lshl_b32 s65, s28, 14\ns_lshl_b32 s66, s29, 10\ns_add_u32 s65, s65, s66\ns_add_u32 s65, s65, {H2F-512}")
            e(f"s_lshl_b32 s66, s28, 8\ns_add_u32 s66, s66, {STF-12*128}")
            e("v_lshlrev_b32 v12, 7, v1\nv_mov_b32 v6, s65\nv_mov_b32 v16, s64\nv_cmp_gt_u32 vcc, 4, v1\nv_cndmask_b32 v6, v6, v16, vcc")
            e("v_mov_b32 v16, s66\nv_cmp_lt_u32 vcc, 11, v1\nv_cndmask_b32 v6, v6, v16, vcc\nv_add_u32 v6, v6, v12")
            e("s_mov_b64 exec, 0x3fff\nglobal_load_dword v124, v6, s[26:27]\ns_mov_b64 exec, -1")
            e("L_nowarm:")
        self.masks(); self.consts(); self.epoch()
        e("s_barrier")
        def Vld(t): e(f"buffer_load_dwordx4 v[{32+4*t}:{35+4*t}], v8, s[44:47], {so(t)} offen offset:{(t%4)*1024} {nt}")
        self.weights_prefetch()
        for t in range(16): Vld(t)
        self.stamp(1)
        e("s_barrier")
        self.stamp(2)
        self.mile("bp", 0)
        e("v_bfe_u32 v6, v1, 3, 1\nv_lshlrev_b32 v6, 7, v6\nv_lshlrev_b32 v12, 5, v3\nv_add_u32 v6, v6, v12\ns_lshl_b32 s64, s30, 8\nv_add_u32 v6, s64, v6")
        e(f"ds_read_b128 v[16:19], v6 offset:{PL}\nds_read_b128 v[20:23], v6 offset:{PL+16}")
        e("v_lshrrev_b32 v6, 1, v3\nv_lshlrev_b32 v6, 4, v6")
        e(f"ds_read_b128 v[24:27], v6 offset:{MX}")
        e("s_lshl_b32 s64, s30, 2\nv_add_u32 v6, s64, v6")
        e(f"ds_read_b32 v28, v6 offset:{MX}")
        e("s_waitcnt lgkmcnt(0)")
        e("v_max3_f32 v24, v24, v25, v26\nv_max_f32 v24, v24, v27\nv_sub_f32 v28, v28, v24\nv_mul_f32 v28, 0x3fb8aa3b, v28\nv_exp_f32 v28, v28")
        e("s_mov_b32 s64, 0x01000100\ns_mov_b32 s65, 0x03020302")
        for t in range(16):
            ab = 96 + 4*(t % 4)
            e(f"v_perm_b32 v29, v{16+t//2}, v{16+t//2}, {'s64' if t%2==0 else 's65'}")
            for r in range(4): e(f"v_and_b32 v{ab+r}, v29, v{120+r}")
            e(f"s_waitcnt vmcnt({15-t})")
            e(f"v_mfma_f32_16x16x32_bf16 v[12:15], v[{ab}:{ab+3}], v[{32+4*t}:{35+4*t}], {'0' if t==0 else 'v[12:15]'}")
        self.stamp(3)
        e("s_setprio 3")
        e("v_lshrrev_b32 v6, 1, v3\nv_lshlrev_b32 v6, 9, v6\nv_lshlrev_b32 v30, 5, v2\nv_add_u32 v6, v6, v30\nv_and_b32 v30, 1, v3\nv_lshlrev_b32 v30, 4, v30\nv_add_u32 v6, v6, v30")
        e("s_lshl_b32 s64, s30, 10\nv_add_u32 v6, s64, v6")
        for r in range(4): e(f"v_mul_f32 v{12+r}, v28, v{12+r}")
        e(f"ds_write_b128 v6, v[12:15] offset:{OP}")
        e("v_mov_b32 v6, 0\nv_mov_b32 v30, 1")
        e("s_mov_b64 exec, 1")
        e(f"ds_add_rtn_u32 v31, v6, v30 offset:{FL+4}")
        e("s_mov_b64 exec, -1")
        e("s_waitcnt lgkmcnt(0)")
        e("v_readfirstlane_b32 s64, v31")
        e("s_cmp_eq_u32 s64, 3\ns_cbranch_scc0 L_vdone")
        for w in range(4): e(f"ds_read_b128 v[{16+4*w}:{19+4*w}], v8 offset:{OP + 1024*w}")
        e(f"s_mul_i32 s67, s28, 18432\ns_mul_i32 s64, s29, 1152\ns_add_u32 s67, s67, s64\ns_add_u32 s67, s67, {H2}")
        e("v_add_u32 v6, s67, v8")
        e(f"s_lshl_b32 s64, s28, 14\ns_lshl_b32 s65, s29, 4\ns_add_u32 s64, s64, s65\ns_add_u32 s64, s64, {H2F}")
        e("v_lshrrev_b32 v12, 3, v1\nv_lshlrev_b32 v12, 11, v12\nv_and_b32 v13, 1, v1\nv_lshlrev_b32 v13, 10, v13\nv_add_u32 v12, v12, v13\nv_bfe_u32 v13, v1, 1, 2\nv_lshlrev_b32 v13, 8, v13\nv_add_u32 v12, v12, v13\nv_add_u32 v12, s64, v12")
        e("s_waitcnt lgkmcnt(0)")
        for r in range(4): e(f"v_add_f32 v{16+r}, v{16+r}, v{20+r}\nv_add_f32 v{24+r}, v{24+r}, v{28+r}")
        for r in range(4): e(f"v_add_f32 v{16+r}, v{16+r}, v{24+r}")
        self.tagins(16)
        self.dual_store("v6", "v[16:19]", "v12")
        e(f"v_mov_b32 v6, 0\nv_mov_b32 v30, 1\nds_write_b32 v6, v30 offset:{FL+8}")
        self.mile("attn")
        e("L_vdone:")
        e("s_setprio 0")
        self.stamp(4)
        e("s_branch L_roles")
        e("L_roles:")
        self.stamp(7)
        e("s_cmp_lt_u32 s29, 9\ns_cbranch_scc1 L_roleA")
        e("s_cmp_lt_u32 s29, 15\ns_cbranch_scc0 L_fin")
        self.roleB1()
        e("L_roleA:")
        self.roleA()
        e("L_fin:")
        if o.get("stamps"):
            self.stamp(15)
            e(f"s_mul_i32 s64, s2, 9\ns_add_u32 s64, s64, s30\ns_lshl_b32 s64, s64, 6\ns_add_u32 s64, s64, {TS}")
            e("v_lshlrev_b32 v6, 2, v1\nv_add_u32 v6, s64, v6")
            e("s_mov_b64 exec, 0xffff")
            e("global_store_dword v6, v127, s[26:27]")
        e("L_end:")
        e("s_endpgm")
        return e.text()

    def qwave(self):
        e = self.e; o = self.o; nt = o.get("kvflag", "nt")
        npf = 0
        self.masks(); self.consts()
        e(f"s_waitcnt vmcnt({18+npf})")
        self.stamp(1)
        e("v_mov_b32 v104, 0\nv_mov_b32 v105, 0\ns_mov_b32 s64, 0x3f803f80")
        for k in range(8):
            e(f"v_dot2_f32_bf16 v104, v{24+k}, s64, v104")
            e(f"v_dot2_f32_bf16 v105, v{24+k}, v{24+k}, v105")
        self.row_allreduce("v_add_f32", ["v104", "v105"])
        e("v_permlane16_swap_b32 v104, v105\nv_add_f32 v104, v104, v105\nv_mov_b32 v105, v104\nv_permlane32_swap_b32 v104, v105\nv_add_f32 v104, v104, v105")
        e("v_readlane_b32 s64, v104, 0\nv_readlane_b32 s65, v104, 16")
        self.ln_scalars("s64", "s65", "v104", "v105", "v106")
        e("v_and_b32 v6, 3, v1\nv_mul_u32_u24 v6, 48, v6\nv_lshrrev_b32 v12, 2, v1\nv_lshlrev_b32 v12, 1, v12\nv_add_u32 v6, v6, v12")
        for i, xv in enumerate(("v14", "v15")):
            e(f"v_lshlrev_b32 {xv}, 16, {xv}")
            self.ln_apply(xv, "v104", "v105", "v106", "v107", "v108")
        e(f"ds_write_b16 v6, v14 offset:{XT}")
        e("s_mov_b64 exec, 0xff")
        e(f"ds_write_b16 v6, v15 offset:{XT+32}")
        e("s_mov_b64 exec, -1")
        e("v_mul_u32_u24 v6, 48, v3")
        e("s_waitcnt lgkmcnt(0)")
        e(f"ds_read_b128 v[24:27], v6 offset:{XT}\nds_read_b128 v[28:31], v6 offset:{XT+16}\nds_read_b32 v11, v6 offset:{XT+32}")
        self.epoch()
        if o.get("diagQ"): self.stamp(9)
        e("s_mov_b32 s64, 0x01000100\ns_mov_b32 s65, 0x03020302")
        slots = [104, 108, 112, 116] + [128 + 4*k for k in range(9)] + [16, 20, 12]
        def prep(i, ab):
            src = f"v{24+i//2}" if i < 16 else "v11"
            e(f"v_perm_b32 v10, {src}, {src}, {'s64' if i%2==0 else 's65'}")
            for r in range(4): e(f"v_and_b32 v{ab+r}, v10, v{120+r}")
        def mm(i, ab):
            e(f"s_waitcnt vmcnt({17-i})")
            e(f"v_mfma_f32_16x16x32_bf16 v[164:167], v[{ab}:{ab+3}], v[{32+4*i}:{35+4*i}], {'0' if i==0 else 'v[164:167]'}")
        for i in range(16): prep(i, slots[i])
        if o.get("diagQ"):
            self.stamp(10)
            e("s_waitcnt vmcnt(0)"); self.stamp(11)
        mm(0, slots[0]); mm(1, slots[1])
        prep(16, slots[0]); prep(17, slots[1])
        for i in range(2, 16): mm(i, slots[i])
        mm(16, slots[0]); mm(17, slots[1])
        e(f"s_lshl_b32 s64, s28, 13\ns_lshl_b32 s65, s29, 9\ns_add_u32 s65, s65, s64\ns_add_u32 s65, s65, {H1}")
        e("v_lshlrev_b32 v6, 5, v2\nv_lshlrev_b32 v12, 4, v3\nv_add_u32 v6, v6, v12\nv_add_u32 v6, s65, v6")
        self.tagins(164)
        e("s_mov_b32 exec_lo, -1\ns_mov_b32 exec_hi, 0")
        self.dual_store("v6", "v[164:167]")
        e("s_mov_b64 exec, -1")
        self.stamp(2)
        self.mile("qpub")
        e("s_barrier")
        e(f"s_add_u32 s64, s64, {H1 + (FAST if o.get('fast', True) else 0)}\nv_add_u32 v6, s64, v8\nv_add_u32 v9, 4096, v6")
        if o.get("smemchk", False):
            regs = [64, 65] + list(range(67, 76)) + [88, 89, 92, 93, 94]
            e(f"s_lshl_b32 s33, s28, 13\ns_add_u32 s33, s33, {H1 + 508}\ns_add_u32 s34, s26, s33\ns_addc_u32 s35, s27, 0")
            e("s_lshr_b32 s33, s31, 24\ns_mov_b32 s66, 0")
            if o.get("h1sleep", 4): e(f"s_sleep {o.get('h1sleep', 4)}")
            e("L_smloop:")
            for k, r in enumerate(regs): e(f"s_load_dword s{r}, s[34:35], {512*k} glc")
            e("s_waitcnt lgkmcnt(0)")
            for k, r in enumerate(regs):
                e(f"s_xor_b32 s{r}, s{r}, s33")
                if k: e(f"s_or_b32 s64, s64, s{r}")
            e("s_and_b32 s64, s64, 0xff\ns_cbranch_scc0 L_smok")
            e("s_add_u32 s66, s66, 1\ns_cmp_gt_u32 s66, %d\ns_cbranch_scc1 L_smok" % o.get("maxspin", 20000))
            e("s_branch L_smloop")
            e("L_smok:")
            self.note(11, "s66")
        elif o.get("h1sleep", 34): e(f"s_sleep {o.get('h1sleep', 34)}")
        e("s_mov_b32 s66, 0")
        def h1loads(base):
            for i in range(8):
                e(f"global_load_dwordx4 v[{base+4*i}:{base+4*i+3}], {'v6' if i<4 else 'v9'}, s[26:27] offset:{(i%4)*1024} sc1")
        self.stamp(5)
        h1loads(32)
        self.stamp(6)
        gap = o.get("h1gap", 28)
        if gap:
            e(f"s_sleep {gap}")
            h1loads(64)
            e("s_waitcnt vmcnt(8)")
            self.validate([32+4*i for i in range(8)], "v100", "v101")
            e("s_cbranch_vccz L_h1ok")
            h1loads(128)
            e("s_waitcnt vmcnt(8)")
            self.validate([64+4*i for i in range(8)], "v100", "v101")
            e("s_cbranch_vccnz L_h1c")
            for k in range(32): e(f"v_mov_b32 v{32+k}, v{64+k}")
            e("s_branch L_h1ok")
            e("L_h1c:")
            e("s_waitcnt vmcnt(0)")
            for k in range(32): e(f"v_mov_b32 v{32+k}, v{128+k}")
        e("L_h1loop:")
        e("s_waitcnt vmcnt(0)")
        self.validate([32+4*i for i in range(8)], "v100", "v101")
        self.spin_fast("L_h1ok", "h1", 2, ["v6", "v9"])
        h1loads(32)
        e("s_branch L_h1loop")
        e("L_h1ok:")
        self.note(12, "s66")
        for k in range(32): e(f"v_and_b32 v{32+k}, 0xffffff00, v{32+k}")
        for i in range(0, 8, 2):
            for r in range(4): e(f"v_add_f32 v{32+4*i+r}, v{32+4*i+r}, v{36+4*i+r}")
        for i in (0, 4):
            for r in range(4): e(f"v_add_f32 v{32+4*i+r}, v{32+4*i+r}, v{40+4*i+r}")
        for r in range(4): e(f"v_add_f32 v{32+r}, v{32+r}, v{48+r}")
        e("v_cvt_pk_bf16_f32 v32, v32, v33\nv_cvt_pk_bf16_f32 v33, v34, v35")
        e("v_lshlrev_b32 v6, 3, v1")
        e(f"ds_write_b64 v6, v[32:33] offset:{QB}")
        e("v_mov_b32 v6, 0\nv_mov_b32 v12, 1")
        e("s_waitcnt lgkmcnt(0)")
        e(f"ds_write_b32 v6, v12 offset:{FL}")
        e("s_waitcnt lgkmcnt(0)")
        self.stamp(3)
        self.mile("qf")
        e("s_waitcnt vmcnt(0)")
        e("s_barrier")
        e("v_mov_b32 v6, 0")
        e(f"ds_read_b128 v[32:35], v6 offset:{MX}\nds_read_b128 v[36:39], v6 offset:{MX+16}\nds_read_b128 v[40:43], v6 offset:{LS}\nds_read_b128 v[44:47], v6 offset:{LS+16}")
        e("s_waitcnt lgkmcnt(0)")
        for h in range(2):
            m = 32 + 4*h; l = 40 + 4*h; M = 16 + 2*h; L = 17 + 2*h
            e(f"v_max3_f32 v{M}, v{m}, v{m+1}, v{m+2}\nv_max_f32 v{M}, v{M}, v{m+3}")
            for k in range(4): e(f"v_sub_f32 v{m+k}, v{m+k}, v{M}")
            for k in range(4): e(f"v_mul_f32 v{m+k}, 0x3fb8aa3b, v{m+k}")
            for k in range(4): e(f"v_exp_f32 v{m+k}, v{m+k}")
            e(f"v_mul_f32 v{L}, v{m}, v{l}")
            for k in range(1, 4): e(f"v_fma_f32 v{L}, v{m+k}, v{l+k}, v{L}")
        self.tagins(16)
        e(f"s_mul_i32 s67, s28, 18432\ns_mul_i32 s64, s29, 1152\ns_add_u32 s67, s67, s64\ns_add_u32 s67, s67, {H2+1024}\nv_mov_b32 v6, s67")
        e(f"s_lshl_b32 s64, s28, 8\ns_lshl_b32 s65, s29, 4\ns_add_u32 s64, s64, s65\ns_add_u32 s64, s64, {STF}\nv_mov_b32 v12, s64")
        e("s_mov_b64 exec, 1")
        self.dual_store("v6", "v[16:19]", "v12")
        e("s_mov_b64 exec, -1")
        e(f"v_mov_b32 v6, 0\nv_mov_b32 v12, 1\nds_write_b32 v6, v12 offset:{FL+12}")
        self.stamp(4)
    def common_setup(self):
        e = self.e; o = self.o
        e("s_load_dword s31, s[26:27], 0")
        self.dma_srds()
        if o.get("amp"):
            self.uid += 1
            e(f"s_cmp_eq_u32 s30, 0\ns_cbranch_scc0 L_amp{self.uid}")
            e(f"s_lshl_b32 s92, s2, 2\ns_add_u32 s92, s92, {0x300000}\nv_mov_b32 v124, s94\nv_mov_b32 v125, s92")
            e("s_mov_b64 exec, 1\nglobal_store_dword v125, v124, s[26:27] sc1\nglobal_store_dword v125, v124, s[26:27] offset:1024 sc1\ns_mov_b64 exec, -1")
            e(f"L_amp{self.uid}:")
    def dma_srds(self):
        e = self.e
        e("s_mov_b32 s52, s12\ns_mov_b32 s53, s13\ns_mov_b32 s54, %d\ns_mov_b32 s55, 0x20000" % (4096*1152))
        e(f"s_mov_b32 s76, s16\ns_mov_b32 s77, s17\ns_mov_b32 s78, {576*9216}\ns_mov_b32 s79, 0x20000")
        e(f"s_mov_b32 s80, s18\ns_mov_b32 s81, s19\ns_mov_b32 s82, {576*9216}\ns_mov_b32 s83, 0x20000")
        e(f"s_mov_b32 s84, s20\ns_mov_b32 s85, s21\ns_mov_b32 s86, {4608*1152}\ns_mov_b32 s87, 0x20000")
    def weights_prefetch(self):
        e = self.e; fl = self.o.get("pfflag", ""); which = self.o.get("pfw", "og")
        d = "v[112:115]"
        def contig(srd, xbytes, jbytes, vbytes):
            e(f"s_and_b32 s64, s2, 7\ns_mul_i32 s64, s64, {xbytes}\ns_lshr_b32 s65, s2, 3\ns_mul_i32 s65, s65, {jbytes}\ns_add_u32 s64, s64, s65")
            e(f"s_and_b32 s65, s30, 3\ns_mul_i32 s65, s65, {vbytes}\ns_add_u32 s64, s64, s65")
            off = 0
            while off < vbytes:
                rem = vbytes - off
                if off and off % 4096 == 0: e("s_add_u32 s64, s64, 4096")
                if rem < 1024:
                    lanes = rem // 16
                    e(f"s_mov_b64 exec, {hex((1 << lanes) - 1)}") if lanes <= 31 else e(f"s_mov_b32 exec_lo, -1\ns_mov_b32 exec_hi, {hex((1 << (lanes-32)) - 1)}")
                e(f"buffer_load_dwordx4 {d}, v8, {srd}, s64 offen offset:{off % 4096} {fl}")
                if rem < 1024: e("s_mov_b64 exec, -1")
                off += 1024
        if "o" in which: contig("s[52:55]", 589824, 18432, 4608)
        if "g" in which or "u" in which:
            e("s_lshr_b32 s64, s2, 3\ns_mul_i32 s64, s64, 18\ns_and_b32 s65, s30, 3\ns_add_u32 s73, s64, s65\ns_add_u32 s74, s64, 17")
            e("s_and_b32 s65, s2, 7\ns_mul_i32 s75, s65, 1152")
            e("v_lshrrev_b32 v100, 3, v1\nv_lshlrev_b32 v100, 2, v100\nv_add_u32 v100, s73, v100\nv_min_u32 v100, s74, v100\nv_mul_u32_u24 v100, 9216, v100")
            e("v_and_b32 v101, 7, v1\nv_lshlrev_b32 v101, 4, v101\nv_add_u32 v100, v100, v101\nv_add_u32 v100, 1024, v100")
            for key, srd in (("g", "s[76:79]"), ("u", "s[80:83]")):
                if key not in which: continue
                for k in range(5):
                    if k == 4: e("s_and_b32 s65, s30, 3\ns_cmp_lt_u32 s65, 2\ns_cbranch_scc0 L_pfk" + key)
                    e(f"s_add_u32 s64, s73, {4*k}\ns_mul_i32 s64, s64, 9216\ns_add_u32 s64, s64, s75")
                    e(f"buffer_load_dwordx4 {d}, v8, {srd}, s64 offen {fl}")
                e(f"L_pfk{key}:")
                e("s_mov_b32 exec_lo, -1\ns_mov_b32 exec_hi, 0xff")
                e(f"buffer_load_dwordx4 {d}, v100, {srd}, s75 offen {fl}")
                e("s_mov_b64 exec, -1")
        if "d" in which: contig("s[84:87]", 663552, 20736, 5184)
    def wait_pub(self, tag, off=8):
        e = self.e
        e(f"v_mov_b32 v6, 0\ns_mov_b32 s66, 0")
        e(f"L_{tag}loop:")
        e(f"ds_read_b32 v12, v6 offset:{FL+off}\ns_waitcnt lgkmcnt(0)\nv_cmp_ne_u32 vcc, 1, v12")
        self.spin_tail(f"L_{tag}ok", f"L_{tag}loop", 2)
        e(f"s_branch L_{tag}loop")
        e(f"L_{tag}ok:")
    def wo_dma(self, early):
        e = self.e
        e("s_and_b32 s64, s30, 3\ns_lshl_b32 s64, s64, 1")
        e("s_lshl_b32 s72, s28, 8\ns_lshl_b32 s65, s64, 5\ns_add_u32 s72, s72, s65\ns_mul_i32 s72, s72, 1152")
        e("s_sub_u32 s65, s29, 9\ns_mul_i32 s65, s65, 192\ns_add_u32 s72, s72, s65")
        e(f"s_mul_i32 s71, s64, 6144\ns_add_u32 s71, s71, {WB}")
        for i in range(3):
            e(f"v_add_u32 v100, {64*i}, v1\nv_mul_u32_u24 v101, 5462, v100\nv_lshrrev_b32 v101, 16, v101")
            e("v_mul_u32_u24 v102, 12, v101\nv_sub_u32 v102, v100, v102")
            e("v_bfe_u32 v103, v101, 3, 1\nv_lshlrev_b32 v103, 1, v103\nv_xor_b32 v102, v102, v103\nv_lshlrev_b32 v102, 4, v102")
            e(f"v_mul_u32_u24 v101, 1152, v101\nv_add_u32 v{104+i}, v101, v102")
        n = 0
        for blk in range(4):
            for i in range(3):
                if n == early: self.wait_pub("wo")
                e("s_mov_b32 m0, s71\ns_add_u32 s71, s71, 1024")
                e(f"buffer_load_dwordx4 v{104+i}, s[52:55], s72 offen {self.o.get('wodmaflag', 'nt')} lds")
                n += 1
            if blk < 3: e(f"s_add_u32 s72, s72, {16*1152}")
    def wgu_dma(self, early):
        e = self.e; o = self.o
        lateU = "u" not in o.get("pfw", "og")
        e("s_mul_i32 s32, s28, 9\ns_add_u32 s32, s32, s29")
        e("v_lshrrev_b32 v10, 2, v1\nv_mul_u32_u24 v10, 9216, v10\nv_and_b32 v12, 3, v1\nv_lshrrev_b32 v11, 5, v1\nv_lshlrev_b32 v11, 1, v11\nv_xor_b32 v12, v12, v11\nv_lshlrev_b32 v12, 4, v12\nv_add_u32 v10, v10, v12")
        e(f"s_and_b32 s64, s30, 3\ns_mul_i32 s65, s64, {16*9216}\ns_lshl_b32 s68, s32, 6\ns_add_u32 s68, s68, s65")
        e(f"s_lshl_b32 s69, s64, 10\ns_add_u32 s69, s69, {WB}")
        e("v_lshrrev_b32 v14, 3, v1\nv_mul_u32_u24 v14, 1152, v14\nv_and_b32 v12, 7, v1\nv_bfe_u32 v11, v1, 4, 1\nv_lshlrev_b32 v11, 1, v11\nv_xor_b32 v12, v12, v11")
        e("s_and_b32 s65, s64, 1\ns_lshl_b32 s65, s65, 2\nv_xor_b32 v12, s65, v12\nv_lshlrev_b32 v12, 4, v12\nv_add_u32 v14, v14, v12")
        e(f"s_mul_i32 s75, s32, 36864\ns_mul_i32 s65, s64, {8*1152}\ns_add_u32 s75, s75, s65")
        ops = []
        def narrow(m, srd):
            ops.append(("pre", f"s_mov_b32 s64, s68\ns_add_u32 s65, s69, {36864*m}"))
            for w in range(9):
                ops.append(("ld", "s_mov_b32 m0, s65\ns_add_u32 s65, s65, 4096\n" + f"buffer_load_dwordx4 v10, {srd}, s64 offen nt lds" + (f"\ns_add_u32 s64, s64, {64*9216}" if w < 8 else "")))
        def wd():
            ops.append(("pre", f"s_add_u32 s65, s69, {2*36864}\ns_mov_b32 s64, s75"))
            for w in range(9):
                ops.append(("ld", "s_mov_b32 m0, s65\ns_add_u32 s65, s65, 4096\n" + "buffer_load_dwordx4 v14, s[84:87], s64 offen nt lds" + ("\ns_add_u32 s64, s64, 128" if w < 8 else "")))
        def pfM(srd, first):
            if first:
                ops.append(("pre", "s_and_b32 s64, s28, 1\ns_mul_i32 s64, s64, 9\ns_add_u32 s64, s64, s29\ns_lshl_b32 s64, s64, 5\ns_and_b32 s65, s30, 3\ns_lshl_b32 s65, s65, 3\ns_add_u32 s64, s64, s65\n"
                            "s_mul_i32 s64, s64, 9216\ns_lshr_b32 s65, s28, 1\ns_mul_i32 s65, s65, 1152\ns_add_u32 s33, s64, s65\n"
                            "v_lshrrev_b32 v100, 3, v1\nv_mul_u32_u24 v100, 9216, v100\nv_and_b32 v101, 7, v1\nv_lshlrev_b32 v101, 4, v101\nv_add_u32 v100, v100, v101\nv_add_u32 v100, 1024, v100"))
            ops.append(("pre", "s_mov_b32 s64, s33"))
            for k in range(8):
                ops.append(("ld", f"buffer_load_dwordx4 v[112:115], v8, {srd}, s64 offen" + ("\ns_add_u32 s64, s64, 9216" if k < 7 else "")))
            ops.append(("ld", f"buffer_load_dwordx4 v[112:115], v100, {srd}, s33 offen"))
        wdfirst = o.get("wdfirst", False)
        lateG = "g" not in o.get("pfw", "og")
        if lateG:
            pfM("s[76:79]", True); pfM("s[80:83]", False)
            ops.append(("pre", "s_waitcnt vmcnt(9)")); narrow(0, "s[76:79]")
            ops.append(("pre", "s_waitcnt vmcnt(9)")); narrow(1, "s[80:83]"); wd()
        elif lateU and o.get("udirect"):
            narrow(1, "s[80:83]"); narrow(0, "s[76:79]"); wd()
        elif lateU:
            pfM("s[80:83]", True); narrow(0, "s[76:79]"); ops.append(("pre", "s_waitcnt vmcnt(9)")); narrow(1, "s[80:83]"); wd()
        elif wdfirst:
            wd(); narrow(0, "s[76:79]"); narrow(1, "s[80:83]")
        else:
            narrow(0, "s[76:79]"); narrow(1, "s[80:83]"); wd()
        n = 0
        for kind, txt in ops:
            if kind == "ld":
                if n == early:
                    e("s_mov_b32 s73, s64\ns_mov_b32 s74, s65")
                    self.wait_pub("wg")
                    e("s_mov_b32 s64, s73\ns_mov_b32 s65, s74")
                n += 1
            e(txt)

    def roleB1(self):
        e = self.e; o = self.o
        e(f"s_mul_i32 s64, s28, 18432\ns_add_u32 s64, s64, {H2}")
        e("s_cmp_eq_u32 s30, 8\ns_cbranch_scc0 L_b1w")
        e("v_mul_u32_u24 v9, 1152, v2\nv_add_u32 v9, s64, v9\nv_add_u32 v9, 1024, v9")
        if o.get("fast", True): e(f"s_lshl_b32 s65, s28, 8\ns_add_u32 s65, s65, {STF}\nv_lshlrev_b32 v6, 4, v2\nv_add_u32 v6, s65, v6")
        else: e("v_mov_b32 v6, v9")
        if o.get("st2sleep", 2): e(f"s_sleep {o.get('st2sleep', 2)}")
        e("s_mov_b32 s66, 0")
        e("L_stloop:")
        e("global_load_dwordx4 v[72:75], v6, s[26:27] sc1\ns_waitcnt vmcnt(0)")
        self.validate([72], "v100", "v101")
        self.spin_fast("L_stok", "st", 2, switch="v_mov_b32 v6, v9")
        e("s_branch L_stloop")
        e("L_stok:")
        e("v_and_b32 v12, 1, v3\nv_cmp_eq_u32 vcc, 1, v12\nv_cndmask_b32 v72, v72, v74, vcc\nv_cndmask_b32 v73, v73, v75, vcc")
        e("v_and_b32 v72, 0xffffff00, v72\nv_and_b32 v73, 0xffffff00, v73")
        e("v_mov_b32 v76, v72")
        self.row_allreduce("v_max_f32", ["v76"])
        e("v_sub_f32 v72, v72, v76\nv_mul_f32 v72, 0x3fb8aa3b, v72\nv_exp_f32 v72, v72")
        e("v_mul_f32 v73, v72, v73")
        self.row_allreduce("v_add_f32", ["v73"])
        e("v_rcp_f32 v73, v73")
        e("v_mul_f32 v72, v72, v73")
        e("v_lshlrev_b32 v6, 2, v1")
        e("s_mov_b32 exec_lo, -1\ns_mov_b32 exec_hi, 0")
        e(f"ds_write_b32 v6, v72 offset:{SC}")
        e("s_mov_b64 exec, -1")
        e("s_setprio 0")
        e("s_waitcnt lgkmcnt(0)")
        self.stamp(13)
        e("s_barrier")
        e("s_branch L_b1w8")
        e("L_b1w:")
        e("v_mul_u32_u24 v15, 1152, v2\nv_add_u32 v15, s64, v15")
        e("v_lshlrev_b32 v12, 5, v3\ns_lshl_b32 s65, s30, 7\nv_add_u32 v12, s65, v12\nv_add_u32 v15, v15, v12")
        if o.get("fast", True):
            e(f"s_lshl_b32 s64, s28, 14\ns_lshl_b32 s65, s30, 11\ns_add_u32 s64, s64, s65\ns_add_u32 s64, s64, {H2F}\nv_add_u32 v6, s64, v8\nv_add_u32 v14, 1024, v6")
        else: e("v_mov_b32 v6, v15\nv_add_u32 v14, 16, v15")
        def h2loads():
            e("global_load_dwordx4 v[64:67], v6, s[26:27] sc1\nglobal_load_dwordx4 v[68:71], v14, s[26:27] sc1")
        e("v_lshlrev_b32 v10, 3, v3\nv_bfe_u32 v12, v1, 2, 2\nv_add_u32 v10, v10, v12\nv_mul_u32_u24 v10, 192, v10\nv_and_b32 v12, 3, v1\nv_lshlrev_b32 v12, 3, v12\nv_add_u32 v10, v10, v12")
        e(f"s_mul_i32 s65, s30, 6144\ns_add_u32 s65, s65, {WB}\nv_add_u32 v10, s65, v10")
        e("v_and_b32 v12, 1, v3\nv_lshlrev_b32 v12, 5, v12\nv_add_u32 v11, v10, v12\nv_sub_u32 v10, v10, v12")
        e("s_lshr_b32 s65, s30, 2\ns_lshl_b32 s65, s65, 6\nv_lshlrev_b32 v9, 2, v2\nv_add_u32 v9, s65, v9")
        e(f"v_lshlrev_b32 v13, 4, v3\ns_mul_i32 s65, s30, 384\nv_add_u32 v13, s65, v13")
        self.stamp(5)
        e("s_waitcnt vmcnt(0)")
        e("s_barrier")
        self.stamp(8)
        e(f"ds_read_b32 v72, v9 offset:{SC}")
        for tau in range(6):
            a = "v11" if tau % 2 == 0 else "v10"
            e(f"ds_read_b64_tr_b16 v[{32+4*tau}:{33+4*tau}], {a} offset:{32*tau}")
            e(f"ds_read_b64_tr_b16 v[{34+4*tau}:{35+4*tau}], {a} offset:{32*tau + 768}")
        if o.get("h2sleep", 0): e(f"s_sleep {o.get('h2sleep', 0)}")
        e("s_mov_b32 s66, 0")
        h2loads()
        e("L_h2loop:")
        e("s_waitcnt vmcnt(0)")
        self.validate([64, 68], "v100", "v101")
        self.spin_fast("L_h2ok", "h2", o.get("h2retry", 0), switch="v_mov_b32 v6, v15\nv_add_u32 v14, 16, v15")
        h2loads()
        e("s_branch L_h2loop")
        e("L_h2ok:")
        self.note(13, "s66")
        self.stamp(9)
        e("s_waitcnt lgkmcnt(0)")
        for k in range(8): e(f"v_mul_f32 v{64+k}, v72, v{64+k}")
        self.row_allreduce("v_add_f32", [f"v{64+k}" for k in range(8)])
        for k in range(4): e(f"v_cvt_pk_bf16_f32 v{76+k}, v{64+2*k}, v{65+2*k}")
        e("s_waitcnt lgkmcnt(0)")
        for tau in range(6):
            e(f"v_mfma_f32_16x16x32_bf16 v[{80+4*tau}:{83+4*tau}], v[{32+4*tau}:{35+4*tau}], v[76:79], 0")
        e("s_mov_b32 s64, 0x00010001\ns_mov_b32 s65, 0x00010001\ns_mov_b64 exec, s[64:65]")
        for tau in range(6):
            e(f"ds_write_b128 v13, v[{80+4*tau}:{83+4*tau}] offset:{WR + 64*tau}")
        e("s_mov_b64 exec, -1")
        e("L_b1w8:")
        e("s_waitcnt lgkmcnt(0)\ns_barrier")
        e("s_cmp_lt_u32 s30, 3\ns_cbranch_scc0 L_b1pubdone")
        e("v_and_b32 v6, 7, v1\nv_lshlrev_b32 v6, 4, v6\nv_lshrrev_b32 v12, 3, v1\nv_mul_u32_u24 v12, 384, v12\nv_add_u32 v6, v6, v12\ns_lshl_b32 s64, s30, 7\nv_add_u32 v6, s64, v6")
        e(f"ds_read_b128 v[16:19], v6 offset:{WR}")
        rep = o.get("h3rep", True)
        e(f"s_mul_i32 s64, s28, 2304\ns_sub_u32 s65, s29, 9\ns_mul_i32 s65, s65, 384\ns_add_u32 s64, s64, s65\ns_lshl_b32 s65, s30, 7\ns_add_u32 s64, s64, s65\ns_add_u32 s64, s64, {H3R if rep else H3}")
        e("v_and_b32 v6, 7, v1\nv_lshlrev_b32 v6, 4, v6\nv_add_u32 v6, s64, v6")
        if rep: e(f"v_lshrrev_b32 v12, 3, v1\nv_mul_u32_u24 v12, {0x9000}, v12\nv_add_u32 v6, v6, v12")
        e("s_waitcnt lgkmcnt(0)")
        self.reduce_stride8(16, 20)
        self.tagins(16)
        if not rep: e("s_mov_b64 exec, 0xff")
        e("global_store_dwordx4 v6, v[16:19], s[26:27] sc1")
        e("s_mov_b64 exec, -1")
        e("L_b1pubdone:")
        self.mile("b1pub", 0)
        self.stamp(10)
        e("s_sub_u32 s32, s29, 9\ns_cmp_lt_u32 s32, 2\ns_cbranch_scc0 L_rho2\ns_lshl_b32 s64, s28, 1\ns_add_u32 s32, s32, s64\ns_branch L_reducer")
        e("L_rho2:\ns_cmp_eq_u32 s32, 2\ns_cbranch_scc0 L_fin\ns_cmp_lt_u32 s28, 4\ns_cbranch_scc0 L_fin\ns_add_u32 s32, s28, 32")
        e("L_reducer:")
        e("s_cmp_eq_u32 s30, 0\ns_cbranch_scc0 L_redh4")
        e(f"v_lshrrev_b32 v6, 2, v1\nv_mul_u32_u24 v6, 2304, v6\nv_and_b32 v12, 3, v1\nv_lshlrev_b32 v12, 4, v12\nv_add_u32 v6, v6, v12\ns_lshl_b32 s64, s32, 6\ns_add_u32 s64, s64, {H3R if rep else H3}\nv_add_u32 v6, s64, v6")
        if rep: e(f"s_and_b32 s64, s2, 7\ns_mul_i32 s64, s64, {0x9000}\nv_add_u32 v6, s64, v6")
        e("v_and_b32 v12, 3, v1\nv_lshl_add_u32 v12, v12, 2, v3\ns_lshl_b32 s64, s32, 4\nv_add_lshl_u32 v13, s64, v12, 1")
        e("buffer_load_ushort v40, v13, s[36:39], 0 offen")
        if o.get("rh3sleep", 8): e(f"s_sleep {o.get('rh3sleep', 8)}")
        e("s_mov_b32 s66, 0")
        e("L_rh3loop:")
        e("global_load_dwordx4 v[32:35], v6, s[26:27] sc1\ns_waitcnt vmcnt(0)")
        self.validate([32], "v100", "v101")
        self.spin_tail("L_rh3ok", "L_rh3loop", 4)
        e("s_branch L_rh3loop")
        e("L_rh3ok:")
        for st in (8, 4):
            for r in range(4): e(f"v_add_f32_dpp v{32+r}, v{32+r}, v{32+r} row_ror:{st} row_mask:0xf bank_mask:0xf")
        self.xrow_transpose_reduce(32)
        self.Rnd("v32", "v32")
        e("v_lshlrev_b32 v40, 16, v40\nv_add_f32 v32, v40, v32")
        self.Rnd("v32", "v32")
        e("v_lshlrev_b32 v12, 2, v12\ns_mov_b32 s64, 0x000f000f\ns_mov_b32 s65, 0x000f000f\ns_mov_b64 exec, s[64:65]")
        e(f"ds_write_b32 v12, v32 offset:{FR+640}")
        e("s_mov_b64 exec, -1\ns_waitcnt lgkmcnt(0)")
        e("L_redh4:")
        e("s_barrier")
        self.stamp(12)
        e(f"v_lshrrev_b32 v6, 2, v0\nv_mul_u32_u24 v6, 2304, v6\nv_and_b32 v12, 3, v0\nv_lshlrev_b32 v12, 4, v12\nv_add_u32 v6, v6, v12\ns_lshl_b32 s64, s32, 6\ns_add_u32 s64, s64, {H4}\nv_add_u32 v6, s64, v6")
        e("v_and_b32 v12, 3, v1\nv_lshl_add_u32 v12, v12, 2, v3\nv_lshlrev_b32 v13, 2, v12\ns_lshl_b32 s64, s30, 6\nv_add_u32 v13, s64, v13")
        e("v_lshlrev_b32 v14, 2, v2\nv_lshl_add_u32 v14, v3, 6, v14")
        e("s_lshl_b32 s64, s32, 4\nv_add_lshl_u32 v15, s64, v2, 1")
        e("s_mov_b32 s52, s22\ns_mov_b32 s53, s23\ns_movk_i32 s54, 1152\ns_mov_b32 s55, 0x20000")
        e("s_mov_b32 s70, 0x000f000f\ns_mov_b32 s71, 0x000f000f\nv_mov_b32 v42, 0")
        for k in range(o.get("h4sleepN", 1)): e(f"s_sleep {o.get('h4sleep', 40)}")
        e("s_mov_b32 s66, 0")
        e("L_h4loop:")
        e("global_load_dwordx4 v[32:35], v6, s[26:27] sc1\ns_waitcnt vmcnt(0)")
        self.validate([32], "v100", "v101")
        self.spin_tail("L_h4ok", "L_h4loop", o.get("h4retry", 4))
        e("s_branch L_h4loop")
        e("L_h4ok:")
        self.mile("h4ok", 0)
        self.note(14, "s66")
        self.stamp(11)
        for st in (8, 4):
            for r in range(4): e(f"v_add_f32_dpp v{32+r}, v{32+r}, v{32+r} row_ror:{st} row_mask:0xf bank_mask:0xf")
        self.xrow_transpose_reduce(32)
        e("s_mov_b64 exec, s[70:71]")
        e(f"ds_write_b32 v13, v32 offset:{FR}")
        e("s_mov_b64 exec, -1")
        e("s_waitcnt lgkmcnt(0)\ns_barrier")
        e("s_cmp_eq_u32 s30, 0\ns_cbranch_scc0 L_fin")
        e(f"ds_read_b32 v40, v14 offset:{FR}\nds_read_b32 v41, v14 offset:{FR+256}")
        e("s_mov_b64 exec, 0xffff")
        e(f"ds_read_b32 v42, v14 offset:{FR+512}\nds_read_b32 v43, v14 offset:{FR+640}")
        e("s_mov_b64 exec, -1")
        e("s_waitcnt lgkmcnt(0)")
        e("v_add_f32 v40, v40, v41\nv_add_f32 v40, v40, v42\nv_mov_b32 v41, v40")
        e("v_permlane16_swap_b32 v40, v41\nv_add_f32 v40, v40, v41\nv_mov_b32 v41, v40\nv_permlane32_swap_b32 v40, v41\nv_add_f32 v40, v40, v41")
        self.Rnd("v40", "v40")
        e("v_add_f32 v40, v43, v40\nv_cvt_pk_bf16_f32 v40, v40, v40")
        e("s_mov_b64 exec, 0xffff")
        e("buffer_store_short v40, v15, s[52:55], 0 offen")
        e("s_mov_b64 exec, -1")
        e("s_cmp_eq_u32 s32, 0\ns_cbranch_scc0 L_fin")
        e("v_mov_b32 v6, 0\ns_mov_b64 exec, 1\nglobal_store_dword v6, v7, s[26:27] sc1\ns_mov_b64 exec, -1")
        if o.get("amp"):
            e(f"s_memrealtime s[92:93]\nv_lshlrev_b32 v6, 4, v1\nv_add_u32 v6, {0x300000}, v6")
            e("global_load_dwordx4 v[32:35], v6, s[26:27] sc1\nglobal_load_dwordx4 v[36:39], v6, s[26:27] offset:1024 sc1\ns_waitcnt vmcnt(0) lgkmcnt(0)")
            for k in range(8): e(f"v_subrev_u32 v{32+k}, s92, v{32+k}")
            e("v_min_i32 v32, v32, v33\nv_min_i32 v34, v34, v35\nv_min_i32 v32, v32, v34\nv_max_i32 v36, v36, v37\nv_max_i32 v38, v38, v39\nv_max_i32 v36, v36, v38")
            for st in (8, 4, 2, 1):
                e(f"v_min_i32_dpp v32, v32, v32 row_ror:{st} row_mask:0xf bank_mask:0xf\nv_max_i32_dpp v36, v36, v36 row_ror:{st} row_mask:0xf bank_mask:0xf")
            e("s_nop 4")
            for q in range(4): e(f"v_readlane_b32 s{40+q}, v32, {16*q}\nv_readlane_b32 s{44+q}, v36, {16*q}")
            e("s_nop 4\ns_min_i32 s40, s40, s41\ns_min_i32 s42, s42, s43\ns_min_i32 s40, s40, s42\ns_max_i32 s44, s44, s45\ns_max_i32 s46, s46, s47\ns_max_i32 s44, s44, s46")
            if o["amp"] == "tot": e("s_sub_u32 s65, 0, s40")
            else: e("s_sub_u32 s65, s44, s40")
            e(f"s_min_u32 s65, s65, 5000\ns_mul_i32 s65, s65, {o.get('ampk', 2)}\ns_add_u32 s65, s65, s92")
            e("L_ampspin:\ns_memrealtime s[66:67]\ns_waitcnt lgkmcnt(0)\ns_sub_u32 s66, s66, s65\ns_cmp_lt_i32 s66, 0\ns_cbranch_scc1 L_ampspin")
        e("s_branch L_fin")

    def roleA(self):
        e = self.e; o = self.o
        e("s_setprio 0")
        e("s_mul_i32 s32, s28, 9\ns_add_u32 s32, s32, s29")
        e(f"s_lshl_b32 s69, s30, 12\ns_add_u32 s69, s69, {WB}")
        e("v_lshlrev_b32 v4, 2, v2\nv_add_u32 v4, v4, v3")
        e("s_lshl_b32 s34, s30, 6\nv_add_u32 v10, s34, v4\nv_lshlrev_b32 v10, 1, v10")
        e("buffer_load_ushort v126, v10, s[36:39], 0 offen")
        e(f"v_mov_b32 v12, 0x3f803f80\nv_lshlrev_b32 v10, 2, v1\ns_mov_b32 exec_lo, -1\ns_mov_b32 exec_hi, 0\nds_write_b32 v10, v12 offset:{ONES}\ns_mov_b64 exec, -1")
        e(f"v_mul_u32_u24 v128, 2304, v3\nv_lshlrev_b32 v12, 4, v2\nv_add_u32 v128, v128, v12\ns_lshl_b32 s64, s30, 8\ns_add_u32 s64, s64, {H3R if o.get('h3rep', True) else H3}\nv_add_u32 v128, s64, v128")
        if o.get("h3rep", True): e(f"s_and_b32 s64, s2, 7\ns_mul_i32 s64, s64, {0x9000}\nv_add_u32 v128, s64, v128")
        e("v_add_u32 v129, 9216, v128\nv_add_u32 v130, 18432, v128\nv_add_u32 v131, 27648, v128")
        e(f"s_lshl_b32 s64, s30, 7\ns_add_u32 s64, s64, {HNL}\nv_lshlrev_b32 v132, 1, v4\nv_add_u32 v132, s64, v132")
        e(f"v_lshlrev_b32 v133, 4, v3\nv_add_u32 v12, s64, v133\nv_add_u32 v133, {ONES}, v133\nv_cmp_eq_u32 vcc, 1, v2\nv_cndmask_b32 v133, v12, v133, vcc")
        e(f"s_lshl_b32 s64, s30, 9\ns_add_u32 s64, s64, {MR}\nv_lshlrev_b32 v134, 4, v3\nv_lshlrev_b32 v12, 8, v2\nv_add_u32 v134, v134, v12\nv_add_u32 v134, s64, v134")
        e(f"v_lshlrev_b32 v135, 4, v2\nv_lshlrev_b32 v12, 9, v3\nv_add_u32 v135, v135, v12\nv_add_u32 v135, {MR}, v135")
        e(f"s_lshl_b32 s64, s30, 6\ns_add_u32 s64, s64, {HHL}\nv_lshlrev_b32 v136, 1, v4\nv_add_u32 v136, s64, v136\nv_lshlrev_b32 v137, 4, v3\nv_add_u32 v137, s64, v137")
        e(f"s_mul_i32 s64, s32, 2304\ns_lshl_b32 s65, s30, 8\ns_add_u32 s64, s64, s65\ns_add_u32 s64, s64, {H4}")
        e("v_bfe_u32 v138, v1, 2, 2\nv_lshlrev_b32 v138, 6, v138\nv_lshlrev_b32 v12, 4, v3\nv_add_u32 v138, v138, v12\nv_add_u32 v138, s64, v138")
        e(f"v_lshlrev_b32 v140, 2, v1\nv_add_u32 v140, {ST2}, v140\ns_lshl_b32 s64, s30, 2\nv_add_u32 v139, s64, v140")
        e("v_lshlrev_b32 v10, 3, v3\nv_bfe_u32 v12, v1, 2, 2\nv_add_u32 v5, v10, v12\nv_lshlrev_b32 v10, 6, v5\nv_and_b32 v12, 3, v1\nv_lshlrev_b32 v12, 3, v12\nv_add_u32 v10, v10, v12\nv_add_u32 v10, s69, v10")
        e("v_lshlrev_b32 v13, 7, v5\nv_add_u32 v13, v13, v12")
        e("v_and_b32 v12, 1, v3\nv_lshlrev_b32 v12, 5, v12\nv_add_u32 v11, v10, v12\nv_xor_b32 v12, 32, v12\nv_add_u32 v10, v10, v12")
        e("v_bfe_u32 v12, v1, 3, 1\nv_and_b32 v5, 1, v3\nv_lshlrev_b32 v5, 1, v5\nv_or_b32 v12, v12, v5\nv_lshlrev_b32 v12, 5, v12\nv_add_u32 v13, v13, v12")
        e(f"s_add_u32 s65, s69, {2*36864}\nv_add_u32 v13, s65, v13")
        for r in range(8): e(f"v_mov_b32 v{144+r}, 0")
        e("v_mov_b32 v152, 0\nv_mov_b32 v153, 0x3ae38e39")
        e("s_mov_b32 s52, 0x00030003\ns_mov_b32 s53, 0x00030003\ns_mov_b32 s54, 0x00ff00ff\ns_mov_b32 s55, 0x00ff00ff\ns_mov_b32 s70, 0x11111111\ns_mov_b32 s71, 0x11111111")
        self.stamp(8)
        e("s_cmp_ge_u32 s30, 4\ns_cbranch_scc0 L_aw0\ns_cmp_lt_u32 s30, 8\ns_cbranch_scc0 L_aw0\ns_waitcnt vmcnt(%d)\ns_branch L_aw1\nL_aw0:\ns_waitcnt vmcnt(0)\nL_aw1:" % (1 if (o.get("wdfirst", False) and "u" in o.get("pfw", "og")) else 9))
        e("s_waitcnt lgkmcnt(0)\ns_barrier")
        def trw(m):
            lo = 36864*m
            for s in range(2):
                for tau in range(2):
                    fr = 32 + 16*m + 8*s + 4*tau
                    a = "v11" if tau == 0 else "v10"
                    off = lo + 2048*s
                    e(f"ds_read_b64_tr_b16 v[{fr}:{fr+1}], {a} offset:{off}")
                    e(f"ds_read_b64_tr_b16 v[{fr+2}:{fr+3}], {a} offset:{off+256}")
        trw(0)
        if o.get("h3sleep", 0): e(f"s_sleep {o['h3sleep']}")
        for i in range(4): e(f"global_load_dwordx4 v[{80+4*i}:{83+4*i}], v{128+i}, s[26:27] sc1")
        e("s_waitcnt lgkmcnt(0)")
        trw(1)
        e("s_mov_b32 s66, 0")
        e("L_h3loop:")
        e("s_waitcnt vmcnt(0)")
        for i in range(4):
            gb = 80 + 4*i
            e(f"v_perm_b32 v100, v{gb+1}, v{gb}, s62\nv_perm_b32 v101, v{gb+3}, v{gb+2}, s63\nv_or_b32 v100, v100, v101")
            e(f"v_cmp_ne_u32 s[{40+2*i}:{41+2*i}], v100, v7")
        e("s_or_b64 s[48:49], s[40:41], s[42:43]\ns_or_b64 s[50:51], s[44:45], s[46:47]\ns_or_b64 s[48:49], s[48:49], s[50:51]")
        e("s_cbranch_scc0 L_h3ok")
        e("s_add_u32 s66, s66, 1\ns_cmp_gt_u32 s66, %d\ns_cbranch_scc1 L_h3ok" % o.get("maxspin", 20000))
        if o.get("h3retry", 1): e(f"s_sleep {o.get('h3retry', 1)}")
        for i in range(4):
            e(f"s_mov_b64 exec, s[{40+2*i}:{41+2*i}]\ns_cbranch_execz L_h3s{i}")
            e(f"global_load_dwordx4 v[{80+4*i}:{83+4*i}], v{128+i}, s[26:27] sc1")
            e(f"L_h3s{i}:")
        e("s_mov_b64 exec, -1\ns_branch L_h3loop")
        e("L_h3ok:")
        self.mile("h3ok", 0)
        self.note(13, "s66")
        self.stamp(9)
        e("v_lshlrev_b32 v126, 16, v126")
        for r in range(4):
            e(f"v_add_f32 v{80+r}, v{80+r}, v{84+r}\nv_add_f32 v{88+r}, v{88+r}, v{92+r}")
        for r in range(4): e(f"v_add_f32 v{80+r}, v{80+r}, v{88+r}")
        self.xrow_transpose_reduce(80)
        self.Rnd("v80", "v80")
        e("v_fma_f32 v80, v126, 1.0, v80") if False else e("v_add_f32 v80, v126, v80")
        e("v_cvt_pk_bf16_f32 v81, v80, v80")
        e("ds_write_b16 v132, v81")
        e("v_and_b32 v82, 0xffff0000, v81")
        e("v_mul_f32 v83, v82, v82")
        e("v_add_f32_dpp v82, v82, v82 row_ror:8 row_mask:0xf bank_mask:0xf")
        e("v_add_f32_dpp v83, v83, v83 row_ror:8 row_mask:0xf bank_mask:0xf")
        e("s_waitcnt lgkmcnt(0)")
        e("ds_read_b128 v[84:87], v133\nds_read_b128 v[88:91], v133 offset:64")
        self.row_allreduce("v_add_f32", ["v82", "v83"], steps=(4, 2, 1))
        e("v_permlane16_swap_b32 v82, v83\nv_add_f32 v82, v82, v83\nv_mov_b32 v83, v82\nv_permlane32_swap_b32 v82, v83\nv_add_f32 v82, v82, v83")
        e("s_waitcnt lgkmcnt(0)")
        for s in range(2):
            for m in range(2):
                for tau in range(2):
                    fr = 32 + 16*m + 8*s + 4*tau; d = 96 + 8*m + 4*tau
                    e(f"v_mfma_f32_16x16x32_bf16 v[{d}:{d+3}], v[{fr}:{fr+3}], v[{84+4*s}:{87+4*s}], {'0' if s==0 else f'v[{d}:{d+3}]'}")
        e("s_mov_b64 exec, 0x10001")
        e("ds_write_b32 v139, v82")
        e("s_mov_b64 exec, s[52:53]")
        for k in range(4):
            e(f"ds_write_b128 v134, v[{96+4*k}:{99+4*k}] offset:{64*k}")
        e("s_mov_b64 exec, 0x01ff01ff")
        self.stamp(10)
        e("s_waitcnt vmcnt(0) lgkmcnt(0)\ns_barrier")
        e("ds_read_b32 v152, v140")
        e("s_mov_b64 exec, -1")
        e("ds_read_b128 v[84:87], v135\nds_read_b128 v[88:91], v135 offset:2048")
        e("ds_read_b128 v[100:103], v135 offset:256\nds_read_b128 v[104:107], v135 offset:2304")
        e("s_mov_b64 exec, 0xffff")
        e("ds_read_b128 v[144:147], v135 offset:4096\nds_read_b128 v[148:151], v135 offset:4352")
        e("s_mov_b64 exec, -1")
        for tau in range(4):
            e(f"v_xor_b32 v12, {32*tau}, v13")
            e(f"ds_read_b64_tr_b16 v[{64+4*tau}:{65+4*tau}], v12\nds_read_b64_tr_b16 v[{66+4*tau}:{67+4*tau}], v12 offset:512")
        e("s_waitcnt lgkmcnt(8)")
        def dpp(st): e(f"v_add_f32_dpp v152, v152, v152 row_ror:{st} row_mask:0xf bank_mask:0xf")
        dpp(8)
        e("v_add_f32 v84, v84, v88\nv_add_f32 v100, v100, v104")
        dpp(4)
        e("v_add_f32 v85, v85, v89\nv_add_f32 v101, v101, v105")
        dpp(2)
        e("v_add_f32 v86, v86, v90\nv_add_f32 v102, v102, v106")
        dpp(1)
        e("v_add_f32 v87, v87, v91\nv_add_f32 v103, v103, v107")
        e("v_readlane_b32 s64, v152, 0\nv_readlane_b32 s65, v152, 16")
        e("v_add_f32 v84, v84, v144\nv_add_f32 v100, v100, v148")
        e("v_mul_f32 v112, s64, v153\nv_mul_f32 v113, s65, v153")
        e("v_add_f32 v85, v85, v145\nv_add_f32 v101, v101, v149")
        e("v_fma_f32 v113, -v112, v112, v113")
        e("v_add_f32 v86, v86, v146\nv_add_f32 v102, v102, v150")
        e("v_max_f32 v113, 0, v113")
        e("v_add_f32 v87, v87, v147\nv_add_f32 v103, v103, v151")
        e("v_cvt_pk_bf16_f32 v113, v113, v113\nv_cvt_pk_bf16_f32 v112, v112, v112")
        e("v_permlane16_swap_b32 v84, v85")
        e("v_and_b32 v113, 0xffff0000, v113\nv_and_b32 v112, 0xffff0000, v112")
        e("v_permlane16_swap_b32 v86, v87")
        e("v_add_f32 v113, 0x3727c5ac, v113")
        e("v_permlane16_swap_b32 v100, v101")
        e("v_cvt_pk_bf16_f32 v113, v113, v113")
        e("v_permlane16_swap_b32 v102, v103")
        e("v_and_b32 v113, 0xffff0000, v113")
        e("v_add_f32 v84, v84, v85\nv_add_f32 v86, v86, v87")
        e("v_sqrt_f32 v113, v113")
        e("v_add_f32 v100, v100, v101\nv_add_f32 v102, v102, v103")
        e("v_cvt_pk_bf16_f32 v113, v113, v113")
        e("v_permlane32_swap_b32 v84, v86")
        e("v_and_b32 v113, 0xffff0000, v113")
        e("v_permlane32_swap_b32 v100, v102")
        e("v_rcp_f32 v114, v113")
        e("v_add_f32 v84, v84, v86\nv_add_f32 v100, v100, v102")
        e("v_fma_f32 v84, -v112, v100, v84")
        e("v_mul_f32 v85, v84, v114\nv_fma_f32 v86, -v85, v113, v84\nv_fma_f32 v85, v86, v114, v85")
        self.Rnd("v84", "v85")
        e("v_mov_b32_dpp v85, v84 row_ror:8 row_mask:0xf bank_mask:0xf")
        e("v_max_f32 v86, 0, v84\nv_mul_f32 v86, v86, v85\nv_cvt_pk_bf16_f32 v86, v86, v86")
        e("s_mov_b64 exec, s[54:55]")
        e("ds_write_b16 v136, v86")
        e("s_mov_b64 exec, -1")
        e("s_waitcnt lgkmcnt(0)")
        e("ds_read_b128 v[84:87], v137")
        e("s_waitcnt lgkmcnt(0)")
        for tau in range(4):
            e(f"v_mfma_f32_16x16x32_bf16 v[{96+4*tau}:{99+4*tau}], v[{64+4*tau}:{67+4*tau}], v[84:87], 0")
        for tau in range(1, 4):
            for r in range(4):
                e(f"v_mov_b32_dpp v{96+r}, v{96+4*tau+r} quad_perm:[0,1,2,3] row_mask:0xf bank_mask:{1<<tau:#x}")
        self.tagins(96)
        e("s_mov_b64 exec, s[70:71]")
        e("global_store_dwordx4 v138, v[96:99], s[26:27] sc1")
        e("s_mov_b64 exec, -1")
        self.mile("apub", 0)
        self.stamp(11)

def build(opt=None):
    opt = opt or {}
    g = G(opt)
    body = g.gen()
    name = NAME + "_kernel"
    txt = HEADER + "; Override launch geometry by editing the next line (default: block=256,\n; grid=ceil(out_elems/256), lds=0). Harness parses it; keep it on one line.\n"
    txt += f"; @launch grid=(256,1,1) block=(576,1,1) lds={LDS_BYTES}\n"
    txt += DOC
    txt += f""".amdgcn_target "amdgcn-amd-amdhsa--gfx950"
.text
.globl {name}
.p2align 8
.type {name},@function
{name}:
{body}.section .rodata,"a"
.p2align 6
.amdhsa_kernel {name}
  .amdhsa_next_free_vgpr 168
  .amdhsa_next_free_sgpr 96
  .amdhsa_accum_offset 168
  .amdhsa_group_segment_fixed_size 0
  .amdhsa_kernarg_size 96
  .amdhsa_user_sgpr_count 2
  .amdhsa_user_sgpr_kernarg_segment_ptr 1
  .amdhsa_system_sgpr_workgroup_id_x 1
.end_amdhsa_kernel
"""
    return txt, g
if __name__ == "__main__":
    import json
    opt = json.loads(sys.argv[2]) if len(sys.argv) > 2 else {}
    txt, g = build(opt)
    open(sys.argv[1], "w").write(txt)
    print("instrs", g.e.count, "nops", g.e.nops)
```
